```python
import torch

def _softmax(x, axis=-1):
    return torch.softmax(x, dim=axis)
def _gelu(x):
    return torch.nn.functional.gelu(x, approximate="tanh")
def _silu(x):
    return torch.nn.functional.silu(x)
def _sigmoid(x):
    return torch.sigmoid(x)
def _layernorm(x, axis=-1, eps=1e-5):
    m = x.mean(dim=axis, keepdim=True)
    v = x.var(dim=axis, keepdim=True, unbiased=False)
    return (x - m) / torch.sqrt(v + eps)
def _scatter_add(tgt, idx, src, axis=0):
    return tgt.clone().index_add_(axis, idx, src)
def _segment_sum(src, seg, n):
    out = torch.zeros((n,) + src.shape[1:], dtype=src.dtype)
    return out.index_add_(0, seg, src)
def _pad(x, pw):
    flat = tuple(v for pair in reversed(pw) for v in pair)
    return torch.nn.functional.pad(x, flat)

kernel_name = 'gated_mix__gqa_block_cached__compressed_kv_cla__decode'

def setup_inputs():

    _w = (lambda a: (lambda t: t.to(torch.bfloat16) if t.is_floating_point() else t)(torch.as_tensor(a)))
    def _A_setup():
        B, Sq, D = 2, 1, 576
        Hq, Hkv, Sk, Dh = 32, 16, 8192, 128
        assert Hq % Hkv == 0, (Hq, Hkv)
        return {
            "x": _w((lambda *s: torch.randn(*s, dtype=torch.bfloat16) * 0.05)(B, Sq, D)),
            "k_cache": _w((lambda *s: torch.randn(*s, dtype=torch.bfloat16) * 6.4)(B, Hkv, Sk, Dh)),
            "v_cache": _w((lambda *s: torch.randn(*s, dtype=torch.bfloat16) * 0.8)(B, Hkv, Sk, Dh)),
            "wq": _w((lambda *s: torch.randn(*s, dtype=torch.bfloat16) * 6.4)(D, Hq * Dh) * (D ** -0.5)),
            "wo": _w((lambda *s: torch.randn(*s, dtype=torch.bfloat16) * 0.8)(Hq * Dh, D) * ((Hq * Dh) ** -0.5)),
        }
    _A_in = _A_setup()

    def _B_setup():
        B, H, Sq, Sk, D, M = 2, 32, 1, 8192, 128, 576
        Dc = 4 * D
        return {
            "x": _w((lambda *s: torch.randn(*s, dtype=torch.bfloat16) * 0.05)(B, Sq, M)),
            "c_kv": _w((lambda *s: torch.randn(*s, dtype=torch.bfloat16) * 1.6)(B, Sk, Dc)),
            "w_q": _w((lambda *s: torch.randn(*s, dtype=torch.bfloat16) * 3.2)(M, H, D) * (M ** -0.5)),
            "w_uk": _w((lambda *s: torch.randn(*s, dtype=torch.bfloat16) * 3.2)(Dc, H, D) * (Dc ** -0.5)),
            "w_uv": _w((lambda *s: torch.randn(*s, dtype=torch.bfloat16) * 1.6)(Dc, H, D) * (Dc ** -0.5)),
            "w_o": _w((lambda *s: torch.randn(*s, dtype=torch.bfloat16) * 1.6)(H, D, M) * ((H * D) ** -0.5)),
        }
    _B_in = _B_setup()

    return {
        "A_x": _A_in["x"],
        "A_k_cache": _A_in["k_cache"],
        "A_v_cache": _A_in["v_cache"],
        "A_wq": _A_in["wq"],
        "A_wo": _A_in["wo"],
        "B_x": _B_in["x"],
        "B_c_kv": _B_in["c_kv"],
        "B_w_q": _B_in["w_q"],
        "B_w_uk": _B_in["w_uk"],
        "B_w_uv": _B_in["w_uv"],
        "B_w_o": _B_in["w_o"],
        "gate_w": _w((lambda *s: torch.randn(*s, dtype=torch.bfloat16) * 0.05)(576) * 16.0),
    }

def reference(A_x, A_k_cache, A_v_cache, A_wq, A_wo, B_x, B_c_kv, B_w_q, B_w_uk, B_w_uv, B_w_o, gate_w):
    def _A_ref(x, k_cache, v_cache, wq, wo):
        B, Sq, D = x.shape
        Hq, Dh = 32, 128
        Hkv = k_cache.shape[1]
        rep = Hq // Hkv
        q = (lambda x, *d: x.permute(*d))((x @ wq).reshape(B, Sq, Hq, Dh), 0, 2, 1, 3)
        k = (lambda x, n, axis: torch.repeat_interleave(x, n, dim=axis))(k_cache, rep, axis=1)
        v = (lambda x, n, axis: torch.repeat_interleave(x, n, dim=axis))(v_cache, rep, axis=1)
        scores = torch.einsum("bhqd,bhkd->bhqk", q, k) * (Dh ** -0.5)
        p = _softmax(scores, axis=-1)
        o = torch.einsum("bhqk,bhkd->bhqd", p, v)
        return (lambda x, *d: x.permute(*d))(o, 0, 2, 1, 3).reshape(B, Sq, Hq * Dh) @ wo

    def _B_ref(x, c_kv, w_q, w_uk, w_uv, w_o):
        B, Sq, M = x.shape[0], x.shape[1], x.shape[2]
        Sk = c_kv.shape[1]
        H, D = w_q.shape[1], w_q.shape[2]
        q = torch.einsum("bqm,mhd->bhqd", x, w_q)
        k = torch.einsum("bkc,chd->bhkd", c_kv, w_uk)
        v = torch.einsum("bkc,chd->bhkd", c_kv, w_uv)
        scores = torch.einsum("bhqd,bhkd->bhqk", q, k) * (D ** -0.5)
        off = Sk - Sq
        qi = torch.arange(Sq)[:, None]
        kj = torch.arange(Sk)[None, :]
        cmask = kj <= (qi + off)
        scores = torch.where(cmask[None, None], scores, -1e9)
        p = _softmax(scores, axis=-1)
        ctx = torch.einsum("bhqk,bhkd->bhqd", p, v)
        return torch.einsum("bhqd,hdm->bqm", ctx, w_o)

    x = A_x
    g = _sigmoid((x * gate_w).sum(-1, keepdims=True))
    a = _A_ref(x, A_k_cache, A_v_cache, A_wq, A_wo)
    b = _B_ref(x, B_c_kv, B_w_q, B_w_uk, B_w_uv, B_w_o)
    return g * a + (1 - g) * b
```

```python
import re

TRANS = ("v_exp_f32", "v_log_f32", "v_rcp_f32", "v_rsq_f32", "v_sqrt_f32", "v_sin_f32", "v_cos_f32")

def parse_reg(tok):
    tok = tok.strip()
    if tok.startswith("-"): tok = tok[1:]
    if tok.startswith("abs(") and tok.endswith(")"): tok = tok[4:-1]
    if tok.startswith("|") and tok.endswith("|"): tok = tok[1:-1]
    m = re.fullmatch(r"([vsa])(\d+)", tok)
    if m: return [(m.group(1), int(m.group(2)))]
    m = re.fullmatch(r"([vsa])\[(\d+):(\d+)\]", tok)
    if m: return [(m.group(1), i) for i in range(int(m.group(2)), int(m.group(3)) + 1)]
    if tok == "vcc": return [("s", "vcc")]
    if tok == "m0": return [("s", "m0")]
    if tok == "exec": return [("s", "exec")]
    return []

class Ins:
    def __init__(self, text):
        self.text = text
        t = text.split(";")[0].strip()
        parts = t.split(None, 1)
        self.op = parts[0]
        rest = parts[1] if len(parts) > 1 else ""
        ops = []; depth = 0; cur = ""
        for ch in rest:
            if ch == "[": depth += 1
            if ch == "]": depth -= 1
            if ch == "," and depth == 0: ops.append(cur.strip()); cur = ""
            else: cur += ch
        if cur.strip(): ops.append(cur.strip())
        self.mods = ""
        if ops:
            sp = ops[-1].split(None, 1)
            ops[-1] = sp[0]
            if len(sp) > 1: self.mods = sp[1]
        self.ops = ops
        op = self.op
        self.is_mfma = op.startswith("v_mfma")
        self.is_valu = op.startswith("v_") and not self.is_mfma
        self.is_salu = op.startswith("s_")
        self.is_ds = op.startswith("ds_")
        self.is_vmem = op.startswith(("buffer_", "global_"))
        self.is_dpp = op.endswith("_dpp") or "row_" in self.mods or "quad_perm" in self.mods
        self.is_perm = op.startswith("v_permlane")
        self.is_rl = op.startswith(("v_readfirstlane", "v_readlane"))
        self.is_trans = op.replace("_e32", "").replace("_e64", "") in TRANS
        self.is_dot = op.startswith("v_dot")
        self.lds_dma = self.is_vmem and re.search(r"\blds\b", self.mods + " " + (ops[-1] if ops else "")) is not None
        R = [parse_reg(o) for o in ops]
        self.R = R
        self.dst = []; self.src = []
        if self.is_mfma:
            self.dst = R[0]; self.srcA = R[1]; self.srcB = R[2]; self.srcC = R[3]; self.src = R[1] + R[2] + R[3]
            self.passes = 8 if "32x32" in op else 4
        elif self.is_valu:
            if self.is_perm:
                self.dst = R[0] + R[1]; self.src = R[0] + R[1]
            elif op.startswith(("v_add_co", "v_sub_co", "v_addc_co")):
                self.dst = R[0] + R[1]; self.src = sum(R[2:], [])
            else:
                self.dst = R[0]; self.src = sum(R[1:], [])
                if op.startswith(("v_dot2c", "v_fmac", "v_writelane")): self.src = self.src + R[0]
                if op.startswith("v_cndmask") and len(ops) == 3: self.src.append(("s", "vcc"))
        elif self.is_ds:
            if op.startswith(("ds_read", "ds_bpermute", "ds_swizzle", "ds_permute")):
                self.dst = R[0]; self.src = sum(R[1:], [])
            else: self.src = sum(R, [])
        elif self.is_vmem:
            if "load" in op and not self.lds_dma:
                self.dst = R[0]; self.src = sum(R[1:], [])
            else: self.src = sum(R, [])
            self.wide_store = ("store" in op) and (op.endswith("x4") or op.endswith("x3"))
            if self.wide_store:
                self.sdata = R[0] if op.startswith("buffer") else R[1]
        elif self.is_salu:
            if op.startswith(("s_cmp", "s_cbranch", "s_branch", "s_waitcnt", "s_nop", "s_barrier", "s_sleep", "s_endpgm", "s_setprio")):
                self.src = sum(R, [])
            else:
                self.dst = R[0] if R else []; self.src = sum(R[1:], [])
    def states(self):
        if self.op == "s_nop": return int(self.ops[0], 0) + 1
        return 1

def need(p, c):
    n = 0
    pd = set(p.dst); cs = set(c.src); cd = set(c.dst)
    pv = {r for r in pd if r[0] in "va"}; ps = {r for r in pd if r[0] == "s"}
    if p.is_valu:
        if pv & cs:
            if c.is_dpp or c.is_perm or c.is_mfma: n = max(n, 2)
            if c.is_rl: n = max(n, 1)
            if p.is_trans and (c.is_valu or c.is_mfma) and not c.is_trans: n = max(n, 1)
            if p.is_trans and c.is_trans: n = max(n, 1)
        if p.is_dot and (pv & (cs | cd)):
            if c.op == p.op and not (pv & set(sum(c.R[1:3], []))): pass
            else: n = max(n, 3)
        if ps & cs:
            if c.is_valu: n = max(n, 4 if c.is_rl else 2)
            if c.is_vmem: n = max(n, 5)
            if c.is_salu and not c.op.startswith("s_cbranch"): n = max(n, 2)
    if p.is_mfma:
        big = 12 if p.passes == 8 else 8
        if c.is_mfma:
            if pd & (set(c.srcA) | set(c.srcB)): n = max(n, big)
            if pd & set(c.srcC):
                if not (c.srcC == p.dst and c.passes == p.passes): n = max(n, big - 2)
        else:
            if pd & (cs | cd): n = max(n, big)
            if c.is_valu and (set(p.srcC) & cd): n = max(n, 7 if p.passes == 8 else 3)
    if p.is_vmem and getattr(p, "wide_store", False):
        if set(p.sdata) & cd: n = max(n, 2)
    if p.is_salu and ("s", "m0") in pd and c.lds_dma: n = max(n, 1)
    return n

class Asm:
    def __init__(self):
        self.lines = []
        self.hist = []
        self.vm = []
        self.lg = []
        self.nlabel = 0
    def raw(self, s): self.lines.append(s)
    def label(self, name):
        self.lines.append(name + ":")
    def newlabel(self, base):
        self.nlabel += 1; return f"{base}_{self.nlabel}"
    def __call__(self, text, tag=None):
        for t in text.split("\n"):
            t = t.strip()
            if not t: continue
            if t.endswith(":"): self.label(t[:-1]); continue
            self._emit(t, tag)
    def _emit(self, t, tag):
        ins = Ins(t)
        dist = 0; pad = 0
        for p in reversed(self.hist):
            pad = max(pad, need(p, ins) - dist)
            dist += p.states()
            if dist >= 20: break
        while pad > 0:
            k = min(pad, 16)
            nop = Ins(f"s_nop {k-1}"); self.lines.append("    " + nop.text); self.hist.append(nop); pad -= k
        self.lines.append("    " + t); self.hist.append(ins)
        if len(self.hist) > 40: self.hist = self.hist[-30:]
        if ins.is_vmem and ins.op not in ("buffer_inv", "buffer_wbl2"): self.vm.append(tag)
        if ins.is_ds: self.lg.append(tag)
    def wait_vm(self, tag=None):
        if tag is None: n = 0; self.vm = []
        else:
            idx = [i for i, t in enumerate(self.vm) if t == tag]
            if not idx: return
            n = len(self.vm) - 1 - idx[-1]; self.vm = self.vm[idx[-1] + 1:]
        assert n <= 63, n
        self(f"s_waitcnt vmcnt({n})")
    def wait_vm_n(self, n):
        if len(self.vm) > n:
            self.vm = self.vm[len(self.vm) - n:] if n else []
            self(f"s_waitcnt vmcnt({n})")
    def wait_lg(self, tag=None):
        if tag is None: n = 0; self.lg = []
        else:
            idx = [i for i, t in enumerate(self.lg) if t == tag]
            if not idx: return
            n = len(self.lg) - 1 - idx[-1]; self.lg = self.lg[idx[-1] + 1:]
        assert n <= 15, n
        self(f"s_waitcnt lgkmcnt({n})")
    def text(self): return "\n".join(self.lines) + "\n"
```

```python
import sys, json
sys.path.insert(0, "dev")
from asmlib import Asm
KN = "gated_mix__gqa_block_cached__compressed_kv_cla__decode_kernel"

EPOCH = 0
Q     = 0x1000
QABS  = 0x11000
FQ    = 0x21000
FB    = 0x23000
PBS   = 0x25000
FE    = 0x27000
REC   = 0x30000
PO    = 0x150000
PB    = 0x200000
STAMP = 0x800000
WS_USED = 0x1000000
LOG2E = 0x3fb8aa3b
SCALE = 0x3db504f3
SCL2E = 0x3e0293ee
NEGINF = 0xff800000

DEF = dict(staged=False, mimicA=True, mimicB=True, W=7, R=40, IQ=26, ICHK=36, burst=1, early=44,
           stamps=False, spin=40000, sleep_long=8, rotb=4, deferW=True)

class G:
    def __init__(self, **kw):
        self.c = dict(DEF); self.c.update(kw)
        self.a = Asm()
        self.nstamp = 0
    def prologue(self, name):
        a = self.a
        a.raw(f".globl {name}\n.p2align 8\n.type {name},@function\n{name}:")
        a.hist = []; a.vm = []; a.lg = []
        self.end = a.newlabel("L_end")
        a(f"s_cmp_ge_u32 s2, 512\ns_cbranch_scc1 {self.end}")
        if self.c['stamps']: a("s_memrealtime s[80:81]")
        a("""s_load_dwordx16 s[4:19], s[0:1], 0
        s_load_dwordx8 s[20:27], s[0:1], 64
        s_load_dwordx4 s[28:31], s[0:1], 96
        s_load_dwordx2 s[32:33], s[0:1], 112
        v_lshrrev_b32 v1, 6, v0
        v_and_b32 v0, 63, v0
        v_readfirstlane_b32 s3, v1
        s_waitcnt lgkmcnt(0)
        s_load_dword s34, s[32:33], 0""")
        a(f"s_mov_b32 s36, s32\ns_and_b32 s37, s33, 0xffff\ns_mov_b32 s38, {WS_USED}\ns_mov_b32 s39, 0x20000")
    def get_tag(self):
        a = self.a
        a("s_waitcnt lgkmcnt(0)\ns_mul_i32 s35, s34, 1664525\ns_add_u32 s35, s35, 1013904223")
        a.lg = []
    def srd(self, d, lo, hi, size):
        self.a(f"s_mov_b32 s{d}, {lo}\ns_and_b32 s{d+1}, {hi}, 0xffff\ns_mov_b32 s{d+2}, {size}\ns_mov_b32 s{d+3}, 0x20000")
    def stamp(self, k):
        if not self.c['stamps']: return
        a = self.a
        if k > 0:
            a(f"s_memrealtime s[{80+2*k}:{81+2*k}]")
    def stamp_flush(self):
        if not self.c['stamps']: return
        a = self.a; L = a.newlabel("L_nost")
        a(f"s_cmp_lg_u32 s3, 0\ns_cbranch_scc1 {L}\ns_waitcnt lgkmcnt(0)")
        a.lg = []
        for k in range(8): a(f"v_mov_b32 v{2+k}, s{80+2*k}")
        a(f"s_lshl_b32 s52, s2, 5\ns_add_u32 s52, s52, {STAMP}\nv_mov_b32 v1, 0\ns_mov_b64 exec, 1")
        a("buffer_store_dwordx4 v[2:5], v1, s[36:39], s52 offen\nbuffer_store_dwordx4 v[6:9], v1, s[36:39], s52 offen offset:16")
        a(f"s_mov_b64 exec, -1\n{L}:")
    def sels(self, A=2, B=6, t=48):
        a = self.a
        a(f"""v_and_b32 v{t}, 1, v0
        v_mov_b32 v{t+1}, 0x0c0c0100
        v_mov_b32 v{t+2}, 0x01000c0c
        v_mov_b32 v{t+3}, 0x0c0c0302
        v_mov_b32 v{t+4}, 0x03020c0c
        v_mov_b32 v{t+5}, 0x0c0c0c0c
        v_cmp_eq_u32 vcc, 1, v{t}
        v_bfe_u32 v{t+6}, v0, 1, 2
        v_cndmask_b32 v{t+1}, v{t+1}, v{t+2}, vcc
        v_cndmask_b32 v{t+3}, v{t+3}, v{t+4}, vcc""")
        for k in range(4):
            a(f"v_cmp_eq_u32 vcc, {k}, v{t+6}\nv_cndmask_b32 v{A+k}, v{t+5}, v{t+1}, vcc\nv_cndmask_b32 v{B+k}, v{t+5}, v{t+3}, vcc")
    def timeout(self, code):
        a = self.a
        a(f"v_mov_b32 v62, {code}\nv_mov_b32 v63, 0\nglobal_store_dword v63, v62, s[30:31]")
    def poll_flags(self, voff, code, sleep):
        a = self.a; Ls = a.newlabel("L_pskip"); Lp = a.newlabel("L_poll"); Ld = a.newlabel("L_pdone")
        a(f"s_cmp_lg_u32 s3, 0\ns_cbranch_scc1 {Ls}\ns_mov_b32 s53, {self.c['spin']}\n{Lp}:")
        a(f"buffer_load_dword v61, v{voff}, s[36:39], 0 offen sc1\ns_waitcnt vmcnt(0)")
        a(f"v_cmp_ne_u32 vcc, s35, v61\ns_cbranch_vccz {Ld}\ns_sleep {sleep}\ns_sub_u32 s53, s53, 1\ns_cbranch_scc0 {Lp}")
        self.timeout(code)
        a(f"{Ld}:\n{Ls}:\ns_barrier")
        a.vm = a.vm[:]
        while a.vm and a.vm[-1] is None: a.vm.pop()
    def tagcheck(self, tags, t):
        a = self.a
        a(f"v_xor_b32 v{t}, s35, v{tags[0]}")
        for r in tags[1:]: a(f"v_bitop3_b32 v{t}, v{t}, v{r}, s35 bitop3:0xf6")
        a(f"v_cmp_ne_u32 vcc, 0, v{t}")
    def poll_granules(self, issue, tags, t, code, first_issued=False, sleep=0):
        a = self.a; Lp = a.newlabel("L_gpoll"); Ld = a.newlabel("L_gdone"); Lc = a.newlabel("L_gchk")
        a(f"s_mov_b32 s53, {self.c['spin']}")
        if first_issued:
            a.wait_vm('pg'); a(f"s_branch {Lc}")
        save = a.vm[:]
        a(f"{Lp}:")
        issue(); a("s_waitcnt vmcnt(0)")
        a(f"{Lc}:")
        a.hist = []
        self.tagcheck(tags, t)
        a(f"s_cbranch_vccz {Ld}")
        if sleep: a(f"s_sleep {sleep}")
        a(f"s_sub_u32 s53, s53, 1\ns_cbranch_scc0 {Lp}")
        self.timeout(code)
        a(f"s_waitcnt vmcnt(0)\n{Ld}:")
        a.vm = save if first_issued else []
    def qk_group(self, K, q, T, U):
        a = self.a
        for kk in range(4):
            for t in range(4):
                for h in range(2):
                    src2 = "0" if kk == 0 else f"v{T+2*t+h}"
                    a(f"v_dot2_f32_bf16 v{T+2*t+h}, v{K[t]+kk}, v{q+8*h+2*kk}, {src2}")
        for t in range(4): a(f"v_add_f32_dpp v{U[t]}, v{T+2*t}, v{T+2*t} row_ror:8 row_mask:0xf bank_mask:0x3")
        for t in range(4): a(f"v_add_f32_dpp v{U[t]}, v{T+2*t+1}, v{T+2*t+1} row_ror:8 row_mask:0xf bank_mask:0xc")
        for m in ("row_half_mirror", "quad_perm:[1,0,3,2]", "quad_perm:[2,3,0,1]"):
            for t in range(4): a(f"v_add_f32_dpp v{U[t]}, v{U[t]}, v{U[t]} {m} row_mask:0xf bank_mask:0xf")
    def bop(self, dst, src, sel):
        for k in range(4): self.a(f"v_perm_b32 v{dst+k}, v{src}, v{src}, v{sel+k}")
    def red8(self, regs, op):
        for m in ("row_half_mirror", "quad_perm:[1,0,3,2]", "quad_perm:[2,3,0,1]"):
            for r in regs: self.a(f"{op}_dpp v{r}, v{r}, v{r} {m} row_mask:0xf bank_mask:0xf")
    def redrows(self, r, t, op):
        a = self.a
        a(f"v_mov_b32 v{t}, v{r}\nv_permlane16_swap_b32 v{r}, v{t}\n{op} v{r}, v{r}, v{t}")
        a(f"v_mov_b32 v{t}, v{r}\nv_permlane32_swap_b32 v{r}, v{t}\n{op} v{r}, v{r}, v{t}")
    def round_scaled(self, r, t):
        a = self.a
        a(f"v_cvt_pk_bf16_f32 v{t}, v{r}, v{r}\nv_and_b32 v{t}, 0xffff0000, v{t}\nv_mul_f32 v{t}, {SCALE}, v{t}")
        a(f"v_cvt_pk_bf16_f32 v{t}, v{t}, v{t}\nv_and_b32 v{r}, 0xffff0000, v{t}")
    def acc_addr(self, dst, t):
        a = self.a
        a(f"""v_and_b32 v{dst}, 7, v0
        v_lshlrev_b32 v{dst}, 4, v{dst}
        v_bfe_u32 v{t}, v0, 3, 2
        v_lshl_add_u32 v{dst}, v{t}, 2, v{dst}
        v_lshrrev_b32 v{t}, 5, v0
        v_lshl_add_u32 v{dst}, v{t}, 8, v{dst}
        s_and_b32 s52, s3, 1
        s_lshl_b32 s52, s52, 9
        s_lshr_b32 s54, s3, 1
        s_lshl_b32 s54, s54, 7
        s_add_u32 s52, s52, s54
        v_add_u32 v{dst}, s52, v{dst}""")

    def role_A(self):
        a = self.a; c = self.c
        W, R = c['W'], c['R']; mim = c['mimicA']
        SREG = 64; RING = 96 if mim else 128
        assert RING + 4 * R <= 256
        a("""s_sub_u32 s52, s2, 256
        s_lshr_b32 s49, s52, 3
        s_and_b32 s50, s52, 7
        s_lshl_b32 s52, s49, 21
        s_add_u32 s54, s6, s52
        s_addc_u32 s55, s7, 0
        s_add_u32 s56, s8, s52
        s_addc_u32 s57, s9, 0""")
        self.srd(40, "s54", "s55", 0x200000); self.srd(44, "s56", "s57", 0x200000)
        a("""s_lshl_b32 s48, s50, 2
        s_add_u32 s48, s48, s3
        s_lshl_b32 s48, s48, 12
        s_lshl_b32 s52, s49, 16
        s_add_u32 s48, s48, s52
        v_lshlrev_b32 v1, 4, v0""")
        def ring(j): return RING + 4 * (j % R)
        def issue(j):
            n = (j % 64) // 4
            if j % 4 == 0: a(f"s_add_u32 s51, s48, {n*131072}\ns_and_b32 s51, s51, 0x1fffff")
            srd = "s[40:43]" if j < 64 else "s[44:47]"
            a(f"buffer_load_dwordx4 v[{ring(j)}:{ring(j)+3}], v1, {srd}, s51 offen offset:{(j%4)*1024} nt", tag=('kv', j))
        def qissue():
            for h in range(2):
                for k in range(2):
                    a(f"buffer_load_dwordx4 v[{10+8*h+4*k}:{13+8*h+4*k}], v29, s[36:39], 0 offen offset:{512*h+16*k} sc1", tag='pg')
        I = 0
        while I < W: issue(I); I += 1
        self.sels()
        a(f"s_lshl_b32 s52, s49, 10\ns_add_u32 s52, s52, {Q}\nv_and_b32 v29, 15, v0\nv_lshlrev_b32 v29, 5, v29\nv_add_u32 v29, s52, v29")
        a(f"v_mov_b32 v26, {NEGINF}\nv_mov_b32 v27, 0\nv_mov_b32 v32, 0\nv_mov_b32 v33, 0\nv_mov_b32 v34, 0\nv_mov_b32 v35, 0")
        self.acc_addr(30, 48)
        self.get_tag()
        while I < c['ICHK']:
            if I == c['IQ']: qissue()
            a.wait_vm_n(W - 1 + (4 if c['IQ'] <= I < c['IQ'] + W else 0)); issue(I); I += 1
        self.stamp(1)
        self.poll_granules(qissue, [11, 13, 15, 17, 19, 21, 23, 25], 48, 1, first_issued=True)
        self.stamp(2)
        C = 0
        def landed(j): return ('kv', j) not in a.vm
        def consumeK(n):
            K = [ring(4 * n + t) for t in range(4)]
            if mim:
                U = [44, 45, 46, 47]
                self.qk_group(K, 10, 36, U)
                a("v_cvt_pk_bf16_f32 v48, v44, v45\nv_cvt_pk_bf16_f32 v50, v46, v47\nv_max3_f32 v26, v26, v44, v45")
                a("v_and_b32 v49, 0xffff0000, v48\nv_lshlrev_b32 v48, 16, v48\nv_and_b32 v51, 0xffff0000, v50\nv_lshlrev_b32 v50, 16, v50")
                a("v_max3_f32 v26, v26, v46, v47")
                for r in (48, 49, 50, 51): a(f"v_mul_f32 v{r}, {SCALE}, v{r}")
                a(f"v_cvt_pk_bf16_f32 v{SREG+2*n}, v48, v49\nv_cvt_pk_bf16_f32 v{SREG+2*n+1}, v50, v51")
            else:
                U = [SREG + 4 * n + t for t in range(4)]
                self.qk_group(K, 10, 36, U)
                a(f"v_max3_f32 v26, v26, v{U[0]}, v{U[1]}\nv_max3_f32 v26, v26, v{U[2]}, v{U[3]}")
        def finishK():
            self.redrows(26, 48, "v_max_f32")
            if mim:
                self.round_scaled(26, 48)
                a(f"v_mul_f32 v26, {LOG2E}, v26\ns_mov_b32 s58, {LOG2E}")
            else:
                a(f"v_mul_f32 v26, {SCL2E}, v26\ns_mov_b32 s58, {SCL2E}")
            self.stamp(3)
        def prepV(n):
            if mim:
                a(f"v_lshlrev_b32 v60, 16, v{SREG+n}\nv_and_b32 v61, 0xffff0000, v{SREG+n}")
                a("v_fma_f32 v60, v60, s58, -v26\nv_fma_f32 v61, v61, s58, -v26")
            else:
                a(f"v_fma_f32 v60, v{SREG+2*n}, s58, -v26\nv_fma_f32 v61, v{SREG+2*n+1}, s58, -v26")
            a("v_exp_f32 v60, v60\nv_exp_f32 v61, v61\nv_add_f32 v27, v27, v60\nv_cvt_pk_bf16_f32 v62, v60, v61\nv_add_f32 v27, v27, v61")
            self.bop(52, 62, 2); self.bop(56, 62, 6)
        def consumeV(n):
            prepV(n)
            for k in range(2):
                j = 64 + 2 * n + k
                a.wait_vm(('kv', j))
                a(f"v_mfma_f32_16x16x32_bf16 v[32:35], v[{ring(j)}:{ring(j)+3}], v[{52+4*k}:{55+4*k}], v[32:35]")
        def unit_last(C): return C + 3 if C < 64 else C + 1
        def consume():
            nonlocal C
            if C < 64:
                a.wait_vm(('kv', C + 3)); consumeK(C // 4); C += 4
                if C == 64: finishK()
            else:
                if C == 64 + c['early']:
                    Ls = a.newlabel("L_noearly")
                    a(f"s_cmp_lg_u32 s3, 0\ns_cbranch_scc1 {Ls}")
                    a(f"s_sub_u32 s52, s2, 256\ns_lshl_b32 s52, s52, 7\ns_add_u32 s52, s52, {FE}\nv_mov_b32 v48, s35\nv_mov_b32 v49, 0\ns_mov_b64 exec, 1")
                    a("buffer_store_dword v48, v49, s[36:39], s52 offen sc1")
                    a.vm.pop()
                    a(f"s_mov_b64 exec, -1\n{Ls}:")
                    self.extra = True
                consumeV((C - 64) // 2); C += 2
        while C < 128:
            if I < 128 and I - R < C:
                a.wait_vm_n(W - 1); issue(I); I += 1
                k = 0
                while C < 128 and k < c['burst'] and landed(unit_last(C)) and unit_last(C) < I: consume(); k += 1
            else:
                consume()
        self.stamp(4)
        self.redrows(27, 48, "v_add_f32")
        a("v_lshlrev_b32 v48, 4, v0\ns_lshl_b32 s52, s3, 10\nv_add_u32 v48, s52, v48")
        a("v_bfe_u32 v49, v0, 3, 1\nv_lshlrev_b32 v49, 5, v49\ns_lshl_b32 s52, s3, 3\ns_add_u32 s52, s52, 4096\nv_add_u32 v49, s52, v49")
        a("ds_write_b64 v49, v[26:27]\nds_write_b128 v48, v[32:35]")
        a(f"""s_lshr_b32 s52, s3, 1
        s_lshl_b32 s54, s49, 1
        s_add_u32 s52, s52, s54
        s_lshl_b32 s52, s52, 3
        s_add_u32 s52, s52, s50
        s_mul_i32 s52, s52, 1152
        s_add_u32 s52, s52, {REC}
        s_and_b32 s54, s3, 1
        s_lshl_b32 s55, s54, 9
        v_lshlrev_b32 v50, 3, v0
        v_add_u32 v50, s55, v50
        s_lshr_b32 s55, s3, 1
        s_lshl_b32 s55, s55, 5
        s_add_u32 s55, s55, 4096
        v_mov_b32 v51, s55""")
        a.wait_lg(); a("s_barrier")
        a("ds_read_b128 v[36:39], v51\nds_read_b128 v[40:43], v51 offset:16")
        for w in range(4): a(f"ds_read_b32 v{44+w}, v30 offset:{1024*w}")
        a.wait_lg()
        a("v_max3_f32 v52, v36, v38, v40\nv_max_f32 v52, v52, v42")
        for w in range(4): a(f"v_sub_f32 v{36+2*w}, v{36+2*w}, v52")
        for w in range(4): a(f"v_exp_f32 v{36+2*w}, v{36+2*w}")
        a("v_mul_f32 v53, v36, v37\nv_mul_f32 v54, v36, v44")
        for w in range(1, 4): a(f"v_fmac_f32 v53, v{36+2*w}, v{37+2*w}\nv_fmac_f32 v54, v{36+2*w}, v{44+w}")
        a("v_rcp_f32 v55, v53\nv_log_f32 v56, v53\nv_mov_b32 v59, s35\nv_mov_b32 v57, s35\nv_mul_f32 v58, v54, v55\nv_add_f32 v56, v56, v52")
        a("buffer_store_dwordx2 v[58:59], v50, s[36:39], s52 offen sc1")
        Ls = a.newlabel("L_nostat")
        a(f"s_cmp_lg_u32 s54, 0\ns_cbranch_scc1 {Ls}\ns_mov_b64 exec, 1")
        a("buffer_store_dwordx2 v[56:57], v50, s[36:39], s52 offen offset:1024 sc1")
        a(f"s_mov_b64 exec, -1\n{Ls}:")
        self.stamp(5)

    def s1(self):
        a = self.a
        a("s_cmp_ge_u32 s2, 64\ns_cselect_b32 s54, s18, s10\ns_cselect_b32 s55, s19, s11")
        self.srd(40, "s54", "s55", 576 * 8192)
        self.srd(44, "s4", "s5", 2304)
        a("""v_lshrrev_b32 v48, 4, v0
        v_mul_u32_u24 v49, 36, v48
        v_bfe_u32 v50, v0, 3, 1
        v_add_u32 v51, v49, v50
        s_mul_i32 s52, s3, 144
        v_add_u32 v51, s52, v51
        v_lshlrev_b32 v28, 13, v51
        v_and_b32 v51, 7, v0
        v_lshl_add_u32 v28, v51, 4, v28
        s_and_b32 s54, s2, 63
        s_lshl_b32 s54, s54, 7
        v_add_u32 v28, s54, v28""")
        for t in range(18):
            a(f"s_mov_b32 s51, {t*16384}\nbuffer_load_dwordx4 v[{64+4*t}:{67+4*t}], v28, s[40:43], s51 offen nt", tag=('w', t))
            if t == 1:
                a("v_mul_u32_u24 v29, 1152, v50\nv_lshl_add_u32 v29, v49, 1, v29\ns_lshl_b32 s52, s52, 1\nv_add_u32 v29, s52, v29")
                for k in range(4): a(f"buffer_load_dwordx4 v[{10+4*k}:{13+4*k}], v29, s[44:47], 0 offen offset:{16*k}", tag='x')
                a("buffer_load_dwordx2 v[26:27], v29, s[44:47], 0 offen offset:64", tag='x')
        self.sels()
        for r in range(32, 40): a(f"v_mov_b32 v{r}, 0")
        self.get_tag()
        a.wait_vm('x')
        for t in range(18):
            self.bop(40, 10 + t, 2); self.bop(44, 10 + t, 6)
            a.wait_vm(('w', t))
            a(f"v_mfma_f32_16x16x32_bf16 v[32:35], v[{64+4*t}:{67+4*t}], v[40:43], v[32:35]")
            a(f"v_mfma_f32_16x16x32_bf16 v[36:39], v[{64+4*t}:{67+4*t}], v[44:47], v[36:39]")
        a("v_cmp_lt_u32 vcc, 31, v0\nv_lshlrev_b32 v48, 4, v0\ns_lshl_b32 s52, s3, 10\nv_add_u32 v48, s52, v48")
        for r in range(4): a(f"v_cndmask_b32 v{32+r}, v{32+r}, v{36+r}, vcc")
        a("ds_write_b128 v48, v[32:35]")
        a.wait_lg(); a("s_barrier")
        Ls = a.newlabel("L_s1skip")
        a(f"s_cmp_lg_u32 s3, 0\ns_cbranch_scc1 {Ls}")
        a("""v_bfe_u32 v48, v0, 4, 1
        v_lshlrev_b32 v48, 8, v48
        v_lshrrev_b32 v49, 5, v0
        v_lshl_add_u32 v48, v49, 7, v48
        v_and_b32 v50, 3, v0
        v_lshl_add_u32 v48, v50, 5, v48
        v_bfe_u32 v50, v0, 2, 2
        v_lshl_add_u32 v48, v50, 2, v48""")
        for s in range(8):
            a(f"ds_read_b32 v{10+2*s}, v48 offset:{512*s}\nds_read_b32 v{11+2*s}, v48 offset:{512*s+16}")
            if s == 5: a.wait_lg()
        a(f"""s_lshr_b32 s52, s2, 6
        s_lshl_b32 s52, s52, 15
        s_and_b32 s54, s2, 63
        s_lshl_b32 s54, s54, 8
        s_add_u32 s52, s52, s54
        s_add_u32 s52, s52, {Q}
        v_and_b32 v50, 31, v0
        v_lshlrev_b32 v50, 3, v50
        v_lshl_add_u32 v50, v49, 14, v50
        v_mov_b32 v53, s35""")
        a.wait_lg()
        for s in range(1, 8): a(f"v_add_f32 v10, v10, v{10+2*s}\nv_add_f32 v11, v11, v{11+2*s}")
        a("v_cvt_pk_bf16_f32 v52, v10, v11\nbuffer_store_dwordx2 v[52:53], v50, s[36:39], s52 offen sc1")
        a.vm.pop()
        a(f"{Ls}:")
        self.stamp(1)

    def s2(self):
        a = self.a
        self.srd(40, "s20", "s21", 512 * 8192)
        a("""s_sub_u32 s48, s2, 128
        s_lshr_b32 s49, s48, 4
        s_and_b32 s50, s48, 15
        s_lshl_b32 s52, s50, 1
        s_lshr_b32 s54, s3, 1
        s_add_u32 s52, s52, s54
        s_lshl_b32 s52, s52, 17
        s_lshl_b32 s54, s49, 1
        s_and_b32 s55, s3, 1
        s_add_u32 s54, s54, s55
        s_lshl_b32 s55, s54, 10
        s_add_u32 s52, s52, s55
        v_lshlrev_b32 v28, 4, v0
        v_add_u32 v28, s52, v28""")
        for t in range(16):
            a(f"s_mov_b32 s51, {t*8192}\nbuffer_load_dwordx4 v[{64+4*t}:{67+4*t}], v28, s[40:43], s51 offen nt", tag=('w', t))
        a(f"""s_lshl_b32 s54, s54, 11
        s_add_u32 s54, s54, {Q + 32768}
        v_lshrrev_b32 v48, 4, v0
        v_lshlrev_b32 v29, 9, v48
        v_and_b32 v49, 15, v0
        v_lshl_add_u32 v29, v49, 5, v29
        v_add_u32 v29, s54, v29
        s_mov_b32 s56, 16384""")
        a("""v_bfe_u32 v50, v0, 3, 1
        v_lshlrev_b32 v30, 9, v50
        v_and_b32 v50, 7, v0
        v_lshl_add_u32 v30, v50, 7, v30
        v_lshl_add_u32 v30, v48, 4, v30
        s_lshr_b32 s52, s3, 1
        s_lshl_b32 s52, s52, 8
        s_and_b32 s55, s3, 1
        s_lshl_b32 s55, s55, 6
        s_add_u32 s52, s52, s55
        v_add_u32 v30, s52, v30
        v_lshlrev_b32 v51, 4, v0
        v_add_u32 v51, 2048, v51
        v_cmp_lt_u32 vcc, 1, v50
        v_cndmask_b32 v30, v30, v51, vcc""")
        self.get_tag()
        def qissue():
            for b in range(2):
                for k in range(2):
                    so = "s56" if b else "0"
                    a(f"buffer_load_dwordx4 v[{10+8*b+4*k}:{13+8*b+4*k}], v29, s[36:39], {so} offen offset:{16*k} sc1", tag='pg')
        self.poll_granules(qissue, [11, 13, 15, 17, 19, 21, 23, 25], 48, 2, sleep=2)
        self.stamp(1)
        for n in range(4):
            self.qk_group([64 + 16 * n + 4 * t for t in range(4)], 10, 36, [128 + 4 * n + t for t in range(4)])
        for k in range(8): a(f"v_cvt_pk_bf16_f32 v{144+k}, v{128+2*k}, v{129+2*k}")
        a("v_and_b32 v50, 7, v0\nv_cmp_eq_u32 vcc, 1, v50")
        for k in range(4): a(f"v_cndmask_b32 v{144+k}, v{144+k}, v{148+k}, vcc")
        a("ds_write_b128 v30, v[144:147]")
        a.wait_lg(); a("s_barrier")
        Ls = a.newlabel("L_s2skip")
        a(f"s_cmp_lg_u32 s3, 0\ns_cbranch_scc1 {Ls}")
        a("v_lshlrev_b32 v48, 4, v0\nds_read_b128 v[52:55], v48")
        a(f"""v_lshrrev_b32 v49, 5, v0
        v_lshlrev_b32 v49, 15, v49
        v_bfe_u32 v50, v0, 3, 2
        v_lshl_add_u32 v49, v50, 10, v49
        v_and_b32 v50, 7, v0
        v_lshl_add_u32 v49, v50, 4, v49
        s_lshr_b32 s52, s49, 1
        s_lshl_b32 s52, s52, 14
        s_and_b32 s54, s50, 3
        s_lshl_b32 s54, s54, 12
        s_add_u32 s52, s52, s54
        s_lshr_b32 s54, s50, 2
        s_lshl_b32 s54, s54, 8
        s_add_u32 s52, s52, s54
        s_and_b32 s54, s49, 1
        s_lshl_b32 s54, s54, 7
        s_add_u32 s52, s52, s54
        s_add_u32 s52, s52, {QABS}
        s_lshl_b32 s54, s48, 7
        s_add_u32 s54, s54, {FQ}
        v_mov_b32 v50, s35
        v_mov_b32 v51, 0""")
        a.wait_lg()
        a("buffer_store_dwordx4 v[52:55], v49, s[36:39], s52 offen sc1\ns_waitcnt vmcnt(0)\ns_mov_b64 exec, 1")
        a("buffer_store_dword v50, v51, s[36:39], s54 offen sc1\ns_mov_b64 exec, -1")
        a(f"{Ls}:")
        a.vm = []
        self.stamp(2)

    def role_B(self):
        a = self.a; c = self.c; mim = c['mimicB']
        PL = 65536; ML = PL + 2560; LL = ML + 256
        QR = 64; ACC = 128; SA = 192; TA = 208; DV = 216; STG = 220
        a("""s_sub_u32 s48, s2, 192
        s_lshr_b32 s49, s48, 5
        s_and_b32 s50, s48, 31
        s_lshl_b32 s52, s49, 23
        s_add_u32 s54, s16, s52
        s_addc_u32 s55, s17, 0""")
        self.srd(40, "s54", "s55", 0x800000)
        a("v_lshrrev_b32 v48, 4, v0\nv_and_b32 v49, 15, v0\ns_lshl_b32 s52, s3, 8\nv_lshlrev_b32 v50, 10, v48\nv_add_u32 v50, s52, v50")
        for q in range(4):
            a(f"v_add_u32 v51, {4*q}, v48\nv_xor_b32 v51, v51, v49\nv_lshl_add_u32 v{DV+q}, v51, 4, v50")
        a(f"s_lshl_b32 s60, s3, 13\ns_mul_i32 s62, s49, {c['rotb']}\ns_lshl_b32 s62, s62, 20\ns_lshl_b32 s52, s50, 15\ns_add_u32 s62, s62, s52")
        def dma(buf):
            a("s_and_b32 s62, s62, 0x7fffff")
            for q in range(8):
                a(f"s_add_u32 m0, s60, {buf*32768 + q*1024}\ns_add_u32 s51, s62, {q*4096}")
                a(f"buffer_load_dwordx4 v{DV + (q & 3)}, s[40:43], s51 offen nt lds", tag=('d', buf))
            a("s_add_u32 s62, s62, 0x100000")
        dma(0); dma(1)
        a("""v_and_b32 v50, 3, v0
        v_lshlrev_b32 v50, 2, v50
        v_bfe_u32 v51, v0, 2, 2
        v_add_u32 v50, v50, v51
        v_mul_u32_u24 v50, 272, v50
        v_lshl_add_u32 v50, v48, 13, v50
        s_and_b32 s52, s3, 1
        s_lshl_b32 s52, s52, 12
        v_add_u32 v50, s52, v50""")
        for ks in range(16): a(f"v_xor_b32 v{SA+ks}, {16*ks}, v50")
        a("""v_bfe_u32 v50, v0, 2, 2
        v_lshlrev_b32 v50, 2, v50
        v_lshrrev_b32 v51, 5, v0
        v_lshl_add_u32 v50, v51, 1, v50
        v_bfe_u32 v51, v0, 4, 1
        v_lshlrev_b32 v51, 1, v51
        v_bfe_u32 v52, v0, 1, 1
        v_add_u32 v51, v51, v52
        v_and_b32 v52, 1, v0
        v_lshlrev_b32 v52, 3, v52
        v_add_u32 v52, s60, v52""")
        for hi in range(2):
            a(f"v_add_u32 v53, {hi}, v50\nv_xor_b32 v54, v53, v51\nv_lshl_add_u32 v54, v54, 4, v52\nv_lshl_add_u32 v54, v53, 8, v54")
            for cb in range(4): a(f"v_xor_b32 v{TA + 2*cb + hi}, {64*cb}, v54")
        a(f"""s_lshr_b32 s52, s3, 1
        s_lshl_b32 s52, s52, 4
        v_add_u32 v50, s52, v49
        v_mul_u32_u24 v2, 80, v50
        v_lshl_add_u32 v2, v48, 3, v2
        s_and_b32 s54, s3, 1
        s_lshl_b32 s55, s54, 5
        s_add_u32 s55, s55, {PL}
        v_add_u32 v2, s55, v2
        v_and_b32 v51, 31, v0
        v_mul_u32_u24 v3, 80, v51
        v_lshrrev_b32 v52, 5, v0
        v_lshl_add_u32 v3, v52, 4, v3
        v_add_u32 v3, {PL}, v3
        v_lshlrev_b32 v5, 2, v50
        v_add_u32 v5, {ML}, v5
        s_lshl_b32 s55, s54, 7
        v_add_u32 v4, s55, v5
        v_lshlrev_b32 v6, 2, v51
        v_add_u32 v6, {ML}, v6
        v_mov_b32 v7, {NEGINF}
        v_mov_b32 v8, {NEGINF}
        v_mov_b32 v9, 0
        v_lshlrev_b32 v28, 7, v0
        v_add_u32 v28, {FQ}, v28
        s_mov_b32 s58, {LOG2E if mim else SCL2E}""")
        for r in range(64): a(f"v_mov_b32 v{ACC+r}, 0")
        self.get_tag()
        self.poll_flags(28, 3, 2)
        self.stamp(1)
        a(f"s_lshl_b32 s52, s49, 1\ns_lshr_b32 s54, s3, 1\ns_add_u32 s52, s52, s54\ns_lshl_b32 s52, s52, 14\ns_add_u32 s52, s52, {QABS}\nv_lshlrev_b32 v29, 4, v0")
        for ks in range(16):
            if ks % 4 == 0 and ks: a("s_add_u32 s52, s52, 4096")
            a(f"buffer_load_dwordx4 v[{QR+4*ks}:{QR+4*ks+3}], v29, s[36:39], s52 offen offset:{(ks%4)*1024} sc1", tag='q')
        a.wait_vm()
        self.stamp(2)
        a("s_mov_b32 s61, 0")
        Lloop = a.newlabel("L_btile")
        a(f"{Lloop}:")
        def tile(buf):
            bo = buf * 32768
            if buf == 0: a("s_waitcnt vmcnt(8)")
            else:
                L1 = a.newlabel("L_bw"); L2 = a.newlabel("L_bw")
                a(f"s_cmp_eq_u32 s61, 3\ns_cbranch_scc1 {L1}\ns_waitcnt vmcnt(8)\ns_branch {L2}\n{L1}:\ns_waitcnt vmcnt(0)\n{L2}:")
            a("s_barrier")
            for r in range(4): a(f"v_mov_b32 v{32+r}, 0")
            for ks in range(8): a(f"ds_read_b128 v[{STG+4*ks}:{STG+4*ks+3}], v{SA+ks} offset:{bo}", tag=('s', ks))
            for ks in range(16):
                a.wait_lg(('s', ks))
                s = STG + 4 * (ks % 8)
                a(f"v_mfma_f32_16x16x32_bf16 v[32:35], v[{s}:{s+3}], v[{QR+4*ks}:{QR+4*ks+3}], v[32:35]")
                if ks + 8 < 16: a(f"ds_read_b128 v[{s}:{s+3}], v{SA+ks+8} offset:{bo}", tag=('s', ks + 8))
            if mim:
                a("v_cvt_pk_bf16_f32 v36, v32, v33\nv_cvt_pk_bf16_f32 v38, v34, v35")
                a("v_and_b32 v37, 0xffff0000, v36\nv_lshlrev_b32 v36, 16, v36\nv_and_b32 v39, 0xffff0000, v38\nv_lshlrev_b32 v38, 16, v38")
                for r in (36, 37, 38, 39): a(f"v_mul_f32 v{r}, {SCALE}, v{r}")
                a("v_cvt_pk_bf16_f32 v36, v36, v37\nv_cvt_pk_bf16_f32 v38, v38, v39")
                a("v_lshlrev_b32 v32, 16, v36\nv_and_b32 v33, 0xffff0000, v36\nv_lshlrev_b32 v34, 16, v38\nv_and_b32 v35, 0xffff0000, v38")
            a("v_max3_f32 v36, v32, v33, v34\nv_max_f32 v36, v36, v35")
            self.redrows(36, 37, "v_max_f32")
            a("ds_write_b32 v4, v36")
            a.wait_lg(); a("s_barrier")
            a("ds_read2_b32 v[36:37], v5 offset1:32\nds_read2_b32 v[38:39], v6 offset1:32")
            a.wait_lg()
            a("v_max3_f32 v36, v36, v37, v7\nv_max3_f32 v38, v38, v39, v8")
            a("v_sub_f32 v40, v7, v36\nv_sub_f32 v41, v8, v38\nv_mul_f32 v37, s58, v36\nv_mul_f32 v40, s58, v40\nv_mul_f32 v42, s58, v41")
            for r in range(4): a(f"v_fma_f32 v{32+r}, v{32+r}, s58, -v37")
            a("v_exp_f32 v40, v40\nv_exp_f32 v42, v42")
            for r in range(4): a(f"v_exp_f32 v{32+r}, v{32+r}")
            a("v_mov_b32 v7, v36\nv_mov_b32 v8, v38\nv_cvt_pk_bf16_f32 v44, v32, v33\nv_cvt_pk_bf16_f32 v45, v34, v35")
            a("ds_write_b64 v2, v[44:45]")
            a("v_fma_f32 v9, v9, v40, v32\nv_add_f32 v33, v33, v34\nv_add_f32 v9, v9, v35\nv_add_f32 v9, v9, v33")
            Lk = a.newlabel("L_keep")
            a(f"v_cmp_neq_f32 vcc, 0, v41\nv_mov_b32 v43, v42\ns_cbranch_vccz {Lk}")
            for r in range(0, 64, 2): a(f"v_pk_mul_f32 v[{ACC+r}:{ACC+r+1}], v[{ACC+r}:{ACC+r+1}], v[42:43]")
            a(f"{Lk}:")
            a.wait_lg(); a("s_barrier")
            a("ds_read_b128 v[36:39], v3\nds_read_b128 v[40:43], v3 offset:32", tag='p')
            seq = [(s, cb) for s in range(2) for cb in range(4)]
            def trd(i):
                s, cb = seq[i]
                for hi in range(2):
                    a(f"ds_read_b64_tr_b16 v[{STG+4*i+2*hi}:{STG+4*i+2*hi+1}], v{TA+2*cb+hi} offset:{bo + 4096*s}", tag=('t', i))
            for i in range(6): trd(i)
            for i in range(8):
                s, cb = seq[i]
                a.wait_lg(('t', i))
                a(f"v_mfma_f32_32x32x16_bf16 v[{ACC+16*cb}:{ACC+16*cb+15}], v[{STG+4*i}:{STG+4*i+3}], v[{36+4*s}:{39+4*s}], v[{ACC+16*cb}:{ACC+16*cb+15}]")
                if i + 6 < 8: trd(i + 6)
            Ln = a.newlabel("L_norefill")
            a(f"s_cmp_eq_u32 s61, 3\ns_cbranch_scc1 {Ln}")
            dma(buf)
            a(f"{Ln}:")
        tile(0); tile(1)
        a(f"s_add_u32 s61, s61, 1\ns_cmp_lg_u32 s61, 4\ns_cbranch_scc1 {Lloop}")
        a.vm = []
        self.stamp(3)
        self.redrows(9, 37, "v_add_f32")
        a("ds_write_b32 v4, v9 offset:256")
        a.wait_lg(); a("s_barrier")
        a("ds_read2_b32 v[36:37], v6 offset0:64 offset1:96")
        a("""v_and_b32 v48, 15, v0
        v_mul_u32_u24 v48, 272, v48
        v_bfe_u32 v49, v0, 4, 1
        v_lshl_add_u32 v48, v49, 15, v48
        v_lshrrev_b32 v49, 5, v0
        v_lshl_add_u32 v48, v49, 3, v48
        v_add_u32 v48, s60, v48
        v_lshrrev_b32 v49, 4, v0
        v_mul_u32_u24 v50, 272, v49
        v_and_b32 v51, 15, v0
        v_lshl_add_u32 v50, v51, 4, v50
        v_add_u32 v50, s60, v50
        v_lshlrev_b32 v52, 10, v49
        v_lshl_add_u32 v52, v51, 4, v52""")
        a(f"s_lshl_b32 s52, s48, 15\ns_lshl_b32 s54, s3, 8\ns_add_u32 s52, s52, s54\ns_add_u32 s52, s52, {PB}")
        a.wait_lg()
        a("v_add_f32 v36, v36, v37\nv_rcp_f32 v38, v36\nv_log_f32 v40, v36\nv_mov_b32 v39, v38\nv_fma_f32 v40, v8, s58, v40")
        for cb in range(4):
            for rq in range(4):
                r = ACC + 16 * cb + 4 * rq
                t = STG + 2 * ((4 * cb + rq) % 8)
                a(f"v_pk_mul_f32 v[{r}:{r+1}], v[{r}:{r+1}], v[38:39]\nv_pk_mul_f32 v[{r+2}:{r+3}], v[{r+2}:{r+3}], v[38:39]")
                a(f"v_cvt_pk_bf16_f32 v{r}, v{r}, v{r+1}\nv_cvt_pk_bf16_f32 v{r+1}, v{r+2}, v{r+3}")
                a(f"ds_write_b64 v48, v[{r}:{r+1}] offset:{64*cb + 16*rq}")
                if (4 * cb + rq) % 8 == 7: a.wait_lg()
        for n in range(8):
            a(f"ds_read_b128 v[{STG+4*n}:{STG+4*n+3}], v50 offset:{(n % 4)*4*272 + (n // 4)*32768}", tag=('r', n))
        for n in range(8):
            a.wait_lg(('r', n))
            a(f"buffer_store_dwordx4 v[{STG+4*n}:{STG+4*n+3}], v52, s[36:39], s52 offen sc1\ns_add_u32 s52, s52, 4096")
        Ls = a.newlabel("L_nopbs")
        a(f"s_cmp_lg_u32 s3, 0\ns_cbranch_scc1 {Ls}")
        a(f"s_lshl_b32 s52, s48, 7\ns_add_u32 s52, s52, {PBS}\nv_lshlrev_b32 v48, 2, v0\ns_mov_b32 exec_hi, 0")
        a(f"buffer_store_dword v40, v48, s[36:39], s52 offen sc1\ns_mov_b64 exec, -1\n{Ls}:")
        a("s_waitcnt vmcnt(0)\ns_barrier"); a.vm = []
        Ls = a.newlabel("L_nofb")
        a(f"s_cmp_lg_u32 s3, 0\ns_cbranch_scc1 {Ls}")
        a(f"s_lshl_b32 s52, s48, 7\ns_add_u32 s52, s52, {FB}\nv_mov_b32 v48, s35\nv_mov_b32 v49, 0\ns_mov_b64 exec, 1")
        a(f"buffer_store_dword v48, v49, s[36:39], s52 offen sc1\ns_mov_b64 exec, -1\n{Ls}:")
        a.vm = []
        self.stamp(4)

    def tb1_prefetch(self):
        a = self.a
        self.srd(40, "s22", "s23", 512 * 8192)
        a("""s_and_b32 s52, s2, 3
        s_lshl_b32 s52, s52, 2
        s_add_u32 s52, s52, s3
        s_lshl_b32 s52, s52, 18
        s_lshr_b32 s54, s2, 2
        s_lshl_b32 s54, s54, 8
        s_add_u32 s52, s52, s54
        v_lshrrev_b32 v48, 4, v0
        v_lshlrev_b32 v28, 16, v48
        v_and_b32 v49, 15, v0
        v_lshl_add_u32 v28, v49, 4, v28
        v_add_u32 v28, s52, v28""")
        for t in range(8):
            a(f"s_mov_b32 s51, {t*8192}\nbuffer_load_dwordx4 v[{136+4*t}:{139+4*t}], v28, s[40:43], s51 offen nt", tag=('uv', t))
    def tb1(self):
        a = self.a
        self.sels()
        a(f"v_lshlrev_b32 v28, 7, v0\nv_add_u32 v28, {FB}, v28")
        a(f"""v_and_b32 v48, 15, v0
        v_bfe_u32 v49, v0, 3, 1
        v_and_b32 v50, 7, v0
        v_lshlrev_b32 v50, 2, v50
        v_lshl_add_u32 v50, v49, 5, v50
        v_lshlrev_b32 v29, 7, v50
        v_lshlrev_b32 v31, 15, v50
        v_lshrrev_b32 v48, 4, v0
        v_lshl_add_u32 v31, v48, 4, v31
        s_lshr_b32 s54, s2, 2
        s_lshl_b32 s55, s54, 2
        s_add_u32 s55, s55, {PBS}
        s_lshl_b32 s56, s54, 10
        s_and_b32 s57, s2, 3
        s_lshl_b32 s57, s57, 2
        s_add_u32 s57, s57, s3
        s_lshl_b32 s57, s57, 6
        s_add_u32 s56, s56, s57
        s_add_u32 s56, s56, {PB}""")
        for r in range(32, 36): a(f"v_mov_b32 v{r}, 0")
        self.acc_addr(30, 48)
        self.poll_flags(28, 4, self.c['sleep_long'])
        self.stamp(2)
        for n in range(4): a(f"buffer_load_dword v{36+n}, v29, s[36:39], s55 offen offset:{128*n} sc1", tag='st')
        for n in range(4): a(f"buffer_load_dwordx4 v[{64+4*n}:{67+4*n}], v31, s[36:39], s56 offen sc1\ns_add_u32 s56, s56, 32768", tag=('pb', n))
        a.wait_vm('st')
        a("v_max3_f32 v40, v36, v37, v38\nv_max_f32 v40, v40, v39")
        self.red8([40], "v_max_f32")
        for n in range(4): a(f"v_sub_f32 v{36+n}, v{36+n}, v40")
        for n in range(4): a(f"v_exp_f32 v{36+n}, v{36+n}")
        a("v_add_f32 v40, v36, v37\nv_add_f32 v41, v38, v39\nv_add_f32 v40, v40, v41")
        self.red8([40], "v_add_f32")
        a("v_rcp_f32 v40, v40")
        for n in range(4): a(f"v_mul_f32 v{36+n}, v{36+n}, v40")
        for n in range(4):
            a.wait_vm(('pb', n))
            for k in range(4):
                a(f"v_lshlrev_b32 v40, 16, v{64+4*n+k}\nv_and_b32 v41, 0xffff0000, v{64+4*n+k}")
                if n == 0: a(f"v_mul_f32 v{10+2*k}, v36, v40\nv_mul_f32 v{11+2*k}, v36, v41")
                else: a(f"v_fmac_f32 v{10+2*k}, v{36+n}, v40\nv_fmac_f32 v{11+2*k}, v{36+n}, v41")
        self.red8(list(range(10, 18)), "v_add_f32")
        for k in range(4): a(f"v_cvt_pk_bf16_f32 v{20+k}, v{10+2*k}, v{11+2*k}")
        for k in range(4):
            self.bop(40, 20 + k, 2); self.bop(44, 20 + k, 6)
            a(f"v_mfma_f32_16x16x32_bf16 v[32:35], v[{136+8*k}:{139+8*k}], v[40:43], v[32:35]")
            a(f"v_mfma_f32_16x16x32_bf16 v[32:35], v[{140+8*k}:{143+8*k}], v[44:47], v[32:35]")
        a("v_lshlrev_b32 v48, 4, v0\ns_lshl_b32 s52, s3, 10\nv_add_u32 v48, s52, v48")
        a(f"""s_lshr_b32 s52, s3, 1
        s_lshl_b32 s52, s52, 5
        s_lshr_b32 s54, s2, 2
        s_add_u32 s52, s52, s54
        s_add_u32 s52, s52, 64
        s_lshl_b32 s52, s52, 3
        s_and_b32 s55, s2, 3
        s_add_u32 s52, s52, s55
        s_mul_i32 s52, s52, 1152
        s_add_u32 s52, s52, {REC}
        s_and_b32 s54, s3, 1
        s_lshl_b32 s55, s54, 9
        v_lshlrev_b32 v50, 3, v0
        v_add_u32 v50, s55, v50
        v_mov_b32 v59, s35
        v_mov_b32 v57, s35
        v_mov_b32 v56, 0""")
        a("ds_write_b128 v48, v[32:35]")
        a.wait_lg(); a("s_barrier")
        for w in range(4): a(f"ds_read_b32 v{44+w}, v30 offset:{1024*w}")
        a.wait_lg()
        a("v_add_f32 v44, v44, v45\nv_add_f32 v46, v46, v47\nv_add_f32 v58, v44, v46")
        a("buffer_store_dwordx2 v[58:59], v50, s[36:39], s52 offen sc1")
        Ls = a.newlabel("L_nostat")
        a(f"s_cmp_lg_u32 s54, 0\ns_cbranch_scc1 {Ls}\ns_mov_b64 exec, 1")
        a("buffer_store_dwordx2 v[56:57], v50, s[36:39], s52 offen offset:1024 sc1")
        a(f"s_mov_b64 exec, -1\n{Ls}:")
        a.vm = a.vm[:-2]
        self.stamp(3)

    def t_setup(self):
        a = self.a
        a("""s_cmp_ge_u32 s2, 96
        s_cselect_b32 s63, 1, 0
        s_cselect_b32 s54, s24, s12
        s_cselect_b32 s55, s25, s13
        s_cselect_b32 s66, 3, 7
        s_cselect_b32 s67, 4.0, 1.0
        s_mul_i32 s52, s63, 96
        s_sub_u32 s52, s2, s52
        s_mul_i32 s64, s52, 171
        s_lshr_b32 s64, s64, 9
        s_mul_i32 s65, s64, 3
        s_sub_u32 s65, s52, s65""")
        self.srd(44, "s54", "s55", 4096 * 1152)
        a("""s_lshl_b32 s52, s64, 2
        s_add_u32 s52, s52, s3
        s_mul_i32 s52, s52, 36864
        s_mul_i32 s54, s65, 384
        s_add_u32 s52, s52, s54
        v_lshrrev_b32 v48, 4, v0
        v_mul_u32_u24 v24, 9216, v48
        v_add_u32 v24, s52, v24
        v_bfe_u32 v49, v0, 3, 1
        v_mul_u32_u24 v25, 1152, v49
        v_add_u32 v25, v25, v24
        v_and_b32 v50, 7, v0
        v_lshl_add_u32 v25, v50, 4, v25
        v_add_u32 v25, 256, v25
        v_and_b32 v51, 15, v0
        v_lshl_add_u32 v24, v51, 4, v24""")
    def t_loads(self):
        a = self.a
        for t in range(8):
            a(f"s_mov_b32 s51, {t*1152}\nbuffer_load_dwordx4 v[{168+4*t}:{171+4*t}], v24, s[44:47], s51 offen nt", tag='tw')
            if t % 2 == 1:
                n = t // 2
                a(f"s_mov_b32 s51, {n*2304}\nbuffer_load_dwordx4 v[{200+4*n}:{203+4*n}], v25, s[44:47], s51 offen nt", tag='tw')
    def t_main(self, need_sels):
        a = self.a; c = self.c
        if need_sels: self.sels()
        self.t_setup()
        if not c['deferW']: self.t_loads()
        a(f"""v_bfe_u32 v49, v0, 3, 1
        v_lshlrev_b32 v29, 8, v49
        v_and_b32 v50, s66, v0
        v_add_u32 v29, v29, v50
        v_mul_u32_u24 v29, 1152, v29
        s_lshl_b32 s52, s63, 6
        s_add_u32 s52, s52, s64
        s_mul_i32 s52, s52, 9216
        s_add_u32 s52, s52, {REC}
        v_add_u32 v29, s52, v29
        v_lshrrev_b32 v48, 4, v0
        v_lshlrev_b32 v31, 6, v48
        s_lshl_b32 s52, s3, 8
        v_add_u32 v31, s52, v31
        v_add_u32 v31, v31, v29""")
        a(f"""v_lshlrev_b32 v28, 7, v49
        v_and_b32 v50, 7, v0
        v_add_u32 v28, v28, v50
        s_lshr_b32 s52, s64, 1
        s_lshl_b32 s52, s52, 3
        v_add_u32 v28, s52, v28
        v_lshlrev_b32 v28, 7, v28
        v_add_u32 v28, {FE}, v28""")
        for r in range(32, 44): a(f"v_mov_b32 v{r}, 0")
        self.acc_addr(30, 48)
        a("""v_and_b32 v26, 7, v0
        v_lshlrev_b32 v26, 4, v26
        v_bfe_u32 v48, v0, 3, 2
        v_lshl_add_u32 v26, v48, 2, v26
        v_lshrrev_b32 v48, 5, v0
        v_lshl_add_u32 v26, v48, 9, v26
        s_and_b32 s52, s3, 1
        s_lshl_b32 s52, s52, 8
        s_lshr_b32 s54, s3, 1
        s_lshl_b32 s54, s54, 7
        s_add_u32 s52, s52, s54
        s_add_u32 s52, s52, 12288
        v_add_u32 v26, s52, v26
        v_lshlrev_b32 v27, 4, v0
        s_lshl_b32 s52, s3, 10
        s_add_u32 s52, s52, 8192
        v_add_u32 v27, s52, v27""")
        a(f"""s_lshl_b32 s68, s63, 5
        s_add_u32 s68, s68, s64
        s_lshl_b32 s68, s68, 1
        s_lshr_b32 s54, s3, 1
        s_add_u32 s68, s68, s54
        s_mul_i32 s68, s68, 4608
        s_mul_i32 s54, s65, 1536
        s_add_u32 s68, s68, s54
        s_add_u32 s68, s68, {PO}
        s_and_b32 s54, s3, 1
        s_lshl_b32 s55, s54, 9
        v_lshlrev_b32 v22, 3, v0
        v_add_u32 v23, s55, v22
        s_lshl_b32 s55, s54, 8
        s_add_u32 s55, s55, 1024
        v_add_u32 v22, s55, v22""")
        self.poll_flags(28, 5, c['sleep_long'])
        self.stamp(4)
        if c['deferW']: self.t_loads()
        def gissue():
            for k in range(4): a(f"buffer_load_dwordx4 v[{64+4*k}:{67+4*k}], v31, s[36:39], 0 offen offset:{16*k} sc1", tag='pg')
            a("buffer_load_dwordx2 v[80:81], v29, s[36:39], 0 offen offset:1024 sc1", tag='pg')
        self.poll_granules(gissue, [65, 67, 69, 71, 73, 75, 77, 79, 81], 48, 6)
        self.stamp(5)
        a("v_mov_b32 v44, v80")
        self.red8([44], "v_max_f32")
        a("v_sub_f32 v44, v80, v44\nv_exp_f32 v44, v44\nv_mov_b32 v45, v44")
        self.red8([45], "v_add_f32")
        a("v_rcp_f32 v45, v45\nv_mul_f32 v44, s67, v44\nv_mul_f32 v44, v44, v45")
        for t in range(8): a(f"v_mul_f32 v{10+t}, v44, v{64+2*t}")
        self.red8(list(range(10, 18)), "v_add_f32")
        for k in range(4): a(f"v_cvt_pk_bf16_f32 v{18+k}, v{10+2*k}, v{11+2*k}")
        for k in range(4):
            self.bop(44, 18 + k, 2); self.bop(48, 18 + k, 6)
            a(f"v_mfma_f32_16x16x32_bf16 v[32:35], v[{168+8*k}:{171+8*k}], v[44:47], v[32:35]")
            a(f"v_mfma_f32_16x16x32_bf16 v[36:39], v[{200+4*k}:{203+4*k}], v[44:47], v[36:39]")
            a(f"v_mfma_f32_16x16x32_bf16 v[32:35], v[{172+8*k}:{175+8*k}], v[48:51], v[32:35]")
            a(f"v_mfma_f32_16x16x32_bf16 v[40:43], v[{200+4*k}:{203+4*k}], v[48:51], v[40:43]")
        a("v_cmp_lt_u32 vcc, 31, v0\nv_mov_b32 v59, s35\nv_mov_b32 v57, s35")
        a("ds_write_b128 v27, v[32:35]")
        for r in range(4): a(f"v_cndmask_b32 v{36+r}, v{36+r}, v{40+r}, vcc")
        a("ds_write_b128 v27, v[36:39] offset:4096")
        a.wait_lg(); a("s_barrier")
        for w in range(4): a(f"ds_read_b32 v{44+w}, v30 offset:{8192 + 1024*w}")
        for w in range(4): a(f"ds_read_b32 v{48+w}, v26 offset:{1024*w}")
        a.wait_lg()
        a("v_add_f32 v48, v48, v49\nv_add_f32 v50, v50, v51\nv_add_f32 v44, v44, v45\nv_add_f32 v46, v46, v47\nv_add_f32 v48, v48, v50\nv_add_f32 v58, v44, v46")
        a("v_mov_b32 v49, v48\nbuffer_store_dwordx2 v[58:59], v23, s[36:39], s68 offen sc1")
        a("v_permlane32_swap_b32 v48, v49\nv_add_f32 v56, v48, v49\ns_mov_b32 exec_hi, 0")
        a("buffer_store_dwordx2 v[56:57], v22, s[36:39], s68 offen sc1\ns_mov_b64 exec, -1")
        self.stamp(6)

    def role_F(self):
        a = self.a; c = self.c
        Lx = a.newlabel("L_nof")
        a(f"s_sub_u32 s48, s2, 192\ns_cmp_ge_u32 s48, 36\ns_cbranch_scc1 {Lx}")
        a("""s_lshl_b32 s48, s48, 2
        s_add_u32 s48, s48, s3
        s_cmp_ge_u32 s48, 72
        s_cselect_b32 s49, 1, 0
        s_mul_i32 s52, s49, 72
        s_sub_u32 s50, s48, s52""")
        a("s_mul_i32 s52, s49, 1152\ns_add_u32 s54, s4, s52\ns_addc_u32 s55, s5, 0")
        self.srd(40, "s54", "s55", 1152); self.srd(44, "s26", "s27", 1152)
        a("v_lshlrev_b32 v1, 2, v0")
        for k in range(5):
            a(f"buffer_load_dword v{10+k}, v1, s[40:43], 0 offen offset:{256*k}\nbuffer_load_dword v{16+k}, v1, s[44:47], 0 offen offset:{256*k}")
        a(f"""v_mul_u32_u24 v31, 9216, v0
        s_mul_i32 s52, s49, 4608
        s_lshl_b32 s54, s50, 6
        s_add_u32 s52, s52, s54
        s_add_u32 s52, s52, {PO}
        v_add_u32 v31, s52, v31
        v_mov_b32 v22, 0""")
        a.wait_vm()
        for k in range(5):
            a(f"""v_lshlrev_b32 v24, 16, v{10+k}
            v_and_b32 v25, 0xffff0000, v{10+k}
            v_lshlrev_b32 v26, 16, v{16+k}
            v_and_b32 v27, 0xffff0000, v{16+k}
            v_mul_f32 v24, v24, v26
            v_mul_f32 v25, v25, v27
            v_cvt_pk_bf16_f32 v24, v24, v25
            v_lshlrev_b32 v25, 16, v24
            v_and_b32 v24, 0xffff0000, v24
            v_add_f32 v22, v22, v25
            v_add_f32 v22, v22, v24""")
        self.red8([22], "v_add_f32")
        a("v_add_f32_dpp v22, v22, v22 row_ror:8 row_mask:0xf bank_mask:0xf")
        self.redrows(22, 24, "v_add_f32")
        a(f"""v_cvt_pk_bf16_f32 v22, v22, v22
        v_and_b32 v22, 0xffff0000, v22
        v_mul_f32 v22, {LOG2E}, v22
        v_exp_f32 v22, -v22
        v_add_f32 v22, 1.0, v22
        v_rcp_f32 v22, v22
        v_cvt_pk_bf16_f32 v22, v22, v22
        v_and_b32 v22, 0xffff0000, v22
        v_sub_f32 v23, 1.0, v22
        v_cvt_pk_bf16_f32 v23, v23, v23
        v_and_b32 v23, 0xffff0000, v23""")
        self.srd(40, "s28", "s29", 2304)
        a("""v_bfe_u32 v24, v0, 2, 1
        v_lshlrev_b32 v21, 3, v24
        v_bfe_u32 v24, v0, 3, 1
        v_lshl_add_u32 v21, v24, 2, v21
        v_bfe_u32 v24, v0, 4, 1
        v_lshl_add_u32 v21, v24, 1, v21
        s_mul_i32 s56, s49, 1152
        s_lshl_b32 s54, s50, 4
        s_add_u32 s56, s56, s54""")
        a(f"v_lshlrev_b32 v28, 9, v0\nv_add_u32 v28, {FE}, v28")
        Lp = a.newlabel("L_fpoll"); Ld = a.newlabel("L_fdone")
        a(f"s_mov_b32 s53, {c['spin']}\n{Lp}:\nbuffer_load_dword v61, v28, s[36:39], 0 offen sc1\ns_waitcnt vmcnt(0)")
        a(f"v_cmp_ne_u32 vcc, s35, v61\ns_cbranch_vccz {Ld}\ns_sleep {c['sleep_long']}\ns_sub_u32 s53, s53, 1\ns_cbranch_scc0 {Lp}")
        self.timeout(7)
        a(f"{Ld}:"); a.vm = []
        self.stamp(5)
        def gissue():
            for k in range(4): a(f"buffer_load_dwordx4 v[{64+4*k}:{67+4*k}], v31, s[36:39], 0 offen offset:{16*k} sc1", tag='pg')
        self.poll_granules(gissue, [65, 67, 69, 71, 73, 75, 77, 79], 48, 8)
        self.stamp(6)
        for n in range(4): a(f"v_permlane16_swap_b32 v{64+4*n}, v{66+4*n}")
        for n in range(4): a(f"v_add_f32 v{64+4*n}, v{64+4*n}, v{66+4*n}")
        for m in range(2):
            a(f"v_add_f32_dpp v{40+m}, v{64+8*m}, v{64+8*m} row_ror:8 row_mask:0xf bank_mask:0x3")
            a(f"v_add_f32_dpp v{40+m}, v{68+8*m}, v{68+8*m} row_ror:8 row_mask:0xf bank_mask:0xc")
        a("v_add_f32_dpp v42, v40, v40 row_half_mirror row_mask:0xf bank_mask:0x5")
        a("v_add_f32_dpp v42, v41, v41 row_half_mirror row_mask:0xf bank_mask:0xa")
        a("v_add_f32_dpp v42, v42, v42 quad_perm:[1,0,3,2] row_mask:0xf bank_mask:0xf")
        a("v_add_f32_dpp v42, v42, v42 quad_perm:[2,3,0,1] row_mask:0xf bank_mask:0xf")
        a("""v_cvt_pk_bf16_f32 v42, v42, v42
        v_and_b32 v42, 0xffff0000, v42
        v_mov_b32 v43, v42
        v_permlane32_swap_b32 v42, v43
        v_mul_f32 v42, v22, v42
        v_mul_f32 v43, v23, v43
        v_cvt_pk_bf16_f32 v42, v42, v43
        v_lshlrev_b32 v43, 16, v42
        v_and_b32 v42, 0xffff0000, v42
        v_add_f32 v42, v42, v43
        v_cvt_pk_bf16_f32 v42, v42, v42
        s_mov_b32 exec_lo, 0x11111111
        s_mov_b32 exec_hi, 0
        buffer_store_short v42, v21, s[40:43], s56 offen""")
        Ls = a.newlabel("L_noep")
        a(f"s_cmp_lg_u32 s48, 0\ns_cbranch_scc1 {Ls}\ns_mov_b64 exec, 1\nv_mov_b32 v44, s35\nv_mov_b32 v45, 0")
        a(f"buffer_store_dword v44, v45, s[36:39], 0 offen\n{Ls}:\ns_mov_b64 exec, -1")
        self.stamp(7)
        a(f"{Lx}:")

    def finish(self):
        self.stamp_flush()
        self.a(f"{self.end}:\ns_endpgm")
    def kd(self, name):
        self.a.raw(f""".amdhsa_kernel {name}
  .amdhsa_next_free_vgpr 256
  .amdhsa_next_free_sgpr 102
  .amdhsa_accum_offset 256
  .amdhsa_group_segment_fixed_size 0
  .amdhsa_kernarg_size 120
  .amdhsa_user_sgpr_count 2
  .amdhsa_user_sgpr_kernarg_segment_ptr 1
  .amdhsa_system_sgpr_workgroup_id_x 1
.end_amdhsa_kernel""")
    def only(self, lo, hi):
        self.a(f"s_cmp_lt_u32 s2, {lo}\ns_cbranch_scc1 {self.end}\ns_cmp_ge_u32 s2, {hi}\ns_cbranch_scc1 {self.end}")
    def build(self):
        a = self.a; LDS = 81920
        hdr = open("gated_mix__gqa_block_cached__compressed_kv_cla__decode.s.ref").read().split("; Override launch")[0]
        a.raw(hdr.rstrip())
        if self.c['staged']:
            names = ["s1_kernel", "s2_kernel", "ab_kernel", "tb1_kernel", "t_kernel", "f_kernel"]
            for n in names: a.raw(f"; @launch kernel={n} grid=(512,1,1) block=(256,1,1) lds={LDS}")
            a.raw('.amdgcn_target "amdgcn-amd-amdhsa--gfx950"\n.text')
            self.prologue("s1_kernel"); self.only(0, 128); self.s1(); self.finish()
            self.prologue("s2_kernel"); self.only(128, 192); self.s2(); self.finish()
            self.prologue("ab_kernel"); self.only(192, 512)
            LA = a.newlabel("L_roleA"); LE = a.newlabel("L_fin")
            a(f"s_cmp_ge_u32 s2, 256\ns_cbranch_scc1 {LA}")
            self.role_B(); a(f"s_branch {LE}\n{LA}:"); a.vm = []; a.lg = []; a.hist = []
            self.role_A(); a(f"{LE}:"); self.finish()
            self.prologue("tb1_kernel"); self.only(0, 128); self.tb1_prefetch(); self.get_tag(); self.tb1(); self.finish()
            self.prologue("t_kernel"); self.only(0, 192); self.get_tag(); self.t_main(True); self.finish()
            self.prologue("f_kernel"); self.only(192, 256); self.get_tag(); self.role_F(); self.finish()
        else:
            names = [KN]
            a.raw(f"; @launch grid=(512,1,1) block=(256,1,1) lds={LDS}")
            a.raw('.amdgcn_target "amdgcn-amd-amdhsa--gfx950"\n.text')
            self.prologue(KN)
            LA, LB, L2, LT, LE = (a.newlabel(x) for x in ("L_roleA", "L_roleB", "L_roleS2", "L_T", "L_fin"))
            a(f"s_cmp_ge_u32 s2, 256\ns_cbranch_scc1 {LA}\ns_cmp_ge_u32 s2, 192\ns_cbranch_scc1 {LB}\ns_cmp_ge_u32 s2, 128\ns_cbranch_scc1 {L2}")
            self.s1(); self.tb1_prefetch(); self.tb1(); a(f"s_branch {LT}")
            a(f"{L2}:"); a.vm = []; a.lg = []; a.hist = []
            self.s2()
            a(f"{LT}:"); a.vm = []; a.lg = []
            self.t_main(True); a(f"s_branch {LE}")
            a(f"{LB}:"); a.vm = []; a.lg = []; a.hist = []
            self.role_B(); self.role_F(); a(f"s_branch {LE}")
            a(f"{LA}:"); a.vm = []; a.lg = []; a.hist = []
            self.role_A()
            a(f"{LE}:"); self.finish()
        a.raw('.section .rodata,"a"')
        for n in names:
            a.raw(".p2align 6"); self.kd(n)
        return a.text()

def gen(**kw): return G(**kw).build()
if __name__ == "__main__":
    cfg = json.loads(sys.argv[2]) if len(sys.argv) > 2 else {}
    open(sys.argv[1], "w").write(gen(**cfg))
```

```python
import sys, json
sys.path.insert(0, "dev")
from asmlib import Asm
KN = "gated_mix__gqa_block_cached__compressed_kv_cla__decode_kernel"

EPOCH = 0
Q     = 0x1000
QABS  = 0x11000
FQ    = 0x21000
FB    = 0x23000
PBS   = 0x25000
FE    = 0x27000
REC   = 0x30000
PO    = 0x150000
PB    = 0x200000
STAMP = 0x800000
WS_USED = 0x1000000
LOG2E = 0x3fb8aa3b
SCALE = 0x3db504f3
SCL2E = 0x3e0293ee
NEGINF = 0xff800000

DEF = dict(staged=False, mimicA=True, mimicB=True, W=7, R=40, IQ=26, ICHK=36, burst=1, early=44,
           stamps=False, spin=40000, sleep_long=8, rotb=4, deferW=True)

class G:
    def __init__(self, **kw):
        self.c = dict(DEF); self.c.update(kw)
        self.a = Asm()
        self.nstamp = 0
    def prologue(self, name):
        a = self.a
        a.raw(f".globl {name}\n.p2align 8\n.type {name},@function\n{name}:")
        a.hist = []; a.vm = []; a.lg = []
        self.end = a.newlabel("L_end")
        a(f"s_cmp_ge_u32 s2, 512\ns_cbranch_scc1 {self.end}")
        if self.c['stamps']: a("s_memrealtime s[80:81]")
        a("""s_load_dwordx16 s[4:19], s[0:1], 0
        s_load_dwordx8 s[20:27], s[0:1], 64
        s_load_dwordx4 s[28:31], s[0:1], 96
        s_load_dwordx2 s[32:33], s[0:1], 112
        v_lshrrev_b32 v1, 6, v0
        v_and_b32 v0, 63, v0
        v_readfirstlane_b32 s3, v1
        s_waitcnt lgkmcnt(0)
        s_load_dword s34, s[32:33], 0""")
        a(f"s_mov_b32 s36, s32\ns_and_b32 s37, s33, 0xffff\ns_mov_b32 s38, {WS_USED}\ns_mov_b32 s39, 0x20000")
    def get_tag(self):
        a = self.a
        a("s_waitcnt lgkmcnt(0)\ns_mul_i32 s35, s34, 1664525\ns_add_u32 s35, s35, 1013904223")
        a.lg = []
    def srd(self, d, lo, hi, size):
        self.a(f"s_mov_b32 s{d}, {lo}\ns_and_b32 s{d+1}, {hi}, 0xffff\ns_mov_b32 s{d+2}, {size}\ns_mov_b32 s{d+3}, 0x20000")
    def stamp(self, k):
        if not self.c['stamps']: return
        a = self.a
        if k > 0:
            a(f"s_memrealtime s[{80+2*k}:{81+2*k}]")
    def stamp_flush(self):
        if not self.c['stamps']: return
        a = self.a; L = a.newlabel("L_nost")
        a(f"s_cmp_lg_u32 s3, {self.c.get('stampwave', 0)}\ns_cbranch_scc1 {L}\ns_waitcnt lgkmcnt(0)")
        a.lg = []
        for k in range(11): a(f"v_mov_b32 v{2+k}, s{80+2*k}")
        a(f"s_lshl_b32 s52, s2, 6\ns_add_u32 s52, s52, {STAMP}\nv_mov_b32 v1, 0\ns_mov_b64 exec, 1")
        a("buffer_store_dwordx4 v[2:5], v1, s[36:39], s52 offen\nbuffer_store_dwordx4 v[6:9], v1, s[36:39], s52 offen offset:16\nbuffer_store_dwordx4 v[10:13], v1, s[36:39], s52 offen offset:32")
        a(f"s_mov_b64 exec, -1\n{L}:")
    def sels(self, A=2, B=6, t=48):
        a = self.a
        a(f"""v_and_b32 v{t}, 1, v0
        v_mov_b32 v{t+1}, 0x0c0c0100
        v_mov_b32 v{t+2}, 0x01000c0c
        v_mov_b32 v{t+3}, 0x0c0c0302
        v_mov_b32 v{t+4}, 0x03020c0c
        v_mov_b32 v{t+5}, 0x0c0c0c0c
        v_cmp_eq_u32 vcc, 1, v{t}
        v_bfe_u32 v{t+6}, v0, 1, 2
        v_cndmask_b32 v{t+1}, v{t+1}, v{t+2}, vcc
        v_cndmask_b32 v{t+3}, v{t+3}, v{t+4}, vcc""")
        for k in range(4):
            a(f"v_cmp_eq_u32 vcc, {k}, v{t+6}\nv_cndmask_b32 v{A+k}, v{t+5}, v{t+1}, vcc\nv_cndmask_b32 v{B+k}, v{t+5}, v{t+3}, vcc")
    def timeout(self, code):
        a = self.a
        a(f"v_mov_b32 v62, {code}\nv_mov_b32 v63, 0\nglobal_store_dword v63, v62, s[30:31]")
    def poll_flags(self, voff, code, sleep):
        a = self.a; Ls = a.newlabel("L_pskip"); Lp = a.newlabel("L_poll"); Ld = a.newlabel("L_pdone")
        a(f"s_cmp_lg_u32 s3, 0\ns_cbranch_scc1 {Ls}\ns_mov_b32 s53, {self.c['spin']}\n{Lp}:")
        a(f"buffer_load_dword v61, v{voff}, s[36:39], 0 offen sc1\ns_waitcnt vmcnt(0)")
        a(f"v_cmp_ne_u32 vcc, s35, v61\ns_cbranch_vccz {Ld}\ns_sleep {sleep}\ns_sub_u32 s53, s53, 1\ns_cbranch_scc0 {Lp}")
        self.timeout(code)
        a(f"{Ld}:\n{Ls}:\ns_barrier")
        a.vm = a.vm[:]
        while a.vm and a.vm[-1] is None: a.vm.pop()
    def tagcheck(self, tags, t):
        a = self.a
        a(f"v_xor_b32 v{t}, s35, v{tags[0]}")
        for r in tags[1:]: a(f"v_bitop3_b32 v{t}, v{t}, v{r}, s35 bitop3:0xf6")
        a(f"v_cmp_ne_u32 vcc, 0, v{t}")
    def poll_granules(self, issue, tags, t, code, first_issued=False, sleep=0):
        a = self.a; Lp = a.newlabel("L_gpoll"); Ld = a.newlabel("L_gdone"); Lc = a.newlabel("L_gchk")
        a(f"s_mov_b32 s53, {self.c['spin']}")
        if first_issued:
            a.wait_vm('pg'); a(f"s_branch {Lc}")
        save = a.vm[:]
        a(f"{Lp}:")
        issue(); a("s_waitcnt vmcnt(0)")
        a(f"{Lc}:")
        a.hist = []
        self.tagcheck(tags, t)
        a(f"s_cbranch_vccz {Ld}")
        if sleep: a(f"s_sleep {sleep}")
        a(f"s_sub_u32 s53, s53, 1\ns_cbranch_scc0 {Lp}")
        self.timeout(code)
        a(f"s_waitcnt vmcnt(0)\n{Ld}:")
        a.vm = save if first_issued else []
    def qk_group(self, K, q, T, U):
        a = self.a
        for kk in range(4):
            for t in range(4):
                for h in range(2):
                    src2 = "0" if kk == 0 else f"v{T+2*t+h}"
                    a(f"v_dot2_f32_bf16 v{T+2*t+h}, v{K[t]+kk}, v{q+8*h+2*kk}, {src2}")
        for t in range(4): a(f"v_add_f32_dpp v{U[t]}, v{T+2*t}, v{T+2*t} row_ror:8 row_mask:0xf bank_mask:0x3")
        for t in range(4): a(f"v_add_f32_dpp v{U[t]}, v{T+2*t+1}, v{T+2*t+1} row_ror:8 row_mask:0xf bank_mask:0xc")
        for m in ("row_half_mirror", "quad_perm:[1,0,3,2]", "quad_perm:[2,3,0,1]"):
            for t in range(4): a(f"v_add_f32_dpp v{U[t]}, v{U[t]}, v{U[t]} {m} row_mask:0xf bank_mask:0xf")
    def bop(self, dst, src, sel):
        for k in range(4): self.a(f"v_perm_b32 v{dst+k}, v{src}, v{src}, v{sel+k}")
    def red8(self, regs, op):
        for m in ("row_half_mirror", "quad_perm:[1,0,3,2]", "quad_perm:[2,3,0,1]"):
            for r in regs: self.a(f"{op}_dpp v{r}, v{r}, v{r} {m} row_mask:0xf bank_mask:0xf")
    def redrows(self, r, t, op):
        a = self.a
        a(f"v_mov_b32 v{t}, v{r}\nv_permlane16_swap_b32 v{r}, v{t}\n{op} v{r}, v{r}, v{t}")
        a(f"v_mov_b32 v{t}, v{r}\nv_permlane32_swap_b32 v{r}, v{t}\n{op} v{r}, v{r}, v{t}")
    def round_scaled(self, r, t):
        a = self.a
        a(f"v_cvt_pk_bf16_f32 v{t}, v{r}, v{r}\nv_and_b32 v{t}, 0xffff0000, v{t}\nv_mul_f32 v{t}, {SCALE}, v{t}")
        a(f"v_cvt_pk_bf16_f32 v{t}, v{t}, v{t}\nv_and_b32 v{r}, 0xffff0000, v{t}")
    def acc_addr(self, dst, t):
        a = self.a
        a(f"""v_and_b32 v{dst}, 7, v0
        v_lshlrev_b32 v{dst}, 4, v{dst}
        v_bfe_u32 v{t}, v0, 3, 2
        v_lshl_add_u32 v{dst}, v{t}, 2, v{dst}
        v_lshrrev_b32 v{t}, 5, v0
        v_lshl_add_u32 v{dst}, v{t}, 8, v{dst}
        s_and_b32 s52, s3, 1
        s_lshl_b32 s52, s52, 9
        s_lshr_b32 s54, s3, 1
        s_lshl_b32 s54, s54, 7
        s_add_u32 s52, s52, s54
        v_add_u32 v{dst}, s52, v{dst}""")

    def role_A(self):
        a = self.a; c = self.c
        W, R = c['W'], c['R']; mim = c['mimicA']
        SREG = 64; RING = 96 if mim else 128
        assert RING + 4 * R <= 256
        a("""s_sub_u32 s52, s2, 256
        s_lshr_b32 s49, s52, 3
        s_and_b32 s50, s52, 7
        s_lshl_b32 s52, s49, 21
        s_add_u32 s54, s6, s52
        s_addc_u32 s55, s7, 0
        s_add_u32 s56, s8, s52
        s_addc_u32 s57, s9, 0""")
        self.srd(40, "s54", "s55", 0x200000); self.srd(44, "s56", "s57", 0x200000)
        a("""s_lshl_b32 s48, s50, 2
        s_add_u32 s48, s48, s3
        s_lshl_b32 s48, s48, 12
        s_lshl_b32 s52, s49, 16
        s_add_u32 s48, s48, s52
        v_lshlrev_b32 v1, 4, v0""")
        def ring(j): return RING + 4 * (j % R)
        def issue(j):
            n = (j % 64) // 4
            if j % 4 == 0: a(f"s_add_u32 s51, s48, {n*131072}\ns_and_b32 s51, s51, 0x1fffff")
            srd = "s[40:43]" if j < 64 else "s[44:47]"
            a(f"buffer_load_dwordx4 v[{ring(j)}:{ring(j)+3}], v1, {srd}, s51 offen offset:{(j%4)*1024} nt", tag=('kv', j))
        def qissue():
            for h in range(2):
                for k in range(2):
                    a(f"buffer_load_dwordx4 v[{10+8*h+4*k}:{13+8*h+4*k}], v29, s[36:39], 0 offen offset:{512*h+16*k} sc1", tag='pg')
        I = 0
        while I < W: issue(I); I += 1
        self.sels()
        a(f"s_lshl_b32 s52, s49, 10\ns_add_u32 s52, s52, {Q}\nv_and_b32 v29, 15, v0\nv_lshlrev_b32 v29, 5, v29\nv_add_u32 v29, s52, v29")
        a(f"v_mov_b32 v26, {NEGINF}\nv_mov_b32 v27, 0\nv_mov_b32 v32, 0\nv_mov_b32 v33, 0\nv_mov_b32 v34, 0\nv_mov_b32 v35, 0")
        self.acc_addr(30, 48)
        self.get_tag()
        while I < c['ICHK']:
            if I == c['IQ']: qissue()
            a.wait_vm_n(W - 1 + (4 if c['IQ'] <= I < c['IQ'] + W else 0)); issue(I); I += 1
        self.stamp(1)
        self.poll_granules(qissue, [11, 13, 15, 17, 19, 21, 23, 25], 48, 1, first_issued=True)
        self.stamp(2)
        C = 0
        def landed(j): return ('kv', j) not in a.vm
        def consumeK(n):
            K = [ring(4 * n + t) for t in range(4)]
            if mim:
                U = [44, 45, 46, 47]
                self.qk_group(K, 10, 36, U)
                a("v_cvt_pk_bf16_f32 v48, v44, v45\nv_cvt_pk_bf16_f32 v50, v46, v47\nv_max3_f32 v26, v26, v44, v45")
                a("v_and_b32 v49, 0xffff0000, v48\nv_lshlrev_b32 v48, 16, v48\nv_and_b32 v51, 0xffff0000, v50\nv_lshlrev_b32 v50, 16, v50")
                a("v_max3_f32 v26, v26, v46, v47")
                for r in (48, 49, 50, 51): a(f"v_mul_f32 v{r}, {SCALE}, v{r}")
                a(f"v_cvt_pk_bf16_f32 v{SREG+2*n}, v48, v49\nv_cvt_pk_bf16_f32 v{SREG+2*n+1}, v50, v51")
            else:
                U = [SREG + 4 * n + t for t in range(4)]
                self.qk_group(K, 10, 36, U)
                a(f"v_max3_f32 v26, v26, v{U[0]}, v{U[1]}\nv_max3_f32 v26, v26, v{U[2]}, v{U[3]}")
        def finishK():
            self.redrows(26, 48, "v_max_f32")
            if mim:
                self.round_scaled(26, 48)
                a(f"v_mul_f32 v26, {LOG2E}, v26\ns_mov_b32 s58, {LOG2E}")
            else:
                a(f"v_mul_f32 v26, {SCL2E}, v26\ns_mov_b32 s58, {SCL2E}")
            self.stamp(3)
        def prepV(n):
            if mim:
                a(f"v_lshlrev_b32 v60, 16, v{SREG+n}\nv_and_b32 v61, 0xffff0000, v{SREG+n}")
                a("v_fma_f32 v60, v60, s58, -v26\nv_fma_f32 v61, v61, s58, -v26")
            else:
                a(f"v_fma_f32 v60, v{SREG+2*n}, s58, -v26\nv_fma_f32 v61, v{SREG+2*n+1}, s58, -v26")
            a("v_exp_f32 v60, v60\nv_exp_f32 v61, v61\nv_add_f32 v27, v27, v60\nv_cvt_pk_bf16_f32 v62, v60, v61\nv_add_f32 v27, v27, v61")
            self.bop(52, 62, 2); self.bop(56, 62, 6)
        def consumeV(n):
            prepV(n)
            for k in range(2):
                j = 64 + 2 * n + k
                a.wait_vm(('kv', j))
                a(f"v_mfma_f32_16x16x32_bf16 v[32:35], v[{ring(j)}:{ring(j)+3}], v[{52+4*k}:{55+4*k}], v[32:35]")
        def unit_last(C): return C + 3 if C < 64 else C + 1
        def consume():
            nonlocal C
            if C < 64:
                a.wait_vm(('kv', C + 3)); consumeK(C // 4); C += 4
                if C == 64: finishK()
            else:
                if C == 64 + c['early']:
                    Ls = a.newlabel("L_noearly")
                    a(f"s_cmp_lg_u32 s3, 0\ns_cbranch_scc1 {Ls}")
                    a(f"s_sub_u32 s52, s2, 256\ns_lshl_b32 s52, s52, 7\ns_add_u32 s52, s52, {FE}\nv_mov_b32 v48, s35\nv_mov_b32 v49, 0\ns_mov_b64 exec, 1")
                    a("buffer_store_dword v48, v49, s[36:39], s52 offen sc1")
                    a.vm.pop()
                    a(f"s_mov_b64 exec, -1\n{Ls}:")
                    self.extra = True
                consumeV((C - 64) // 2); C += 2
        while C < 128:
            if I < 128 and I - R < C:
                a.wait_vm_n(W - 1); issue(I); I += 1
                k = 0
                while C < 128 and k < c['burst'] and landed(unit_last(C)) and unit_last(C) < I: consume(); k += 1
            else:
                consume()
        self.stamp(4)
        self.redrows(27, 48, "v_add_f32")
        a("v_lshlrev_b32 v48, 4, v0\ns_lshl_b32 s52, s3, 10\nv_add_u32 v48, s52, v48")
        a("v_bfe_u32 v49, v0, 3, 1\nv_lshlrev_b32 v49, 5, v49\ns_lshl_b32 s52, s3, 3\ns_add_u32 s52, s52, 4096\nv_add_u32 v49, s52, v49")
        a("ds_write_b64 v49, v[26:27]\nds_write_b128 v48, v[32:35]")
        a(f"""s_lshr_b32 s52, s3, 1
        s_lshl_b32 s54, s49, 1
        s_add_u32 s52, s52, s54
        s_lshl_b32 s52, s52, 3
        s_add_u32 s52, s52, s50
        s_mul_i32 s52, s52, 1152
        s_add_u32 s52, s52, {REC}
        s_and_b32 s54, s3, 1
        s_lshl_b32 s55, s54, 9
        v_lshlrev_b32 v50, 3, v0
        v_add_u32 v50, s55, v50
        s_lshr_b32 s55, s3, 1
        s_lshl_b32 s55, s55, 5
        s_add_u32 s55, s55, 4096
        v_mov_b32 v51, s55""")
        a.wait_lg(); a("s_barrier")
        a("ds_read_b128 v[36:39], v51\nds_read_b128 v[40:43], v51 offset:16")
        for w in range(4): a(f"ds_read_b32 v{44+w}, v30 offset:{1024*w}")
        a.wait_lg()
        a("v_max3_f32 v52, v36, v38, v40\nv_max_f32 v52, v52, v42")
        for w in range(4): a(f"v_sub_f32 v{36+2*w}, v{36+2*w}, v52")
        for w in range(4): a(f"v_exp_f32 v{36+2*w}, v{36+2*w}")
        a("v_mul_f32 v53, v36, v37\nv_mul_f32 v54, v36, v44")
        for w in range(1, 4): a(f"v_fmac_f32 v53, v{36+2*w}, v{37+2*w}\nv_fmac_f32 v54, v{36+2*w}, v{44+w}")
        a("v_rcp_f32 v55, v53\nv_log_f32 v56, v53\nv_mov_b32 v59, s35\nv_mov_b32 v57, s35\nv_mul_f32 v58, v54, v55\nv_add_f32 v56, v56, v52")
        a("buffer_store_dwordx2 v[58:59], v50, s[36:39], s52 offen sc1")
        Ls = a.newlabel("L_nostat")
        a(f"s_cmp_lg_u32 s54, 0\ns_cbranch_scc1 {Ls}\ns_mov_b64 exec, 1")
        a("buffer_store_dwordx2 v[56:57], v50, s[36:39], s52 offen offset:1024 sc1")
        a(f"s_mov_b64 exec, -1\n{Ls}:")
        self.stamp(5)

    def s1(self):
        a = self.a
        a("s_cmp_ge_u32 s2, 64\ns_cselect_b32 s54, s18, s10\ns_cselect_b32 s55, s19, s11")
        self.srd(40, "s54", "s55", 576 * 8192)
        self.srd(44, "s4", "s5", 2304)
        a("""v_lshrrev_b32 v48, 4, v0
        v_mul_u32_u24 v49, 36, v48
        v_bfe_u32 v50, v0, 3, 1
        v_add_u32 v51, v49, v50
        s_mul_i32 s52, s3, 144
        v_add_u32 v51, s52, v51
        v_lshlrev_b32 v28, 13, v51
        v_and_b32 v51, 7, v0
        v_lshl_add_u32 v28, v51, 4, v28
        s_and_b32 s54, s2, 63
        s_lshl_b32 s54, s54, 7
        v_add_u32 v28, s54, v28""")
        for t in range(18):
            a(f"s_mov_b32 s51, {t*16384}\nbuffer_load_dwordx4 v[{64+4*t}:{67+4*t}], v28, s[40:43], s51 offen nt", tag=('w', t))
            if t == 1:
                a("v_mul_u32_u24 v29, 1152, v50\nv_lshl_add_u32 v29, v49, 1, v29\ns_lshl_b32 s52, s52, 1\nv_add_u32 v29, s52, v29")
                for k in range(4): a(f"buffer_load_dwordx4 v[{10+4*k}:{13+4*k}], v29, s[44:47], 0 offen offset:{16*k}", tag='x')
                a("buffer_load_dwordx2 v[26:27], v29, s[44:47], 0 offen offset:64", tag='x')
        self.sels()
        for r in range(32, 40): a(f"v_mov_b32 v{r}, 0")
        self.get_tag()
        a.wait_vm('x')
        for t in range(18):
            self.bop(40, 10 + t, 2); self.bop(44, 10 + t, 6)
            a.wait_vm(('w', t))
            a(f"v_mfma_f32_16x16x32_bf16 v[32:35], v[{64+4*t}:{67+4*t}], v[40:43], v[32:35]")
            a(f"v_mfma_f32_16x16x32_bf16 v[36:39], v[{64+4*t}:{67+4*t}], v[44:47], v[36:39]")
        a("v_cmp_lt_u32 vcc, 31, v0\nv_lshlrev_b32 v48, 4, v0\ns_lshl_b32 s52, s3, 10\nv_add_u32 v48, s52, v48")
        for r in range(4): a(f"v_cndmask_b32 v{32+r}, v{32+r}, v{36+r}, vcc")
        a("ds_write_b128 v48, v[32:35]")
        a.wait_lg(); a("s_barrier")
        Ls = a.newlabel("L_s1skip")
        a(f"s_cmp_lg_u32 s3, 0\ns_cbranch_scc1 {Ls}")
        a("""v_bfe_u32 v48, v0, 4, 1
        v_lshlrev_b32 v48, 8, v48
        v_lshrrev_b32 v49, 5, v0
        v_lshl_add_u32 v48, v49, 7, v48
        v_and_b32 v50, 3, v0
        v_lshl_add_u32 v48, v50, 5, v48
        v_bfe_u32 v50, v0, 2, 2
        v_lshl_add_u32 v48, v50, 2, v48""")
        for s in range(8):
            a(f"ds_read_b32 v{10+2*s}, v48 offset:{512*s}\nds_read_b32 v{11+2*s}, v48 offset:{512*s+16}")
            if s == 5: a.wait_lg()
        a(f"""s_lshr_b32 s52, s2, 6
        s_lshl_b32 s52, s52, 15
        s_and_b32 s54, s2, 63
        s_lshl_b32 s54, s54, 8
        s_add_u32 s52, s52, s54
        s_add_u32 s52, s52, {Q}
        v_and_b32 v50, 31, v0
        v_lshlrev_b32 v50, 3, v50
        v_lshl_add_u32 v50, v49, 14, v50
        v_mov_b32 v53, s35""")
        a.wait_lg()
        for s in range(1, 8): a(f"v_add_f32 v10, v10, v{10+2*s}\nv_add_f32 v11, v11, v{11+2*s}")
        a("v_cvt_pk_bf16_f32 v52, v10, v11\nbuffer_store_dwordx2 v[52:53], v50, s[36:39], s52 offen sc1")
        a.vm.pop()
        a(f"{Ls}:")
        self.stamp(1)

    def s2(self):
        a = self.a
        self.srd(40, "s20", "s21", 512 * 8192)
        a("""s_sub_u32 s48, s2, 128
        s_lshr_b32 s49, s48, 4
        s_and_b32 s50, s48, 15
        s_lshl_b32 s52, s50, 1
        s_lshr_b32 s54, s3, 1
        s_add_u32 s52, s52, s54
        s_lshl_b32 s52, s52, 17
        s_lshl_b32 s54, s49, 1
        s_and_b32 s55, s3, 1
        s_add_u32 s54, s54, s55
        s_lshl_b32 s55, s54, 10
        s_add_u32 s52, s52, s55
        v_lshlrev_b32 v28, 4, v0
        v_add_u32 v28, s52, v28""")
        for t in range(16):
            a(f"s_mov_b32 s51, {t*8192}\nbuffer_load_dwordx4 v[{64+4*t}:{67+4*t}], v28, s[40:43], s51 offen nt", tag=('w', t))
        a(f"""s_lshl_b32 s54, s54, 11
        s_add_u32 s54, s54, {Q + 32768}
        v_lshrrev_b32 v48, 4, v0
        v_lshlrev_b32 v29, 9, v48
        v_and_b32 v49, 15, v0
        v_lshl_add_u32 v29, v49, 5, v29
        v_add_u32 v29, s54, v29
        s_mov_b32 s56, 16384""")
        a("""v_bfe_u32 v50, v0, 3, 1
        v_lshlrev_b32 v30, 9, v50
        v_and_b32 v50, 7, v0
        v_lshl_add_u32 v30, v50, 7, v30
        v_lshl_add_u32 v30, v48, 4, v30
        s_lshr_b32 s52, s3, 1
        s_lshl_b32 s52, s52, 8
        s_and_b32 s55, s3, 1
        s_lshl_b32 s55, s55, 6
        s_add_u32 s52, s52, s55
        v_add_u32 v30, s52, v30
        v_lshlrev_b32 v51, 4, v0
        v_add_u32 v51, 2048, v51
        v_cmp_lt_u32 vcc, 1, v50
        v_cndmask_b32 v30, v30, v51, vcc""")
        self.get_tag()
        def qissue():
            for b in range(2):
                for k in range(2):
                    so = "s56" if b else "0"
                    a(f"buffer_load_dwordx4 v[{10+8*b+4*k}:{13+8*b+4*k}], v29, s[36:39], {so} offen offset:{16*k} sc1", tag='pg')
        self.poll_granules(qissue, [11, 13, 15, 17, 19, 21, 23, 25], 48, 2, sleep=2)
        self.stamp(1)
        for n in range(4):
            self.qk_group([64 + 16 * n + 4 * t for t in range(4)], 10, 36, [128 + 4 * n + t for t in range(4)])
        for k in range(8): a(f"v_cvt_pk_bf16_f32 v{144+k}, v{128+2*k}, v{129+2*k}")
        a("v_and_b32 v50, 7, v0\nv_cmp_eq_u32 vcc, 1, v50")
        for k in range(4): a(f"v_cndmask_b32 v{144+k}, v{144+k}, v{148+k}, vcc")
        a("ds_write_b128 v30, v[144:147]")
        a.wait_lg(); a("s_barrier")
        Ls = a.newlabel("L_s2skip")
        a(f"s_cmp_lg_u32 s3, 0\ns_cbranch_scc1 {Ls}")
        a("v_lshlrev_b32 v48, 4, v0\nds_read_b128 v[52:55], v48")
        a(f"""v_lshrrev_b32 v49, 5, v0
        v_lshlrev_b32 v49, 15, v49
        v_bfe_u32 v50, v0, 3, 2
        v_lshl_add_u32 v49, v50, 10, v49
        v_and_b32 v50, 7, v0
        v_lshl_add_u32 v49, v50, 4, v49
        s_lshr_b32 s52, s49, 1
        s_lshl_b32 s52, s52, 14
        s_and_b32 s54, s50, 3
        s_lshl_b32 s54, s54, 12
        s_add_u32 s52, s52, s54
        s_lshr_b32 s54, s50, 2
        s_lshl_b32 s54, s54, 8
        s_add_u32 s52, s52, s54
        s_and_b32 s54, s49, 1
        s_lshl_b32 s54, s54, 7
        s_add_u32 s52, s52, s54
        s_add_u32 s52, s52, {QABS}
        s_lshl_b32 s54, s48, 7
        s_add_u32 s54, s54, {FQ}
        v_mov_b32 v50, s35
        v_mov_b32 v51, 0""")
        a.wait_lg()
        a("buffer_store_dwordx4 v[52:55], v49, s[36:39], s52 offen sc1\ns_waitcnt vmcnt(0)\ns_mov_b64 exec, 1")
        a("buffer_store_dword v50, v51, s[36:39], s54 offen sc1\ns_mov_b64 exec, -1")
        a(f"{Ls}:")
        a.vm = []
        self.stamp(2)

    def role_B(self):
        a = self.a; c = self.c; mim = c['mimicB']
        PL = 65536; ML = PL + 2560; LL = ML + 256
        QR = 64; ACC = 128; SA = 192; TA = 208; DV = 216; STG = 220
        a("""s_sub_u32 s48, s2, 192
        s_lshr_b32 s49, s48, 5
        s_and_b32 s50, s48, 31
        s_lshl_b32 s52, s49, 23
        s_add_u32 s54, s16, s52
        s_addc_u32 s55, s17, 0""")
        self.srd(40, "s54", "s55", 0x800000)
        a("v_lshrrev_b32 v48, 4, v0\nv_and_b32 v49, 15, v0\ns_lshl_b32 s52, s3, 8\nv_lshlrev_b32 v50, 10, v48\nv_add_u32 v50, s52, v50")
        for q in range(4):
            a(f"v_add_u32 v51, {4*q}, v48\nv_xor_b32 v51, v51, v49\nv_lshl_add_u32 v{DV+q}, v51, 4, v50")
        a(f"s_lshl_b32 s60, s3, 13\ns_mul_i32 s62, s49, {c['rotb']}\ns_lshl_b32 s62, s62, 20\ns_lshl_b32 s52, s50, 15\ns_add_u32 s62, s62, s52")
        def dma(buf):
            a("s_and_b32 s62, s62, 0x7fffff")
            for q in range(8):
                a(f"s_add_u32 m0, s60, {buf*32768 + q*1024}\ns_add_u32 s51, s62, {q*4096}")
                a(f"buffer_load_dwordx4 v{DV + (q & 3)}, s[40:43], s51 offen nt lds", tag=('d', buf))
            a("s_add_u32 s62, s62, 0x100000")
        dma(0); dma(1)
        a("""v_and_b32 v50, 3, v0
        v_lshlrev_b32 v50, 2, v50
        v_bfe_u32 v51, v0, 2, 2
        v_add_u32 v50, v50, v51
        v_mul_u32_u24 v50, 272, v50
        v_lshl_add_u32 v50, v48, 13, v50
        s_and_b32 s52, s3, 1
        s_lshl_b32 s52, s52, 12
        v_add_u32 v50, s52, v50""")
        for ks in range(16): a(f"v_xor_b32 v{SA+ks}, {16*ks}, v50")
        a("""v_bfe_u32 v50, v0, 2, 2
        v_lshlrev_b32 v50, 2, v50
        v_lshrrev_b32 v51, 5, v0
        v_lshl_add_u32 v50, v51, 1, v50
        v_bfe_u32 v51, v0, 4, 1
        v_lshlrev_b32 v51, 1, v51
        v_bfe_u32 v52, v0, 1, 1
        v_add_u32 v51, v51, v52
        v_and_b32 v52, 1, v0
        v_lshlrev_b32 v52, 3, v52
        v_add_u32 v52, s60, v52""")
        for hi in range(2):
            a(f"v_add_u32 v53, {hi}, v50\nv_xor_b32 v54, v53, v51\nv_lshl_add_u32 v54, v54, 4, v52\nv_lshl_add_u32 v54, v53, 8, v54")
            for cb in range(4): a(f"v_xor_b32 v{TA + 2*cb + hi}, {64*cb}, v54")
        a(f"""s_lshr_b32 s52, s3, 1
        s_lshl_b32 s52, s52, 4
        v_add_u32 v50, s52, v49
        v_mul_u32_u24 v2, 80, v50
        v_lshl_add_u32 v2, v48, 3, v2
        s_and_b32 s54, s3, 1
        s_lshl_b32 s55, s54, 5
        s_add_u32 s55, s55, {PL}
        v_add_u32 v2, s55, v2
        v_and_b32 v51, 31, v0
        v_mul_u32_u24 v3, 80, v51
        v_lshrrev_b32 v52, 5, v0
        v_lshl_add_u32 v3, v52, 4, v3
        v_add_u32 v3, {PL}, v3
        v_lshlrev_b32 v5, 2, v50
        v_add_u32 v5, {ML}, v5
        s_lshl_b32 s55, s54, 7
        v_add_u32 v4, s55, v5
        v_lshlrev_b32 v6, 2, v51
        v_add_u32 v6, {ML}, v6
        v_mov_b32 v7, {NEGINF}
        v_mov_b32 v8, {NEGINF}
        v_mov_b32 v9, 0
        v_lshlrev_b32 v28, 7, v0
        v_add_u32 v28, {FQ}, v28
        s_mov_b32 s58, {LOG2E if mim else SCL2E}""")
        for r in range(64): a(f"v_mov_b32 v{ACC+r}, 0")
        self.get_tag()
        self.poll_flags(28, 3, 2)
        self.stamp(1)
        a(f"s_lshl_b32 s52, s49, 1\ns_lshr_b32 s54, s3, 1\ns_add_u32 s52, s52, s54\ns_lshl_b32 s52, s52, 14\ns_add_u32 s52, s52, {QABS}\nv_lshlrev_b32 v29, 4, v0")
        for ks in range(16):
            if ks % 4 == 0 and ks: a("s_add_u32 s52, s52, 4096")
            a(f"buffer_load_dwordx4 v[{QR+4*ks}:{QR+4*ks+3}], v29, s[36:39], s52 offen offset:{(ks%4)*1024} sc1", tag='q')
        a.wait_vm()
        self.stamp(2)
        a("s_mov_b32 s61, 0")
        Lloop = a.newlabel("L_btile")
        a(f"{Lloop}:")
        def tile(buf):
            bo = buf * 32768
            if buf == 0: a("s_waitcnt vmcnt(8)")
            else:
                L1 = a.newlabel("L_bw"); L2 = a.newlabel("L_bw")
                a(f"s_cmp_eq_u32 s61, 3\ns_cbranch_scc1 {L1}\ns_waitcnt vmcnt(8)\ns_branch {L2}\n{L1}:\ns_waitcnt vmcnt(0)\n{L2}:")
            a("s_barrier")
            for r in range(4): a(f"v_mov_b32 v{32+r}, 0")
            for ks in range(8): a(f"ds_read_b128 v[{STG+4*ks}:{STG+4*ks+3}], v{SA+ks} offset:{bo}", tag=('s', ks))
            for ks in range(16):
                a.wait_lg(('s', ks))
                s = STG + 4 * (ks % 8)
                a(f"v_mfma_f32_16x16x32_bf16 v[32:35], v[{s}:{s+3}], v[{QR+4*ks}:{QR+4*ks+3}], v[32:35]")
                if ks + 8 < 16: a(f"ds_read_b128 v[{s}:{s+3}], v{SA+ks+8} offset:{bo}", tag=('s', ks + 8))
            if mim:
                a("v_cvt_pk_bf16_f32 v36, v32, v33\nv_cvt_pk_bf16_f32 v38, v34, v35")
                a("v_and_b32 v37, 0xffff0000, v36\nv_lshlrev_b32 v36, 16, v36\nv_and_b32 v39, 0xffff0000, v38\nv_lshlrev_b32 v38, 16, v38")
                for r in (36, 37, 38, 39): a(f"v_mul_f32 v{r}, {SCALE}, v{r}")
                a("v_cvt_pk_bf16_f32 v36, v36, v37\nv_cvt_pk_bf16_f32 v38, v38, v39")
                a("v_lshlrev_b32 v32, 16, v36\nv_and_b32 v33, 0xffff0000, v36\nv_lshlrev_b32 v34, 16, v38\nv_and_b32 v35, 0xffff0000, v38")
            a("v_max3_f32 v36, v32, v33, v34\nv_max_f32 v36, v36, v35")
            self.redrows(36, 37, "v_max_f32")
            a("ds_write_b32 v4, v36")
            a.wait_lg(); a("s_barrier")
            a("ds_read2_b32 v[36:37], v5 offset1:32\nds_read2_b32 v[38:39], v6 offset1:32")
            a.wait_lg()
            a("v_max3_f32 v36, v36, v37, v7\nv_max3_f32 v38, v38, v39, v8")
            a("v_sub_f32 v40, v7, v36\nv_sub_f32 v41, v8, v38\nv_mul_f32 v37, s58, v36\nv_mul_f32 v40, s58, v40\nv_mul_f32 v42, s58, v41")
            for r in range(4): a(f"v_fma_f32 v{32+r}, v{32+r}, s58, -v37")
            a("v_exp_f32 v40, v40\nv_exp_f32 v42, v42")
            for r in range(4): a(f"v_exp_f32 v{32+r}, v{32+r}")
            a("v_mov_b32 v7, v36\nv_mov_b32 v8, v38\nv_cvt_pk_bf16_f32 v44, v32, v33\nv_cvt_pk_bf16_f32 v45, v34, v35")
            a("ds_write_b64 v2, v[44:45]")
            a("v_fma_f32 v9, v9, v40, v32\nv_add_f32 v33, v33, v34\nv_add_f32 v9, v9, v35\nv_add_f32 v9, v9, v33")
            Lk = a.newlabel("L_keep")
            a(f"v_cmp_neq_f32 vcc, 0, v41\nv_mov_b32 v43, v42\ns_cbranch_vccz {Lk}")
            for r in range(0, 64, 2): a(f"v_pk_mul_f32 v[{ACC+r}:{ACC+r+1}], v[{ACC+r}:{ACC+r+1}], v[42:43]")
            a(f"{Lk}:")
            a.wait_lg(); a("s_barrier")
            a("ds_read_b128 v[36:39], v3\nds_read_b128 v[40:43], v3 offset:32", tag='p')
            seq = [(s, cb) for s in range(2) for cb in range(4)]
            def trd(i):
                s, cb = seq[i]
                for hi in range(2):
                    a(f"ds_read_b64_tr_b16 v[{STG+4*i+2*hi}:{STG+4*i+2*hi+1}], v{TA+2*cb+hi} offset:{bo + 4096*s}", tag=('t', i))
            for i in range(6): trd(i)
            for i in range(8):
                s, cb = seq[i]
                a.wait_lg(('t', i))
                a(f"v_mfma_f32_32x32x16_bf16 v[{ACC+16*cb}:{ACC+16*cb+15}], v[{STG+4*i}:{STG+4*i+3}], v[{36+4*s}:{39+4*s}], v[{ACC+16*cb}:{ACC+16*cb+15}]")
                if i + 6 < 8: trd(i + 6)
            Ln = a.newlabel("L_norefill")
            a(f"s_cmp_eq_u32 s61, 3\ns_cbranch_scc1 {Ln}")
            dma(buf)
            a(f"{Ln}:")
        tile(0); tile(1)
        a(f"s_add_u32 s61, s61, 1\ns_cmp_lg_u32 s61, 4\ns_cbranch_scc1 {Lloop}")
        a.vm = []
        self.stamp(3)
        self.redrows(9, 37, "v_add_f32")
        a("ds_write_b32 v4, v9 offset:256")
        a.wait_lg(); a("s_barrier")
        a("ds_read2_b32 v[36:37], v6 offset0:64 offset1:96")
        a("""v_and_b32 v48, 15, v0
        v_mul_u32_u24 v48, 272, v48
        v_bfe_u32 v49, v0, 4, 1
        v_lshl_add_u32 v48, v49, 15, v48
        v_lshrrev_b32 v49, 5, v0
        v_lshl_add_u32 v48, v49, 3, v48
        v_add_u32 v48, s60, v48
        v_lshrrev_b32 v49, 4, v0
        v_mul_u32_u24 v50, 272, v49
        v_and_b32 v51, 15, v0
        v_lshl_add_u32 v50, v51, 4, v50
        v_add_u32 v50, s60, v50
        v_lshlrev_b32 v52, 10, v49
        v_lshl_add_u32 v52, v51, 4, v52""")
        a(f"s_lshl_b32 s52, s48, 15\ns_lshl_b32 s54, s3, 8\ns_add_u32 s52, s52, s54\ns_add_u32 s52, s52, {PB}")
        a.wait_lg()
        a("v_add_f32 v36, v36, v37\nv_rcp_f32 v38, v36\nv_log_f32 v40, v36\nv_mov_b32 v39, v38\nv_fma_f32 v40, v8, s58, v40")
        for cb in range(4):
            for rq in range(4):
                r = ACC + 16 * cb + 4 * rq
                t = STG + 2 * ((4 * cb + rq) % 8)
                a(f"v_pk_mul_f32 v[{r}:{r+1}], v[{r}:{r+1}], v[38:39]\nv_pk_mul_f32 v[{r+2}:{r+3}], v[{r+2}:{r+3}], v[38:39]")
                a(f"v_cvt_pk_bf16_f32 v{r}, v{r}, v{r+1}\nv_cvt_pk_bf16_f32 v{r+1}, v{r+2}, v{r+3}")
                a(f"ds_write_b64 v48, v[{r}:{r+1}] offset:{64*cb + 16*rq}")
                if (4 * cb + rq) % 8 == 7: a.wait_lg()
        for n in range(8):
            a(f"ds_read_b128 v[{STG+4*n}:{STG+4*n+3}], v50 offset:{(n % 4)*4*272 + (n // 4)*32768}", tag=('r', n))
        for n in range(8):
            a.wait_lg(('r', n))
            a(f"buffer_store_dwordx4 v[{STG+4*n}:{STG+4*n+3}], v52, s[36:39], s52 offen sc1\ns_add_u32 s52, s52, 4096")
        Ls = a.newlabel("L_nopbs")
        a(f"s_cmp_lg_u32 s3, 0\ns_cbranch_scc1 {Ls}")
        a(f"s_lshl_b32 s52, s48, 7\ns_add_u32 s52, s52, {PBS}\nv_lshlrev_b32 v48, 2, v0\ns_mov_b32 exec_hi, 0")
        a(f"buffer_store_dword v40, v48, s[36:39], s52 offen sc1\ns_mov_b64 exec, -1\n{Ls}:")
        a("s_waitcnt vmcnt(0)\ns_barrier"); a.vm = []
        Ls = a.newlabel("L_nofb")
        a(f"s_cmp_lg_u32 s3, 0\ns_cbranch_scc1 {Ls}")
        a(f"s_lshl_b32 s52, s48, 7\ns_add_u32 s52, s52, {FB}\nv_mov_b32 v48, s35\nv_mov_b32 v49, 0\ns_mov_b64 exec, 1")
        a(f"buffer_store_dword v48, v49, s[36:39], s52 offen sc1\ns_mov_b64 exec, -1\n{Ls}:")
        a.vm = []
        self.stamp(4)

    def tb1_prefetch(self):
        a = self.a
        self.srd(40, "s22", "s23", 512 * 8192)
        a("""s_and_b32 s52, s2, 3
        s_lshl_b32 s52, s52, 2
        s_add_u32 s52, s52, s3
        s_lshl_b32 s52, s52, 18
        s_lshr_b32 s54, s2, 2
        s_lshl_b32 s54, s54, 8
        s_add_u32 s52, s52, s54
        v_lshrrev_b32 v48, 4, v0
        v_lshlrev_b32 v28, 16, v48
        v_and_b32 v49, 15, v0
        v_lshl_add_u32 v28, v49, 4, v28
        v_add_u32 v28, s52, v28""")
        for t in range(8):
            a(f"s_mov_b32 s51, {t*8192}\nbuffer_load_dwordx4 v[{136+4*t}:{139+4*t}], v28, s[40:43], s51 offen nt", tag=('uv', t))
    def tb1(self):
        a = self.a
        self.sels()
        a(f"v_lshlrev_b32 v28, 7, v0\nv_add_u32 v28, {FB}, v28")
        a(f"""v_and_b32 v48, 15, v0
        v_bfe_u32 v49, v0, 3, 1
        v_and_b32 v50, 7, v0
        v_lshlrev_b32 v50, 2, v50
        v_lshl_add_u32 v50, v49, 5, v50
        v_lshlrev_b32 v29, 7, v50
        v_lshlrev_b32 v31, 15, v50
        v_lshrrev_b32 v48, 4, v0
        v_lshl_add_u32 v31, v48, 4, v31
        s_lshr_b32 s54, s2, 2
        s_lshl_b32 s55, s54, 2
        s_add_u32 s55, s55, {PBS}
        s_lshl_b32 s56, s54, 10
        s_and_b32 s57, s2, 3
        s_lshl_b32 s57, s57, 2
        s_add_u32 s57, s57, s3
        s_lshl_b32 s57, s57, 6
        s_add_u32 s56, s56, s57
        s_add_u32 s56, s56, {PB}""")
        for r in range(32, 36): a(f"v_mov_b32 v{r}, 0")
        self.acc_addr(30, 48)
        self.poll_flags(28, 4, self.c['sleep_long'])
        self.stamp(2)
        for n in range(4): a(f"buffer_load_dword v{36+n}, v29, s[36:39], s55 offen offset:{128*n} sc1", tag='st')
        for n in range(4): a(f"buffer_load_dwordx4 v[{64+4*n}:{67+4*n}], v31, s[36:39], s56 offen sc1\ns_add_u32 s56, s56, 32768", tag=('pb', n))
        a.wait_vm('st')
        a("v_max3_f32 v40, v36, v37, v38\nv_max_f32 v40, v40, v39")
        self.red8([40], "v_max_f32")
        for n in range(4): a(f"v_sub_f32 v{36+n}, v{36+n}, v40")
        for n in range(4): a(f"v_exp_f32 v{36+n}, v{36+n}")
        a("v_add_f32 v40, v36, v37\nv_add_f32 v41, v38, v39\nv_add_f32 v40, v40, v41")
        self.red8([40], "v_add_f32")
        a("v_rcp_f32 v40, v40")
        for n in range(4): a(f"v_mul_f32 v{36+n}, v{36+n}, v40")
        for n in range(4):
            a.wait_vm(('pb', n))
            for k in range(4):
                a(f"v_lshlrev_b32 v40, 16, v{64+4*n+k}\nv_and_b32 v41, 0xffff0000, v{64+4*n+k}")
                if n == 0: a(f"v_mul_f32 v{10+2*k}, v36, v40\nv_mul_f32 v{11+2*k}, v36, v41")
                else: a(f"v_fmac_f32 v{10+2*k}, v{36+n}, v40\nv_fmac_f32 v{11+2*k}, v{36+n}, v41")
        self.red8(list(range(10, 18)), "v_add_f32")
        for k in range(4): a(f"v_cvt_pk_bf16_f32 v{20+k}, v{10+2*k}, v{11+2*k}")
        for k in range(4):
            self.bop(40, 20 + k, 2); self.bop(44, 20 + k, 6)
            a(f"v_mfma_f32_16x16x32_bf16 v[32:35], v[{136+8*k}:{139+8*k}], v[40:43], v[32:35]")
            a(f"v_mfma_f32_16x16x32_bf16 v[32:35], v[{140+8*k}:{143+8*k}], v[44:47], v[32:35]")
        a("v_lshlrev_b32 v48, 4, v0\ns_lshl_b32 s52, s3, 10\nv_add_u32 v48, s52, v48")
        a(f"""s_lshr_b32 s52, s3, 1
        s_lshl_b32 s52, s52, 5
        s_lshr_b32 s54, s2, 2
        s_add_u32 s52, s52, s54
        s_add_u32 s52, s52, 64
        s_lshl_b32 s52, s52, 3
        s_and_b32 s55, s2, 3
        s_add_u32 s52, s52, s55
        s_mul_i32 s52, s52, 1152
        s_add_u32 s52, s52, {REC}
        s_and_b32 s54, s3, 1
        s_lshl_b32 s55, s54, 9
        v_lshlrev_b32 v50, 3, v0
        v_add_u32 v50, s55, v50
        v_mov_b32 v59, s35
        v_mov_b32 v57, s35
        v_mov_b32 v56, 0""")
        a("ds_write_b128 v48, v[32:35]")
        a.wait_lg(); a("s_barrier")
        for w in range(4): a(f"ds_read_b32 v{44+w}, v30 offset:{1024*w}")
        a.wait_lg()
        a("v_add_f32 v44, v44, v45\nv_add_f32 v46, v46, v47\nv_add_f32 v58, v44, v46")
        a("buffer_store_dwordx2 v[58:59], v50, s[36:39], s52 offen sc1")
        Ls = a.newlabel("L_nostat")
        a(f"s_cmp_lg_u32 s54, 0\ns_cbranch_scc1 {Ls}\ns_mov_b64 exec, 1")
        a("buffer_store_dwordx2 v[56:57], v50, s[36:39], s52 offen offset:1024 sc1")
        a(f"s_mov_b64 exec, -1\n{Ls}:")
        a.vm = a.vm[:-2]
        self.stamp(3)

    def t_setup(self):
        a = self.a
        a("""s_cmp_ge_u32 s2, 96
        s_cselect_b32 s63, 1, 0
        s_cselect_b32 s54, s24, s12
        s_cselect_b32 s55, s25, s13
        s_cselect_b32 s66, 3, 7
        s_cselect_b32 s67, 4.0, 1.0
        s_mul_i32 s52, s63, 96
        s_sub_u32 s52, s2, s52
        s_mul_i32 s64, s52, 171
        s_lshr_b32 s64, s64, 9
        s_mul_i32 s65, s64, 3
        s_sub_u32 s65, s52, s65""")
        self.srd(44, "s54", "s55", 4096 * 1152)
        a("""s_lshl_b32 s52, s64, 2
        s_add_u32 s52, s52, s3
        s_mul_i32 s52, s52, 36864
        s_mul_i32 s54, s65, 384
        s_add_u32 s52, s52, s54
        v_lshrrev_b32 v48, 4, v0
        v_mul_u32_u24 v24, 9216, v48
        v_add_u32 v24, s52, v24
        v_bfe_u32 v49, v0, 3, 1
        v_mul_u32_u24 v25, 1152, v49
        v_add_u32 v25, v25, v24
        v_and_b32 v50, 7, v0
        v_lshl_add_u32 v25, v50, 4, v25
        v_add_u32 v25, 256, v25
        v_and_b32 v51, 15, v0
        v_lshl_add_u32 v24, v51, 4, v24""")
    def t_loads(self):
        a = self.a
        for t in range(8):
            a(f"s_mov_b32 s51, {t*1152}\nbuffer_load_dwordx4 v[{168+4*t}:{171+4*t}], v24, s[44:47], s51 offen nt", tag='tw')
            if t % 2 == 1:
                n = t // 2
                a(f"s_mov_b32 s51, {n*2304}\nbuffer_load_dwordx4 v[{200+4*n}:{203+4*n}], v25, s[44:47], s51 offen nt", tag='tw')
    def t_main(self, need_sels):
        a = self.a; c = self.c
        if need_sels: self.sels()
        self.t_setup()
        if not c['deferW']: self.t_loads()
        a(f"""v_bfe_u32 v49, v0, 3, 1
        v_lshlrev_b32 v29, 8, v49
        v_and_b32 v50, s66, v0
        v_add_u32 v29, v29, v50
        v_mul_u32_u24 v29, 1152, v29
        s_lshl_b32 s52, s63, 6
        s_add_u32 s52, s52, s64
        s_mul_i32 s52, s52, 9216
        s_add_u32 s52, s52, {REC}
        v_add_u32 v29, s52, v29
        v_lshrrev_b32 v48, 4, v0
        v_lshlrev_b32 v31, 6, v48
        s_lshl_b32 s52, s3, 8
        v_add_u32 v31, s52, v31
        v_add_u32 v31, v31, v29""")
        a(f"""v_lshlrev_b32 v28, 7, v49
        v_and_b32 v50, 7, v0
        v_add_u32 v28, v28, v50
        s_lshr_b32 s52, s64, 1
        s_lshl_b32 s52, s52, 3
        v_add_u32 v28, s52, v28
        v_lshlrev_b32 v28, 7, v28
        v_add_u32 v28, {FE}, v28""")
        for r in range(32, 44): a(f"v_mov_b32 v{r}, 0")
        self.acc_addr(30, 48)
        a("""v_and_b32 v26, 7, v0
        v_lshlrev_b32 v26, 4, v26
        v_bfe_u32 v48, v0, 3, 2
        v_lshl_add_u32 v26, v48, 2, v26
        v_lshrrev_b32 v48, 5, v0
        v_lshl_add_u32 v26, v48, 9, v26
        s_and_b32 s52, s3, 1
        s_lshl_b32 s52, s52, 8
        s_lshr_b32 s54, s3, 1
        s_lshl_b32 s54, s54, 7
        s_add_u32 s52, s52, s54
        s_add_u32 s52, s52, 12288
        v_add_u32 v26, s52, v26
        v_lshlrev_b32 v27, 4, v0
        s_lshl_b32 s52, s3, 10
        s_add_u32 s52, s52, 8192
        v_add_u32 v27, s52, v27""")
        a(f"""s_lshl_b32 s68, s63, 5
        s_add_u32 s68, s68, s64
        s_lshl_b32 s68, s68, 1
        s_lshr_b32 s54, s3, 1
        s_add_u32 s68, s68, s54
        s_mul_i32 s68, s68, 4608
        s_mul_i32 s54, s65, 1536
        s_add_u32 s68, s68, s54
        s_add_u32 s68, s68, {PO}
        s_and_b32 s54, s3, 1
        s_lshl_b32 s55, s54, 9
        v_lshlrev_b32 v22, 3, v0
        v_add_u32 v23, s55, v22
        s_lshl_b32 s55, s54, 8
        s_add_u32 s55, s55, 1024
        v_add_u32 v22, s55, v22""")
        self.poll_flags(28, 5, c['sleep_long'])
        self.stamp(4)
        if c['deferW']: self.t_loads()
        def gissue():
            for k in range(4): a(f"buffer_load_dwordx4 v[{64+4*k}:{67+4*k}], v31, s[36:39], 0 offen offset:{16*k} sc1", tag='pg')
            a("buffer_load_dwordx2 v[80:81], v29, s[36:39], 0 offen offset:1024 sc1", tag='pg')
        self.poll_granules(gissue, [65, 67, 69, 71, 73, 75, 77, 79, 81], 48, 6)
        self.stamp(5)
        a("v_mov_b32 v44, v80")
        self.red8([44], "v_max_f32")
        a("v_sub_f32 v44, v80, v44\nv_exp_f32 v44, v44\nv_mov_b32 v45, v44")
        self.red8([45], "v_add_f32")
        a("v_rcp_f32 v45, v45\nv_mul_f32 v44, s67, v44\nv_mul_f32 v44, v44, v45")
        for t in range(8): a(f"v_mul_f32 v{10+t}, v44, v{64+2*t}")
        self.red8(list(range(10, 18)), "v_add_f32")
        for k in range(4): a(f"v_cvt_pk_bf16_f32 v{18+k}, v{10+2*k}, v{11+2*k}")
        for k in range(4):
            self.bop(44, 18 + k, 2); self.bop(48, 18 + k, 6)
            a(f"v_mfma_f32_16x16x32_bf16 v[32:35], v[{168+8*k}:{171+8*k}], v[44:47], v[32:35]")
            a(f"v_mfma_f32_16x16x32_bf16 v[36:39], v[{200+4*k}:{203+4*k}], v[44:47], v[36:39]")
            a(f"v_mfma_f32_16x16x32_bf16 v[32:35], v[{172+8*k}:{175+8*k}], v[48:51], v[32:35]")
            a(f"v_mfma_f32_16x16x32_bf16 v[40:43], v[{200+4*k}:{203+4*k}], v[48:51], v[40:43]")
        a("v_cmp_lt_u32 vcc, 31, v0\nv_mov_b32 v59, s35\nv_mov_b32 v57, s35")
        a("ds_write_b128 v27, v[32:35]")
        for r in range(4): a(f"v_cndmask_b32 v{36+r}, v{36+r}, v{40+r}, vcc")
        a("ds_write_b128 v27, v[36:39] offset:4096")
        a.wait_lg(); a("s_barrier")
        for w in range(4): a(f"ds_read_b32 v{44+w}, v30 offset:{8192 + 1024*w}")
        for w in range(4): a(f"ds_read_b32 v{48+w}, v26 offset:{1024*w}")
        a.wait_lg()
        a("v_add_f32 v48, v48, v49\nv_add_f32 v50, v50, v51\nv_add_f32 v44, v44, v45\nv_add_f32 v46, v46, v47\nv_add_f32 v48, v48, v50\nv_add_f32 v58, v44, v46")
        a("v_mov_b32 v49, v48\nbuffer_store_dwordx2 v[58:59], v23, s[36:39], s68 offen sc1")
        a("v_permlane32_swap_b32 v48, v49\nv_add_f32 v56, v48, v49\ns_mov_b32 exec_hi, 0")
        a("buffer_store_dwordx2 v[56:57], v22, s[36:39], s68 offen sc1\ns_mov_b64 exec, -1")
        self.stamp(6)

    def role_F(self):
        a = self.a; c = self.c
        Lx = a.newlabel("L_nof")
        a(f"s_sub_u32 s48, s2, 192\ns_cmp_ge_u32 s48, 36\ns_cbranch_scc1 {Lx}")
        a("""s_lshl_b32 s48, s48, 2
        s_add_u32 s48, s48, s3
        s_cmp_ge_u32 s48, 72
        s_cselect_b32 s49, 1, 0
        s_mul_i32 s52, s49, 72
        s_sub_u32 s50, s48, s52""")
        a("s_mul_i32 s52, s49, 1152\ns_add_u32 s54, s4, s52\ns_addc_u32 s55, s5, 0")
        self.srd(40, "s54", "s55", 1152); self.srd(44, "s26", "s27", 1152)
        a("v_lshlrev_b32 v1, 2, v0")
        for k in range(5):
            a(f"buffer_load_dword v{10+k}, v1, s[40:43], 0 offen offset:{256*k}\nbuffer_load_dword v{16+k}, v1, s[44:47], 0 offen offset:{256*k}")
        a(f"""v_mul_u32_u24 v31, 9216, v0
        s_mul_i32 s52, s49, 4608
        s_lshl_b32 s54, s50, 6
        s_add_u32 s52, s52, s54
        s_add_u32 s52, s52, {PO}
        v_add_u32 v31, s52, v31
        v_mov_b32 v22, 0""")
        a.wait_vm()
        for k in range(5):
            a(f"""v_lshlrev_b32 v24, 16, v{10+k}
            v_and_b32 v25, 0xffff0000, v{10+k}
            v_lshlrev_b32 v26, 16, v{16+k}
            v_and_b32 v27, 0xffff0000, v{16+k}
            v_mul_f32 v24, v24, v26
            v_mul_f32 v25, v25, v27
            v_cvt_pk_bf16_f32 v24, v24, v25
            v_lshlrev_b32 v25, 16, v24
            v_and_b32 v24, 0xffff0000, v24
            v_add_f32 v22, v22, v25
            v_add_f32 v22, v22, v24""")
        self.red8([22], "v_add_f32")
        a("v_add_f32_dpp v22, v22, v22 row_ror:8 row_mask:0xf bank_mask:0xf")
        self.redrows(22, 24, "v_add_f32")
        a(f"""v_cvt_pk_bf16_f32 v22, v22, v22
        v_and_b32 v22, 0xffff0000, v22
        v_mul_f32 v22, {LOG2E}, v22
        v_exp_f32 v22, -v22
        v_add_f32 v22, 1.0, v22
        v_rcp_f32 v22, v22
        v_cvt_pk_bf16_f32 v22, v22, v22
        v_and_b32 v22, 0xffff0000, v22
        v_sub_f32 v23, 1.0, v22
        v_cvt_pk_bf16_f32 v23, v23, v23
        v_and_b32 v23, 0xffff0000, v23""")
        self.srd(40, "s28", "s29", 2304)
        a("""v_bfe_u32 v24, v0, 2, 1
        v_lshlrev_b32 v21, 3, v24
        v_bfe_u32 v24, v0, 3, 1
        v_lshl_add_u32 v21, v24, 2, v21
        v_bfe_u32 v24, v0, 4, 1
        v_lshl_add_u32 v21, v24, 1, v21
        s_mul_i32 s56, s49, 1152
        s_lshl_b32 s54, s50, 4
        s_add_u32 s56, s56, s54""")
        a(f"v_lshlrev_b32 v28, 9, v0\nv_add_u32 v28, {FE}, v28")
        Lp = a.newlabel("L_fpoll"); Ld = a.newlabel("L_fdone")
        a(f"s_mov_b32 s53, {c['spin']}\n{Lp}:\nbuffer_load_dword v61, v28, s[36:39], 0 offen sc1\ns_waitcnt vmcnt(0)")
        a(f"v_cmp_ne_u32 vcc, s35, v61\ns_cbranch_vccz {Ld}\ns_sleep {c['sleep_long']}\ns_sub_u32 s53, s53, 1\ns_cbranch_scc0 {Lp}")
        self.timeout(7)
        a(f"{Ld}:"); a.vm = []
        self.stamp(5)
        def gissue():
            for k in range(4): a(f"buffer_load_dwordx4 v[{64+4*k}:{67+4*k}], v31, s[36:39], 0 offen offset:{16*k} sc1", tag='pg')
        self.poll_granules(gissue, [65, 67, 69, 71, 73, 75, 77, 79], 48, 8)
        self.stamp(6)
        for n in range(4): a(f"v_permlane16_swap_b32 v{64+4*n}, v{66+4*n}")
        for n in range(4): a(f"v_add_f32 v{64+4*n}, v{64+4*n}, v{66+4*n}")
        for m in range(2):
            a(f"v_add_f32_dpp v{40+m}, v{64+8*m}, v{64+8*m} row_ror:8 row_mask:0xf bank_mask:0x3")
            a(f"v_add_f32_dpp v{40+m}, v{68+8*m}, v{68+8*m} row_ror:8 row_mask:0xf bank_mask:0xc")
        a("v_add_f32_dpp v42, v40, v40 row_half_mirror row_mask:0xf bank_mask:0x5")
        a("v_add_f32_dpp v42, v41, v41 row_half_mirror row_mask:0xf bank_mask:0xa")
        a("v_add_f32_dpp v42, v42, v42 quad_perm:[1,0,3,2] row_mask:0xf bank_mask:0xf")
        a("v_add_f32_dpp v42, v42, v42 quad_perm:[2,3,0,1] row_mask:0xf bank_mask:0xf")
        a("""v_cvt_pk_bf16_f32 v42, v42, v42
        v_and_b32 v42, 0xffff0000, v42
        v_mov_b32 v43, v42
        v_permlane32_swap_b32 v42, v43
        v_mul_f32 v42, v22, v42
        v_mul_f32 v43, v23, v43
        v_cvt_pk_bf16_f32 v42, v42, v43
        v_lshlrev_b32 v43, 16, v42
        v_and_b32 v42, 0xffff0000, v42
        v_add_f32 v42, v42, v43
        v_cvt_pk_bf16_f32 v42, v42, v42
        s_mov_b32 exec_lo, 0x11111111
        s_mov_b32 exec_hi, 0
        buffer_store_short v42, v21, s[40:43], s56 offen""")
        Ls = a.newlabel("L_noep")
        a(f"s_cmp_lg_u32 s48, 0\ns_cbranch_scc1 {Ls}\ns_mov_b64 exec, 1\nv_mov_b32 v44, s35\nv_mov_b32 v45, 0")
        a(f"buffer_store_dword v44, v45, s[36:39], 0 offen\n{Ls}:\ns_mov_b64 exec, -1")
        self.stamp(7)
        a(f"{Lx}:")

    def finish(self):
        self.stamp_flush()
        self.a(f"{self.end}:\ns_endpgm")
    def kd(self, name):
        self.a.raw(f""".amdhsa_kernel {name}
  .amdhsa_next_free_vgpr 256
  .amdhsa_next_free_sgpr 102
  .amdhsa_accum_offset 256
  .amdhsa_group_segment_fixed_size 0
  .amdhsa_kernarg_size 120
  .amdhsa_user_sgpr_count 2
  .amdhsa_user_sgpr_kernarg_segment_ptr 1
  .amdhsa_system_sgpr_workgroup_id_x 1
.end_amdhsa_kernel""")
    def only(self, lo, hi):
        self.a(f"s_cmp_lt_u32 s2, {lo}\ns_cbranch_scc1 {self.end}\ns_cmp_ge_u32 s2, {hi}\ns_cbranch_scc1 {self.end}")
    def build(self):
        a = self.a; LDS = 81920
        hdr = open("gated_mix__gqa_block_cached__compressed_kv_cla__decode.s.ref").read().split("; Override launch")[0]
        a.raw(hdr.rstrip())
        if self.c['staged']:
            names = ["s1_kernel", "s2_kernel", "ab_kernel", "tb1_kernel", "t_kernel", "f_kernel"]
            for n in names: a.raw(f"; @launch kernel={n} grid=(512,1,1) block=(256,1,1) lds={LDS}")
            a.raw('.amdgcn_target "amdgcn-amd-amdhsa--gfx950"\n.text')
            self.prologue("s1_kernel"); self.only(0, 128); self.s1(); self.finish()
            self.prologue("s2_kernel"); self.only(128, 192); self.s2(); self.finish()
            self.prologue("ab_kernel"); self.only(192, 512)
            LA = a.newlabel("L_roleA"); LE = a.newlabel("L_fin")
            a(f"s_cmp_ge_u32 s2, 256\ns_cbranch_scc1 {LA}")
            self.role_B(); a(f"s_branch {LE}\n{LA}:"); a.vm = []; a.lg = []; a.hist = []
            self.role_A(); a(f"{LE}:"); self.finish()
            self.prologue("tb1_kernel"); self.only(0, 128); self.tb1_prefetch(); self.get_tag(); self.tb1(); self.finish()
            self.prologue("t_kernel"); self.only(0, 192); self.get_tag(); self.t_main(True); self.finish()
            self.prologue("f_kernel"); self.only(192, 256); self.get_tag(); self.role_F(); self.finish()
        else:
            names = [KN]
            a.raw(f"; @launch grid=(512,1,1) block=(256,1,1) lds={LDS}")
            a.raw('.amdgcn_target "amdgcn-amd-amdhsa--gfx950"\n.text')
            self.prologue(KN)
            LA, LB, L2, LT, LE = (a.newlabel(x) for x in ("L_roleA", "L_roleB", "L_roleS2", "L_T", "L_fin"))
            a(f"s_cmp_ge_u32 s2, 256\ns_cbranch_scc1 {LA}\ns_cmp_ge_u32 s2, 192\ns_cbranch_scc1 {LB}\ns_cmp_ge_u32 s2, 128\ns_cbranch_scc1 {L2}")
            self.s1(); self.tb1_prefetch(); self.tb1(); a(f"s_branch {LT}")
            a(f"{L2}:"); a.vm = []; a.lg = []; a.hist = []
            self.s2()
            a(f"{LT}:"); a.vm = []; a.lg = []
            self.t_main(True); a(f"s_branch {LE}")
            a(f"{LB}:"); a.vm = []; a.lg = []; a.hist = []
            self.role_B(); self.role_F(); a(f"s_branch {LE}")
            a(f"{LA}:"); a.vm = []; a.lg = []; a.hist = []
            self.role_A()
            a(f"{LE}:"); self.finish()
        a.raw('.section .rodata,"a"')
        for n in names:
            a.raw(".p2align 6"); self.kd(n)
        return a.text()

def gen(**kw): return G(**kw).build()
if __name__ == "__main__":
    cfg = json.loads(sys.argv[2]) if len(sys.argv) > 2 else {}
    open(sys.argv[1], "w").write(gen(**cfg))
```

```python
import sys, json
sys.path.insert(0, "dev")
from asmlib import Asm
import gen as G1
from gen import KN, EPOCH, Q, QABS, FQ, FB, PBS, FE, REC, PO, PB, STAMP, WS_USED, LOG2E, SCALE, SCL2E, NEGINF

DEF = dict(staged=False, mimicA=True, mimicB=True, W=4, R=40, IQ=20, ICHK=24, burst=1, WH=6,
           stamps=False, spin=40000, sleep_long=8, rotb=2, fsleep=4, pfA=32, pfH=0, pfKB=4)
NT = 43
PL = 131072; ML = PL + 4608; SC = 137216; S2O = 153600

class G(G1.G):
    def __init__(self, **kw):
        self.c = dict(DEF); self.c.update(kw)
        self.a = Asm()
    def prologue(self, name):
        a = self.a
        a.raw(f".globl {name}\n.p2align 8\n.type {name},@function\n{name}:")
        a.hist = []; a.vm = []; a.lg = []
        self.end = a.newlabel("L_end")
        a(f"s_cmp_ge_u32 s2, 256\ns_cbranch_scc1 {self.end}")
        if self.c['stamps']: a("s_memrealtime s[80:81]")
        a("""s_load_dwordx16 s[4:19], s[0:1], 0
        s_load_dwordx8 s[20:27], s[0:1], 64
        s_load_dwordx4 s[28:31], s[0:1], 96
        s_load_dwordx2 s[32:33], s[0:1], 112
        v_lshrrev_b32 v1, 6, v0
        v_and_b32 v0, 63, v0
        v_readfirstlane_b32 s3, v1
        s_waitcnt lgkmcnt(0)
        s_load_dword s34, s[32:33], 0""")
        a(f"s_mov_b32 s36, s32\ns_and_b32 s37, s33, 0xffff\ns_mov_b32 s38, {WS_USED}\ns_mov_b32 s39, 0x20000")
    def qk_group(self, K, q, T, U):
        a = self.a; n = len(K)
        for kk in range(4):
            for t in range(n):
                for h in range(2):
                    src2 = "0" if kk == 0 else f"v{T+2*t+h}"
                    a(f"v_dot2_f32_bf16 v{T+2*t+h}, v{K[t]+kk}, v{q+8*h+2*kk}, {src2}")
        for t in range(n): a(f"v_add_f32_dpp v{U[t]}, v{T+2*t}, v{T+2*t} row_ror:8 row_mask:0xf bank_mask:0x3")
        for t in range(n): a(f"v_add_f32_dpp v{U[t]}, v{T+2*t+1}, v{T+2*t+1} row_ror:8 row_mask:0xf bank_mask:0xc")
        for m in ("row_half_mirror", "quad_perm:[1,0,3,2]", "quad_perm:[2,3,0,1]"):
            for t in range(n): a(f"v_add_f32_dpp v{U[t]}, v{U[t]}, v{U[t]} {m} row_mask:0xf bank_mask:0xf")

    def code_prefetch(self, cond_reg, limit, dst):
        a = self.a; n = self.c['pfKB']
        if not limit or self.c['staged']: return
        L = a.newlabel("L_nopf"); Lp = a.newlabel("L_pc")
        a(f"s_cmp_ge_u32 {cond_reg}, {limit}\ns_cbranch_scc1 {L}")
        a(f"s_getpc_b64 s[76:77]\n{Lp}:\ns_sub_u32 s76, s76, {Lp}-{KN}\ns_subb_u32 s77, s77, 0")
        a(f"s_mul_i32 s52, s3, {n*1024}\nv_lshlrev_b32 v{dst}, 4, v0\nv_add_u32 v{dst}, s52, v{dst}")
        for k in range(n):
            a(f"global_load_dwordx4 v[244:247], v{dst}, s[76:77] offset:{k*1024}"); a.vm.pop()
        a(f"{L}:")
    def a_ids(self):
        self.a("s_sub_u32 s48, s2, 64\ns_mul_i32 s49, s48, 171\ns_lshr_b32 s49, s49, 10\ns_mul_i32 s50, s49, 6\ns_sub_u32 s50, s48, s50")
    def t_addr(self):
        a = self.a
        a("""s_cmp_ge_u32 s48, 96
        s_cselect_b32 s63, 1, 0
        s_cselect_b32 s54, s24, s12
        s_cselect_b32 s55, s25, s13
        s_cselect_b32 s67, 2.0, 1.0
        s_mul_i32 s52, s63, 96
        s_sub_u32 s52, s48, s52
        s_mul_i32 s64, s52, 171
        s_lshr_b32 s64, s64, 9
        s_mul_i32 s65, s64, 3
        s_sub_u32 s65, s52, s65""")
        self.srd(68, "s54", "s55", 4096 * 1152)
        a("""s_lshl_b32 s52, s64, 3
        s_add_u32 s52, s52, s3
        s_mul_i32 s52, s52, 18432
        s_mul_i32 s54, s65, 384
        s_add_u32 s52, s52, s54
        v_lshrrev_b32 v48, 4, v0
        v_mul_u32_u24 v30, 4608, v48
        v_add_u32 v30, s52, v30
        v_bfe_u32 v49, v0, 3, 1
        v_mul_u32_u24 v31, 1152, v49
        v_add_u32 v31, v31, v30
        v_and_b32 v50, 7, v0
        v_lshl_add_u32 v31, v50, 4, v31
        v_add_u32 v31, 256, v31
        v_and_b32 v51, 15, v0
        v_lshl_add_u32 v30, v51, 4, v30""")
    def t_load(self, k, reg):
        a = self.a
        if k < 4: a(f"buffer_load_dwordx4 v[{reg}:{reg+3}], v30, s[68:71], 0 offen offset:{k*1152} nt", tag=('kv', 2*NT + k))
        else: a(f"buffer_load_dwordx4 v[{reg}:{reg+3}], v31, s[68:71], 0 offen offset:{(k-4)*2304} nt", tag=('kv', 2*NT + k))
    def role_A(self, with_t=True):
        a = self.a; c = self.c
        W, R = c['W'], c['R']; mim = c['mimicA']
        SREG = 64; RING = 88 if mim else 108
        assert RING + 4 * R <= 256
        NL = 2 * NT + (6 if with_t else 0)
        self.a_ids()
        a("""s_lshl_b32 s52, s49, 21
        s_add_u32 s54, s6, s52
        s_addc_u32 s55, s7, 0
        s_add_u32 s56, s8, s52
        s_addc_u32 s57, s9, 0""")
        self.srd(40, "s54", "s55", 0x200000); self.srd(44, "s56", "s57", 0x200000)
        a(f"""s_lshl_b32 s59, s50, 3
        s_add_u32 s59, s59, s3
        s_lshl_b32 s52, s49, 16
        s_lshl_b32 s60, s59, 12
        s_add_u32 s60, s60, s52
        s_lshl_b32 s61, s59, 10
        s_add_u32 s61, s61, s52
        s_add_u32 s61, s61, {1920*1024}
        s_cmp_lt_u32 s59, 32
        s_cselect_b32 s62, 0, {NEGINF}
        s_cselect_b32 s66, 0, 0x40000000
        v_lshlrev_b32 v1, 4, v0""")
        def ring(j): return RING + 4 * (j % R)
        self.ring = ring
        def issue(j):
            if j >= 2 * NT: self.t_load(j - 2 * NT, ring(j)); return
            jj = j % NT
            srd = "s[40:43]" if j < NT else "s[44:47]"
            off = 0
            if jj < 40:
                if jj % 4 == 0: a(f"s_add_u32 s51, s60, {(jj//4)*48*4096}\ns_and_b32 s51, s51, 0x1fffff")
                off = (jj % 4) * 1024
            else:
                a(f"s_add_u32 s51, s61, {(jj-40)*48*1024}\ns_and_b32 s51, s51, 0x1fffff")
                if jj == 42: a("s_or_b32 s51, s51, s66")
            a(f"buffer_load_dwordx4 v[{ring(j)}:{ring(j)+3}], v1, {srd}, s51 offen offset:{off} nt", tag=('kv', j))
        def qissue():
            for h in range(2):
                for k in range(2):
                    a(f"buffer_load_dwordx4 v[{10+8*h+4*k}:{13+8*h+4*k}], v29, s[36:39], 0 offen offset:{512*h+16*k} sc1", tag='pg')
        I = 0
        self.code_prefetch("s48", c['pfA'], 52)
        while I < W: issue(I); I += 1
        self.sels()
        a(f"s_lshl_b32 s52, s49, 10\ns_add_u32 s52, s52, {Q}\nv_and_b32 v29, 15, v0\nv_lshlrev_b32 v29, 5, v29\nv_add_u32 v29, s52, v29")
        a(f"v_mov_b32 v26, {NEGINF}\nv_mov_b32 v27, 0\nv_mov_b32 v32, 0\nv_mov_b32 v33, 0\nv_mov_b32 v34, 0\nv_mov_b32 v35, 0")
        if with_t: self.t_addr()
        self.get_tag()
        while I < c['ICHK']:
            if I == c['IQ']: qissue()
            a.wait_vm_n(W - 1 + (4 if c['IQ'] <= I < c['IQ'] + W else 0)); issue(I); I += 1
        self.stamp(1)
        self.poll_granules(qissue, [11, 13, 15, 17, 19, 21, 23, 25], 48, 1, first_issued=True)
        self.stamp(2)
        C = 0
        def landed(j): return ('kv', j) not in a.vm
        def consumeK(n):
            nt = min(4, NT - 4 * n)
            K = [ring(4 * n + t) for t in range(nt)]
            U = [44, 45, 46, 47] if mim else [SREG + 4 * n + t for t in range(4)]
            self.qk_group(K, 10, 36, U)
            if nt == 3: a(f"v_add_f32 v{U[2]}, s62, v{U[2]}\nv_mov_b32 v{U[3]}, {NEGINF}")
            if mim:
                a("v_cvt_pk_bf16_f32 v48, v44, v45\nv_cvt_pk_bf16_f32 v50, v46, v47\nv_max3_f32 v26, v26, v44, v45")
                a("v_and_b32 v49, 0xffff0000, v48\nv_lshlrev_b32 v48, 16, v48\nv_and_b32 v51, 0xffff0000, v50\nv_lshlrev_b32 v50, 16, v50")
                a("v_max3_f32 v26, v26, v46, v47")
                for r in (48, 49, 50, 51): a(f"v_mul_f32 v{r}, {SCALE}, v{r}")
                a(f"v_cvt_pk_bf16_f32 v{SREG+2*n}, v48, v49\nv_cvt_pk_bf16_f32 v{SREG+2*n+1}, v50, v51")
            else:
                a(f"v_max3_f32 v26, v26, v{U[0]}, v{U[1]}\nv_max3_f32 v26, v26, v{U[2]}, v{U[3]}")
        def finishK():
            self.redrows(26, 48, "v_max_f32")
            if mim:
                self.round_scaled(26, 48)
                a(f"v_mul_f32 v26, {LOG2E}, v26\ns_mov_b32 s58, {LOG2E}")
            else:
                a(f"v_mul_f32 v26, {SCL2E}, v26\ns_mov_b32 s58, {SCL2E}")
            self.stamp(3)
        def consumeV(n):
            nt = min(2, NT - 2 * n)
            if mim:
                a(f"v_lshlrev_b32 v60, 16, v{SREG+n}\nv_and_b32 v61, 0xffff0000, v{SREG+n}")
                a("v_fma_f32 v60, v60, s58, -v26\nv_fma_f32 v61, v61, s58, -v26")
            else:
                a(f"v_fma_f32 v60, v{SREG+2*n}, s58, -v26\nv_fma_f32 v61, v{SREG+2*n+1}, s58, -v26")
            a("v_exp_f32 v60, v60\nv_exp_f32 v61, v61\nv_add_f32 v27, v27, v60\nv_cvt_pk_bf16_f32 v62, v60, v61\nv_add_f32 v27, v27, v61")
            self.bop(52, 62, 2)
            if nt == 2: self.bop(56, 62, 6)
            for k in range(nt):
                j = NT + 2 * n + k
                a.wait_vm(('kv', j))
                a(f"v_mfma_f32_16x16x32_bf16 v[32:35], v[{ring(j)}:{ring(j)+3}], v[{52+4*k}:{55+4*k}], v[32:35]")
        def unit_last(C): return min(C + 3, NT - 1) if C < NT else min(C + 1, 2 * NT - 1)
        def consume():
            nonlocal C
            if C < NT:
                a.wait_vm(('kv', unit_last(C))); consumeK(C // 4); C = unit_last(C) + 1
                if C == NT: finishK()
            else:
                consumeV((C - NT) // 2); C = unit_last(C) + 1
        while C < 2 * NT:
            if I < NL and I - R < C:
                a.wait_vm_n(W - 1); issue(I); I += 1
                while 2 * NT < I < NL: issue(I); I += 1
                k = 0
                while C < 2 * NT and k < c['burst'] and landed(unit_last(C)) and unit_last(C) < I: consume(); k += 1
            else:
                consume()
        while I < NL: issue(I); I += 1
        self.stamp(4)
        self.redrows(27, 48, "v_add_f32")
        a("v_lshlrev_b32 v48, 4, v0\ns_lshl_b32 s52, s3, 10\nv_add_u32 v48, s52, v48")
        a("v_bfe_u32 v49, v0, 3, 1\nv_lshlrev_b32 v49, 6, v49\ns_lshl_b32 s52, s3, 3\ns_add_u32 s52, s52, 8192\nv_add_u32 v49, s52, v49")
        a("ds_write_b64 v49, v[26:27]\nds_write_b128 v48, v[32:35]")
        self.acc_addr(28, 52)
        a(f"""s_lshr_b32 s52, s3, 1
        s_lshl_b32 s54, s49, 1
        s_add_u32 s52, s52, s54
        s_lshl_b32 s52, s52, 3
        s_add_u32 s52, s52, s50
        s_mul_i32 s52, s52, 1152
        s_add_u32 s52, s52, {REC}
        s_and_b32 s54, s3, 1
        s_lshl_b32 s55, s54, 9
        v_lshlrev_b32 v50, 3, v0
        v_add_u32 v50, s55, v50
        s_lshr_b32 s55, s3, 1
        s_lshl_b32 s55, s55, 6
        s_add_u32 s55, s55, 8192
        v_mov_b32 v51, s55""")
        a.wait_lg(); a("s_barrier")
        self.stamp(8)
        Lu = a.newlabel("L_aup")
        a(f"s_cmp_ge_u32 s3, 4\ns_cbranch_scc1 {Lu}")
        for k in range(4): a(f"ds_read_b128 v[{10+4*k}:{13+4*k}], v51 offset:{16*k}")
        for w in range(8): a(f"ds_read_b32 v{36+w}, v28 offset:{1024*w}")
        a.wait_lg()
        a("v_max3_f32 v52, v10, v12, v14\nv_max3_f32 v53, v16, v18, v20\nv_max3_f32 v52, v52, v22, v24\nv_max_f32 v52, v52, v53")
        for w in range(8): a(f"v_sub_f32 v{10+2*w}, v{10+2*w}, v52")
        for w in range(8): a(f"v_exp_f32 v{10+2*w}, v{10+2*w}")
        a("v_mul_f32 v53, v10, v11\nv_mul_f32 v54, v10, v36")
        for w in range(1, 8): a(f"v_fmac_f32 v53, v{10+2*w}, v{11+2*w}\nv_fmac_f32 v54, v{10+2*w}, v{36+w}")
        a("v_rcp_f32 v55, v53\nv_log_f32 v56, v53\nv_mov_b32 v59, s35\nv_mov_b32 v57, s35\nv_mul_f32 v58, v54, v55\nv_add_f32 v56, v56, v52")
        a("buffer_store_dwordx2 v[58:59], v50, s[36:39], s52 offen sc1"); a.vm.pop()
        a(f"s_cmp_lg_u32 s54, 0\ns_cbranch_scc1 {Lu}\ns_mov_b64 exec, 1")
        a("buffer_store_dwordx2 v[56:57], v50, s[36:39], s52 offen offset:1024 sc1"); a.vm.pop()
        a(f"s_mov_b64 exec, -1\n{Lu}:")
        self.stamp(5)
    def t_main(self, standalone=False):
        a = self.a; c = self.c
        if standalone:
            self.a_ids(); self.sels(); self.t_addr()
            self.ring = lambda j: 88 + 4 * (j % 40)
            for k in range(6): self.t_load(k, self.ring(2 * NT + k))
        WR = [self.ring(2 * NT + k) for k in range(6)]
        a(f"""v_and_b32 v50, 7, v0
        v_min_u32 v51, 5, v50
        v_and_b32 v52, 1, v0
        s_cmp_eq_u32 s63, 0
        s_cselect_b64 vcc, -1, 0
        s_cselect_b32 s66, 5, 7
        v_cndmask_b32 v51, v52, v51, vcc
        v_bfe_u32 v49, v0, 3, 1
        v_lshl_add_u32 v29, v49, 8, v51
        v_mul_u32_u24 v29, 1152, v29
        s_lshl_b32 s52, s63, 6
        s_add_u32 s52, s52, s64
        s_mul_i32 s52, s52, 9216
        s_add_u32 s52, s52, {REC}
        v_add_u32 v29, s52, v29
        v_lshrrev_b32 v48, 4, v0
        v_lshlrev_b32 v1, 5, v48
        s_lshl_b32 s52, s3, 7
        v_add_u32 v1, s52, v1
        v_add_u32 v1, v1, v29
        v_cmp_lt_u32 s[72:73], s66, v50""")
        def gissue():
            for k in range(2): a(f"buffer_load_dwordx4 v[{10+4*k}:{13+4*k}], v1, s[36:39], 0 offen offset:{16*k} sc1", tag='pg')
            a("buffer_load_dwordx2 v[18:19], v29, s[36:39], 0 offen offset:1024 sc1", tag='pg')
        gissue()
        for r in range(32, 44): a(f"v_mov_b32 v{r}, 0")
        a("""v_and_b32 v26, 7, v0
        v_lshlrev_b32 v26, 4, v26
        v_bfe_u32 v48, v0, 3, 2
        v_lshl_add_u32 v26, v48, 2, v26
        v_lshrrev_b32 v48, 5, v0
        s_cmp_ge_u32 s3, 4
        s_cselect_b32 s52, 9, 8
        s_cselect_b32 s54, 8, 9
        s_cselect_b32 s55, 8192, 0
        s_cselect_b32 s56, 1024, 0
        s_add_u32 s55, s55, 16384
        v_lshl_add_u32 v26, v48, s52, v26
        s_and_b32 s57, s3, 1
        s_lshl_b32 s57, s57, s54
        s_add_u32 s56, s56, s57
        s_add_u32 s55, s55, s57
        s_bfe_u32 s57, s3, 0x10001
        s_lshl_b32 s52, s57, 7
        s_add_u32 s55, s55, s52
        v_add_u32 v26, s55, v26
        v_lshlrev_b32 v27, 4, v0
        s_lshl_b32 s52, s3, 10
        s_add_u32 s52, s52, 16384
        v_add_u32 v27, s52, v27
        v_lshlrev_b32 v23, 3, v0
        v_add_u32 v23, s56, v23""")
        a(f"""s_lshl_b32 s74, s63, 5
        s_add_u32 s74, s74, s64
        s_lshl_b32 s74, s74, 1
        s_add_u32 s74, s74, s57
        s_mul_i32 s74, s74, 4608
        s_mul_i32 s54, s65, 1536
        s_add_u32 s74, s74, s54
        s_add_u32 s74, s74, {PO}
        v_mov_b32 v59, s35
        v_mov_b32 v47, {NEGINF}""")
        self.poll_granules(gissue, [11, 13, 15, 17, 19], 48, 6, first_issued=True)
        self.stamp(6)
        a("v_cndmask_b32 v18, v18, v47, s[72:73]\nv_mov_b32 v44, v18")
        self.red8([44], "v_max_f32")
        a("v_sub_f32 v44, v18, v44\nv_exp_f32 v44, v44\nv_mov_b32 v45, v44")
        self.red8([45], "v_add_f32")
        a("v_rcp_f32 v45, v45\nv_mul_f32 v44, s67, v44\nv_mul_f32 v44, v44, v45")
        for t in range(4): a(f"v_mul_f32 v{52+t}, v44, v{10+2*t}")
        self.red8([52, 53, 54, 55], "v_add_f32")
        for k in range(2): a(f"v_cvt_pk_bf16_f32 v{20+k}, v{52+2*k}, v{53+2*k}")
        for k in range(2):
            self.bop(44, 20 + k, 2); self.bop(48, 20 + k, 6)
            a(f"v_mfma_f32_16x16x32_bf16 v[36:39], v[{WR[4+k]}:{WR[4+k]+3}], v[44:47], v[36:39]")
            a(f"v_mfma_f32_16x16x32_bf16 v[40:43], v[{WR[4+k]}:{WR[4+k]+3}], v[48:51], v[40:43]")
            a(f"v_mfma_f32_16x16x32_bf16 v[32:35], v[{WR[2*k]}:{WR[2*k]+3}], v[44:47], v[32:35]")
            a(f"v_mfma_f32_16x16x32_bf16 v[32:35], v[{WR[2*k+1]}:{WR[2*k+1]+3}], v[48:51], v[32:35]")
        a("v_cmp_lt_u32 vcc, 31, v0")
        for r in range(4): a(f"v_cndmask_b32 v{36+r}, v{36+r}, v{40+r}, vcc")
        a("ds_write_b128 v27, v[36:39] offset:8192\nds_write_b128 v27, v[32:35]")
        a.wait_lg(); a("s_barrier")
        for w in range(8): a(f"ds_read_b32 v{44+w}, v26 offset:{1024*w}")
        a.wait_lg()
        a("v_add_f32 v44, v44, v45\nv_add_f32 v46, v46, v47\nv_add_f32 v48, v48, v49\nv_add_f32 v50, v50, v51\nv_add_f32 v44, v44, v46\nv_add_f32 v48, v48, v50\nv_add_f32 v58, v44, v48")
        Lf = a.newlabel("L_tfull")
        a(f"s_cmp_lt_u32 s3, 4\ns_cbranch_scc1 {Lf}")
        a("v_mov_b32 v49, v58\nv_permlane32_swap_b32 v58, v49\nv_add_f32 v58, v58, v49\ns_mov_b32 exec_hi, 0")
        a(f"{Lf}:\nbuffer_store_dwordx2 v[58:59], v23, s[36:39], s74 offen sc1\ns_mov_b64 exec, -1")
        self.stamp(7)

    def s1_finish(self, mat):
        a = self.a; base = SC + 8192 * mat
        a(f"v_cmp_lt_u32 vcc, 31, v0\nv_lshlrev_b32 v48, 4, v0\ns_lshl_b32 s52, s3, 10\ns_add_u32 s52, s52, {base}\nv_add_u32 v48, s52, v48")
        for r in range(4): a(f"v_cndmask_b32 v{32+r}, v{32+r}, v{36+r}, vcc")
        a("ds_write_b128 v48, v[32:35]")
        a.wait_lg(); a("s_barrier")
        Ls = a.newlabel("L_s1skip")
        a(f"s_cmp_ge_u32 s3, 2\ns_cbranch_scc1 {Ls}")
        a(f"""v_and_b32 v48, 7, v0
        v_lshlrev_b32 v48, 4, v48
        v_bfe_u32 v49, v0, 3, 2
        v_lshl_add_u32 v48, v49, 2, v48
        v_lshrrev_b32 v49, 5, v0
        v_lshl_add_u32 v48, v49, 8, v48
        s_lshl_b32 s52, s3, 7
        s_add_u32 s52, s52, {base}
        v_add_u32 v48, s52, v48""")
        for s in range(16):
            a(f"ds_read_b32 v{32+s}, v48 offset:{512*s}")
            if s == 11: a.wait_lg()
        a(f"""s_lshl_b32 s52, s3, 14
        s_lshl_b32 s54, s2, 8
        s_add_u32 s52, s52, s54
        s_add_u32 s52, s52, {Q + 32768 * mat}
        v_lshlrev_b32 v50, 2, v0
        v_mov_b32 v53, s35""")
        a.wait_lg()
        for st in (8, 4, 2, 1):
            for s in range(st): a(f"v_add_f32 v{32+s}, v{32+s}, v{32+s+st}")
        a("v_mov_b32_dpp v33, v32 quad_perm:[1,0,3,2] row_mask:0xf bank_mask:0xf")
        a("v_cvt_pk_bf16_f32 v52, v32, v33\ns_mov_b32 exec_lo, 0x55555555\ns_mov_b32 exec_hi, 0x55555555")
        a("buffer_store_dwordx2 v[52:53], v50, s[36:39], s52 offen sc1\ns_mov_b64 exec, -1"); a.vm.pop()
        a(f"{Ls}:")
    def h_head(self, parts=("s1b", "s1a", "s2")):
        a = self.a; c = self.c; WH = c['WH']
        self.srd(40, "s18", "s19", 576 * 8192); self.srd(44, "s10", "s11", 576 * 8192)
        self.srd(68, "s20", "s21", 512 * 8192); self.srd(72, "s4", "s5", 2304)
        a("""v_lshrrev_b32 v48, 4, v0
        v_mul_u32_u24 v49, 18, v48
        v_bfe_u32 v50, v0, 3, 1
        v_add_u32 v51, v49, v50
        s_mul_i32 s52, s3, 72
        v_add_u32 v51, s52, v51
        v_lshlrev_b32 v28, 13, v51
        v_and_b32 v51, 7, v0
        v_lshl_add_u32 v28, v51, 4, v28
        s_lshl_b32 s54, s2, 7
        v_add_u32 v28, s54, v28
        v_mul_u32_u24 v29, 1152, v50
        v_lshl_add_u32 v29, v49, 1, v29
        s_lshl_b32 s52, s52, 1
        v_add_u32 v29, s52, v29""")
        self.code_prefetch("s2", c['pfH'], 52)
        seq = []
        if "s1b" in parts: seq += [('b', t) for t in range(9)]
        if "s2" in parts: seq += [('u', t) for t in range(8)]
        if "s1a" in parts: seq += [('a', t) for t in range(9)]
        REG = {'b': 64, 'u': 100, 'a': 132}
        def issue(x):
            k, t = x; r = REG[k] + 4 * t
            if k == 'u': a(f"s_mov_b32 s51, {t*8192}\nbuffer_load_dwordx4 v[{r}:{r+3}], v30, s[68:71], s51 offen nt", tag=x)
            else: a(f"s_mov_b32 s51, {t*16384}\nbuffer_load_dwordx4 v[{r}:{r+3}], v28, {'s[40:43]' if k == 'b' else 's[44:47]'}, s51 offen nt", tag=x)
        a("buffer_load_dwordx4 v[10:13], v29, s[72:75], 0 offen\nbuffer_load_dwordx4 v[14:17], v29, s[72:75], 0 offen offset:16\nbuffer_load_dword v18, v29, s[72:75], 0 offen offset:32", tag='x')
        I = 0
        nfirst = min(len(seq), 9)
        if seq[0][0] != 'u':
            while I < nfirst: issue(seq[I]); I += 1
        a(f"""s_lshr_b32 s49, s2, 4
        s_and_b32 s50, s2, 15
        s_lshl_b32 s52, s50, 2
        s_lshr_b32 s54, s3, 1
        s_add_u32 s52, s52, s54
        s_lshl_b32 s52, s52, 16
        s_lshl_b32 s54, s49, 1
        s_and_b32 s55, s3, 1
        s_add_u32 s54, s54, s55
        s_lshl_b32 s55, s54, 10
        s_add_u32 s52, s52, s55
        v_lshlrev_b32 v30, 4, v0
        v_add_u32 v30, s52, v30
        s_lshl_b32 s54, s54, 11
        s_add_u32 s54, s54, {Q + 32768}
        v_lshlrev_b32 v31, 9, v48
        v_and_b32 v49, 15, v0
        v_lshl_add_u32 v31, v49, 5, v31
        v_add_u32 v31, s54, v31
        s_mov_b32 s56, 16384""")
        self.sels()
        self.get_tag()
        def more(n=1):
            nonlocal I
            for _ in range(n):
                if I < len(seq): a.wait_vm_n(WH - 1); issue(seq[I]); I += 1
        def s1(k, mat):
            for r in range(32, 40): a(f"v_mov_b32 v{r}, 0")
            for t in range(9):
                self.bop(40, 10 + t, 2); self.bop(44, 10 + t, 6)
                while (k, t) not in seq[:I]: more()
                a.wait_vm((k, t))
                if I < len(seq) and len(a.vm) < WH: issue(seq[I]); globals()['_dummy'] = 0; inc()
                r = REG[k] + 4 * t
                a(f"v_mfma_f32_16x16x32_bf16 v[32:35], v[{r}:{r+3}], v[40:43], v[32:35]")
                a(f"v_mfma_f32_16x16x32_bf16 v[36:39], v[{r}:{r+3}], v[44:47], v[36:39]")
            self.s1_finish(mat)
        def inc():
            nonlocal I
            I += 1
        a.wait_vm('x')
        if "s1b" in parts:
            s1('b', 1); self.stamp(1)
        while I < len(seq): more()
        if "s2" in parts:
            def qissue():
                for b in range(2):
                    for k in range(2):
                        so = "s56" if b else "0"
                        a(f"buffer_load_dwordx4 v[{168+8*b+4*k}:{171+8*b+4*k}], v31, s[36:39], {so} offen offset:{16*k} sc1", tag='pg')
            qissue()
            a(f"""v_bfe_u32 v50, v0, 3, 1
            v_lshlrev_b32 v63, 9, v50
            v_lshrrev_b32 v48, 4, v0
            v_lshl_add_u32 v63, v48, 4, v63
            s_lshr_b32 s52, s3, 1
            s_lshl_b32 s52, s52, 7
            s_and_b32 s55, s3, 1
            s_lshl_b32 s55, s55, 6
            s_add_u32 s52, s52, s55
            s_add_u32 s52, s52, {S2O}
            v_add_u32 v60, s52, v63
            v_lshlrev_b32 v51, 4, v0
            v_add_u32 v51, {S2O + 1024}, v51
            v_and_b32 v50, 7, v0
            v_cmp_lt_u32 vcc, 0, v50
            v_cndmask_b32 v60, v60, v51, vcc""")
            self.poll_granules(qissue, [169, 171, 173, 175, 177, 179, 181, 183], 48, 2, first_issued=True, sleep=1)
            self.stamp(2)
            for n in range(2):
                self.qk_group([100 + 16 * n + 4 * t for t in range(4)], 168, 36, [184 + 4 * n + t for t in range(4)])
            for k in range(4): a(f"v_cvt_pk_bf16_f32 v{52+k}, v{184+2*k}, v{185+2*k}")
            a("ds_write_b128 v60, v[52:55]")
            a.wait_lg(); a("s_barrier")
            Ls = a.newlabel("L_s2skip")
            a(f"s_cmp_lg_u32 s3, 7\ns_cbranch_scc1 {Ls}")
            a(f"v_lshlrev_b32 v48, 4, v0\nv_add_u32 v48, {S2O}, v48\nds_read_b128 v[52:55], v48")
            a(f"""v_lshrrev_b32 v49, 5, v0
            v_lshlrev_b32 v49, 15, v49
            v_bfe_u32 v50, v0, 3, 2
            v_lshl_add_u32 v49, v50, 10, v49
            v_and_b32 v50, 7, v0
            v_lshl_add_u32 v49, v50, 4, v49
            s_lshr_b32 s52, s49, 1
            s_lshl_b32 s52, s52, 14
            s_and_b32 s54, s50, 3
            s_lshl_b32 s54, s54, 12
            s_add_u32 s52, s52, s54
            s_lshr_b32 s54, s50, 2
            s_lshl_b32 s54, s54, 8
            s_add_u32 s52, s52, s54
            s_and_b32 s54, s49, 1
            s_lshl_b32 s54, s54, 7
            s_add_u32 s52, s52, s54
            s_add_u32 s52, s52, {QABS}
            s_lshl_b32 s54, s2, 7
            s_add_u32 s54, s54, {FQ}
            v_mov_b32 v50, s35
            v_mov_b32 v51, 0""")
            a.wait_lg()
            a("buffer_store_dwordx4 v[52:55], v49, s[36:39], s52 offen sc1\ns_waitcnt vmcnt(0)\ns_mov_b64 exec, 1")
            a("buffer_store_dword v50, v51, s[36:39], s54 offen sc1\ns_mov_b64 exec, -1")
            a(f"{Ls}:")
            a.vm = [x for x in a.vm if x is not None]
            self.stamp(3)
        if "s1a" in parts:
            s1('a', 0)
    def role_B(self, with_uv=True):
        a = self.a; c = self.c; mim = c['mimicB']
        QR = 64; ACC = 128; SA = 160; TA = 168; DV = 172; STG = 176; UV = 208
        a("""s_lshr_b32 s49, s2, 5
        s_and_b32 s50, s2, 31
        s_lshl_b32 s52, s49, 23
        s_add_u32 s54, s16, s52
        s_addc_u32 s55, s17, 0""")
        self.srd(40, "s54", "s55", 0x800000)
        a("v_lshrrev_b32 v48, 3, v0\nv_and_b32 v49, 7, v0\ns_lshl_b32 s52, s3, 7\nv_lshlrev_b32 v50, 10, v48\nv_add_u32 v50, s52, v50\nv_lshrrev_b32 v52, 4, v0")
        for q in range(2): a(f"v_add_u32 v51, {4*q}, v52\nv_xor_b32 v51, v51, v49\nv_lshl_add_u32 v{DV+q}, v51, 4, v50")
        a(f"s_lshl_b32 s60, s3, 13\ns_mul_i32 s62, s49, {c['rotb']}\ns_lshl_b32 s62, s62, 21\ns_lshl_b32 s52, s50, 16\ns_add_u32 s62, s62, s52")
        def dma():
            a("s_and_b32 s62, s62, 0x7fffff")
            for q in range(8):
                a(f"s_add_u32 m0, s60, {q*1024}\ns_add_u32 s51, s62, {q*8192}")
                a(f"buffer_load_dwordx4 v{DV + (q & 1)}, s[40:43], s51 offen nt lds", tag='d')
            a("s_add_u32 s62, s62, 0x200000\ns_xor_b32 s60, s60, 0x10000")
        dma()
        a("""v_and_b32 v50, 1, v0
        v_bfe_u32 v51, v0, 1, 1
        v_bfe_u32 v53, v0, 2, 2
        v_lshl_add_u32 v51, v51, 2, v53
        v_lshl_add_u32 v50, v51, 1, v50
        v_lshlrev_b32 v50, 7, v50
        v_lshl_add_u32 v50, v51, 4, v50
        v_lshl_add_u32 v50, v52, 14, v50
        s_and_b32 s52, s3, 3
        s_lshl_b32 s52, s52, 11
        v_add_u32 v50, s52, v50""")
        for ks in range(8): a(f"v_xor_b32 v{SA+ks}, {16*ks}, v50")
        a("""v_bfe_u32 v50, v0, 3, 1
        v_lshlrev_b32 v50, 2, v50
        v_lshrrev_b32 v51, 5, v0
        v_lshl_add_u32 v50, v51, 1, v50
        v_bfe_u32 v51, v0, 4, 1
        v_lshlrev_b32 v51, 1, v51
        v_bfe_u32 v53, v0, 1, 1
        v_add_u32 v51, v51, v53
        v_and_b32 v53, 1, v0
        v_lshlrev_b32 v53, 3, v53
        v_bfe_u32 v54, v0, 2, 1
        v_lshl_add_u32 v53, v54, 7, v53
        s_lshl_b32 s52, s3, 13
        v_add_u32 v53, s52, v53""")
        for hi in range(2):
            a(f"v_add_u32 v54, {hi}, v50\nv_xor_b32 v55, v54, v51\nv_lshl_add_u32 v55, v55, 4, v53\nv_lshl_add_u32 v55, v54, 8, v55")
            for cb in range(2): a(f"v_xor_b32 v{TA + 2*cb + hi}, {64*cb}, v55")
        a(f"""s_lshr_b32 s52, s3, 2
        s_lshl_b32 s52, s52, 4
        v_and_b32 v49, 15, v0
        v_add_u32 v50, s52, v49
        v_mul_u32_u24 v2, 144, v50
        v_lshl_add_u32 v2, v52, 3, v2
        s_and_b32 s54, s3, 3
        s_lshl_b32 s55, s54, 5
        s_add_u32 s55, s55, {PL}
        v_add_u32 v2, s55, v2
        v_and_b32 v51, 31, v0
        v_mul_u32_u24 v3, 144, v51
        v_lshrrev_b32 v53, 5, v0
        v_lshl_add_u32 v3, v53, 4, v3
        v_add_u32 v3, {PL}, v3
        v_lshlrev_b32 v5, 2, v50
        v_add_u32 v5, {ML}, v5
        s_lshl_b32 s55, s54, 7
        v_add_u32 v4, s55, v5
        v_lshlrev_b32 v6, 2, v51
        v_add_u32 v6, {ML}, v6
        v_mov_b32 v7, {NEGINF}
        v_mov_b32 v8, {NEGINF}
        v_mov_b32 v9, 0
        v_lshlrev_b32 v28, 7, v0
        v_add_u32 v28, {FQ}, v28
        s_mov_b32 s58, {LOG2E if mim else SCL2E}""")
        for r in range(32): a(f"v_mov_b32 v{ACC+r}, 0")
        a(f"s_lshl_b32 s52, s49, 15\ns_lshl_b32 s54, s3, 12\ns_add_u32 s52, s52, s54\ns_add_u32 s52, s52, {QABS}\nv_lshlrev_b32 v29, 4, v0")
        a("s_add_u32 s54, s54, 0x10000\nv_add_u32 v30, s54, v29\ns_lshr_b32 s54, s3, 2\ns_lshl_b32 s54, s54, 14\ns_add_u32 s54, s54, 0x10000\nv_add_u32 v31, s54, v29")
        self.poll_flags(28, 3, 1)
        self.stamp(4)
        for n in range(4): a(f"buffer_load_dwordx4 v[{STG+4*n}:{STG+4*n+3}], v29, s[36:39], s52 offen offset:{n*1024} sc1", tag=('q', n))
        for n in range(4):
            a.wait_vm(('q', n)); a(f"ds_write_b128 v30, v[{STG+4*n}:{STG+4*n+3}] offset:{n*1024}")
        a.wait_lg(); a("s_barrier")
        for ks in range(16):
            a(f"ds_read_b128 v[{QR+4*ks}:{QR+4*ks+3}], v31 offset:{ks*1024}")
            if ks == 11: a.wait_lg()
        a.wait_lg(); a("s_barrier")
        dma()
        if with_uv: self.tb1_addr()
        a("s_mov_b32 s61, 0")
        Lloop = a.newlabel("L_btile")
        a(f"{Lloop}:")
        if with_uv: a("s_waitcnt vmcnt(8)")
        else:
            L1 = a.newlabel("L_bw"); L2 = a.newlabel("L_bw")
            a(f"s_cmp_eq_u32 s61, 3\ns_cbranch_scc1 {L1}\ns_waitcnt vmcnt(8)\ns_branch {L2}\n{L1}:\ns_waitcnt vmcnt(0)\n{L2}:")
        a("s_barrier")
        for r in range(4): a(f"v_mov_b32 v{32+r}, 0")
        for ks in range(8): a(f"ds_read_b128 v[{STG+4*ks}:{STG+4*ks+3}], v{SA+ks}", tag=('s', ks))
        for ks in range(16):
            a.wait_lg(('s', ks))
            s = STG + 4 * (ks % 8)
            a(f"v_mfma_f32_16x16x32_bf16 v[32:35], v[{s}:{s+3}], v[{QR+4*ks}:{QR+4*ks+3}], v[32:35]")
            if ks + 8 < 16: a(f"ds_read_b128 v[{s}:{s+3}], v{SA+ks} offset:8192", tag=('s', ks + 8))
        for ks in range(8): a(f"v_xor_b32 v{SA+ks}, 0x10000, v{SA+ks}")
        if mim:
            a("v_cvt_pk_bf16_f32 v36, v32, v33\nv_cvt_pk_bf16_f32 v38, v34, v35")
            a("v_and_b32 v37, 0xffff0000, v36\nv_lshlrev_b32 v36, 16, v36\nv_and_b32 v39, 0xffff0000, v38\nv_lshlrev_b32 v38, 16, v38")
            for r in (36, 37, 38, 39): a(f"v_mul_f32 v{r}, {SCALE}, v{r}")
            a("v_cvt_pk_bf16_f32 v36, v36, v37\nv_cvt_pk_bf16_f32 v38, v38, v39")
            a("v_lshlrev_b32 v32, 16, v36\nv_and_b32 v33, 0xffff0000, v36\nv_lshlrev_b32 v34, 16, v38\nv_and_b32 v35, 0xffff0000, v38")
        a("v_max3_f32 v36, v32, v33, v34\nv_max_f32 v36, v36, v35")
        self.redrows(36, 37, "v_max_f32")
        a("ds_write_b32 v4, v36")
        a.wait_lg(); a("s_barrier")
        a("ds_read2_b32 v[36:37], v5 offset1:32\nds_read2_b32 v[38:39], v5 offset0:64 offset1:96\nds_read2_b32 v[40:41], v6 offset1:32\nds_read2_b32 v[42:43], v6 offset0:64 offset1:96")
        a.wait_lg()
        a("v_max3_f32 v36, v36, v37, v7\nv_max3_f32 v40, v40, v41, v8\nv_max3_f32 v36, v36, v38, v39\nv_max3_f32 v38, v40, v42, v43")
        a("v_sub_f32 v40, v7, v36\nv_sub_f32 v41, v8, v38\nv_mul_f32 v37, s58, v36\nv_mul_f32 v40, s58, v40\nv_mul_f32 v42, s58, v41")
        for r in range(4): a(f"v_fma_f32 v{32+r}, v{32+r}, s58, -v37")
        a("v_exp_f32 v40, v40\nv_exp_f32 v42, v42")
        for r in range(4): a(f"v_exp_f32 v{32+r}, v{32+r}")
        a("v_mov_b32 v7, v36\nv_mov_b32 v8, v38\nv_cvt_pk_bf16_f32 v44, v32, v33\nv_cvt_pk_bf16_f32 v45, v34, v35")
        a("ds_write_b64 v2, v[44:45]")
        a("v_fma_f32 v9, v9, v40, v32\nv_add_f32 v33, v33, v34\nv_add_f32 v9, v9, v35\nv_add_f32 v9, v9, v33\nv_mov_b32 v43, v42")
        for r in range(0, 32, 2): a(f"v_pk_mul_f32 v[{ACC+r}:{ACC+r+1}], v[{ACC+r}:{ACC+r+1}], v[42:43]")
        a.wait_lg(); a("s_barrier")
        for s in range(4): a(f"ds_read_b128 v[{32+4*s}:{35+4*s}], v3 offset:{32*s}", tag='p')
        seq = [(s, cb) for s in range(4) for cb in range(2)]
        def trd(i):
            s, cb = seq[i]
            for hi in range(2):
                a(f"ds_read_b64_tr_b16 v[{STG+4*i+2*hi}:{STG+4*i+2*hi+1}], v{TA+2*cb+hi} offset:{2048*s}", tag=('t', i))
        for i in range(5): trd(i)
        for i in range(8):
            s, cb = seq[i]
            a.wait_lg(('t', i))
            a(f"v_mfma_f32_32x32x16_bf16 v[{ACC+16*cb}:{ACC+16*cb+15}], v[{STG+4*i}:{STG+4*i+3}], v[{32+4*s}:{35+4*s}], v[{ACC+16*cb}:{ACC+16*cb+15}]")
            if i + 5 < 8: trd(i + 5)
        for k in range(4): a(f"v_xor_b32 v{TA+k}, 0x10000, v{TA+k}")
        Ln = a.newlabel("L_norefill"); Lq = a.newlabel("L_refilled")
        a(f"s_cmp_ge_u32 s61, 2\ns_cbranch_scc1 {Ln}")
        dma()
        a(f"s_branch {Lq}\n{Ln}:")
        if with_uv:
            a(f"s_cmp_eq_u32 s61, 3\ns_cbranch_scc1 {Lq}")
            self.tb1_loads(UV)
        a(f"{Lq}:")
        a(f"s_add_u32 s61, s61, 1\ns_cmp_lg_u32 s61, 4\ns_cbranch_scc1 {Lloop}")
        a.vm = []
        self.stamp(5)
        self.redrows(9, 37, "v_add_f32")
        a("ds_write_b32 v4, v9 offset:512")
        a.wait_lg(); a("s_barrier")
        a("ds_read2_b32 v[36:37], v6 offset0:128 offset1:160\nds_read2_b32 v[38:39], v6 offset0:192 offset1:224")
        a("""v_and_b32 v48, 31, v0
        v_mul_u32_u24 v48, 144, v48
        v_lshrrev_b32 v49, 5, v0
        v_lshl_add_u32 v48, v49, 3, v48
        s_lshl_b32 s54, s3, 13
        v_add_u32 v48, s54, v48
        v_lshrrev_b32 v49, 3, v0
        v_mul_u32_u24 v50, 144, v49
        v_and_b32 v51, 7, v0
        v_lshl_add_u32 v50, v51, 4, v50
        v_add_u32 v50, s54, v50
        v_lshlrev_b32 v52, 10, v49
        v_lshl_add_u32 v52, v51, 4, v52""")
        a(f"s_lshl_b32 s52, s2, 15\ns_lshl_b32 s54, s3, 7\ns_add_u32 s52, s52, s54\ns_add_u32 s52, s52, {PB}")
        a.wait_lg()
        a("v_add_f32 v36, v36, v37\nv_add_f32 v38, v38, v39\nv_add_f32 v36, v36, v38\nv_rcp_f32 v38, v36\nv_log_f32 v40, v36\nv_mov_b32 v39, v38\nv_fma_f32 v40, v8, s58, v40")
        for cb in range(2):
            for rq in range(4):
                r = ACC + 16 * cb + 4 * rq
                a(f"v_pk_mul_f32 v[{r}:{r+1}], v[{r}:{r+1}], v[38:39]\nv_pk_mul_f32 v[{r+2}:{r+3}], v[{r+2}:{r+3}], v[38:39]")
                a(f"v_cvt_pk_bf16_f32 v{r}, v{r}, v{r+1}\nv_cvt_pk_bf16_f32 v{r+1}, v{r+2}, v{r+3}")
                a(f"ds_write_b64 v48, v[{r}:{r+1}] offset:{64*cb + 16*rq}")
        a.wait_lg()
        for n in range(4): a(f"ds_read_b128 v[{STG+4*n}:{STG+4*n+3}], v50 offset:{n*8*144}", tag=('r', n))
        for n in range(4):
            a.wait_lg(('r', n))
            a(f"buffer_store_dwordx4 v[{STG+4*n}:{STG+4*n+3}], v52, s[36:39], s52 offen sc1\ns_add_u32 s52, s52, 8192")
        Ls = a.newlabel("L_nopbs")
        a(f"s_cmp_lg_u32 s3, 0\ns_cbranch_scc1 {Ls}")
        a(f"s_lshl_b32 s52, s2, 7\ns_add_u32 s52, s52, {PBS}\nv_lshlrev_b32 v48, 2, v0\ns_mov_b32 exec_hi, 0")
        a(f"buffer_store_dword v40, v48, s[36:39], s52 offen sc1\ns_mov_b64 exec, -1\n{Ls}:")
        self.stamp(8)
        a("s_waitcnt vmcnt(0)\ns_barrier"); a.vm = []
        self.stamp(9)
        Ls = a.newlabel("L_nofb")
        a(f"s_cmp_lg_u32 s3, 0\ns_cbranch_scc1 {Ls}")
        a(f"s_lshl_b32 s52, s2, 7\ns_add_u32 s52, s52, {FB}\nv_mov_b32 v48, s35\nv_mov_b32 v49, 0\ns_mov_b64 exec, 1")
        a(f"buffer_store_dword v48, v49, s[36:39], s52 offen sc1\ns_mov_b64 exec, -1\n{Ls}:")
        a.vm = []
    def tb1_addr(self):
        a = self.a
        self.srd(44, "s22", "s23", 512 * 8192)
        a("""s_and_b32 s52, s2, 1
        s_lshl_b32 s52, s52, 3
        s_add_u32 s52, s52, s3
        s_lshl_b32 s52, s52, 18
        s_lshr_b32 s54, s2, 1
        s_lshl_b32 s54, s54, 8
        s_add_u32 s52, s52, s54
        v_lshrrev_b32 v48, 4, v0
        v_lshlrev_b32 v10, 16, v48
        v_and_b32 v49, 15, v0
        v_lshl_add_u32 v10, v49, 4, v10
        v_add_u32 v10, s52, v10""")
    def tb1_loads(self, UV):
        for t in range(8):
            self.a(f"s_mov_b32 s51, {t*8192}\nbuffer_load_dwordx4 v[{UV+4*t}:{UV+4*t+3}], v10, s[44:47], s51 offen nt", tag=('uv', t))
    def tb1(self, standalone=False):
        a = self.a; UV = 208
        if standalone: self.tb1_addr(); self.tb1_loads(UV)
        self.sels()
        a(f"v_lshlrev_b32 v28, 7, v0\nv_add_u32 v28, {FB}, v28")
        a(f"""v_bfe_u32 v49, v0, 3, 1
        v_and_b32 v50, 7, v0
        v_lshlrev_b32 v50, 2, v50
        v_lshl_add_u32 v50, v49, 5, v50
        v_lshlrev_b32 v29, 7, v50
        v_lshlrev_b32 v31, 15, v50
        v_lshrrev_b32 v48, 4, v0
        v_lshl_add_u32 v31, v48, 4, v31
        s_lshr_b32 s54, s2, 1
        s_lshl_b32 s55, s54, 2
        s_add_u32 s55, s55, {PBS}
        s_lshl_b32 s56, s54, 10
        s_and_b32 s57, s2, 1
        s_lshl_b32 s57, s57, 3
        s_add_u32 s57, s57, s3
        s_lshl_b32 s57, s57, 6
        s_add_u32 s56, s56, s57
        s_add_u32 s56, s56, {PB}""")
        for r in range(32, 36): a(f"v_mov_b32 v{r}, 0")
        self.acc_addr(30, 48)
        self.poll_flags(28, 4, 1)
        self.stamp(10)
        for n in range(4): a(f"buffer_load_dword v{36+n}, v29, s[36:39], s55 offen offset:{128*n} sc1", tag='st')
        for n in range(4): a(f"buffer_load_dwordx4 v[{64+4*n}:{67+4*n}], v31, s[36:39], s56 offen sc1\ns_add_u32 s56, s56, 32768", tag=('pb', n))
        a.wait_vm('st')
        a("v_max3_f32 v40, v36, v37, v38\nv_max_f32 v40, v40, v39")
        self.red8([40], "v_max_f32")
        for n in range(4): a(f"v_sub_f32 v{36+n}, v{36+n}, v40")
        for n in range(4): a(f"v_exp_f32 v{36+n}, v{36+n}")
        a("v_add_f32 v40, v36, v37\nv_add_f32 v41, v38, v39\nv_add_f32 v40, v40, v41")
        self.red8([40], "v_add_f32")
        a("v_rcp_f32 v40, v40")
        for n in range(4): a(f"v_mul_f32 v{36+n}, v{36+n}, v40")
        for n in range(4):
            a.wait_vm(('pb', n))
            for k in range(4):
                a(f"v_lshlrev_b32 v40, 16, v{64+4*n+k}\nv_and_b32 v41, 0xffff0000, v{64+4*n+k}")
                if n == 0: a(f"v_mul_f32 v{10+2*k}, v36, v40\nv_mul_f32 v{11+2*k}, v36, v41")
                else: a(f"v_fmac_f32 v{10+2*k}, v{36+n}, v40\nv_fmac_f32 v{11+2*k}, v{36+n}, v41")
        self.red8(list(range(10, 18)), "v_add_f32")
        for k in range(4): a(f"v_cvt_pk_bf16_f32 v{20+k}, v{10+2*k}, v{11+2*k}")
        for k in range(4):
            self.bop(40, 20 + k, 2); self.bop(44, 20 + k, 6)
            a(f"v_mfma_f32_16x16x32_bf16 v[32:35], v[{UV+8*k}:{UV+8*k+3}], v[40:43], v[32:35]")
            a(f"v_mfma_f32_16x16x32_bf16 v[32:35], v[{UV+8*k+4}:{UV+8*k+7}], v[44:47], v[32:35]")
        a("v_lshlrev_b32 v48, 4, v0\ns_lshl_b32 s52, s3, 10\nv_add_u32 v48, s52, v48")
        a(f"""s_lshr_b32 s52, s3, 1
        s_lshl_b32 s52, s52, 5
        s_lshr_b32 s54, s2, 1
        s_add_u32 s52, s52, s54
        s_add_u32 s52, s52, 64
        s_lshl_b32 s52, s52, 3
        s_and_b32 s55, s2, 1
        s_add_u32 s52, s52, s55
        s_mul_i32 s52, s52, 1152
        s_add_u32 s52, s52, {REC}
        s_and_b32 s54, s3, 1
        s_lshl_b32 s55, s54, 9
        v_lshlrev_b32 v50, 3, v0
        v_add_u32 v50, s55, v50
        v_mov_b32 v59, s35
        v_mov_b32 v57, s35
        v_mov_b32 v56, 0""")
        a("ds_write_b128 v48, v[32:35]")
        a.wait_lg(); a("s_barrier")
        Ls = a.newlabel("L_nostat")
        a(f"s_cmp_ge_u32 s3, 4\ns_cbranch_scc1 {Ls}")
        for w in range(8): a(f"ds_read_b32 v{40+w}, v30 offset:{1024*w}")
        a.wait_lg()
        a("v_add_f32 v40, v40, v41\nv_add_f32 v42, v42, v43\nv_add_f32 v44, v44, v45\nv_add_f32 v46, v46, v47\nv_add_f32 v40, v40, v42\nv_add_f32 v44, v44, v46\nv_add_f32 v58, v40, v44")
        a("buffer_store_dwordx2 v[58:59], v50, s[36:39], s52 offen sc1")
        a(f"s_cmp_lg_u32 s54, 0\ns_cbranch_scc1 {Ls}\ns_mov_b64 exec, 1")
        a("buffer_store_dwordx2 v[56:57], v50, s[36:39], s52 offen offset:1024 sc1")
        a(f"s_mov_b64 exec, -1\n{Ls}:")
        a.vm = []
        self.stamp(6)
    def role_F(self):
        a = self.a; c = self.c
        Lx = a.newlabel("L_nof")
        a(f"""s_lshl_b32 s48, s3, 6
        s_add_u32 s48, s48, s2
        s_cmp_ge_u32 s48, 72
        s_cbranch_scc1 {Lx}
        s_cmp_ge_u32 s48, 36
        s_cselect_b32 s49, 1, 0
        s_mul_i32 s52, s49, 36
        s_sub_u32 s50, s48, s52""")
        a("s_mul_i32 s52, s49, 1152\ns_add_u32 s54, s4, s52\ns_addc_u32 s55, s5, 0")
        self.srd(40, "s54", "s55", 1152); self.srd(44, "s26", "s27", 1152)
        a("v_lshlrev_b32 v1, 2, v0")
        for k in range(5):
            a(f"buffer_load_dword v{10+k}, v1, s[40:43], 0 offen offset:{256*k}\nbuffer_load_dword v{16+k}, v1, s[44:47], 0 offen offset:{256*k}")
        a(f"""v_lshrrev_b32 v24, 3, v0
        v_mul_u32_u24 v31, 9216, v24
        v_and_b32 v24, 7, v0
        v_lshl_add_u32 v31, v24, 4, v31
        s_mul_i32 s52, s49, 4608
        s_lshl_b32 s54, s50, 7
        s_add_u32 s52, s52, s54
        s_add_u32 s52, s52, {PO}
        v_add_u32 v31, s52, v31
        v_mov_b32 v22, 0""")
        for n in range(8): a(f"s_mov_b32 s{64+n}, {n*73728}")
        a.wait_vm()
        for k in range(5):
            a(f"""v_lshlrev_b32 v24, 16, v{10+k}
            v_and_b32 v25, 0xffff0000, v{10+k}
            v_lshlrev_b32 v26, 16, v{16+k}
            v_and_b32 v27, 0xffff0000, v{16+k}
            v_mul_f32 v24, v24, v26
            v_mul_f32 v25, v25, v27
            v_cvt_pk_bf16_f32 v24, v24, v25
            v_lshlrev_b32 v25, 16, v24
            v_and_b32 v24, 0xffff0000, v24
            v_add_f32 v22, v22, v25
            v_add_f32 v22, v22, v24""")
        self.red8([22], "v_add_f32")
        a("v_add_f32_dpp v22, v22, v22 row_ror:8 row_mask:0xf bank_mask:0xf")
        self.redrows(22, 24, "v_add_f32")
        a(f"""v_cvt_pk_bf16_f32 v22, v22, v22
        v_and_b32 v22, 0xffff0000, v22
        v_mul_f32 v22, {LOG2E}, v22
        v_exp_f32 v22, -v22
        v_add_f32 v22, 1.0, v22
        v_rcp_f32 v22, v22
        v_cvt_pk_bf16_f32 v22, v22, v22
        v_and_b32 v22, 0xffff0000, v22
        v_sub_f32 v23, 1.0, v22
        v_cvt_pk_bf16_f32 v23, v23, v23
        v_and_b32 v23, 0xffff0000, v23""")
        self.srd(40, "s28", "s29", 2304)
        a("""v_and_b32 v21, 7, v0
        v_lshlrev_b32 v21, 2, v21
        v_bfe_u32 v24, v0, 4, 1
        v_lshl_add_u32 v21, v24, 1, v21
        s_mul_i32 s56, s49, 1152
        s_lshl_b32 s54, s50, 5
        s_add_u32 s56, s56, s54""")
        def g0(): a("buffer_load_dwordx4 v[64:67], v31, s[36:39], 0 offen sc1", tag='pg')
        self.poll_granules(g0, [65, 67], 48, 7, sleep=c['fsleep'])
        def gissue():
            for n in range(8): a(f"buffer_load_dwordx4 v[{64+4*n}:{67+4*n}], v31, s[36:39], s{64+n} offen sc1", tag='pg')
        self.poll_granules(gissue, [65 + 2 * k for k in range(16)], 48, 8)
        for k in range(2):
            a(f"v_add_f32 v{64+2*k}, v{64+2*k}, v{68+2*k}\nv_add_f32 v{72+2*k}, v{72+2*k}, v{76+2*k}")
            a(f"v_add_f32 v{80+2*k}, v{80+2*k}, v{84+2*k}\nv_add_f32 v{88+2*k}, v{88+2*k}, v{92+2*k}")
        for k in range(2): a(f"v_add_f32 v{64+2*k}, v{64+2*k}, v{72+2*k}\nv_add_f32 v{80+2*k}, v{80+2*k}, v{88+2*k}")
        a("""v_permlane32_swap_b32 v64, v80
        v_permlane32_swap_b32 v66, v82
        v_add_f32 v64, v64, v80
        v_add_f32 v66, v66, v82
        v_permlane16_swap_b32 v64, v66
        v_add_f32 v64, v64, v66
        v_add_f32_dpp v42, v64, v64 row_ror:8 row_mask:0xf bank_mask:0xf
        v_cvt_pk_bf16_f32 v42, v42, v42
        v_and_b32 v42, 0xffff0000, v42
        v_mov_b32 v43, v42
        v_permlane32_swap_b32 v42, v43
        v_mul_f32 v42, v22, v42
        v_mul_f32 v43, v23, v43
        v_cvt_pk_bf16_f32 v42, v42, v43
        v_lshlrev_b32 v43, 16, v42
        v_and_b32 v42, 0xffff0000, v42
        v_add_f32 v42, v42, v43
        v_cvt_pk_bf16_f32 v42, v42, v42
        s_mov_b32 exec_lo, 0x00ff00ff
        s_mov_b32 exec_hi, 0
        buffer_store_short v42, v21, s[40:43], s56 offen""")
        Ls = a.newlabel("L_noep")
        a(f"s_cmp_lg_u32 s48, 0\ns_cbranch_scc1 {Ls}\ns_mov_b64 exec, 1\nv_mov_b32 v44, s35\nv_mov_b32 v45, 0")
        a(f"buffer_store_dword v44, v45, s[36:39], 0 offen\n{Ls}:\ns_mov_b64 exec, -1")
        self.stamp(7)
        a(f"{Lx}:")
    def build(self):
        a = self.a; LDS = 163840
        hdr = open("gated_mix__gqa_block_cached__compressed_kv_cla__decode.s.ref").read().split("; Override launch")[0]
        a.raw(hdr.rstrip())
        def reset(): a.vm = []; a.lg = []; a.hist = []
        if self.c['staged']:
            names = ["s1_kernel", "s2_kernel", "ab_kernel", "tb1_kernel", "t_kernel", "f_kernel"]
            for n in names: a.raw(f"; @launch kernel={n} grid=(256,1,1) block=(512,1,1) lds={LDS}")
            a.raw('.amdgcn_target "amdgcn-amd-amdhsa--gfx950"\n.text')
            self.prologue("s1_kernel"); self.only(0, 64); self.h_head(("s1b", "s1a")); self.finish()
            self.prologue("s2_kernel"); self.only(0, 64); self.h_head(("s2",)); self.finish()
            self.prologue("ab_kernel")
            LA = a.newlabel("L_roleA"); LE = a.newlabel("L_fin")
            a(f"s_cmp_ge_u32 s2, 64\ns_cbranch_scc1 {LA}")
            self.get_tag(); self.role_B(False); a(f"s_branch {LE}\n{LA}:"); reset()
            self.role_A(False); a(f"{LE}:"); self.finish()
            self.prologue("tb1_kernel"); self.only(0, 64); self.get_tag(); self.tb1(True); self.finish()
            self.prologue("t_kernel"); self.only(64, 256); self.get_tag(); self.t_main(True); self.finish()
            self.prologue("f_kernel"); self.only(0, 64); self.get_tag(); self.role_F(); self.finish()
        else:
            names = [KN]
            a.raw(f"; @launch grid=(256,1,1) block=(512,1,1) lds={LDS}")
            a.raw('.amdgcn_target "amdgcn-amd-amdhsa--gfx950"\n.text')
            self.prologue(KN)
            LA, LE = (a.newlabel(x) for x in ("L_roleA", "L_fin"))
            a(f"s_cmp_ge_u32 s2, 64\ns_cbranch_scc1 {LA}")
            self.h_head(); self.role_B(); self.tb1(); self.role_F(); a(f"s_branch {LE}")
            a(f"{LA}:"); reset()
            self.role_A(); self.t_main()
            a(f"{LE}:"); self.finish()
            a.raw(f"L_codeend:\n.fill ({8*1024*self.c['pfKB']} - (L_codeend - {KN})) / 4, 4, 0xbf810000")
        a.raw('.section .rodata,"a"')
        for n in names:
            a.raw(".p2align 6"); self.kd(n)
        return a.text()

def gen(**kw): return G(**kw).build()
if __name__ == "__main__":
    cfg = json.loads(sys.argv[2]) if len(sys.argv) > 2 else {}
    open(sys.argv[1], "w").write(gen(**cfg))
```

```python
import sys, json
sys.path.insert(0, "dev")
from asmlib import Asm
import gen as G1
from gen import KN, EPOCH, Q, QABS, FQ, FB, PBS, FE, REC, PO, PB, STAMP, WS_USED, LOG2E, SCALE, SCL2E, NEGINF

DEF = dict(staged=False, mimicA=True, mimicB=True, W=4, R=40, IQ=20, ICHK=24, burst=1, WH=6,
           stamps=False, spin=40000, sleep_long=8, rotb=2, fsleep=4, pfA=32, pfH=0, pfKB=4)
NT = 43
PL = 131072; ML = PL + 4608; SC = 137216; S2O = 153600

class G(G1.G):
    def __init__(self, **kw):
        self.c = dict(DEF); self.c.update(kw)
        self.a = Asm()
    def prologue(self, name):
        a = self.a
        a.raw(f".globl {name}\n.p2align 8\n.type {name},@function\n{name}:")
        a.hist = []; a.vm = []; a.lg = []
        self.end = a.newlabel("L_end")
        a(f"s_cmp_ge_u32 s2, 256\ns_cbranch_scc1 {self.end}")
        if self.c['stamps'] or self.c.get('padto'): a("s_memrealtime s[80:81]")
        a("""s_load_dwordx16 s[4:19], s[0:1], 0
        s_load_dwordx8 s[20:27], s[0:1], 64
        s_load_dwordx4 s[28:31], s[0:1], 96
        s_load_dwordx2 s[32:33], s[0:1], 112
        v_lshrrev_b32 v1, 6, v0
        v_and_b32 v0, 63, v0
        v_readfirstlane_b32 s3, v1
        s_waitcnt lgkmcnt(0)
        s_load_dword s34, s[32:33], 0""")
        a(f"s_mov_b32 s36, s32\ns_and_b32 s37, s33, 0xffff\ns_mov_b32 s38, {WS_USED}\ns_mov_b32 s39, 0x20000")
    def qk_group(self, K, q, T, U):
        a = self.a; n = len(K)
        for kk in range(4):
            for t in range(n):
                for h in range(2):
                    src2 = "0" if kk == 0 else f"v{T+2*t+h}"
                    a(f"v_dot2_f32_bf16 v{T+2*t+h}, v{K[t]+kk}, v{q+8*h+2*kk}, {src2}")
        for t in range(n): a(f"v_add_f32_dpp v{U[t]}, v{T+2*t}, v{T+2*t} row_ror:8 row_mask:0xf bank_mask:0x3")
        for t in range(n): a(f"v_add_f32_dpp v{U[t]}, v{T+2*t+1}, v{T+2*t+1} row_ror:8 row_mask:0xf bank_mask:0xc")
        for m in ("row_half_mirror", "quad_perm:[1,0,3,2]", "quad_perm:[2,3,0,1]"):
            for t in range(n): a(f"v_add_f32_dpp v{U[t]}, v{U[t]}, v{U[t]} {m} row_mask:0xf bank_mask:0xf")

    def code_prefetch(self, cond_reg, limit, dst):
        a = self.a; n = self.c['pfKB']
        if not limit or self.c['staged']: return
        L = a.newlabel("L_nopf"); Lp = a.newlabel("L_pc")
        a(f"s_cmp_ge_u32 {cond_reg}, {limit}\ns_cbranch_scc1 {L}")
        a(f"s_getpc_b64 s[76:77]\n{Lp}:\ns_sub_u32 s76, s76, {Lp}-{KN}\ns_subb_u32 s77, s77, 0")
        a(f"s_mul_i32 s52, s3, {n*1024}\nv_lshlrev_b32 v{dst}, 4, v0\nv_add_u32 v{dst}, s52, v{dst}")
        for k in range(n):
            a(f"global_load_dwordx4 v[244:247], v{dst}, s[76:77] offset:{k*1024}"); a.vm.pop()
        a(f"{L}:")
    def a_ids(self):
        self.a("s_sub_u32 s48, s2, 64\ns_mul_i32 s49, s48, 171\ns_lshr_b32 s49, s49, 10\ns_mul_i32 s50, s49, 6\ns_sub_u32 s50, s48, s50")
    def t_addr(self):
        a = self.a
        a("""s_cmp_ge_u32 s48, 96
        s_cselect_b32 s63, 1, 0
        s_cselect_b32 s54, s24, s12
        s_cselect_b32 s55, s25, s13
        s_cselect_b32 s67, 2.0, 1.0
        s_mul_i32 s52, s63, 96
        s_sub_u32 s52, s48, s52
        s_mul_i32 s64, s52, 171
        s_lshr_b32 s64, s64, 9
        s_mul_i32 s65, s64, 3
        s_sub_u32 s65, s52, s65""")
        self.srd(68, "s54", "s55", 4096 * 1152)
        a("""s_lshl_b32 s52, s64, 3
        s_add_u32 s52, s52, s3
        s_mul_i32 s52, s52, 18432
        s_mul_i32 s54, s65, 384
        s_add_u32 s52, s52, s54
        v_lshrrev_b32 v48, 4, v0
        v_mul_u32_u24 v30, 4608, v48
        v_add_u32 v30, s52, v30
        v_bfe_u32 v49, v0, 3, 1
        v_mul_u32_u24 v31, 1152, v49
        v_add_u32 v31, v31, v30
        v_and_b32 v50, 7, v0
        v_lshl_add_u32 v31, v50, 4, v31
        v_add_u32 v31, 256, v31
        v_and_b32 v51, 15, v0
        v_lshl_add_u32 v30, v51, 4, v30""")
    def t_load(self, k, reg):
        a = self.a
        if k < 4: a(f"buffer_load_dwordx4 v[{reg}:{reg+3}], v30, s[68:71], 0 offen offset:{k*1152} nt", tag=('kv', 2*NT + k))
        else: a(f"buffer_load_dwordx4 v[{reg}:{reg+3}], v31, s[68:71], 0 offen offset:{(k-4)*2304} nt", tag=('kv', 2*NT + k))
    def role_A(self, with_t=True):
        a = self.a; c = self.c
        W, R = c['W'], c['R']; mim = c['mimicA']
        SREG = 64; RING = 88 if mim else 108
        assert RING + 4 * R <= 256
        NL = 2 * NT + (6 if with_t else 0)
        self.a_ids()
        a("""s_lshl_b32 s52, s49, 21
        s_add_u32 s54, s6, s52
        s_addc_u32 s55, s7, 0
        s_add_u32 s56, s8, s52
        s_addc_u32 s57, s9, 0""")
        self.srd(40, "s54", "s55", 0x200000); self.srd(44, "s56", "s57", 0x200000)
        a(f"""s_lshl_b32 s59, s50, 3
        s_add_u32 s59, s59, s3
        s_lshl_b32 s52, s49, 16
        s_lshl_b32 s60, s59, 12
        s_add_u32 s60, s60, s52
        s_lshl_b32 s61, s59, 10
        s_add_u32 s61, s61, s52
        s_add_u32 s61, s61, {1920*1024}
        s_cmp_lt_u32 s59, 32
        s_cselect_b32 s62, 0, {NEGINF}
        s_cselect_b32 s66, 0, 0x40000000
        v_lshlrev_b32 v1, 4, v0""")
        def ring(j): return RING + 4 * (j % R)
        self.ring = ring
        def issue(j):
            if j >= 2 * NT: self.t_load(j - 2 * NT, ring(j)); return
            jj = j % NT
            srd = "s[40:43]" if j < NT else "s[44:47]"
            off = 0
            if jj < 40:
                if jj % 4 == 0: a(f"s_add_u32 s51, s60, {(jj//4)*48*4096}\ns_and_b32 s51, s51, 0x1fffff")
                off = (jj % 4) * 1024
            else:
                a(f"s_add_u32 s51, s61, {(jj-40)*48*1024}\ns_and_b32 s51, s51, 0x1fffff")
                if jj == 42: a("s_or_b32 s51, s51, s66")
            a(f"buffer_load_dwordx4 v[{ring(j)}:{ring(j)+3}], v1, {srd}, s51 offen offset:{off} nt", tag=('kv', j))
        def qissue():
            for h in range(2):
                for k in range(2):
                    a(f"buffer_load_dwordx4 v[{10+8*h+4*k}:{13+8*h+4*k}], v29, s[36:39], 0 offen offset:{512*h+16*k} sc1", tag='pg')
        I = 0
        self.code_prefetch("s48", c['pfA'], 52)
        while I < W: issue(I); I += 1
        self.sels()
        a(f"s_lshl_b32 s52, s49, 10\ns_add_u32 s52, s52, {Q}\nv_and_b32 v29, 15, v0\nv_lshlrev_b32 v29, 5, v29\nv_add_u32 v29, s52, v29")
        a(f"v_mov_b32 v26, {NEGINF}\nv_mov_b32 v27, 0\nv_mov_b32 v32, 0\nv_mov_b32 v33, 0\nv_mov_b32 v34, 0\nv_mov_b32 v35, 0")
        if with_t: self.t_addr()
        self.get_tag()
        while I < c['ICHK']:
            if I == c['IQ']: qissue()
            a.wait_vm_n(W - 1 + (4 if c['IQ'] <= I < c['IQ'] + W else 0)); issue(I); I += 1
        self.stamp(1)
        self.poll_granules(qissue, [11, 13, 15, 17, 19, 21, 23, 25], 48, 1, first_issued=True)
        self.stamp(2)
        C = 0
        def landed(j): return ('kv', j) not in a.vm
        def consumeK(n):
            nt = min(4, NT - 4 * n)
            K = [ring(4 * n + t) for t in range(nt)]
            U = [44, 45, 46, 47] if mim else [SREG + 4 * n + t for t in range(4)]
            self.qk_group(K, 10, 36, U)
            if nt == 3: a(f"v_add_f32 v{U[2]}, s62, v{U[2]}\nv_mov_b32 v{U[3]}, {NEGINF}")
            if mim:
                a("v_cvt_pk_bf16_f32 v48, v44, v45\nv_cvt_pk_bf16_f32 v50, v46, v47\nv_max3_f32 v26, v26, v44, v45")
                a("v_and_b32 v49, 0xffff0000, v48\nv_lshlrev_b32 v48, 16, v48\nv_and_b32 v51, 0xffff0000, v50\nv_lshlrev_b32 v50, 16, v50")
                a("v_max3_f32 v26, v26, v46, v47")
                for r in (48, 49, 50, 51): a(f"v_mul_f32 v{r}, {SCALE}, v{r}")
                a(f"v_cvt_pk_bf16_f32 v{SREG+2*n}, v48, v49\nv_cvt_pk_bf16_f32 v{SREG+2*n+1}, v50, v51")
            else:
                a(f"v_max3_f32 v26, v26, v{U[0]}, v{U[1]}\nv_max3_f32 v26, v26, v{U[2]}, v{U[3]}")
        def finishK():
            self.redrows(26, 48, "v_max_f32")
            if mim:
                self.round_scaled(26, 48)
                a(f"v_mul_f32 v26, {LOG2E}, v26\ns_mov_b32 s58, {LOG2E}")
            else:
                a(f"v_mul_f32 v26, {SCL2E}, v26\ns_mov_b32 s58, {SCL2E}")
            self.stamp(3)
        def consumeV(n):
            nt = min(2, NT - 2 * n)
            if mim:
                a(f"v_lshlrev_b32 v60, 16, v{SREG+n}\nv_and_b32 v61, 0xffff0000, v{SREG+n}")
                a("v_fma_f32 v60, v60, s58, -v26\nv_fma_f32 v61, v61, s58, -v26")
            else:
                a(f"v_fma_f32 v60, v{SREG+2*n}, s58, -v26\nv_fma_f32 v61, v{SREG+2*n+1}, s58, -v26")
            a("v_exp_f32 v60, v60\nv_exp_f32 v61, v61\nv_add_f32 v27, v27, v60\nv_cvt_pk_bf16_f32 v62, v60, v61\nv_add_f32 v27, v27, v61")
            self.bop(52, 62, 2)
            if nt == 2: self.bop(56, 62, 6)
            for k in range(nt):
                j = NT + 2 * n + k
                a.wait_vm(('kv', j))
                a(f"v_mfma_f32_16x16x32_bf16 v[32:35], v[{ring(j)}:{ring(j)+3}], v[{52+4*k}:{55+4*k}], v[32:35]")
        def unit_last(C): return min(C + 3, NT - 1) if C < NT else min(C + 1, 2 * NT - 1)
        def consume():
            nonlocal C
            if C < NT:
                a.wait_vm(('kv', unit_last(C))); consumeK(C // 4); C = unit_last(C) + 1
                if C == NT: finishK()
            else:
                consumeV((C - NT) // 2); C = unit_last(C) + 1
        while C < 2 * NT:
            if I < NL and I - R < C:
                a.wait_vm_n(W - 1); issue(I); I += 1
                while 2 * NT < I < NL: issue(I); I += 1
                k = 0
                while C < 2 * NT and k < c['burst'] and landed(unit_last(C)) and unit_last(C) < I: consume(); k += 1
            else:
                consume()
        while I < NL: issue(I); I += 1
        self.stamp(4)
        self.redrows(27, 48, "v_add_f32")
        a("v_lshlrev_b32 v48, 4, v0\ns_lshl_b32 s52, s3, 10\nv_add_u32 v48, s52, v48")
        a("v_bfe_u32 v49, v0, 3, 1\nv_lshlrev_b32 v49, 6, v49\ns_lshl_b32 s52, s3, 3\ns_add_u32 s52, s52, 8192\nv_add_u32 v49, s52, v49")
        a("ds_write_b64 v49, v[26:27]\nds_write_b128 v48, v[32:35]")
        self.acc_addr(28, 52)
        a(f"""s_lshr_b32 s52, s3, 1
        s_lshl_b32 s54, s49, 1
        s_add_u32 s52, s52, s54
        s_lshl_b32 s52, s52, 3
        s_add_u32 s52, s52, s50
        s_mul_i32 s52, s52, 1152
        s_add_u32 s52, s52, {REC}
        s_and_b32 s54, s3, 1
        s_lshl_b32 s55, s54, 9
        v_lshlrev_b32 v50, 3, v0
        v_add_u32 v50, s55, v50
        s_lshr_b32 s55, s3, 1
        s_lshl_b32 s55, s55, 6
        s_add_u32 s55, s55, 8192
        v_mov_b32 v51, s55""")
        a.wait_lg(); a("s_barrier")
        self.stamp(8)
        Lu = a.newlabel("L_aup")
        a(f"s_cmp_ge_u32 s3, 4\ns_cbranch_scc1 {Lu}")
        for k in range(4): a(f"ds_read_b128 v[{10+4*k}:{13+4*k}], v51 offset:{16*k}")
        for w in range(8): a(f"ds_read_b32 v{36+w}, v28 offset:{1024*w}")
        a.wait_lg()
        a("v_max3_f32 v52, v10, v12, v14\nv_max3_f32 v53, v16, v18, v20\nv_max3_f32 v52, v52, v22, v24\nv_max_f32 v52, v52, v53")
        for w in range(8): a(f"v_sub_f32 v{10+2*w}, v{10+2*w}, v52")
        for w in range(8): a(f"v_exp_f32 v{10+2*w}, v{10+2*w}")
        a("v_mul_f32 v53, v10, v11\nv_mul_f32 v54, v10, v36")
        for w in range(1, 8): a(f"v_fmac_f32 v53, v{10+2*w}, v{11+2*w}\nv_fmac_f32 v54, v{10+2*w}, v{36+w}")
        a("v_rcp_f32 v55, v53\nv_log_f32 v56, v53\nv_mov_b32 v59, s35\nv_mov_b32 v57, s35\nv_mul_f32 v58, v54, v55\nv_add_f32 v56, v56, v52")
        a("buffer_store_dwordx2 v[58:59], v50, s[36:39], s52 offen sc1"); a.vm.pop()
        a(f"s_cmp_lg_u32 s54, 0\ns_cbranch_scc1 {Lu}\ns_mov_b64 exec, 1")
        a("buffer_store_dwordx2 v[56:57], v50, s[36:39], s52 offen offset:1024 sc1"); a.vm.pop()
        a(f"s_mov_b64 exec, -1\n{Lu}:")
        self.stamp(5)
    def t_main(self, standalone=False):
        a = self.a; c = self.c
        if standalone:
            self.a_ids(); self.sels(); self.t_addr()
            self.ring = lambda j: 88 + 4 * (j % 40)
            for k in range(6): self.t_load(k, self.ring(2 * NT + k))
        WR = [self.ring(2 * NT + k) for k in range(6)]
        a(f"""v_and_b32 v50, 7, v0
        v_min_u32 v51, 5, v50
        v_and_b32 v52, 1, v0
        s_cmp_eq_u32 s63, 0
        s_cselect_b64 vcc, -1, 0
        s_cselect_b32 s66, 5, 7
        v_cndmask_b32 v51, v52, v51, vcc
        v_bfe_u32 v49, v0, 3, 1
        v_lshl_add_u32 v29, v49, 8, v51
        v_mul_u32_u24 v29, 1152, v29
        s_lshl_b32 s52, s63, 6
        s_add_u32 s52, s52, s64
        s_mul_i32 s52, s52, 9216
        s_add_u32 s52, s52, {REC}
        v_add_u32 v29, s52, v29
        v_lshrrev_b32 v48, 4, v0
        v_lshlrev_b32 v1, 5, v48
        s_lshl_b32 s52, s3, 7
        v_add_u32 v1, s52, v1
        v_add_u32 v1, v1, v29
        v_cmp_lt_u32 s[72:73], s66, v50""")
        def gissue():
            for k in range(2): a(f"buffer_load_dwordx4 v[{10+4*k}:{13+4*k}], v1, s[36:39], 0 offen offset:{16*k} sc1", tag='pg')
            a("buffer_load_dwordx2 v[18:19], v29, s[36:39], 0 offen offset:1024 sc1", tag='pg')
        gissue()
        for r in range(32, 44): a(f"v_mov_b32 v{r}, 0")
        a("""v_and_b32 v26, 7, v0
        v_lshlrev_b32 v26, 4, v26
        v_bfe_u32 v48, v0, 3, 2
        v_lshl_add_u32 v26, v48, 2, v26
        v_lshrrev_b32 v48, 5, v0
        s_cmp_ge_u32 s3, 4
        s_cselect_b32 s52, 9, 8
        s_cselect_b32 s54, 8, 9
        s_cselect_b32 s55, 8192, 0
        s_cselect_b32 s56, 1024, 0
        s_add_u32 s55, s55, 16384
        v_lshl_add_u32 v26, v48, s52, v26
        s_and_b32 s57, s3, 1
        s_lshl_b32 s57, s57, s54
        s_add_u32 s56, s56, s57
        s_add_u32 s55, s55, s57
        s_bfe_u32 s57, s3, 0x10001
        s_lshl_b32 s52, s57, 7
        s_add_u32 s55, s55, s52
        v_add_u32 v26, s55, v26
        v_lshlrev_b32 v27, 4, v0
        s_lshl_b32 s52, s3, 10
        s_add_u32 s52, s52, 16384
        v_add_u32 v27, s52, v27
        v_lshlrev_b32 v23, 3, v0
        v_add_u32 v23, s56, v23""")
        a(f"""s_lshl_b32 s74, s63, 5
        s_add_u32 s74, s74, s64
        s_lshl_b32 s74, s74, 1
        s_add_u32 s74, s74, s57
        s_mul_i32 s74, s74, 4608
        s_mul_i32 s54, s65, 1536
        s_add_u32 s74, s74, s54
        s_add_u32 s74, s74, {PO}
        v_mov_b32 v59, s35
        v_mov_b32 v47, {NEGINF}""")
        self.poll_granules(gissue, [11, 13, 15, 17, 19], 48, 6, first_issued=True)
        self.stamp(6)
        a("v_cndmask_b32 v18, v18, v47, s[72:73]\nv_mov_b32 v44, v18")
        self.red8([44], "v_max_f32")
        a("v_sub_f32 v44, v18, v44\nv_exp_f32 v44, v44\nv_mov_b32 v45, v44")
        self.red8([45], "v_add_f32")
        a("v_rcp_f32 v45, v45\nv_mul_f32 v44, s67, v44\nv_mul_f32 v44, v44, v45")
        for t in range(4): a(f"v_mul_f32 v{52+t}, v44, v{10+2*t}")
        self.red8([52, 53, 54, 55], "v_add_f32")
        for k in range(2): a(f"v_cvt_pk_bf16_f32 v{20+k}, v{52+2*k}, v{53+2*k}")
        for k in range(2):
            self.bop(44, 20 + k, 2); self.bop(48, 20 + k, 6)
            a(f"v_mfma_f32_16x16x32_bf16 v[36:39], v[{WR[4+k]}:{WR[4+k]+3}], v[44:47], v[36:39]")
            a(f"v_mfma_f32_16x16x32_bf16 v[40:43], v[{WR[4+k]}:{WR[4+k]+3}], v[48:51], v[40:43]")
            a(f"v_mfma_f32_16x16x32_bf16 v[32:35], v[{WR[2*k]}:{WR[2*k]+3}], v[44:47], v[32:35]")
            a(f"v_mfma_f32_16x16x32_bf16 v[32:35], v[{WR[2*k+1]}:{WR[2*k+1]+3}], v[48:51], v[32:35]")
        a("v_cmp_lt_u32 vcc, 31, v0")
        for r in range(4): a(f"v_cndmask_b32 v{36+r}, v{36+r}, v{40+r}, vcc")
        a("ds_write_b128 v27, v[36:39] offset:8192\nds_write_b128 v27, v[32:35]")
        a.wait_lg(); a("s_barrier")
        for w in range(8): a(f"ds_read_b32 v{44+w}, v26 offset:{1024*w}")
        a.wait_lg()
        a("v_add_f32 v44, v44, v45\nv_add_f32 v46, v46, v47\nv_add_f32 v48, v48, v49\nv_add_f32 v50, v50, v51\nv_add_f32 v44, v44, v46\nv_add_f32 v48, v48, v50\nv_add_f32 v58, v44, v48")
        Lf = a.newlabel("L_tfull")
        a(f"s_cmp_lt_u32 s3, 4\ns_cbranch_scc1 {Lf}")
        a("v_mov_b32 v49, v58\nv_permlane32_swap_b32 v58, v49\nv_add_f32 v58, v58, v49\ns_mov_b32 exec_hi, 0")
        a(f"{Lf}:\nbuffer_store_dwordx2 v[58:59], v23, s[36:39], s74 offen sc1\ns_mov_b64 exec, -1")
        self.stamp(7)

    def s1_finish(self, mat):
        a = self.a; base = SC + 8192 * mat
        a(f"v_cmp_lt_u32 vcc, 31, v0\nv_lshlrev_b32 v48, 4, v0\ns_lshl_b32 s52, s3, 10\ns_add_u32 s52, s52, {base}\nv_add_u32 v48, s52, v48")
        for r in range(4): a(f"v_cndmask_b32 v{32+r}, v{32+r}, v{36+r}, vcc")
        a("ds_write_b128 v48, v[32:35]")
        a.wait_lg(); a("s_barrier")
        Ls = a.newlabel("L_s1skip")
        a(f"s_cmp_ge_u32 s3, 2\ns_cbranch_scc1 {Ls}")
        a(f"""v_and_b32 v48, 7, v0
        v_lshlrev_b32 v48, 4, v48
        v_bfe_u32 v49, v0, 3, 2
        v_lshl_add_u32 v48, v49, 2, v48
        v_lshrrev_b32 v49, 5, v0
        v_lshl_add_u32 v48, v49, 8, v48
        s_lshl_b32 s52, s3, 7
        s_add_u32 s52, s52, {base}
        v_add_u32 v48, s52, v48""")
        for s in range(16):
            a(f"ds_read_b32 v{32+s}, v48 offset:{512*s}")
            if s == 11: a.wait_lg()
        a(f"""s_lshl_b32 s52, s3, 14
        s_lshl_b32 s54, s2, 8
        s_add_u32 s52, s52, s54
        s_add_u32 s52, s52, {Q + 32768 * mat}
        v_lshlrev_b32 v50, 2, v0
        v_mov_b32 v53, s35""")
        a.wait_lg()
        for st in (8, 4, 2, 1):
            for s in range(st): a(f"v_add_f32 v{32+s}, v{32+s}, v{32+s+st}")
        a("v_mov_b32_dpp v33, v32 quad_perm:[1,0,3,2] row_mask:0xf bank_mask:0xf")
        a("v_cvt_pk_bf16_f32 v52, v32, v33\ns_mov_b32 exec_lo, 0x55555555\ns_mov_b32 exec_hi, 0x55555555")
        a("buffer_store_dwordx2 v[52:53], v50, s[36:39], s52 offen sc1\ns_mov_b64 exec, -1"); a.vm.pop()
        a(f"{Ls}:")
    def h_head(self, parts=("s1b", "s1a", "s2")):
        a = self.a; c = self.c; WH = c['WH']
        self.srd(40, "s18", "s19", 576 * 8192); self.srd(44, "s10", "s11", 576 * 8192)
        self.srd(68, "s20", "s21", 512 * 8192); self.srd(72, "s4", "s5", 2304)
        a("""v_lshrrev_b32 v48, 4, v0
        v_mul_u32_u24 v49, 18, v48
        v_bfe_u32 v50, v0, 3, 1
        v_add_u32 v51, v49, v50
        s_mul_i32 s52, s3, 72
        v_add_u32 v51, s52, v51
        v_lshlrev_b32 v28, 13, v51
        v_and_b32 v51, 7, v0
        v_lshl_add_u32 v28, v51, 4, v28
        s_lshl_b32 s54, s2, 7
        v_add_u32 v28, s54, v28
        v_mul_u32_u24 v29, 1152, v50
        v_lshl_add_u32 v29, v49, 1, v29
        s_lshl_b32 s52, s52, 1
        v_add_u32 v29, s52, v29""")
        self.code_prefetch("s2", c['pfH'], 52)
        seq = []
        if "s1b" in parts: seq += [('b', t) for t in range(9)]
        if "s2" in parts: seq += [('u', t) for t in range(8)]
        if "s1a" in parts: seq += [('a', t) for t in range(9)]
        REG = {'b': 64, 'u': 100, 'a': 132}
        def issue(x):
            k, t = x; r = REG[k] + 4 * t
            if k == 'u': a(f"s_mov_b32 s51, {t*8192}\nbuffer_load_dwordx4 v[{r}:{r+3}], v30, s[68:71], s51 offen nt", tag=x)
            else: a(f"s_mov_b32 s51, {t*16384}\nbuffer_load_dwordx4 v[{r}:{r+3}], v28, {'s[40:43]' if k == 'b' else 's[44:47]'}, s51 offen nt", tag=x)
        a("buffer_load_dwordx4 v[10:13], v29, s[72:75], 0 offen\nbuffer_load_dwordx4 v[14:17], v29, s[72:75], 0 offen offset:16\nbuffer_load_dword v18, v29, s[72:75], 0 offen offset:32", tag='x')
        I = 0
        nfirst = min(len(seq), 9)
        if seq[0][0] != 'u':
            while I < nfirst: issue(seq[I]); I += 1
        a(f"""s_lshr_b32 s49, s2, 4
        s_and_b32 s50, s2, 15
        s_lshl_b32 s52, s50, 2
        s_lshr_b32 s54, s3, 1
        s_add_u32 s52, s52, s54
        s_lshl_b32 s52, s52, 16
        s_lshl_b32 s54, s49, 1
        s_and_b32 s55, s3, 1
        s_add_u32 s54, s54, s55
        s_lshl_b32 s55, s54, 10
        s_add_u32 s52, s52, s55
        v_lshlrev_b32 v30, 4, v0
        v_add_u32 v30, s52, v30
        s_lshl_b32 s54, s54, 11
        s_add_u32 s54, s54, {Q + 32768}
        v_lshlrev_b32 v31, 9, v48
        v_and_b32 v49, 15, v0
        v_lshl_add_u32 v31, v49, 5, v31
        v_add_u32 v31, s54, v31
        s_mov_b32 s56, 16384""")
        self.sels()
        self.get_tag()
        def more(n=1):
            nonlocal I
            for _ in range(n):
                if I < len(seq): a.wait_vm_n(WH - 1); issue(seq[I]); I += 1
        def s1(k, mat):
            for r in range(32, 40): a(f"v_mov_b32 v{r}, 0")
            for t in range(9):
                self.bop(40, 10 + t, 2); self.bop(44, 10 + t, 6)
                while (k, t) not in seq[:I]: more()
                a.wait_vm((k, t))
                if I < len(seq) and len(a.vm) < WH: issue(seq[I]); globals()['_dummy'] = 0; inc()
                r = REG[k] + 4 * t
                a(f"v_mfma_f32_16x16x32_bf16 v[32:35], v[{r}:{r+3}], v[40:43], v[32:35]")
                a(f"v_mfma_f32_16x16x32_bf16 v[36:39], v[{r}:{r+3}], v[44:47], v[36:39]")
            self.s1_finish(mat)
        def inc():
            nonlocal I
            I += 1
        a.wait_vm('x')
        if "s1b" in parts:
            s1('b', 1); self.stamp(1)
        while I < len(seq): more()
        if "s2" in parts:
            def qissue():
                for b in range(2):
                    for k in range(2):
                        so = "s56" if b else "0"
                        a(f"buffer_load_dwordx4 v[{168+8*b+4*k}:{171+8*b+4*k}], v31, s[36:39], {so} offen offset:{16*k} sc1", tag='pg')
            qissue()
            a(f"""v_bfe_u32 v50, v0, 3, 1
            v_lshlrev_b32 v63, 9, v50
            v_lshrrev_b32 v48, 4, v0
            v_lshl_add_u32 v63, v48, 4, v63
            s_lshr_b32 s52, s3, 1
            s_lshl_b32 s52, s52, 7
            s_and_b32 s55, s3, 1
            s_lshl_b32 s55, s55, 6
            s_add_u32 s52, s52, s55
            s_add_u32 s52, s52, {S2O}
            v_add_u32 v60, s52, v63
            v_lshlrev_b32 v51, 4, v0
            v_add_u32 v51, {S2O + 1024}, v51
            v_and_b32 v50, 7, v0
            v_cmp_lt_u32 vcc, 0, v50
            v_cndmask_b32 v60, v60, v51, vcc""")
            self.poll_granules(qissue, [169, 171, 173, 175, 177, 179, 181, 183], 48, 2, first_issued=True, sleep=1)
            self.stamp(2)
            for n in range(2):
                self.qk_group([100 + 16 * n + 4 * t for t in range(4)], 168, 36, [184 + 4 * n + t for t in range(4)])
            for k in range(4): a(f"v_cvt_pk_bf16_f32 v{52+k}, v{184+2*k}, v{185+2*k}")
            a("ds_write_b128 v60, v[52:55]")
            a.wait_lg(); a("s_barrier")
            Ls = a.newlabel("L_s2skip")
            a(f"s_cmp_lg_u32 s3, 7\ns_cbranch_scc1 {Ls}")
            a(f"v_lshlrev_b32 v48, 4, v0\nv_add_u32 v48, {S2O}, v48\nds_read_b128 v[52:55], v48")
            a(f"""v_lshrrev_b32 v49, 5, v0
            v_lshlrev_b32 v49, 15, v49
            v_bfe_u32 v50, v0, 3, 2
            v_lshl_add_u32 v49, v50, 10, v49
            v_and_b32 v50, 7, v0
            v_lshl_add_u32 v49, v50, 4, v49
            s_lshr_b32 s52, s49, 1
            s_lshl_b32 s52, s52, 14
            s_and_b32 s54, s50, 3
            s_lshl_b32 s54, s54, 12
            s_add_u32 s52, s52, s54
            s_lshr_b32 s54, s50, 2
            s_lshl_b32 s54, s54, 8
            s_add_u32 s52, s52, s54
            s_and_b32 s54, s49, 1
            s_lshl_b32 s54, s54, 7
            s_add_u32 s52, s52, s54
            s_add_u32 s52, s52, {QABS}
            s_lshl_b32 s54, s2, 7
            s_add_u32 s54, s54, {FQ}
            v_mov_b32 v50, s35
            v_mov_b32 v51, 0""")
            a.wait_lg()
            a("buffer_store_dwordx4 v[52:55], v49, s[36:39], s52 offen sc1\ns_waitcnt vmcnt(0)\ns_mov_b64 exec, 1")
            a("buffer_store_dword v50, v51, s[36:39], s54 offen sc1\ns_mov_b64 exec, -1")
            a(f"{Ls}:")
            a.vm = [x for x in a.vm if x is not None]
            self.stamp(3)
        if "s1a" in parts:
            s1('a', 0)
    def role_B(self, with_uv=True):
        a = self.a; c = self.c; mim = c['mimicB']
        QR = 64; ACC = 128; SA = 160; TA = 168; DV = 172; STG = 176; UV = 208
        a("""s_lshr_b32 s49, s2, 5
        s_and_b32 s50, s2, 31
        s_lshl_b32 s52, s49, 23
        s_add_u32 s54, s16, s52
        s_addc_u32 s55, s17, 0""")
        self.srd(40, "s54", "s55", 0x800000)
        a("v_lshrrev_b32 v48, 3, v0\nv_and_b32 v49, 7, v0\ns_lshl_b32 s52, s3, 7\nv_lshlrev_b32 v50, 10, v48\nv_add_u32 v50, s52, v50\nv_lshrrev_b32 v52, 4, v0")
        for q in range(2): a(f"v_add_u32 v51, {4*q}, v52\nv_xor_b32 v51, v51, v49\nv_lshl_add_u32 v{DV+q}, v51, 4, v50")
        a(f"s_lshl_b32 s60, s3, 13\ns_mul_i32 s62, s49, {c['rotb']}\ns_lshl_b32 s62, s62, 21\ns_lshl_b32 s52, s50, 16\ns_add_u32 s62, s62, s52")
        def dma():
            a("s_and_b32 s62, s62, 0x7fffff")
            for q in range(8):
                a(f"s_add_u32 m0, s60, {q*1024}\ns_add_u32 s51, s62, {q*8192}")
                a(f"buffer_load_dwordx4 v{DV + (q & 1)}, s[40:43], s51 offen nt lds", tag='d')
            a("s_add_u32 s62, s62, 0x200000\ns_xor_b32 s60, s60, 0x10000")
        dma()
        a("""v_and_b32 v50, 1, v0
        v_bfe_u32 v51, v0, 1, 1
        v_bfe_u32 v53, v0, 2, 2
        v_lshl_add_u32 v51, v51, 2, v53
        v_lshl_add_u32 v50, v51, 1, v50
        v_lshlrev_b32 v50, 7, v50
        v_lshl_add_u32 v50, v51, 4, v50
        v_lshl_add_u32 v50, v52, 14, v50
        s_and_b32 s52, s3, 3
        s_lshl_b32 s52, s52, 11
        v_add_u32 v50, s52, v50""")
        for ks in range(8): a(f"v_xor_b32 v{SA+ks}, {16*ks}, v50")
        a("""v_bfe_u32 v50, v0, 3, 1
        v_lshlrev_b32 v50, 2, v50
        v_lshrrev_b32 v51, 5, v0
        v_lshl_add_u32 v50, v51, 1, v50
        v_bfe_u32 v51, v0, 4, 1
        v_lshlrev_b32 v51, 1, v51
        v_bfe_u32 v53, v0, 1, 1
        v_add_u32 v51, v51, v53
        v_and_b32 v53, 1, v0
        v_lshlrev_b32 v53, 3, v53
        v_bfe_u32 v54, v0, 2, 1
        v_lshl_add_u32 v53, v54, 7, v53
        s_lshl_b32 s52, s3, 13
        v_add_u32 v53, s52, v53""")
        for hi in range(2):
            a(f"v_add_u32 v54, {hi}, v50\nv_xor_b32 v55, v54, v51\nv_lshl_add_u32 v55, v55, 4, v53\nv_lshl_add_u32 v55, v54, 8, v55")
            for cb in range(2): a(f"v_xor_b32 v{TA + 2*cb + hi}, {64*cb}, v55")
        a(f"""s_lshr_b32 s52, s3, 2
        s_lshl_b32 s52, s52, 4
        v_and_b32 v49, 15, v0
        v_add_u32 v50, s52, v49
        v_mul_u32_u24 v2, 144, v50
        v_lshl_add_u32 v2, v52, 3, v2
        s_and_b32 s54, s3, 3
        s_lshl_b32 s55, s54, 5
        s_add_u32 s55, s55, {PL}
        v_add_u32 v2, s55, v2
        v_and_b32 v51, 31, v0
        v_mul_u32_u24 v3, 144, v51
        v_lshrrev_b32 v53, 5, v0
        v_lshl_add_u32 v3, v53, 4, v3
        v_add_u32 v3, {PL}, v3
        v_lshlrev_b32 v5, 2, v50
        v_add_u32 v5, {ML}, v5
        s_lshl_b32 s55, s54, 7
        v_add_u32 v4, s55, v5
        v_lshlrev_b32 v6, 2, v51
        v_add_u32 v6, {ML}, v6
        v_mov_b32 v7, {NEGINF}
        v_mov_b32 v8, {NEGINF}
        v_mov_b32 v9, 0
        v_lshlrev_b32 v28, 7, v0
        v_add_u32 v28, {FQ}, v28
        s_mov_b32 s58, {LOG2E if mim else SCL2E}""")
        for r in range(32): a(f"v_mov_b32 v{ACC+r}, 0")
        a(f"s_lshl_b32 s52, s49, 15\ns_lshl_b32 s54, s3, 12\ns_add_u32 s52, s52, s54\ns_add_u32 s52, s52, {QABS}\nv_lshlrev_b32 v29, 4, v0")
        a("s_add_u32 s54, s54, 0x10000\nv_add_u32 v30, s54, v29\ns_lshr_b32 s54, s3, 2\ns_lshl_b32 s54, s54, 14\ns_add_u32 s54, s54, 0x10000\nv_add_u32 v31, s54, v29")
        self.poll_flags(28, 3, 1)
        self.stamp(4)
        for n in range(4): a(f"buffer_load_dwordx4 v[{STG+4*n}:{STG+4*n+3}], v29, s[36:39], s52 offen offset:{n*1024} sc1", tag=('q', n))
        for n in range(4):
            a.wait_vm(('q', n)); a(f"ds_write_b128 v30, v[{STG+4*n}:{STG+4*n+3}] offset:{n*1024}")
        a.wait_lg(); a("s_barrier")
        for ks in range(16):
            a(f"ds_read_b128 v[{QR+4*ks}:{QR+4*ks+3}], v31 offset:{ks*1024}")
            if ks == 11: a.wait_lg()
        a.wait_lg(); a("s_barrier")
        dma()
        if with_uv: self.tb1_addr()
        a("s_mov_b32 s61, 0")
        Lloop = a.newlabel("L_btile")
        a(f"{Lloop}:")
        if with_uv: a("s_waitcnt vmcnt(8)")
        else:
            L1 = a.newlabel("L_bw"); L2 = a.newlabel("L_bw")
            a(f"s_cmp_eq_u32 s61, 3\ns_cbranch_scc1 {L1}\ns_waitcnt vmcnt(8)\ns_branch {L2}\n{L1}:\ns_waitcnt vmcnt(0)\n{L2}:")
        a("s_barrier")
        for r in range(4): a(f"v_mov_b32 v{32+r}, 0")
        for ks in range(8): a(f"ds_read_b128 v[{STG+4*ks}:{STG+4*ks+3}], v{SA+ks}", tag=('s', ks))
        for ks in range(16):
            a.wait_lg(('s', ks))
            s = STG + 4 * (ks % 8)
            a(f"v_mfma_f32_16x16x32_bf16 v[32:35], v[{s}:{s+3}], v[{QR+4*ks}:{QR+4*ks+3}], v[32:35]")
            if ks + 8 < 16: a(f"ds_read_b128 v[{s}:{s+3}], v{SA+ks} offset:8192", tag=('s', ks + 8))
        for ks in range(8): a(f"v_xor_b32 v{SA+ks}, 0x10000, v{SA+ks}")
        if mim:
            a("v_cvt_pk_bf16_f32 v36, v32, v33\nv_cvt_pk_bf16_f32 v38, v34, v35")
            a("v_and_b32 v37, 0xffff0000, v36\nv_lshlrev_b32 v36, 16, v36\nv_and_b32 v39, 0xffff0000, v38\nv_lshlrev_b32 v38, 16, v38")
            for r in (36, 37, 38, 39): a(f"v_mul_f32 v{r}, {SCALE}, v{r}")
            a("v_cvt_pk_bf16_f32 v36, v36, v37\nv_cvt_pk_bf16_f32 v38, v38, v39")
            a("v_lshlrev_b32 v32, 16, v36\nv_and_b32 v33, 0xffff0000, v36\nv_lshlrev_b32 v34, 16, v38\nv_and_b32 v35, 0xffff0000, v38")
        a("v_max3_f32 v36, v32, v33, v34\nv_max_f32 v36, v36, v35")
        self.redrows(36, 37, "v_max_f32")
        a("ds_write_b32 v4, v36")
        a.wait_lg(); a("s_barrier")
        a("ds_read2_b32 v[36:37], v5 offset1:32\nds_read2_b32 v[38:39], v5 offset0:64 offset1:96\nds_read2_b32 v[40:41], v6 offset1:32\nds_read2_b32 v[42:43], v6 offset0:64 offset1:96")
        a.wait_lg()
        a("v_max3_f32 v36, v36, v37, v7\nv_max3_f32 v40, v40, v41, v8\nv_max3_f32 v36, v36, v38, v39\nv_max3_f32 v38, v40, v42, v43")
        a("v_sub_f32 v40, v7, v36\nv_sub_f32 v41, v8, v38\nv_mul_f32 v37, s58, v36\nv_mul_f32 v40, s58, v40\nv_mul_f32 v42, s58, v41")
        for r in range(4): a(f"v_fma_f32 v{32+r}, v{32+r}, s58, -v37")
        a("v_exp_f32 v40, v40\nv_exp_f32 v42, v42")
        for r in range(4): a(f"v_exp_f32 v{32+r}, v{32+r}")
        a("v_mov_b32 v7, v36\nv_mov_b32 v8, v38\nv_cvt_pk_bf16_f32 v44, v32, v33\nv_cvt_pk_bf16_f32 v45, v34, v35")
        a("ds_write_b64 v2, v[44:45]")
        a("v_fma_f32 v9, v9, v40, v32\nv_add_f32 v33, v33, v34\nv_add_f32 v9, v9, v35\nv_add_f32 v9, v9, v33\nv_mov_b32 v43, v42")
        for r in range(0, 32, 2): a(f"v_pk_mul_f32 v[{ACC+r}:{ACC+r+1}], v[{ACC+r}:{ACC+r+1}], v[42:43]")
        a.wait_lg(); a("s_barrier")
        for s in range(4): a(f"ds_read_b128 v[{32+4*s}:{35+4*s}], v3 offset:{32*s}", tag='p')
        seq = [(s, cb) for s in range(4) for cb in range(2)]
        def trd(i):
            s, cb = seq[i]
            for hi in range(2):
                a(f"ds_read_b64_tr_b16 v[{STG+4*i+2*hi}:{STG+4*i+2*hi+1}], v{TA+2*cb+hi} offset:{2048*s}", tag=('t', i))
        for i in range(5): trd(i)
        for i in range(8):
            s, cb = seq[i]
            a.wait_lg(('t', i))
            a(f"v_mfma_f32_32x32x16_bf16 v[{ACC+16*cb}:{ACC+16*cb+15}], v[{STG+4*i}:{STG+4*i+3}], v[{32+4*s}:{35+4*s}], v[{ACC+16*cb}:{ACC+16*cb+15}]")
            if i + 5 < 8: trd(i + 5)
        for k in range(4): a(f"v_xor_b32 v{TA+k}, 0x10000, v{TA+k}")
        Ln = a.newlabel("L_norefill"); Lq = a.newlabel("L_refilled")
        a(f"s_cmp_ge_u32 s61, 2\ns_cbranch_scc1 {Ln}")
        dma()
        a(f"s_branch {Lq}\n{Ln}:")
        if with_uv:
            a(f"s_cmp_eq_u32 s61, 3\ns_cbranch_scc1 {Lq}")
            self.tb1_loads(UV)
        a(f"{Lq}:")
        a(f"s_add_u32 s61, s61, 1\ns_cmp_lg_u32 s61, 4\ns_cbranch_scc1 {Lloop}")
        a.vm = []
        self.stamp(5)
        self.redrows(9, 37, "v_add_f32")
        a("ds_write_b32 v4, v9 offset:512")
        a.wait_lg(); a("s_barrier")
        a("ds_read2_b32 v[36:37], v6 offset0:128 offset1:160\nds_read2_b32 v[38:39], v6 offset0:192 offset1:224")
        a("""v_and_b32 v48, 31, v0
        v_mul_u32_u24 v48, 144, v48
        v_lshrrev_b32 v49, 5, v0
        v_lshl_add_u32 v48, v49, 3, v48
        s_lshl_b32 s54, s3, 13
        v_add_u32 v48, s54, v48
        v_lshrrev_b32 v49, 3, v0
        v_mul_u32_u24 v50, 144, v49
        v_and_b32 v51, 7, v0
        v_lshl_add_u32 v50, v51, 4, v50
        v_add_u32 v50, s54, v50
        v_lshlrev_b32 v52, 10, v49
        v_lshl_add_u32 v52, v51, 4, v52""")
        a(f"s_lshl_b32 s52, s2, 15\ns_lshl_b32 s54, s3, 7\ns_add_u32 s52, s52, s54\ns_add_u32 s52, s52, {PB}")
        a.wait_lg()
        a("v_add_f32 v36, v36, v37\nv_add_f32 v38, v38, v39\nv_add_f32 v36, v36, v38\nv_rcp_f32 v38, v36\nv_log_f32 v40, v36\nv_mov_b32 v39, v38\nv_fma_f32 v40, v8, s58, v40")
        for cb in range(2):
            for rq in range(4):
                r = ACC + 16 * cb + 4 * rq
                a(f"v_pk_mul_f32 v[{r}:{r+1}], v[{r}:{r+1}], v[38:39]\nv_pk_mul_f32 v[{r+2}:{r+3}], v[{r+2}:{r+3}], v[38:39]")
                a(f"v_cvt_pk_bf16_f32 v{r}, v{r}, v{r+1}\nv_cvt_pk_bf16_f32 v{r+1}, v{r+2}, v{r+3}")
                a(f"ds_write_b64 v48, v[{r}:{r+1}] offset:{64*cb + 16*rq}")
        a.wait_lg()
        for n in range(4): a(f"ds_read_b128 v[{STG+4*n}:{STG+4*n+3}], v50 offset:{n*8*144}", tag=('r', n))
        for n in range(4):
            a.wait_lg(('r', n))
            a(f"buffer_store_dwordx4 v[{STG+4*n}:{STG+4*n+3}], v52, s[36:39], s52 offen sc1\ns_add_u32 s52, s52, 8192")
        Ls = a.newlabel("L_nopbs")
        a(f"s_cmp_lg_u32 s3, 0\ns_cbranch_scc1 {Ls}")
        a(f"s_lshl_b32 s52, s2, 7\ns_add_u32 s52, s52, {PBS}\nv_lshlrev_b32 v48, 2, v0\ns_mov_b32 exec_hi, 0")
        a(f"buffer_store_dword v40, v48, s[36:39], s52 offen sc1\ns_mov_b64 exec, -1\n{Ls}:")
        self.stamp(8)
        a("s_waitcnt vmcnt(0)\ns_barrier"); a.vm = []
        self.stamp(9)
        Ls = a.newlabel("L_nofb")
        a(f"s_cmp_lg_u32 s3, 0\ns_cbranch_scc1 {Ls}")
        a(f"s_lshl_b32 s52, s2, 7\ns_add_u32 s52, s52, {FB}\nv_mov_b32 v48, s35\nv_mov_b32 v49, 0\ns_mov_b64 exec, 1")
        a(f"buffer_store_dword v48, v49, s[36:39], s52 offen sc1\ns_mov_b64 exec, -1\n{Ls}:")
        a.vm = []
    def tb1_addr(self):
        a = self.a
        self.srd(44, "s22", "s23", 512 * 8192)
        a("""s_and_b32 s52, s2, 1
        s_lshl_b32 s52, s52, 3
        s_add_u32 s52, s52, s3
        s_lshl_b32 s52, s52, 18
        s_lshr_b32 s54, s2, 1
        s_lshl_b32 s54, s54, 8
        s_add_u32 s52, s52, s54
        v_lshrrev_b32 v48, 4, v0
        v_lshlrev_b32 v10, 16, v48
        v_and_b32 v49, 15, v0
        v_lshl_add_u32 v10, v49, 4, v10
        v_add_u32 v10, s52, v10""")
    def tb1_loads(self, UV):
        for t in range(8):
            self.a(f"s_mov_b32 s51, {t*8192}\nbuffer_load_dwordx4 v[{UV+4*t}:{UV+4*t+3}], v10, s[44:47], s51 offen nt", tag=('uv', t))
    def tb1(self, standalone=False):
        a = self.a; UV = 208
        if standalone: self.tb1_addr(); self.tb1_loads(UV)
        self.sels()
        a(f"v_lshlrev_b32 v28, 7, v0\nv_add_u32 v28, {FB}, v28")
        a(f"""v_bfe_u32 v49, v0, 3, 1
        v_and_b32 v50, 7, v0
        v_lshlrev_b32 v50, 2, v50
        v_lshl_add_u32 v50, v49, 5, v50
        v_lshlrev_b32 v29, 7, v50
        v_lshlrev_b32 v31, 15, v50
        v_lshrrev_b32 v48, 4, v0
        v_lshl_add_u32 v31, v48, 4, v31
        s_lshr_b32 s54, s2, 1
        s_lshl_b32 s55, s54, 2
        s_add_u32 s55, s55, {PBS}
        s_lshl_b32 s56, s54, 10
        s_and_b32 s57, s2, 1
        s_lshl_b32 s57, s57, 3
        s_add_u32 s57, s57, s3
        s_lshl_b32 s57, s57, 6
        s_add_u32 s56, s56, s57
        s_add_u32 s56, s56, {PB}""")
        for r in range(32, 36): a(f"v_mov_b32 v{r}, 0")
        self.acc_addr(30, 48)
        self.poll_flags(28, 4, 1)
        self.stamp(10)
        for n in range(4): a(f"buffer_load_dword v{36+n}, v29, s[36:39], s55 offen offset:{128*n} sc1", tag='st')
        for n in range(4): a(f"buffer_load_dwordx4 v[{64+4*n}:{67+4*n}], v31, s[36:39], s56 offen sc1\ns_add_u32 s56, s56, 32768", tag=('pb', n))
        a.wait_vm('st')
        a("v_max3_f32 v40, v36, v37, v38\nv_max_f32 v40, v40, v39")
        self.red8([40], "v_max_f32")
        for n in range(4): a(f"v_sub_f32 v{36+n}, v{36+n}, v40")
        for n in range(4): a(f"v_exp_f32 v{36+n}, v{36+n}")
        a("v_add_f32 v40, v36, v37\nv_add_f32 v41, v38, v39\nv_add_f32 v40, v40, v41")
        self.red8([40], "v_add_f32")
        a("v_rcp_f32 v40, v40")
        for n in range(4): a(f"v_mul_f32 v{36+n}, v{36+n}, v40")
        for n in range(4):
            a.wait_vm(('pb', n))
            for k in range(4):
                a(f"v_lshlrev_b32 v40, 16, v{64+4*n+k}\nv_and_b32 v41, 0xffff0000, v{64+4*n+k}")
                if n == 0: a(f"v_mul_f32 v{10+2*k}, v36, v40\nv_mul_f32 v{11+2*k}, v36, v41")
                else: a(f"v_fmac_f32 v{10+2*k}, v{36+n}, v40\nv_fmac_f32 v{11+2*k}, v{36+n}, v41")
        self.red8(list(range(10, 18)), "v_add_f32")
        for k in range(4): a(f"v_cvt_pk_bf16_f32 v{20+k}, v{10+2*k}, v{11+2*k}")
        for k in range(4):
            self.bop(40, 20 + k, 2); self.bop(44, 20 + k, 6)
            a(f"v_mfma_f32_16x16x32_bf16 v[32:35], v[{UV+8*k}:{UV+8*k+3}], v[40:43], v[32:35]")
            a(f"v_mfma_f32_16x16x32_bf16 v[32:35], v[{UV+8*k+4}:{UV+8*k+7}], v[44:47], v[32:35]")
        a("v_lshlrev_b32 v48, 4, v0\ns_lshl_b32 s52, s3, 10\nv_add_u32 v48, s52, v48")
        a(f"""s_lshr_b32 s52, s3, 1
        s_lshl_b32 s52, s52, 5
        s_lshr_b32 s54, s2, 1
        s_add_u32 s52, s52, s54
        s_add_u32 s52, s52, 64
        s_lshl_b32 s52, s52, 3
        s_and_b32 s55, s2, 1
        s_add_u32 s52, s52, s55
        s_mul_i32 s52, s52, 1152
        s_add_u32 s52, s52, {REC}
        s_and_b32 s54, s3, 1
        s_lshl_b32 s55, s54, 9
        v_lshlrev_b32 v50, 3, v0
        v_add_u32 v50, s55, v50
        v_mov_b32 v59, s35
        v_mov_b32 v57, s35
        v_mov_b32 v56, 0""")
        a("ds_write_b128 v48, v[32:35]")
        a.wait_lg(); a("s_barrier")
        Ls = a.newlabel("L_nostat")
        a(f"s_cmp_ge_u32 s3, 4\ns_cbranch_scc1 {Ls}")
        for w in range(8): a(f"ds_read_b32 v{40+w}, v30 offset:{1024*w}")
        a.wait_lg()
        a("v_add_f32 v40, v40, v41\nv_add_f32 v42, v42, v43\nv_add_f32 v44, v44, v45\nv_add_f32 v46, v46, v47\nv_add_f32 v40, v40, v42\nv_add_f32 v44, v44, v46\nv_add_f32 v58, v40, v44")
        a("buffer_store_dwordx2 v[58:59], v50, s[36:39], s52 offen sc1")
        a(f"s_cmp_lg_u32 s54, 0\ns_cbranch_scc1 {Ls}\ns_mov_b64 exec, 1")
        a("buffer_store_dwordx2 v[56:57], v50, s[36:39], s52 offen offset:1024 sc1")
        a(f"s_mov_b64 exec, -1\n{Ls}:")
        a.vm = []
        self.stamp(6)
    def role_F(self):
        a = self.a; c = self.c
        Lx = a.newlabel("L_nof")
        a(f"""s_lshl_b32 s48, s3, 6
        s_add_u32 s48, s48, s2
        s_cmp_ge_u32 s48, 72
        s_cbranch_scc1 {Lx}
        s_cmp_ge_u32 s48, 36
        s_cselect_b32 s49, 1, 0
        s_mul_i32 s52, s49, 36
        s_sub_u32 s50, s48, s52""")
        a("s_mul_i32 s52, s49, 1152\ns_add_u32 s54, s4, s52\ns_addc_u32 s55, s5, 0")
        self.srd(40, "s54", "s55", 1152); self.srd(44, "s26", "s27", 1152)
        a("v_lshlrev_b32 v1, 2, v0")
        for k in range(5):
            a(f"buffer_load_dword v{10+k}, v1, s[40:43], 0 offen offset:{256*k}\nbuffer_load_dword v{16+k}, v1, s[44:47], 0 offen offset:{256*k}")
        a(f"""v_lshrrev_b32 v24, 3, v0
        v_mul_u32_u24 v31, 9216, v24
        v_and_b32 v24, 7, v0
        v_lshl_add_u32 v31, v24, 4, v31
        s_mul_i32 s52, s49, 4608
        s_lshl_b32 s54, s50, 7
        s_add_u32 s52, s52, s54
        s_add_u32 s52, s52, {PO}
        v_add_u32 v31, s52, v31
        v_mov_b32 v22, 0""")
        for n in range(8): a(f"s_mov_b32 s{64+n}, {n*73728}")
        a.wait_vm()
        for k in range(5):
            a(f"""v_lshlrev_b32 v24, 16, v{10+k}
            v_and_b32 v25, 0xffff0000, v{10+k}
            v_lshlrev_b32 v26, 16, v{16+k}
            v_and_b32 v27, 0xffff0000, v{16+k}
            v_mul_f32 v24, v24, v26
            v_mul_f32 v25, v25, v27
            v_cvt_pk_bf16_f32 v24, v24, v25
            v_lshlrev_b32 v25, 16, v24
            v_and_b32 v24, 0xffff0000, v24
            v_add_f32 v22, v22, v25
            v_add_f32 v22, v22, v24""")
        self.red8([22], "v_add_f32")
        a("v_add_f32_dpp v22, v22, v22 row_ror:8 row_mask:0xf bank_mask:0xf")
        self.redrows(22, 24, "v_add_f32")
        a(f"""v_cvt_pk_bf16_f32 v22, v22, v22
        v_and_b32 v22, 0xffff0000, v22
        v_mul_f32 v22, {LOG2E}, v22
        v_exp_f32 v22, -v22
        v_add_f32 v22, 1.0, v22
        v_rcp_f32 v22, v22
        v_cvt_pk_bf16_f32 v22, v22, v22
        v_and_b32 v22, 0xffff0000, v22
        v_sub_f32 v23, 1.0, v22
        v_cvt_pk_bf16_f32 v23, v23, v23
        v_and_b32 v23, 0xffff0000, v23""")
        self.srd(40, "s28", "s29", 2304)
        a("""v_and_b32 v21, 7, v0
        v_lshlrev_b32 v21, 2, v21
        v_bfe_u32 v24, v0, 4, 1
        v_lshl_add_u32 v21, v24, 1, v21
        s_mul_i32 s56, s49, 1152
        s_lshl_b32 s54, s50, 5
        s_add_u32 s56, s56, s54""")
        def g0(): a("buffer_load_dwordx4 v[64:67], v31, s[36:39], 0 offen sc1", tag='pg')
        self.poll_granules(g0, [65, 67], 48, 7, sleep=c['fsleep'])
        def gissue():
            for n in range(8): a(f"buffer_load_dwordx4 v[{64+4*n}:{67+4*n}], v31, s[36:39], s{64+n} offen sc1", tag='pg')
        self.poll_granules(gissue, [65 + 2 * k for k in range(16)], 48, 8)
        for k in range(2):
            a(f"v_add_f32 v{64+2*k}, v{64+2*k}, v{68+2*k}\nv_add_f32 v{72+2*k}, v{72+2*k}, v{76+2*k}")
            a(f"v_add_f32 v{80+2*k}, v{80+2*k}, v{84+2*k}\nv_add_f32 v{88+2*k}, v{88+2*k}, v{92+2*k}")
        for k in range(2): a(f"v_add_f32 v{64+2*k}, v{64+2*k}, v{72+2*k}\nv_add_f32 v{80+2*k}, v{80+2*k}, v{88+2*k}")
        a("""v_permlane32_swap_b32 v64, v80
        v_permlane32_swap_b32 v66, v82
        v_add_f32 v64, v64, v80
        v_add_f32 v66, v66, v82
        v_permlane16_swap_b32 v64, v66
        v_add_f32 v64, v64, v66
        v_add_f32_dpp v42, v64, v64 row_ror:8 row_mask:0xf bank_mask:0xf
        v_cvt_pk_bf16_f32 v42, v42, v42
        v_and_b32 v42, 0xffff0000, v42
        v_mov_b32 v43, v42
        v_permlane32_swap_b32 v42, v43
        v_mul_f32 v42, v22, v42
        v_mul_f32 v43, v23, v43
        v_cvt_pk_bf16_f32 v42, v42, v43
        v_lshlrev_b32 v43, 16, v42
        v_and_b32 v42, 0xffff0000, v42
        v_add_f32 v42, v42, v43
        v_cvt_pk_bf16_f32 v42, v42, v42
        s_mov_b32 exec_lo, 0x00ff00ff
        s_mov_b32 exec_hi, 0
        buffer_store_short v42, v21, s[40:43], s56 offen""")
        Ls = a.newlabel("L_noep")
        a(f"s_cmp_lg_u32 s48, 0\ns_cbranch_scc1 {Ls}\ns_mov_b64 exec, 1\nv_mov_b32 v44, s35\nv_mov_b32 v45, 0")
        a(f"buffer_store_dword v44, v45, s[36:39], 0 offen\n{Ls}:\ns_mov_b64 exec, -1")
        self.stamp(7)
        if c.get('padto'):
            Lq = a.newlabel("L_pad")
            a(f"s_cmp_lg_u32 s48, 0\ns_cbranch_scc1 {Lx}\ns_memrealtime s[78:79]\ns_waitcnt lgkmcnt(0)\ns_sub_u32 s52, s78, s80\nv_mov_b32 v62, s52\nv_mov_b32 v63, 0\nglobal_store_dword v63, v62, s[30:31] offset:4")
            a(f"{Lq}:\ns_memrealtime s[78:79]\ns_waitcnt lgkmcnt(0)\ns_sub_u32 s52, s78, s80\ns_cmp_lt_u32 s52, {c['padto']*100}\ns_cbranch_scc1 {Lq}")
        a(f"{Lx}:")
    def build(self):
        a = self.a; LDS = 163840
        hdr = open("gated_mix__gqa_block_cached__compressed_kv_cla__decode.s.ref").read().split("; Override launch")[0]
        a.raw(hdr.rstrip())
        def reset(): a.vm = []; a.lg = []; a.hist = []
        if self.c['staged']:
            names = ["s1_kernel", "s2_kernel", "ab_kernel", "tb1_kernel", "t_kernel", "f_kernel"]
            for n in names: a.raw(f"; @launch kernel={n} grid=(256,1,1) block=(512,1,1) lds={LDS}")
            a.raw('.amdgcn_target "amdgcn-amd-amdhsa--gfx950"\n.text')
            self.prologue("s1_kernel"); self.only(0, 64); self.h_head(("s1b", "s1a")); self.finish()
            self.prologue("s2_kernel"); self.only(0, 64); self.h_head(("s2",)); self.finish()
            self.prologue("ab_kernel")
            LA = a.newlabel("L_roleA"); LE = a.newlabel("L_fin")
            a(f"s_cmp_ge_u32 s2, 64\ns_cbranch_scc1 {LA}")
            self.get_tag(); self.role_B(False); a(f"s_branch {LE}\n{LA}:"); reset()
            self.role_A(False); a(f"{LE}:"); self.finish()
            self.prologue("tb1_kernel"); self.only(0, 64); self.get_tag(); self.tb1(True); self.finish()
            self.prologue("t_kernel"); self.only(64, 256); self.get_tag(); self.t_main(True); self.finish()
            self.prologue("f_kernel"); self.only(0, 64); self.get_tag(); self.role_F(); self.finish()
        else:
            names = [KN]
            a.raw(f"; @launch grid=(256,1,1) block=(512,1,1) lds={LDS}")
            a.raw('.amdgcn_target "amdgcn-amd-amdhsa--gfx950"\n.text')
            self.prologue(KN)
            LA, LE = (a.newlabel(x) for x in ("L_roleA", "L_fin"))
            a(f"s_cmp_ge_u32 s2, 64\ns_cbranch_scc1 {LA}")
            self.h_head(); self.role_B(); self.tb1(); self.role_F(); a(f"s_branch {LE}")
            a(f"{LA}:"); reset()
            self.role_A(); self.t_main()
            a(f"{LE}:"); self.finish()
            a.raw(f"L_codeend:\n.fill ({8*1024*self.c['pfKB']} - (L_codeend - {KN})) / 4, 4, 0xbf810000")
        a.raw('.section .rodata,"a"')
        for n in names:
            a.raw(".p2align 6"); self.kd(n)
        return a.text()

def gen(**kw): return G(**kw).build()
if __name__ == "__main__":
    cfg = json.loads(sys.argv[2]) if len(sys.argv) > 2 else {}
    open(sys.argv[1], "w").write(gen(**cfg))
```

```python
import sys, json
sys.path.insert(0, "dev")
from asmlib import Asm
import gen as G1
from gen import KN, EPOCH, Q, QABS, FQ, FB, PBS, FE, REC, PO, PB, STAMP, WS_USED, LOG2E, SCALE, SCL2E, NEGINF

DEF = dict(staged=False, mimicA=True, mimicB=True, W=3, W2=4, iW2=50, R=40, IQ=26, ICHK=30, burst=1, WH=4, iq2=10, W0=0, n0=8, bar=0,
           stamps=False, spin=40000, sleep_long=8, rotb=2, fsleep=4, pfA=32, pfH=0, pfKB=4)
NT = 43
PL = 131072; ML = PL + 4608; SC = 137216; S2O = 153600

class G(G1.G):
    def __init__(self, **kw):
        self.c = dict(DEF); self.c.update(kw)
        self.a = Asm()
    def prologue(self, name):
        a = self.a
        a.raw(f".globl {name}\n.p2align 8\n.type {name},@function\n{name}:")
        a.hist = []; a.vm = []; a.lg = []
        self.end = a.newlabel("L_end")
        a(f"s_cmp_ge_u32 s2, 256\ns_cbranch_scc1 {self.end}")
        if self.c['stamps'] or self.c.get('padto'): a("s_memrealtime s[80:81]")
        a("""s_load_dwordx16 s[4:19], s[0:1], 0
        s_load_dwordx8 s[20:27], s[0:1], 64
        s_load_dwordx4 s[28:31], s[0:1], 96
        s_load_dwordx2 s[32:33], s[0:1], 112
        v_lshrrev_b32 v1, 6, v0
        v_and_b32 v0, 63, v0
        v_readfirstlane_b32 s3, v1
        s_waitcnt lgkmcnt(0)
        s_load_dword s34, s[32:33], 0""")
        a(f"s_mov_b32 s36, s32\ns_and_b32 s37, s33, 0xffff\ns_mov_b32 s38, {WS_USED}\ns_mov_b32 s39, 0x20000")
    def qk_group(self, K, q, T, U):
        a = self.a; n = len(K)
        for kk in range(4):
            for t in range(n):
                for h in range(2):
                    src2 = "0" if kk == 0 else f"v{T+2*t+h}"
                    a(f"v_dot2_f32_bf16 v{T+2*t+h}, v{K[t]+kk}, v{q+8*h+2*kk}, {src2}")
        for t in range(n): a(f"v_add_f32_dpp v{U[t]}, v{T+2*t}, v{T+2*t} row_ror:8 row_mask:0xf bank_mask:0x3")
        for t in range(n): a(f"v_add_f32_dpp v{U[t]}, v{T+2*t+1}, v{T+2*t+1} row_ror:8 row_mask:0xf bank_mask:0xc")
        for m in ("row_half_mirror", "quad_perm:[1,0,3,2]", "quad_perm:[2,3,0,1]"):
            for t in range(n): a(f"v_add_f32_dpp v{U[t]}, v{U[t]}, v{U[t]} {m} row_mask:0xf bank_mask:0xf")

    def code_prefetch(self, cond_reg, limit, dst):
        a = self.a; n = self.c['pfKB']
        if not limit or self.c['staged']: return
        L = a.newlabel("L_nopf"); Lp = a.newlabel("L_pc")
        a(f"s_cmp_ge_u32 {cond_reg}, {limit}\ns_cbranch_scc1 {L}")
        a(f"s_getpc_b64 s[76:77]\n{Lp}:\ns_sub_u32 s76, s76, {Lp}-{KN}\ns_subb_u32 s77, s77, 0")
        a(f"s_mul_i32 s52, s3, {n*1024}\nv_lshlrev_b32 v{dst}, 4, v0\nv_add_u32 v{dst}, s52, v{dst}")
        for k in range(n):
            a(f"global_load_dwordx4 v[244:247], v{dst}, s[76:77] offset:{k*1024}"); a.vm.pop()
        a(f"{L}:")
    def a_ids(self):
        self.a("s_sub_u32 s48, s2, 64\ns_mul_i32 s49, s48, 171\ns_lshr_b32 s49, s49, 10\ns_mul_i32 s50, s49, 6\ns_sub_u32 s50, s48, s50")
    def t_addr(self):
        a = self.a
        a("""s_cmp_ge_u32 s48, 96
        s_cselect_b32 s63, 1, 0
        s_cselect_b32 s54, s24, s12
        s_cselect_b32 s55, s25, s13
        s_cselect_b32 s67, 2.0, 1.0
        s_mul_i32 s52, s63, 96
        s_sub_u32 s52, s48, s52
        s_mul_i32 s64, s52, 171
        s_lshr_b32 s64, s64, 9
        s_mul_i32 s65, s64, 3
        s_sub_u32 s65, s52, s65""")
        self.srd(68, "s54", "s55", 4096 * 1152)
        a("""s_lshl_b32 s52, s64, 3
        s_add_u32 s52, s52, s3
        s_mul_i32 s52, s52, 18432
        s_mul_i32 s54, s65, 384
        s_add_u32 s52, s52, s54
        v_lshrrev_b32 v48, 4, v0
        v_mul_u32_u24 v30, 4608, v48
        v_add_u32 v30, s52, v30
        v_bfe_u32 v49, v0, 3, 1
        v_mul_u32_u24 v31, 1152, v49
        v_add_u32 v31, v31, v30
        v_and_b32 v50, 7, v0
        v_lshl_add_u32 v31, v50, 4, v31
        v_add_u32 v31, 256, v31
        v_and_b32 v51, 15, v0
        v_lshl_add_u32 v30, v51, 4, v30""")
    def t_load(self, k, reg):
        a = self.a
        if k < 4: a(f"buffer_load_dwordx4 v[{reg}:{reg+3}], v30, s[68:71], 0 offen offset:{k*1152} nt", tag=('kv', 2*NT + k))
        else: a(f"buffer_load_dwordx4 v[{reg}:{reg+3}], v31, s[68:71], 0 offen offset:{(k-4)*2304} nt", tag=('kv', 2*NT + k))
    def role_A(self, with_t=True, heads=True):
        a = self.a; c = self.c
        W, R = c['W'], c['R']; mim = c['mimicA']
        SREG = 64; RING = 88 if mim else 108
        assert RING + 4 * R <= 256
        NL = 2 * NT + (6 if with_t else 0)
        self.a_ids()
        a("""s_lshl_b32 s52, s49, 21
        s_add_u32 s54, s6, s52
        s_addc_u32 s55, s7, 0
        s_add_u32 s56, s8, s52
        s_addc_u32 s57, s9, 0""")
        self.srd(40, "s54", "s55", 0x200000); self.srd(44, "s56", "s57", 0x200000)
        a(f"""s_lshl_b32 s59, s50, 3
        s_add_u32 s59, s59, s3
        s_lshl_b32 s52, s49, 16
        s_lshl_b32 s60, s59, 12
        s_add_u32 s60, s60, s52
        s_lshl_b32 s61, s59, 10
        s_add_u32 s61, s61, s52
        s_add_u32 s61, s61, {1920*1024}
        s_cmp_lt_u32 s59, 32
        s_cselect_b32 s62, 0, {NEGINF}
        s_cselect_b32 s66, 0, 0x40000000
        v_lshlrev_b32 v1, 4, v0""")
        def ring(j): return RING + 4 * (j % R)
        self.ring = ring
        def issue(j):
            if j >= 2 * NT: self.t_load(j - 2 * NT, ring(j)); return
            jj = j % NT
            srd = "s[40:43]" if j < NT else "s[44:47]"
            off = 0
            if jj < 40:
                if jj % 4 == 0: a(f"s_add_u32 s51, s60, {(jj//4)*48*4096}\ns_and_b32 s51, s51, 0x1fffff")
                off = (jj % 4) * 1024
            else:
                a(f"s_add_u32 s51, s61, {(jj-40)*48*1024}\ns_and_b32 s51, s51, 0x1fffff")
                if jj == 42: a("s_or_b32 s51, s51, s66")
            a(f"buffer_load_dwordx4 v[{ring(j)}:{ring(j)+3}], v1, {srd}, s51 offen offset:{off} nt", tag=('kv', j))
        def qissue():
            for h in range(2):
                for k in range(2):
                    a(f"buffer_load_dwordx4 v[{10+8*h+4*k}:{13+8*h+4*k}], v29, s[36:39], 0 offen offset:{512*h+16*k} sc1", tag='pg')
        self.code_prefetch("s48", c['pfA'], 52)
        def common():
            self.sels()
            a(f"s_lshl_b32 s52, s49, 10\ns_add_u32 s52, s52, {Q}\nv_and_b32 v29, 15, v0\nv_lshlrev_b32 v29, 5, v29\nv_add_u32 v29, s52, v29")
            if with_t: self.t_addr()
            self.get_tag()
        IM = c['IQ']
        if heads == 'only_s1':
            self.head_s1(issue, 0, common); return
        if heads == 'only_s2':
            self.head_s2(issue, 0, common); return
        if heads:
            L2 = a.newlabel("L_heads2"); LM = a.newlabel("L_merge")
            a(f"s_cmp_ge_u32 s48, 128\ns_cbranch_scc1 {L2}")
            self.head_s1(issue, IM, common)
            a(f"s_branch {LM}\n{L2}:"); a.vm = []; a.lg = []; a.hist = []
            self.head_s2(issue, IM, common)
            a(f"{LM}:")
            a.vm = [('kv', j) for j in range(IM - W, IM)]
        else:
            for j in range(W): issue(j)
            common()
            for j in range(W, IM): a.wait_vm_n(W - 1); issue(j)
        I = IM
        a(f"v_mov_b32 v26, {NEGINF}\nv_mov_b32 v27, 0\nv_mov_b32 v32, 0\nv_mov_b32 v33, 0\nv_mov_b32 v34, 0\nv_mov_b32 v35, 0")
        qissue()
        while I < c['ICHK']:
            a.wait_vm_n(W - 1 + (4 if I < IM + W else 0)); issue(I); I += 1
        self.stamp(1)
        self.poll_granules(qissue, [11, 13, 15, 17, 19, 21, 23, 25], 48, 1, first_issued=True)
        self.stamp(2)
        C = 0
        def landed(j): return ('kv', j) not in a.vm
        def consumeK(n):
            nt = min(4, NT - 4 * n)
            K = [ring(4 * n + t) for t in range(nt)]
            U = [44, 45, 46, 47] if mim else [SREG + 4 * n + t for t in range(4)]
            self.qk_group(K, 10, 36, U)
            if nt == 3: a(f"v_add_f32 v{U[2]}, s62, v{U[2]}\nv_mov_b32 v{U[3]}, {NEGINF}")
            if mim:
                a("v_cvt_pk_bf16_f32 v48, v44, v45\nv_cvt_pk_bf16_f32 v50, v46, v47\nv_max3_f32 v26, v26, v44, v45")
                a("v_and_b32 v49, 0xffff0000, v48\nv_lshlrev_b32 v48, 16, v48\nv_and_b32 v51, 0xffff0000, v50\nv_lshlrev_b32 v50, 16, v50")
                a("v_max3_f32 v26, v26, v46, v47")
                for r in (48, 49, 50, 51): a(f"v_mul_f32 v{r}, {SCALE}, v{r}")
                a(f"v_cvt_pk_bf16_f32 v{SREG+2*n}, v48, v49\nv_cvt_pk_bf16_f32 v{SREG+2*n+1}, v50, v51")
            else:
                a(f"v_max3_f32 v26, v26, v{U[0]}, v{U[1]}\nv_max3_f32 v26, v26, v{U[2]}, v{U[3]}")
        def finishK():
            self.redrows(26, 48, "v_max_f32")
            if mim:
                self.round_scaled(26, 48)
                a(f"v_mul_f32 v26, {LOG2E}, v26\ns_mov_b32 s58, {LOG2E}")
            else:
                a(f"v_mul_f32 v26, {SCL2E}, v26\ns_mov_b32 s58, {SCL2E}")
            self.stamp(3)
        def consumeV(n):
            nt = min(2, NT - 2 * n)
            if mim:
                a(f"v_lshlrev_b32 v60, 16, v{SREG+n}\nv_and_b32 v61, 0xffff0000, v{SREG+n}")
                a("v_fma_f32 v60, v60, s58, -v26\nv_fma_f32 v61, v61, s58, -v26")
            else:
                a(f"v_fma_f32 v60, v{SREG+2*n}, s58, -v26\nv_fma_f32 v61, v{SREG+2*n+1}, s58, -v26")
            a("v_exp_f32 v60, v60\nv_exp_f32 v61, v61\nv_add_f32 v27, v27, v60\nv_cvt_pk_bf16_f32 v62, v60, v61\nv_add_f32 v27, v27, v61")
            self.bop(52, 62, 2)
            if nt == 2: self.bop(56, 62, 6)
            for k in range(nt):
                j = NT + 2 * n + k
                a.wait_vm(('kv', j))
                a(f"v_mfma_f32_16x16x32_bf16 v[32:35], v[{ring(j)}:{ring(j)+3}], v[{52+4*k}:{55+4*k}], v[32:35]")
        def unit_last(C): return min(C + 3, NT - 1) if C < NT else min(C + 1, 2 * NT - 1)
        def consume():
            nonlocal C
            if C < NT:
                a.wait_vm(('kv', unit_last(C))); consumeK(C // 4); C = unit_last(C) + 1
                if C == NT: finishK()
            else:
                consumeV((C - NT) // 2); C = unit_last(C) + 1
        while C < 2 * NT:
            if I < NL and I - R < C:
                a.wait_vm_n((W if I < c['iW2'] else c['W2']) - 1); issue(I); I += 1
                if c['bar'] and I % c['bar'] == 0 and I < 2 * NT - 2: a("s_barrier")
                while 2 * NT < I < NL: issue(I); I += 1
                k = 0
                while C < 2 * NT and k < c['burst'] and landed(unit_last(C)) and unit_last(C) < I: consume(); k += 1
            else:
                consume()
        while I < NL: issue(I); I += 1
        self.stamp(4)
        self.redrows(27, 48, "v_add_f32")
        a("v_lshlrev_b32 v48, 4, v0\ns_lshl_b32 s52, s3, 10\nv_add_u32 v48, s52, v48")
        a("v_bfe_u32 v49, v0, 3, 1\nv_lshlrev_b32 v49, 6, v49\ns_lshl_b32 s52, s3, 3\ns_add_u32 s52, s52, 8192\nv_add_u32 v49, s52, v49")
        a("ds_write_b64 v49, v[26:27]\nds_write_b128 v48, v[32:35]")
        self.acc_addr(28, 52)
        a(f"""s_lshr_b32 s52, s3, 1
        s_lshl_b32 s54, s49, 1
        s_add_u32 s52, s52, s54
        s_lshl_b32 s52, s52, 3
        s_add_u32 s52, s52, s50
        s_mul_i32 s52, s52, 1152
        s_add_u32 s52, s52, {REC}
        s_and_b32 s54, s3, 1
        s_lshl_b32 s55, s54, 9
        v_lshlrev_b32 v50, 3, v0
        v_add_u32 v50, s55, v50
        s_lshr_b32 s55, s3, 1
        s_lshl_b32 s55, s55, 6
        s_add_u32 s55, s55, 8192
        v_mov_b32 v51, s55""")
        a.wait_lg(); a("s_barrier")
        self.stamp(8)
        Lu = a.newlabel("L_aup")
        a(f"s_cmp_ge_u32 s3, 4\ns_cbranch_scc1 {Lu}")
        for k in range(4): a(f"ds_read_b128 v[{10+4*k}:{13+4*k}], v51 offset:{16*k}")
        for w in range(8): a(f"ds_read_b32 v{36+w}, v28 offset:{1024*w}")
        a.wait_lg()
        a("v_max3_f32 v52, v10, v12, v14\nv_max3_f32 v53, v16, v18, v20\nv_max3_f32 v52, v52, v22, v24\nv_max_f32 v52, v52, v53")
        for w in range(8): a(f"v_sub_f32 v{10+2*w}, v{10+2*w}, v52")
        for w in range(8): a(f"v_exp_f32 v{10+2*w}, v{10+2*w}")
        a("v_mul_f32 v53, v10, v11\nv_mul_f32 v54, v10, v36")
        for w in range(1, 8): a(f"v_fmac_f32 v53, v{10+2*w}, v{11+2*w}\nv_fmac_f32 v54, v{10+2*w}, v{36+w}")
        a("v_rcp_f32 v55, v53\nv_log_f32 v56, v53\nv_mov_b32 v59, s35\nv_mov_b32 v57, s35\nv_mul_f32 v58, v54, v55\nv_add_f32 v56, v56, v52")
        a("buffer_store_dwordx2 v[58:59], v50, s[36:39], s52 offen sc1"); a.vm.pop()
        a(f"s_cmp_lg_u32 s54, 0\ns_cbranch_scc1 {Lu}\ns_mov_b64 exec, 1")
        a("buffer_store_dwordx2 v[56:57], v50, s[36:39], s52 offen offset:1024 sc1"); a.vm.pop()
        a(f"s_mov_b64 exec, -1\n{Lu}:")
        self.stamp(5)
    def t_main(self, standalone=False):
        a = self.a; c = self.c
        if standalone:
            self.a_ids(); self.sels(); self.t_addr()
            if not hasattr(self, 'ticket'): self.ring = lambda j: 88 + 4 * (j % 40)
            for k in range(6): self.t_load(k, self.ring(2 * NT + k))
        WR = [self.ring(2 * NT + k) for k in range(6)]
        a(f"""v_and_b32 v50, 7, v0
        v_min_u32 v51, {7 if self.c.get('hjoin') else 5}, v50
        v_and_b32 v52, 1, v0
        s_cmp_eq_u32 s63, 0
        s_cselect_b64 vcc, -1, 0
        s_cselect_b32 s66, {7 if self.c.get('hjoin') else 5}, 7
        v_cndmask_b32 v51, v52, v51, vcc
        v_bfe_u32 v49, v0, 3, 1
        v_lshl_add_u32 v29, v49, 8, v51
        v_mul_u32_u24 v29, 1152, v29
        s_lshl_b32 s52, s63, 6
        s_add_u32 s52, s52, s64
        s_mul_i32 s52, s52, 9216
        s_add_u32 s52, s52, {REC}
        v_add_u32 v29, s52, v29
        v_lshrrev_b32 v48, 4, v0
        v_lshlrev_b32 v1, 5, v48
        s_lshl_b32 s52, s3, 7
        v_add_u32 v1, s52, v1
        v_add_u32 v1, v1, v29
        v_cmp_lt_u32 s[72:73], s66, v50""")
        def gissue():
            for k in range(2): a(f"buffer_load_dwordx4 v[{10+4*k}:{13+4*k}], v1, s[36:39], 0 offen offset:{16*k} sc1", tag='pg')
            a("buffer_load_dwordx2 v[18:19], v29, s[36:39], 0 offen offset:1024 sc1", tag='pg')
        gissue()
        for r in range(32, 44): a(f"v_mov_b32 v{r}, 0")
        a("""v_and_b32 v26, 7, v0
        v_lshlrev_b32 v26, 4, v26
        v_bfe_u32 v48, v0, 3, 2
        v_lshl_add_u32 v26, v48, 2, v26
        v_lshrrev_b32 v48, 5, v0
        s_cmp_ge_u32 s3, 4
        s_cselect_b32 s52, 9, 8
        s_cselect_b32 s54, 8, 9
        s_cselect_b32 s55, 8192, 0
        s_cselect_b32 s56, 1024, 0
        s_add_u32 s55, s55, 16384
        v_lshl_add_u32 v26, v48, s52, v26
        s_and_b32 s57, s3, 1
        s_lshl_b32 s57, s57, s54
        s_add_u32 s56, s56, s57
        s_add_u32 s55, s55, s57
        s_bfe_u32 s57, s3, 0x10001
        s_lshl_b32 s52, s57, 7
        s_add_u32 s55, s55, s52
        v_add_u32 v26, s55, v26
        v_lshlrev_b32 v27, 4, v0
        s_lshl_b32 s52, s3, 10
        s_add_u32 s52, s52, 16384
        v_add_u32 v27, s52, v27
        v_lshlrev_b32 v23, 3, v0
        v_add_u32 v23, s56, v23""")
        a(f"""s_lshl_b32 s74, s63, 5
        s_add_u32 s74, s74, s64
        s_lshl_b32 s74, s74, 1
        s_add_u32 s74, s74, s57
        s_mul_i32 s74, s74, 4608
        s_mul_i32 s54, s65, 1536
        s_add_u32 s74, s74, s54
        s_add_u32 s74, s74, {PO}
        v_mov_b32 v59, s35
        v_mov_b32 v47, {NEGINF}""")
        self.poll_granules(gissue, [11, 13, 15, 17, 19], 48, 6, first_issued=True)
        self.stamp(6)
        a("v_cndmask_b32 v18, v18, v47, s[72:73]\nv_mov_b32 v44, v18")
        self.red8([44], "v_max_f32")
        a("v_sub_f32 v44, v18, v44\nv_exp_f32 v44, v44\nv_mov_b32 v45, v44")
        self.red8([45], "v_add_f32")
        a("v_rcp_f32 v45, v45\nv_mul_f32 v44, s67, v44\nv_mul_f32 v44, v44, v45")
        for t in range(4): a(f"v_mul_f32 v{52+t}, v44, v{10+2*t}")
        self.red8([52, 53, 54, 55], "v_add_f32")
        for k in range(2): a(f"v_cvt_pk_bf16_f32 v{20+k}, v{52+2*k}, v{53+2*k}")
        for k in range(2):
            self.bop(44, 20 + k, 2); self.bop(48, 20 + k, 6)
            a(f"v_mfma_f32_16x16x32_bf16 v[36:39], v[{WR[4+k]}:{WR[4+k]+3}], v[44:47], v[36:39]")
            a(f"v_mfma_f32_16x16x32_bf16 v[40:43], v[{WR[4+k]}:{WR[4+k]+3}], v[48:51], v[40:43]")
            a(f"v_mfma_f32_16x16x32_bf16 v[32:35], v[{WR[2*k]}:{WR[2*k]+3}], v[44:47], v[32:35]")
            a(f"v_mfma_f32_16x16x32_bf16 v[32:35], v[{WR[2*k+1]}:{WR[2*k+1]+3}], v[48:51], v[32:35]")
        a("v_cmp_lt_u32 vcc, 31, v0")
        for r in range(4): a(f"v_cndmask_b32 v{36+r}, v{36+r}, v{40+r}, vcc")
        a("ds_write_b128 v27, v[36:39] offset:8192\nds_write_b128 v27, v[32:35]")
        a.wait_lg(); a("s_barrier")
        for w in range(8): a(f"ds_read_b32 v{44+w}, v26 offset:{1024*w}")
        a.wait_lg()
        a("v_add_f32 v44, v44, v45\nv_add_f32 v46, v46, v47\nv_add_f32 v48, v48, v49\nv_add_f32 v50, v50, v51\nv_add_f32 v44, v44, v46\nv_add_f32 v48, v48, v50\nv_add_f32 v58, v44, v48")
        Lf = a.newlabel("L_tfull")
        a(f"s_cmp_lt_u32 s3, 4\ns_cbranch_scc1 {Lf}")
        a("v_mov_b32 v49, v58\nv_permlane32_swap_b32 v58, v49\nv_add_f32 v58, v58, v49\ns_mov_b32 exec_hi, 0")
        a(f"{Lf}:\nbuffer_store_dwordx2 v[58:59], v23, s[36:39], s74 offen sc1\ns_mov_b64 exec, -1")
        self.stamp(7)

    def s1_finish(self):
        a = self.a; base = 32768
        a(f"v_cmp_lt_u32 vcc, 31, v0\nv_lshlrev_b32 v48, 4, v0\ns_lshl_b32 s52, s3, 10\ns_add_u32 s52, s52, {base}\nv_add_u32 v48, s52, v48")
        for r in range(4): a(f"v_cndmask_b32 v{32+r}, v{32+r}, v{36+r}, vcc")
        a("ds_write_b128 v48, v[32:35]")
        a.wait_lg(); a("s_barrier")
        Ls = a.newlabel("L_s1skip")
        a(f"s_cmp_ge_u32 s3, 2\ns_cbranch_scc1 {Ls}")
        a(f"""v_and_b32 v48, 7, v0
        v_lshlrev_b32 v48, 4, v48
        v_bfe_u32 v49, v0, 3, 2
        v_lshl_add_u32 v48, v49, 2, v48
        v_lshrrev_b32 v49, 5, v0
        v_lshl_add_u32 v48, v49, 8, v48
        s_lshl_b32 s52, s3, 7
        s_add_u32 s52, s52, {base}
        v_add_u32 v48, s52, v48""")
        for s in range(16):
            a(f"ds_read_b32 v{32+s}, v48 offset:{512*s}")
            if s == 11: a.wait_lg()
        a("""s_lshl_b32 s52, s3, 14
        s_add_u32 s52, s52, s56
        v_lshlrev_b32 v50, 2, v0
        v_mov_b32 v53, s35""")
        a.wait_lg()
        for st in (8, 4, 2, 1):
            for s in range(st): a(f"v_add_f32 v{32+s}, v{32+s}, v{32+s+st}")
        a("v_mov_b32_dpp v33, v32 quad_perm:[1,0,3,2] row_mask:0xf bank_mask:0xf")
        a("v_cvt_pk_bf16_f32 v52, v32, v33\ns_mov_b32 exec_lo, 0x55555555\ns_mov_b32 exec_hi, 0x55555555")
        a("buffer_store_dwordx2 v[52:53], v50, s[36:39], s52 offen sc1\ns_mov_b64 exec, -1"); a.vm.pop()
        a(f"{Ls}:")
    def head_s1(self, kissue, IM, common):
        a = self.a; W = self.c['W']; WR = 212
        a(f"""s_cmp_lt_u32 s48, 64
        s_cselect_b32 s54, s18, s10
        s_cselect_b32 s55, s19, s11
        s_cselect_b32 s56, 32768, 0
        s_and_b32 s57, s48, 63""")
        self.srd(72, "s54", "s55", 576 * 8192); self.srd(76, "s4", "s5", 2304)
        a("""v_lshrrev_b32 v48, 4, v0
        v_mul_u32_u24 v49, 18, v48
        v_bfe_u32 v50, v0, 3, 1
        v_add_u32 v51, v49, v50
        s_mul_i32 s52, s3, 72
        v_add_u32 v51, s52, v51
        v_lshlrev_b32 v28, 13, v51
        v_and_b32 v51, 7, v0
        v_lshl_add_u32 v28, v51, 4, v28
        s_lshl_b32 s54, s57, 7
        v_add_u32 v28, s54, v28
        v_mul_u32_u24 v63, 1152, v50
        v_lshl_add_u32 v63, v49, 1, v63
        s_lshl_b32 s52, s52, 1
        v_add_u32 v63, s52, v63""")
        seq = [('w', t) for t in range(9)] + [('kv', j) for j in range(IM)]
        I = 0
        def issue():
            nonlocal I
            x = seq[I]; I += 1
            if x[0] == 'kv': kissue(x[1])
            else: a(f"s_mov_b32 s51, {x[1]*16384}\nbuffer_load_dwordx4 v[{WR+4*x[1]}:{WR+4*x[1]+3}], v28, s[72:75], s51 offen nt", tag=x)
        a("buffer_load_dwordx4 v[10:13], v63, s[76:79], 0 offen\nbuffer_load_dwordx4 v[14:17], v63, s[76:79], 0 offen offset:16\nbuffer_load_dword v18, v63, s[76:79], 0 offen offset:32", tag='x')
        W0 = self.c['W0']
        def yield_a():
            if W0 and I < self.c['n0']:
                L = a.newlabel("L_y")
                a(f"s_cmp_lt_u32 s48, 64\ns_cbranch_scc1 {L}\ns_waitcnt vmcnt({W0 - 1})\n{L}:")
        for k in range(4):
            if k >= (W0 or 4): yield_a()
            issue()
        a(f"s_lshl_b32 s54, s57, 8\ns_add_u32 s56, s56, s54\ns_add_u32 s56, s56, {Q}")
        common()
        for r in range(32, 40): a(f"v_mov_b32 v{r}, 0")
        a.wait_vm('x')
        for t in range(9):
            self.bop(40, 10 + t, 2); self.bop(44, 10 + t, 6)
            a.wait_vm(('w', t))
            while I < len(seq) and len(a.vm) < (4 if I < 9 else W): yield_a(); issue()
            r = WR + 4 * t
            a(f"v_mfma_f32_16x16x32_bf16 v[32:35], v[{r}:{r+3}], v[40:43], v[32:35]")
            a(f"v_mfma_f32_16x16x32_bf16 v[36:39], v[{r}:{r+3}], v[44:47], v[36:39]")
        self.s1_finish()
        self.stamp(9)
        while I < len(seq): a.wait_vm_n(W - 1); issue()
    def head_s2(self, kissue, IM, common):
        a = self.a; c = self.c; W = c['W']; UR = 216; S2O = 49152
        self.srd(72, "s20", "s21", 512 * 8192)
        if not hasattr(self, 'ticket'): a("s_sub_u32 s57, s48, 128")
        a(f"""s_mov_b32 s77, s57
        s_lshr_b32 s56, s57, 4
        s_and_b32 s57, s57, 15
        s_lshl_b32 s52, s57, 2
        s_lshr_b32 s54, s3, 1
        s_add_u32 s52, s52, s54
        s_lshl_b32 s52, s52, 16
        s_lshl_b32 s54, s56, 1
        s_and_b32 s55, s3, 1
        s_add_u32 s54, s54, s55
        s_lshl_b32 s55, s54, 10
        s_add_u32 s52, s52, s55
        v_add_u32 v28, s52, v1""")
        seq = [('u', t) for t in range(8)] + [('kv', j) for j in range(IM)]
        I = 0
        def issue():
            nonlocal I
            x = seq[I]; I += 1
            if x[0] == 'kv': kissue(x[1])
            else: a(f"s_mov_b32 s51, {x[1]*8192}\nbuffer_load_dwordx4 v[{UR+4*x[1]}:{UR+4*x[1]+3}], v28, s[72:75], s51 offen nt", tag=x)
        W0 = c['W0'] or W
        def more(n=1):
            for _ in range(n):
                if I < len(seq): a.wait_vm_n((W0 if I < c['n0'] else W) - 1); issue()
        for _ in range(W0): issue()
        a(f"""s_lshl_b32 s54, s54, 11
        s_add_u32 s54, s54, {Q + 32768}
        v_lshrrev_b32 v48, 4, v0
        v_lshlrev_b32 v63, 9, v48
        v_and_b32 v49, 15, v0
        v_lshl_add_u32 v63, v49, 5, v63
        v_add_u32 v63, s54, v63
        s_mov_b32 s76, 16384
        v_bfe_u32 v50, v0, 3, 1
        v_lshlrev_b32 v60, 9, v50
        v_lshl_add_u32 v60, v48, 4, v60
        s_lshr_b32 s52, s3, 1
        s_lshl_b32 s52, s52, 7
        s_and_b32 s55, s3, 1
        s_lshl_b32 s55, s55, 6
        s_add_u32 s52, s52, s55
        s_add_u32 s52, s52, {S2O}
        v_add_u32 v60, s52, v60
        v_add_u32 v51, {S2O + 1024}, v1
        v_and_b32 v50, 7, v0
        v_cmp_lt_u32 vcc, 0, v50
        v_cndmask_b32 v60, v60, v51, vcc
        v_mov_b32 v59, v63""")
        common()
        while ('u', 7) in seq[I:] or ('kv', c['iq2'] - 1) in seq[I:]: more()
        def qissue():
            for b in range(2):
                for k in range(2):
                    so = "s76" if b else "0"
                    a(f"buffer_load_dwordx4 v[{10+8*b+4*k}:{13+8*b+4*k}], v59, s[36:39], {so} offen offset:{16*k} sc1", tag='pg')
        qissue()
        while I < len(seq) and sum(1 for x in a.vm[a.vm.index('pg'):] if x != 'pg') < W - 1:
            a.wait_vm_n(W + 3); issue()
        self.poll_granules(qissue, [11, 13, 15, 17, 19, 21, 23, 25], 48, 2, first_issued=True, sleep=1)
        self.stamp(9)
        while I < len(seq) and len(a.vm) < W: issue()
        for n in range(2):
            self.qk_group([UR + 16 * n + 4 * t for t in range(4)], 10, 36, [44 + 4 * n + t for t in range(4)])
            more()
        for k in range(4): a(f"v_cvt_pk_bf16_f32 v{52+k}, v{44+2*k}, v{45+2*k}")
        a("ds_write_b128 v60, v[52:55]")
        a.wait_lg(); a("s_barrier")
        Ls = a.newlabel("L_s2skip")
        a(f"s_cmp_lg_u32 s3, 7\ns_cbranch_scc1 {Ls}")
        a(f"v_add_u32 v48, {S2O}, v1\nds_read_b128 v[52:55], v48")
        a(f"""v_lshrrev_b32 v49, 5, v0
        v_lshlrev_b32 v49, 15, v49
        v_bfe_u32 v50, v0, 3, 2
        v_lshl_add_u32 v49, v50, 10, v49
        v_and_b32 v50, 7, v0
        v_lshl_add_u32 v49, v50, 4, v49
        s_lshr_b32 s52, s56, 1
        s_lshl_b32 s52, s52, 14
        s_and_b32 s54, s57, 3
        s_lshl_b32 s54, s54, 12
        s_add_u32 s52, s52, s54
        s_lshr_b32 s54, s57, 2
        s_lshl_b32 s54, s54, 8
        s_add_u32 s52, s52, s54
        s_and_b32 s54, s56, 1
        s_lshl_b32 s54, s54, 7
        s_add_u32 s52, s52, s54
        s_add_u32 s52, s52, {QABS}""")
        a.wait_lg()
        a("buffer_store_dwordx4 v[52:55], v49, s[36:39], s52 offen sc1"); a.vm.pop()
        a(f"{Ls}:")
        i_store = I
        more(W - 1)
        Ls = a.newlabel("L_s2flag")
        a(f"s_cmp_lg_u32 s3, 7\ns_cbranch_scc1 {Ls}")
        a(f"s_lshl_b32 s54, s77, 7\ns_add_u32 s54, s54, {FQ}\nv_mov_b32 v50, s35\nv_mov_b32 v51, 0")
        a(f"s_waitcnt vmcnt({I - i_store})\ns_mov_b64 exec, 1")
        a("buffer_store_dword v50, v51, s[36:39], s54 offen sc1\ns_mov_b64 exec, -1"); a.vm.pop()
        a(f"{Ls}:")
        self.stamp(1 if c.get('s2flagstamp') else 10)
        while I < len(seq): more()
    def h_stream(self, with_uv):
        a = self.a; c = self.c; WH = c['WH']
        QR = 64; DV = 240; STG = 176; UV = 208
        self.code_prefetch("s2", c['pfH'], 52)
        self.b_dma_setup(DV)
        for t in range(WH): self.dma1(t, DV, 'd')
        self.b_setup()
        if with_uv: self.tb1_addr(59)
        self.get_tag()
        for t in range(WH, 16):
            a.wait_vm_n(WH - 1); self.dma1(t % 8, DV, 'd')
        if with_uv:
            for t in range(8):
                a.wait_vm_n(WH - 1)
                a(f"s_mov_b32 s51, {t*8192}\nbuffer_load_dwordx4 v[{UV+4*t}:{UV+4*t+3}], v59, s[44:47], s51 offen nt", tag='v')
        self.stamp(1)
        self.poll_flags(28, 3, 2)
        self.stamp(4)
        for n in range(4): a(f"buffer_load_dwordx4 v[{STG+4*n}:{STG+4*n+3}], v29, s[36:39], s65 offen offset:{n*1024} sc1", tag=('q', n))
        for n in range(4):
            a.wait_vm(('q', n)); a(f"ds_write_b128 v30, v[{STG+4*n}:{STG+4*n+3}] offset:{n*1024}")
        a.wait_lg(); a("s_barrier")
        for ks in range(16):
            a(f"ds_read_b128 v[{QR+4*ks}:{QR+4*ks+3}], v31 offset:{ks*1024}")
            if ks == 11: a.wait_lg()
        a.wait_lg()
        self.stamp(2)
    def b_dma_setup(self, DV):
        a = self.a; c = self.c
        a("""s_lshr_b32 s63, s2, 5
        s_and_b32 s64, s2, 31
        s_lshl_b32 s52, s63, 23
        s_add_u32 s54, s16, s52
        s_addc_u32 s55, s17, 0""")
        self.srd(76, "s54", "s55", 0x800000)
        a("v_lshrrev_b32 v48, 3, v0\nv_and_b32 v49, 7, v0\ns_lshl_b32 s52, s3, 7\nv_lshlrev_b32 v50, 10, v48\nv_add_u32 v50, s52, v50\nv_lshrrev_b32 v52, 4, v0")
        for q in range(2): a(f"v_add_u32 v51, {4*q}, v52\nv_xor_b32 v51, v51, v49\nv_lshl_add_u32 v{DV+q}, v51, 4, v50")
        a(f"s_lshl_b32 s60, s3, 13\ns_mul_i32 s62, s63, {c['rotb']}\ns_lshl_b32 s62, s62, 21\ns_lshl_b32 s52, s64, 16\ns_add_u32 s62, s62, s52")
    def dma1(self, q, DV, tag):
        a = self.a
        if q == 0: a("s_and_b32 s62, s62, 0x7fffff")
        a(f"s_add_u32 m0, s60, {q*1024}\ns_add_u32 s51, s62, {q*8192}")
        a(f"buffer_load_dwordx4 v{DV + (q & 1)}, s[76:79], s51 offen nt lds", tag=tag)
        if q == 7: a("s_add_u32 s62, s62, 0x200000\ns_xor_b32 s60, s60, 0x10000")
    def b_setup(self):
        a = self.a; c = self.c; mim = c['mimicB']
        ACC = 128; SA = 160; TA = 168
        a("v_lshrrev_b32 v52, 4, v0")
        a("""v_and_b32 v50, 1, v0
        v_bfe_u32 v51, v0, 1, 1
        v_bfe_u32 v53, v0, 2, 2
        v_lshl_add_u32 v51, v51, 2, v53
        v_lshl_add_u32 v50, v51, 1, v50
        v_lshlrev_b32 v50, 7, v50
        v_lshl_add_u32 v50, v51, 4, v50
        v_lshl_add_u32 v50, v52, 14, v50
        s_and_b32 s52, s3, 3
        s_lshl_b32 s52, s52, 11
        v_add_u32 v50, s52, v50""")
        for ks in range(8): a(f"v_xor_b32 v{SA+ks}, {16*ks}, v50")
        a("""v_bfe_u32 v50, v0, 3, 1
        v_lshlrev_b32 v50, 2, v50
        v_lshrrev_b32 v51, 5, v0
        v_lshl_add_u32 v50, v51, 1, v50
        v_bfe_u32 v51, v0, 4, 1
        v_lshlrev_b32 v51, 1, v51
        v_bfe_u32 v53, v0, 1, 1
        v_add_u32 v51, v51, v53
        v_and_b32 v53, 1, v0
        v_lshlrev_b32 v53, 3, v53
        v_bfe_u32 v54, v0, 2, 1
        v_lshl_add_u32 v53, v54, 7, v53
        s_lshl_b32 s52, s3, 13
        v_add_u32 v53, s52, v53""")
        for hi in range(2):
            a(f"v_add_u32 v54, {hi}, v50\nv_xor_b32 v55, v54, v51\nv_lshl_add_u32 v55, v55, 4, v53\nv_lshl_add_u32 v55, v54, 8, v55")
            for cb in range(2): a(f"v_xor_b32 v{TA + 2*cb + hi}, {64*cb}, v55")
        a(f"""s_lshr_b32 s52, s3, 2
        s_lshl_b32 s52, s52, 4
        v_and_b32 v49, 15, v0
        v_add_u32 v50, s52, v49
        v_mul_u32_u24 v2, 144, v50
        v_lshl_add_u32 v2, v52, 3, v2
        s_and_b32 s54, s3, 3
        s_lshl_b32 s55, s54, 5
        s_add_u32 s55, s55, {PL}
        v_add_u32 v2, s55, v2
        v_and_b32 v51, 31, v0
        v_mul_u32_u24 v3, 144, v51
        v_lshrrev_b32 v53, 5, v0
        v_lshl_add_u32 v3, v53, 4, v3
        v_add_u32 v3, {PL}, v3
        v_lshlrev_b32 v5, 2, v50
        v_add_u32 v5, {ML}, v5
        s_lshl_b32 s55, s54, 7
        v_add_u32 v4, s55, v5
        v_lshlrev_b32 v6, 2, v51
        v_add_u32 v6, {ML}, v6
        v_mov_b32 v7, {NEGINF}
        v_mov_b32 v8, {NEGINF}
        v_mov_b32 v9, 0
        v_lshlrev_b32 v28, 7, v0
        v_add_u32 v28, {FQ}, v28
        s_mov_b32 s58, {LOG2E if mim else SCL2E}""")
        for r in range(32): a(f"v_mov_b32 v{ACC+r}, 0")
        a(f"s_lshl_b32 s65, s63, 15\ns_lshl_b32 s54, s3, 12\ns_add_u32 s65, s65, s54\ns_add_u32 s65, s65, {QABS}\nv_lshlrev_b32 v29, 4, v0")
        a(f"s_add_u32 s54, s54, {PL}\nv_add_u32 v30, s54, v29\ns_lshr_b32 s54, s3, 2\ns_lshl_b32 s54, s54, 14\ns_add_u32 s54, s54, {PL}\nv_add_u32 v31, s54, v29")
    def role_B(self):
        a = self.a; c = self.c; mim = c['mimicB']
        QR = 64; ACC = 128; SA = 160; TA = 168; DV = 240; STG = 176
        def dma():
            for q in range(8): self.dma1(q, DV, 'd')
        a("s_mov_b32 s61, 0")
        Lloop = a.newlabel("L_btile")
        a(f"{Lloop}:")
        self.b_tile_wait()
        a("s_barrier")
        if c.get('fine') == 'b': self.stamp(1)
        for r in range(4): a(f"v_mov_b32 v{32+r}, 0")
        for ks in range(8): a(f"ds_read_b128 v[{STG+4*ks}:{STG+4*ks+3}], v{SA+ks}", tag=('s', ks))
        for ks in range(16):
            a.wait_lg(('s', ks))
            s = STG + 4 * (ks % 8)
            a(f"v_mfma_f32_16x16x32_bf16 v[32:35], v[{s}:{s+3}], v[{QR+4*ks}:{QR+4*ks+3}], v[32:35]")
            if ks + 8 < 16: a(f"ds_read_b128 v[{s}:{s+3}], v{SA+ks} offset:8192", tag=('s', ks + 8))
        for ks in range(8): a(f"v_xor_b32 v{SA+ks}, 0x10000, v{SA+ks}")
        if mim:
            a("v_cvt_pk_bf16_f32 v36, v32, v33\nv_cvt_pk_bf16_f32 v38, v34, v35")
            a("v_and_b32 v37, 0xffff0000, v36\nv_lshlrev_b32 v36, 16, v36\nv_and_b32 v39, 0xffff0000, v38\nv_lshlrev_b32 v38, 16, v38")
            for r in (36, 37, 38, 39): a(f"v_mul_f32 v{r}, {SCALE}, v{r}")
            a("v_cvt_pk_bf16_f32 v36, v36, v37\nv_cvt_pk_bf16_f32 v38, v38, v39")
            a("v_lshlrev_b32 v32, 16, v36\nv_and_b32 v33, 0xffff0000, v36\nv_lshlrev_b32 v34, 16, v38\nv_and_b32 v35, 0xffff0000, v38")
        a("v_max3_f32 v36, v32, v33, v34\nv_max_f32 v36, v36, v35")
        self.redrows(36, 37, "v_max_f32")
        if c.get('fine') == 'b': self.stamp(3)
        a("ds_write_b32 v4, v36")
        a.wait_lg(); a("s_barrier")
        if c.get('fine') == 'b': self.stamp(4)
        a("ds_read2_b32 v[36:37], v5 offset1:32\nds_read2_b32 v[38:39], v5 offset0:64 offset1:96\nds_read2_b32 v[40:41], v6 offset1:32\nds_read2_b32 v[42:43], v6 offset0:64 offset1:96")
        a.wait_lg()
        a("v_max3_f32 v36, v36, v37, v7\nv_max3_f32 v40, v40, v41, v8\nv_max3_f32 v36, v36, v38, v39\nv_max3_f32 v38, v40, v42, v43")
        a("v_sub_f32 v40, v7, v36\nv_sub_f32 v41, v8, v38\nv_mul_f32 v37, s58, v36\nv_mul_f32 v40, s58, v40\nv_mul_f32 v42, s58, v41")
        for r in range(4): a(f"v_fma_f32 v{32+r}, v{32+r}, s58, -v37")
        a("v_exp_f32 v40, v40\nv_exp_f32 v42, v42")
        for r in range(4): a(f"v_exp_f32 v{32+r}, v{32+r}")
        a("v_mov_b32 v7, v36\nv_mov_b32 v8, v38\nv_cvt_pk_bf16_f32 v44, v32, v33\nv_cvt_pk_bf16_f32 v45, v34, v35")
        a("ds_write_b64 v2, v[44:45]")
        a("v_fma_f32 v9, v9, v40, v32\nv_add_f32 v33, v33, v34\nv_add_f32 v9, v9, v35\nv_add_f32 v9, v9, v33\nv_mov_b32 v43, v42")
        for r in range(0, 32, 2): a(f"v_pk_mul_f32 v[{ACC+r}:{ACC+r+1}], v[{ACC+r}:{ACC+r+1}], v[42:43]")
        a.wait_lg(); a("s_barrier")
        if c.get('fine') == 'b': self.stamp(6)
        for s in range(4): a(f"ds_read_b128 v[{32+4*s}:{35+4*s}], v3 offset:{32*s}", tag='p')
        seq = [(s, cb) for s in range(4) for cb in range(2)]
        def trd(i):
            s, cb = seq[i]
            for hi in range(2):
                a(f"ds_read_b64_tr_b16 v[{STG+4*i+2*hi}:{STG+4*i+2*hi+1}], v{TA+2*cb+hi} offset:{2048*s}", tag=('t', i))
        for i in range(5): trd(i)
        for i in range(8):
            s, cb = seq[i]
            a.wait_lg(('t', i))
            a(f"v_mfma_f32_32x32x16_bf16 v[{ACC+16*cb}:{ACC+16*cb+15}], v[{STG+4*i}:{STG+4*i+3}], v[{32+4*s}:{35+4*s}], v[{ACC+16*cb}:{ACC+16*cb+15}]")
            if i + 5 < 8: trd(i + 5)
        for k in range(4): a(f"v_xor_b32 v{TA+k}, 0x10000, v{TA+k}")
        self.b_refill()
        a(f"s_add_u32 s61, s61, 1\ns_cmp_lg_u32 s61, 4\ns_cbranch_scc1 {Lloop}")
        a.vm = []
        self.stamp(5)
        self.redrows(9, 37, "v_add_f32")
        a("ds_write_b32 v4, v9 offset:512")
        a.wait_lg(); a("s_barrier")
        a("ds_read2_b32 v[36:37], v6 offset0:128 offset1:160\nds_read2_b32 v[38:39], v6 offset0:192 offset1:224")
        a("""v_and_b32 v48, 31, v0
        v_mul_u32_u24 v48, 144, v48
        v_lshrrev_b32 v49, 5, v0
        v_lshl_add_u32 v48, v49, 3, v48
        s_lshl_b32 s54, s3, 13
        v_add_u32 v48, s54, v48
        v_lshrrev_b32 v49, 3, v0
        v_mul_u32_u24 v50, 144, v49
        v_and_b32 v51, 7, v0
        v_lshl_add_u32 v50, v51, 4, v50
        v_add_u32 v50, s54, v50
        v_lshlrev_b32 v52, 10, v49
        v_lshl_add_u32 v52, v51, 4, v52""")
        a(f"s_mul_i32 s52, s2, {c.get('pbs', 32768)}\ns_lshl_b32 s54, s3, 7\ns_add_u32 s52, s52, s54\ns_add_u32 s52, s52, {PB}")
        a.wait_lg()
        a("v_add_f32 v36, v36, v37\nv_add_f32 v38, v38, v39\nv_add_f32 v36, v36, v38\nv_rcp_f32 v38, v36\nv_log_f32 v40, v36\nv_mov_b32 v39, v38\nv_fma_f32 v40, v8, s58, v40")
        for cb in range(2):
            for rq in range(4):
                r = ACC + 16 * cb + 4 * rq
                a(f"v_pk_mul_f32 v[{r}:{r+1}], v[{r}:{r+1}], v[38:39]\nv_pk_mul_f32 v[{r+2}:{r+3}], v[{r+2}:{r+3}], v[38:39]")
                a(f"v_cvt_pk_bf16_f32 v{r}, v{r}, v{r+1}\nv_cvt_pk_bf16_f32 v{r+1}, v{r+2}, v{r+3}")
                a(f"ds_write_b64 v48, v[{r}:{r+1}] offset:{64*cb + 16*rq}")
        a.wait_lg()
        for n in range(4): a(f"ds_read_b128 v[{STG+4*n}:{STG+4*n+3}], v50 offset:{n*8*144}", tag=('r', n))
        for n in range(4):
            a.wait_lg(('r', n))
            a(f"buffer_store_dwordx4 v[{STG+4*n}:{STG+4*n+3}], v52, s[36:39], s52 offen sc1\ns_add_u32 s52, s52, 8192")
        Ls = a.newlabel("L_nopbs")
        a(f"s_cmp_lg_u32 s3, 0\ns_cbranch_scc1 {Ls}")
        a(f"s_lshl_b32 s52, s2, 7\ns_add_u32 s52, s52, {PBS}\nv_lshlrev_b32 v48, 2, v0\ns_mov_b32 exec_hi, 0")
        a(f"buffer_store_dword v40, v48, s[36:39], s52 offen sc1\ns_mov_b64 exec, -1\n{Ls}:")
        self.stamp(8)
        a("s_waitcnt vmcnt(0)\ns_barrier"); a.vm = []
        self.stamp(9)
        Ls = a.newlabel("L_nofb")
        a(f"s_cmp_lg_u32 s3, 0\ns_cbranch_scc1 {Ls}")
        a(f"s_lshl_b32 s52, s2, 7\ns_add_u32 s52, s52, {FB}\nv_mov_b32 v48, s35\nv_mov_b32 v49, 0\ns_mov_b64 exec, 1")
        a(f"buffer_store_dword v48, v49, s[36:39], s52 offen sc1\ns_mov_b64 exec, -1\n{Ls}:")
        a.vm = []
    def b_tile_wait(self):
        a = self.a
        L1 = a.newlabel("L_bw"); L2 = a.newlabel("L_bw")
        a(f"s_cmp_eq_u32 s61, 3\ns_cbranch_scc1 {L1}\ns_cmp_lt_u32 s61, 2\ns_cbranch_scc1 {L2}\ns_waitcnt vmcnt(8)\ns_branch {L2}\n{L1}:\ns_waitcnt vmcnt(0)\n{L2}:")
    def b_refill(self):
        a = self.a; Ln = a.newlabel("L_norefill")
        a(f"s_cmp_ge_u32 s61, 2\ns_cbranch_scc1 {Ln}")
        for q in range(8): self.dma1(q, 240, 'd')
        a(f"{Ln}:")
    def tb1_addr(self, vr=10):
        a = self.a
        self.srd(44, "s22", "s23", 512 * 8192)
        a(f"""s_and_b32 s52, s2, 1
        s_lshl_b32 s52, s52, 3
        s_add_u32 s52, s52, s3
        s_lshl_b32 s52, s52, 18
        s_lshr_b32 s54, s2, 1
        s_lshl_b32 s54, s54, 8
        s_add_u32 s52, s52, s54
        v_lshrrev_b32 v48, 4, v0
        v_lshlrev_b32 v{vr}, 16, v48
        v_and_b32 v49, 15, v0
        v_lshl_add_u32 v{vr}, v49, 4, v{vr}
        v_add_u32 v{vr}, s52, v{vr}""")
    def tb1_loads(self, UV, vr=10):
        for t in range(8):
            self.a(f"s_mov_b32 s51, {t*8192}\nbuffer_load_dwordx4 v[{UV+4*t}:{UV+4*t+3}], v{vr}, s[44:47], s51 offen nt", tag=('uv', t))
    def tb1(self, standalone=False):
        a = self.a; UV = 208
        if standalone: self.tb1_addr(); self.tb1_loads(UV)
        self.sels()
        a(f"v_lshlrev_b32 v28, 7, v0\nv_add_u32 v28, {FB}, v28")
        a(f"""v_bfe_u32 v49, v0, 3, 1
        v_and_b32 v50, 7, v0
        v_lshlrev_b32 v50, 2, v50
        v_lshl_add_u32 v50, v49, 5, v50
        v_lshlrev_b32 v112, 7, v50
        v_mul_u32_u24 v31, {self.c.get('pbs', 32768)}, v50
        v_lshrrev_b32 v48, 4, v0
        v_lshl_add_u32 v31, v48, 4, v31
        s_lshr_b32 s54, s2, 1
        s_lshl_b32 s55, s54, 2
        s_add_u32 s55, s55, {PBS}
        s_lshl_b32 s56, s54, 10
        s_and_b32 s57, s2, 1
        s_lshl_b32 s57, s57, 3
        s_add_u32 s57, s57, s3
        s_lshl_b32 s57, s57, 6
        s_add_u32 s56, s56, s57
        s_add_u32 s56, s56, {PB}""")
        for r in range(32, 36): a(f"v_mov_b32 v{r}, 0")
        self.acc_addr(30, 48)
        self.poll_flags(28, 4, 1)
        self.stamp(10)
        for n in range(4): a(f"buffer_load_dword v{36+n}, v112, s[36:39], s55 offen offset:{128*n} sc1", tag='st')
        for n in range(4): a(f"buffer_load_dwordx4 v[{64+4*n}:{67+4*n}], v31, s[36:39], s56 offen sc1\ns_add_u32 s56, s56, {self.c.get('pbs', 32768)}", tag=('pb', n))
        if self.c.get('hjoin') and not standalone: self.ticket(0); self.ticket(1)
        a.wait_vm('st')
        if self.c.get('fine') == 'tb1': self.stamp(1)
        a("v_max3_f32 v40, v36, v37, v38\nv_max_f32 v40, v40, v39")
        self.red8([40], "v_max_f32")
        for n in range(4): a(f"v_sub_f32 v{36+n}, v{36+n}, v40")
        for n in range(4): a(f"v_exp_f32 v{36+n}, v{36+n}")
        a("v_add_f32 v40, v36, v37\nv_add_f32 v41, v38, v39\nv_add_f32 v40, v40, v41")
        self.red8([40], "v_add_f32")
        a("v_rcp_f32 v40, v40")
        for n in range(4): a(f"v_mul_f32 v{36+n}, v{36+n}, v40")
        for n in range(4):
            a.wait_vm(('pb', n))
            for k in range(4):
                a(f"v_lshlrev_b32 v40, 16, v{64+4*n+k}\nv_and_b32 v41, 0xffff0000, v{64+4*n+k}")
                if n == 0: a(f"v_mul_f32 v{104+2*k}, v36, v40\nv_mul_f32 v{105+2*k}, v36, v41")
                else: a(f"v_fmac_f32 v{104+2*k}, v{36+n}, v40\nv_fmac_f32 v{105+2*k}, v{36+n}, v41")
        if self.c.get('fine') == 'tb1': self.stamp(2)
        self.red8(list(range(104, 112)), "v_add_f32")
        for k in range(4): a(f"v_cvt_pk_bf16_f32 v{114+k}, v{104+2*k}, v{105+2*k}")
        for k in range(4):
            self.bop(40, 114 + k, 2); self.bop(44, 114 + k, 6)
            a(f"v_mfma_f32_16x16x32_bf16 v[32:35], v[{UV+8*k}:{UV+8*k+3}], v[40:43], v[32:35]")
            a(f"v_mfma_f32_16x16x32_bf16 v[32:35], v[{UV+8*k+4}:{UV+8*k+7}], v[44:47], v[32:35]")
        a("v_lshlrev_b32 v48, 4, v0\ns_lshl_b32 s52, s3, 10\nv_add_u32 v48, s52, v48")
        a(f"""s_lshr_b32 s52, s3, 1
        s_lshl_b32 s52, s52, 5
        s_lshr_b32 s54, s2, 1
        s_add_u32 s52, s52, s54
        s_add_u32 s52, s52, 64
        s_lshl_b32 s52, s52, 3
        s_and_b32 s55, s2, 1
        s_add_u32 s52, s52, s55
        s_mul_i32 s52, s52, 1152
        s_add_u32 s52, s52, {REC}
        s_and_b32 s54, s3, 1
        s_lshl_b32 s55, s54, 9
        v_lshlrev_b32 v50, 3, v0
        v_add_u32 v50, s55, v50
        v_mov_b32 v59, s35
        v_mov_b32 v57, s35
        v_mov_b32 v56, 0""")
        a("ds_write_b128 v48, v[32:35]")
        a.wait_vm(); a.wait_lg(); a("s_barrier")
        if self.c.get('fine') == 'tb1': self.stamp(3)
        Ls = a.newlabel("L_nostat")
        a(f"s_cmp_ge_u32 s3, 4\ns_cbranch_scc1 {Ls}")
        for w in range(8): a(f"ds_read_b32 v{40+w}, v30 offset:{1024*w}")
        a.wait_lg()
        a("v_add_f32 v40, v40, v41\nv_add_f32 v42, v42, v43\nv_add_f32 v44, v44, v45\nv_add_f32 v46, v46, v47\nv_add_f32 v40, v40, v42\nv_add_f32 v44, v44, v46\nv_add_f32 v58, v40, v44")
        a("buffer_store_dwordx2 v[58:59], v50, s[36:39], s52 offen sc1")
        a(f"s_cmp_lg_u32 s54, 0\ns_cbranch_scc1 {Ls}\ns_mov_b64 exec, 1")
        a("buffer_store_dwordx2 v[56:57], v50, s[36:39], s52 offen offset:1024 sc1")
        a(f"s_mov_b64 exec, -1\n{Ls}:")
        a.vm = []
        if self.c.get('fine') != 'b': self.stamp(6)
    def role_F(self):
        a = self.a; c = self.c
        Lx = a.newlabel("L_nof")
        a(f"""s_lshl_b32 s48, s3, 6
        s_add_u32 s48, s48, s2
        s_cmp_ge_u32 s48, 72
        s_cbranch_scc1 {Lx}
        s_cmp_ge_u32 s48, 36
        s_cselect_b32 s49, 1, 0
        s_mul_i32 s52, s49, 36
        s_sub_u32 s50, s48, s52""")
        a("s_mul_i32 s52, s49, 1152\ns_add_u32 s54, s4, s52\ns_addc_u32 s55, s5, 0")
        self.srd(40, "s54", "s55", 1152); self.srd(44, "s26", "s27", 1152)
        a("v_lshlrev_b32 v1, 2, v0")
        for k in range(5):
            a(f"buffer_load_dword v{10+k}, v1, s[40:43], 0 offen offset:{256*k}\nbuffer_load_dword v{16+k}, v1, s[44:47], 0 offen offset:{256*k}")
        a(f"""v_lshrrev_b32 v24, 3, v0
        v_mul_u32_u24 v31, 9216, v24
        v_and_b32 v24, 7, v0
        v_lshl_add_u32 v31, v24, 4, v31
        s_mul_i32 s52, s49, 4608
        s_lshl_b32 s54, s50, 7
        s_add_u32 s52, s52, s54
        s_add_u32 s52, s52, {PO}
        v_add_u32 v31, s52, v31
        v_mov_b32 v22, 0""")
        for n in range(8): a(f"s_mov_b32 s{64+n}, {n*73728}")
        a.wait_vm()
        for k in range(5):
            a(f"""v_lshlrev_b32 v24, 16, v{10+k}
            v_and_b32 v25, 0xffff0000, v{10+k}
            v_lshlrev_b32 v26, 16, v{16+k}
            v_and_b32 v27, 0xffff0000, v{16+k}
            v_mul_f32 v24, v24, v26
            v_mul_f32 v25, v25, v27
            v_cvt_pk_bf16_f32 v24, v24, v25
            v_lshlrev_b32 v25, 16, v24
            v_and_b32 v24, 0xffff0000, v24
            v_add_f32 v22, v22, v25
            v_add_f32 v22, v22, v24""")
        self.red8([22], "v_add_f32")
        a("v_add_f32_dpp v22, v22, v22 row_ror:8 row_mask:0xf bank_mask:0xf")
        self.redrows(22, 24, "v_add_f32")
        a(f"""v_cvt_pk_bf16_f32 v22, v22, v22
        v_and_b32 v22, 0xffff0000, v22
        v_mul_f32 v22, {LOG2E}, v22
        v_exp_f32 v22, -v22
        v_add_f32 v22, 1.0, v22
        v_rcp_f32 v22, v22
        v_cvt_pk_bf16_f32 v22, v22, v22
        v_and_b32 v22, 0xffff0000, v22
        v_sub_f32 v23, 1.0, v22
        v_cvt_pk_bf16_f32 v23, v23, v23
        v_and_b32 v23, 0xffff0000, v23""")
        self.srd(40, "s28", "s29", 2304)
        a("""v_and_b32 v21, 7, v0
        v_lshlrev_b32 v21, 2, v21
        v_bfe_u32 v24, v0, 4, 1
        v_lshl_add_u32 v21, v24, 1, v21
        s_mul_i32 s56, s49, 1152
        s_lshl_b32 s54, s50, 5
        s_add_u32 s56, s56, s54""")
        def g0(): a("buffer_load_dwordx4 v[64:67], v31, s[36:39], 0 offen sc1", tag='pg')
        self.poll_granules(g0, [65, 67], 48, 7, sleep=c['fsleep'])
        def gissue():
            for n in range(8): a(f"buffer_load_dwordx4 v[{64+4*n}:{67+4*n}], v31, s[36:39], s{64+n} offen sc1", tag='pg')
        self.poll_granules(gissue, [65 + 2 * k for k in range(16)], 48, 8)
        for k in range(2):
            a(f"v_add_f32 v{64+2*k}, v{64+2*k}, v{68+2*k}\nv_add_f32 v{72+2*k}, v{72+2*k}, v{76+2*k}")
            a(f"v_add_f32 v{80+2*k}, v{80+2*k}, v{84+2*k}\nv_add_f32 v{88+2*k}, v{88+2*k}, v{92+2*k}")
        for k in range(2): a(f"v_add_f32 v{64+2*k}, v{64+2*k}, v{72+2*k}\nv_add_f32 v{80+2*k}, v{80+2*k}, v{88+2*k}")
        a("""v_permlane32_swap_b32 v64, v80
        v_permlane32_swap_b32 v66, v82
        v_add_f32 v64, v64, v80
        v_add_f32 v66, v66, v82
        v_permlane16_swap_b32 v64, v66
        v_add_f32 v64, v64, v66
        v_add_f32_dpp v42, v64, v64 row_ror:8 row_mask:0xf bank_mask:0xf
        v_cvt_pk_bf16_f32 v42, v42, v42
        v_and_b32 v42, 0xffff0000, v42
        v_mov_b32 v43, v42
        v_permlane32_swap_b32 v42, v43
        v_mul_f32 v42, v22, v42
        v_mul_f32 v43, v23, v43
        v_cvt_pk_bf16_f32 v42, v42, v43
        v_lshlrev_b32 v43, 16, v42
        v_and_b32 v42, 0xffff0000, v42
        v_add_f32 v42, v42, v43
        v_cvt_pk_bf16_f32 v42, v42, v42
        s_mov_b32 exec_lo, 0x00ff00ff
        s_mov_b32 exec_hi, 0
        buffer_store_short v42, v21, s[40:43], s56 offen""")
        Ls = a.newlabel("L_noep")
        a(f"s_cmp_lg_u32 s48, 0\ns_cbranch_scc1 {Ls}\ns_mov_b64 exec, 1\nv_mov_b32 v44, s35\nv_mov_b32 v45, 0")
        a(f"buffer_store_dword v44, v45, s[36:39], 0 offen\n{Ls}:\ns_mov_b64 exec, -1")
        self.stamp(7)
        if c.get('padto'):
            Lq = a.newlabel("L_pad")
            a(f"s_cmp_lg_u32 s48, 0\ns_cbranch_scc1 {Lx}\ns_memrealtime s[78:79]\ns_waitcnt lgkmcnt(0)\ns_sub_u32 s52, s78, s80\nv_mov_b32 v62, s52\nv_mov_b32 v63, 0\nglobal_store_dword v63, v62, s[30:31] offset:4")
            a(f"{Lq}:\ns_memrealtime s[78:79]\ns_waitcnt lgkmcnt(0)\ns_sub_u32 s52, s78, s80\ns_cmp_lt_u32 s52, {c['padto']*100}\ns_cbranch_scc1 {Lq}")
        a(f"{Lx}:")
    def build(self):
        a = self.a; LDS = 163840
        hdr = open("gated_mix__gqa_block_cached__compressed_kv_cla__decode.s.ref").read().split("; Override launch")[0]
        a.raw(hdr.rstrip())
        def reset(): a.vm = []; a.lg = []; a.hist = []
        if self.c['staged']:
            names = ["s1_kernel", "s2_kernel", "ab_kernel", "tb1_kernel", "t_kernel", "f_kernel"]
            for n in names: a.raw(f"; @launch kernel={n} grid=(256,1,1) block=(512,1,1) lds={LDS}")
            a.raw('.amdgcn_target "amdgcn-amd-amdhsa--gfx950"\n.text')
            self.prologue("s1_kernel"); self.only(64, 192); self.role_A(False, 'only_s1'); self.finish()
            self.prologue("s2_kernel"); self.only(192, 256); self.role_A(False, 'only_s2'); self.finish()
            self.prologue("ab_kernel")
            LA = a.newlabel("L_roleA"); LE = a.newlabel("L_fin")
            a(f"s_cmp_ge_u32 s2, 64\ns_cbranch_scc1 {LA}")
            self.h_stream(False); self.role_B(); a(f"s_branch {LE}\n{LA}:"); reset()
            self.role_A(False, False); a(f"{LE}:"); self.finish()
            self.prologue("tb1_kernel"); self.only(0, 64); self.get_tag(); self.tb1(True); self.finish()
            self.prologue("t_kernel"); self.only(64, 256); self.get_tag(); self.t_main(True); self.finish()
            self.prologue("f_kernel"); self.only(0, 64); self.get_tag(); self.role_F(); self.finish()
        else:
            names = [KN]
            a.raw(f"; @launch grid=(256,1,1) block=(512,1,1) lds={LDS}")
            a.raw('.amdgcn_target "amdgcn-amd-amdhsa--gfx950"\n.text')
            self.prologue(KN)
            LA, LE = (a.newlabel(x) for x in ("L_roleA", "L_fin"))
            a(f"s_cmp_ge_u32 s2, 64\ns_cbranch_scc1 {LA}")
            self.h_stream(True); self.role_B(); self.tb1(); self.role_F(); a(f"s_branch {LE}")
            a(f"{LA}:"); reset()
            self.role_A(); self.t_main()
            a(f"{LE}:"); self.finish()
            a.raw(f"L_codeend:\n.fill ({8*1024*self.c['pfKB']} - (L_codeend - {KN})) / 4, 4, 0xbf810000")
        a.raw('.section .rodata,"a"')
        for n in names:
            a.raw(".p2align 6"); self.kd(n)
        return a.text()

def gen(**kw): return G(**kw).build()
if __name__ == "__main__":
    cfg = json.loads(sys.argv[2]) if len(sys.argv) > 2 else {}
    open(sys.argv[1], "w").write(gen(**cfg))
```

```python
import sys, json
sys.path.insert(0, "dev")
from asmlib import Asm
import gen as G1
import gen2 as G2
from gen import KN, EPOCH, Q, QABS, FQ, FB, PBS, FE, REC, PO, PB, STAMP, WS_USED, LOG2E, SCALE, SCL2E, NEGINF
CNT = FE
DEF = dict(staged=False, mimicA=True, mimicB=True, W=4, W2=4, iW2=50, R=40, NS=32, IQ=22, ICHK=26, burst=1, WH=3, iq2=12, W0=0, n0=8,
           stamps=False, spin=40000, rotb=2, fsleep=4, pfA=32, pfH=0, pfKB=4, hjoin=False, subrot=3, pbs=32768, touch=0, touchA=32, s2flagstamp=False)
PL = G2.PL; ML = G2.ML
EB = 65536
RING = 88; SREG = 64; ZERO = 85; TK = 86
FK = [88, 96]; FV = [92, 100]; TW = [104 + 4 * k for k in range(6)]
R2 = [12, 16, 20, 24, 172, 244, 248, 252]; UV = 208

class G(G2.G):
    def __init__(self, **kw):
        self.c = dict(DEF); self.c.update(kw)
        self.a = Asm()
        self.NF = (2048 - 48 * self.c['NS']) // 8
    def kv_setup(self):
        a = self.a; NS = self.c['NS']
        a("""s_lshl_b32 s52, s49, 21
        s_add_u32 s54, s6, s52
        s_addc_u32 s55, s7, 0""")
        self.srd(40, "s54", "s55", 0x200000)
        a("s_add_u32 s54, s8, s52\ns_addc_u32 s55, s9, 0")
        self.srd(44, "s54", "s55", 0x200000)
        a(f"""s_mul_i32 s52, s50, {self.c['subrot']}
        s_add_u32 s52, s52, s3
        s_and_b32 s61, s52, 7
        s_lshl_b32 s61, s61, 10
        s_lshl_b32 s52, s49, 16
        s_add_u32 s61, s61, s52
        s_add_u32 s61, s61, {NS*48*1024}
        v_lshlrev_b32 v1, 4, v0""")
    def q_setup(self):
        self.a(f"""s_lshl_b32 s52, s49, 10
        s_add_u32 s52, s52, {Q}
        v_and_b32 v29, 15, v0
        v_lshlrev_b32 v29, 5, v29
        v_add_u32 v29, s52, v29
        s_mul_i32 s52, s50, {self.c['subrot']}
        s_add_u32 s52, s52, s3
        s_and_b32 s52, s52, 7
        s_lshl_b32 s62, s49, 3
        s_add_u32 s62, s62, s52
        s_lshl_b32 s62, s62, 7
        s_add_u32 s62, s62, {CNT}
        s_mov_b32 s58, {LOG2E}
        v_mov_b32 v{ZERO}, 0""")
    def qissue(self):
        for h in range(2):
            for k in range(2):
                self.a(f"buffer_load_dwordx4 v[{10+8*h+4*k}:{13+8*h+4*k}], v29, s[36:39], 0 offen offset:{512*h+16*k} sc1", tag='pg')
    def ticket(self, k):
        self.a(f"v_mov_b32 v{TK+k}, 1\ns_mov_b64 exec, 1\nbuffer_atomic_add v{TK+k}, v{ZERO}, s[36:39], s62 offen sc0\ns_mov_b64 exec, -1", tag=('tk', k))
    def unit_first(self, k):
        a = self.a
        a.wait_vm(('tk', k))
        a(f"""v_readfirstlane_b32 s52, v{TK+k}
        s_cmp_lt_u32 s52, {self.NF}
        s_cselect_b32 s{76+k}, 0, {NEGINF}
        s_cselect_b32 s54, 0, 0x40000000
        s_lshl_b32 s52, s52, 13
        s_add_u32 s51, s61, s52
        s_and_b32 s51, s51, 0x1fffff
        s_or_b32 s51, s51, s54""")
        a(f"buffer_load_dwordx4 v[{FK[k]}:{FK[k]+3}], v1, s[40:43], s51 offen nt", tag=('fk', k))
        a(f"buffer_load_dwordx4 v[{FV[k]}:{FV[k]+3}], v1, s[44:47], s51 offen nt", tag=('fv', k))
        self.ticket(k)
    def unit_compute(self, k, refill):
        a = self.a
        for kk in range(4):
            for h in range(2):
                a(f"v_dot2_f32_bf16 v{36+h}, v{FK[k]+kk}, v{10+8*h+2*kk}, {'0' if kk == 0 else f'v{36+h}'}")
        if refill: a(f"buffer_load_dwordx4 v[{FK[k]}:{FK[k]+3}], v1, s[40:43], s51 offen nt")
        a("v_add_f32_dpp v44, v36, v36 row_ror:8 row_mask:0xf bank_mask:0x3\nv_add_f32_dpp v44, v37, v37 row_ror:8 row_mask:0xf bank_mask:0xc")
        for m in ("row_half_mirror", "quad_perm:[1,0,3,2]", "quad_perm:[2,3,0,1]"):
            a(f"v_add_f32_dpp v44, v44, v44 {m} row_mask:0xf bank_mask:0xf")
        a(f"v_add_f32 v44, s{76+k}, v44")
        self.round_scaled(44, 48)
        Ls = a.newlabel("L_nomax")
        a(f"v_fma_f32 v60, v44, s58, -v26\nv_cmp_lt_f32 vcc, 0x41800000, v60\ns_cbranch_vccz {Ls}")
        a("v_mul_f32 v45, s58, v44\nv_mov_b32 v46, v45")
        self.redrows(46, 48, "v_max_f32")
        a("v_max_f32 v46, v46, v26\nv_sub_f32 v47, v26, v46\nv_exp_f32 v47, v47\nv_mov_b32 v26, v46\nv_sub_f32 v60, v45, v46\nv_mul_f32 v27, v27, v47")
        for r in range(32, 36): a(f"v_mul_f32 v{r}, v{r}, v47")
        a(f"{Ls}:\nv_exp_f32 v60, v60\nv_add_f32 v27, v27, v60\nv_cvt_pk_bf16_f32 v62, v60, v60")
        self.bop(52, 62, 2)
        a(f"v_mfma_f32_16x16x32_bf16 v[32:35], v[{FV[k]}:{FV[k]+3}], v[52:55], v[32:35]")
        if refill:
            a(f"s_mov_b32 s{76+k}, 0\nbuffer_load_dwordx4 v[{FV[k]}:{FV[k]+3}], v1, s[44:47], s51 offen nt")
            self.ticket(k)
    def pool_loop(self, with_t):
        a = self.a
        Ll = a.newlabel("L_pool"); Ld = [a.newlabel("L_drain") for _ in range(2)]; Le = a.newlabel("L_poolend")
        a(f"{Ll}:")
        for k in range(2):
            a(f"""s_waitcnt vmcnt(3)
            v_readfirstlane_b32 s52, v{TK+k}
            s_cmp_lt_u32 s52, {self.NF}
            s_cbranch_scc0 {Ld[k]}
            s_lshl_b32 s52, s52, 13
            s_add_u32 s51, s61, s52
            s_and_b32 s51, s51, 0x1fffff""")
            if k == 0 and self.c['touch'] and not self.c['staged']:
                L = a.newlabel("L_nt")
                a(f"s_cmp_eq_u32 s59, 1\ns_cbranch_scc1 {L}\ns_cmp_ge_u32 s48, {self.c['touchA']}\ns_cbranch_scc1 {L}")
                for j in range(self.c['pfKB']): a(f"global_load_dword v83, v84, s[78:79] offset:{j*1024}")
                a(f"{L}:")
            self.unit_compute(k, True)
        a(f"s_branch {Ll}")
        for k in range(2):
            a(f"{Ld[k]}:"); a.hist = []
            Lh = a.newlabel("L_dh"); Lw = a.newlabel("L_dw")
            if with_t:
                a(f"s_cmp_eq_u32 s59, 1\ns_cbranch_scc1 {Lh}")
                for j in range(6): self.t_load(j, TW[j])
                a(f"{Lh}:")
            self.unit_compute(k, False)
            if with_t:
                Lh = a.newlabel("L_dh")
                a(f"s_cmp_eq_u32 s59, 1\ns_cbranch_scc1 {Lh}\ns_waitcnt vmcnt(7)\ns_branch {Lw}\n{Lh}:\ns_waitcnt vmcnt(1)\n{Lw}:")
            else: a("s_waitcnt vmcnt(1)")
            self.unit_compute(1 - k, False)
            if k == 0: a(f"s_branch {Le}")
        a(f"{Le}:")
        a.vm = []
    def a_epilogue(self):
        a = self.a
        self.stamp(4)
        self.redrows(27, 48, "v_add_f32")
        a(f"s_lshl_b32 s52, s3, 10\ns_add_u32 s52, s52, {EB}\nv_add_u32 v48, s52, v1")
        a(f"v_bfe_u32 v49, v0, 3, 1\nv_lshlrev_b32 v49, 6, v49\ns_lshl_b32 s52, s3, 3\ns_add_u32 s52, s52, {EB + 8192}\nv_add_u32 v49, s52, v49")
        a("ds_write_b64 v49, v[26:27]\nds_write_b128 v48, v[32:35]")
        self.acc_addr(28, 52)
        a(f"""v_add_u32 v28, {EB}, v28
        s_lshr_b32 s52, s3, 1
        s_lshl_b32 s54, s49, 1
        s_add_u32 s52, s52, s54
        s_lshl_b32 s52, s52, 3
        s_add_u32 s52, s52, s50
        s_mul_i32 s52, s52, 1152
        s_add_u32 s52, s52, {REC}
        s_and_b32 s54, s3, 1
        s_lshl_b32 s55, s54, 9
        v_lshlrev_b32 v50, 3, v0
        v_add_u32 v50, s55, v50
        s_lshr_b32 s55, s3, 1
        s_lshl_b32 s55, s55, 6
        s_add_u32 s55, s55, {EB + 8192}
        v_mov_b32 v51, s55""")
        a.wait_lg(); a("s_barrier")
        self.stamp(8)
        Lu = a.newlabel("L_aup")
        a(f"s_cmp_ge_u32 s3, 4\ns_cbranch_scc1 {Lu}")
        for k in range(4): a(f"ds_read_b128 v[{10+4*k}:{13+4*k}], v51 offset:{16*k}")
        for w in range(8): a(f"ds_read_b32 v{36+w}, v28 offset:{1024*w}")
        a.wait_lg()
        a("v_max3_f32 v52, v10, v12, v14\nv_max3_f32 v53, v16, v18, v20\nv_max3_f32 v52, v52, v22, v24\nv_max_f32 v52, v52, v53")
        for w in range(8): a(f"v_sub_f32 v{10+2*w}, v{10+2*w}, v52")
        for w in range(8): a(f"v_exp_f32 v{10+2*w}, v{10+2*w}")
        a("v_mul_f32 v53, v10, v11\nv_mul_f32 v54, v10, v36")
        for w in range(1, 8): a(f"v_fmac_f32 v53, v{10+2*w}, v{11+2*w}\nv_fmac_f32 v54, v{10+2*w}, v{36+w}")
        a("v_max_f32 v55, 0x0da24260, v53\nv_log_f32 v56, v53\nv_rcp_f32 v55, v55\nv_mov_b32 v59, s35\nv_mov_b32 v57, s35\nv_mul_f32 v58, v54, v55\nv_add_f32 v56, v56, v52")
        a("buffer_store_dwordx2 v[58:59], v50, s[36:39], s52 offen sc1"); a.vm.pop()
        a(f"s_cmp_lg_u32 s54, 0\ns_cbranch_scc1 {Lu}\ns_mov_b64 exec, 1")
        a("buffer_store_dwordx2 v[56:57], v50, s[36:39], s52 offen offset:1024 sc1"); a.vm.pop()
        a(f"s_mov_b64 exec, -1\n{Lu}:")
        self.stamp(5)
    def t_load(self, k, reg):
        a = self.a
        if k < 4: a(f"buffer_load_dwordx4 v[{reg}:{reg+3}], v30, s[68:71], 0 offen offset:{k*1152} nt", tag='tw')
        else: a(f"buffer_load_dwordx4 v[{reg}:{reg+3}], v31, s[68:71], 0 offen offset:{(k-4)*2304} nt", tag='tw')

    def a_ids(self):
        self.a("""s_sub_u32 s48, s2, 64
        s_mul_i32 s49, s48, 171
        s_lshr_b32 s49, s49, 10
        s_mul_i32 s50, s49, 6
        s_sub_u32 s50, s48, s50
        s_cmp_ge_u32 s50, 3
        s_cselect_b32 s52, 3, 0
        s_cselect_b32 s57, 1, 0
        s_sub_u32 s66, s50, s52
        s_lshl_b32 s52, s49, 1
        s_add_u32 s57, s57, s52
        s_mov_b32 s59, 0""")
    def head_s1(self, kissue, IM, common):
        a = self.a; W = self.c['W']; WR = 212
        a("""s_cmp_eq_u32 s66, 0
        s_cselect_b32 s54, s18, s10
        s_cselect_b32 s55, s19, s11
        s_cselect_b32 s56, 32768, 0""")
        self.srd(72, "s54", "s55", 576 * 8192); self.srd(76, "s4", "s5", 2304)
        a("""v_lshrrev_b32 v48, 4, v0
        v_mul_u32_u24 v49, 18, v48
        v_bfe_u32 v50, v0, 3, 1
        v_add_u32 v51, v49, v50
        s_mul_i32 s52, s3, 72
        v_add_u32 v51, s52, v51
        v_lshlrev_b32 v28, 13, v51
        v_and_b32 v51, 7, v0
        v_lshl_add_u32 v28, v51, 4, v28
        s_lshl_b32 s54, s57, 7
        v_add_u32 v28, s54, v28
        v_mul_u32_u24 v63, 1152, v50
        v_lshl_add_u32 v63, v49, 1, v63
        s_lshl_b32 s52, s52, 1
        v_add_u32 v63, s52, v63""")
        seq = [('w', t) for t in range(9)] + [('kv', j) for j in range(IM)]
        I = 0
        def issue():
            nonlocal I
            x = seq[I]; I += 1
            if x[0] == 'kv': kissue(x[1])
            else: a(f"s_mov_b32 s51, {x[1]*16384}\nbuffer_load_dwordx4 v[{WR+4*x[1]}:{WR+4*x[1]+3}], v28, s[72:75], s51 offen nt", tag=x)
        a("buffer_load_dwordx4 v[10:13], v63, s[76:79], 0 offen\nbuffer_load_dwordx4 v[14:17], v63, s[76:79], 0 offen offset:16\nbuffer_load_dword v18, v63, s[76:79], 0 offen offset:32", tag='x')
        W0 = self.c['W0']
        def yield_a():
            if W0 and I < self.c['n0']:
                L = a.newlabel("L_y")
                a(f"s_cmp_eq_u32 s66, 0\ns_cbranch_scc1 {L}\ns_waitcnt vmcnt({W0 - 1})\n{L}:")
        for k in range(4):
            if k >= (W0 or 4): yield_a()
            issue()
        Lz = a.newlabel("L_nozero")
        a(f"""s_and_b32 s52, s57, 3
        s_lshr_b32 s54, s3, 1
        s_or_b32 s52, s52, s54
        s_xor_b32 s54, s66, 1
        s_or_b32 s52, s52, s54
        s_cmp_lg_u32 s52, 0
        s_cbranch_scc1 {Lz}
        s_lshl_b32 s52, s3, 4
        s_lshr_b32 s54, s57, 2
        s_add_u32 s52, s52, s54
        s_lshl_b32 s52, s52, 10
        s_add_u32 s52, s52, {CNT}
        v_lshlrev_b32 v48, 7, v0
        v_mov_b32 v49, 0
        s_mov_b64 exec, 0xff
        buffer_store_dword v49, v48, s[36:39], s52 offen sc1
        s_mov_b64 exec, -1
        {Lz}:"""); a.vm.pop()
        a(f"s_lshl_b32 s54, s57, 8\ns_add_u32 s56, s56, s54\ns_add_u32 s56, s56, {Q}")
        common()
        for r in range(32, 40): a(f"v_mov_b32 v{r}, 0")
        a.wait_vm('x')
        for t in range(9):
            self.bop(40, 10 + t, 2); self.bop(44, 10 + t, 6)
            a.wait_vm(('w', t))
            while I < len(seq) and len(a.vm) < (4 if I < 9 else W): yield_a(); issue()
            r = WR + 4 * t
            a(f"v_mfma_f32_16x16x32_bf16 v[32:35], v[{r}:{r+3}], v[40:43], v[32:35]")
            a(f"v_mfma_f32_16x16x32_bf16 v[36:39], v[{r}:{r+3}], v[44:47], v[36:39]")
        self.s1_finish()
        self.stamp(9)
        while I < len(seq): a.wait_vm_n(W - 1); issue()
    def role_A(self, with_t=True, heads=True):
        a = self.a; c = self.c
        W, R, NS = c['W'], c['R'], c['NS']
        assert RING + 4 * R <= 256 and NS % 4 == 0 and SREG + NS // 2 <= ZERO
        self.a_ids(); self.kv_setup()
        a("""s_lshl_b32 s60, s50, 3
        s_add_u32 s60, s60, s3
        s_lshl_b32 s60, s60, 12
        s_lshl_b32 s52, s49, 16
        s_add_u32 s60, s60, s52""")
        def ring(j): return RING + 4 * (j % R)
        assert all(ring(j) >= TW[5] + 4 for j in range(2 * NS - 10, 2 * NS))
        def touch():
            L = a.newlabel("L_nt")
            a(f"s_cmp_ge_u32 s48, {c['touchA']}\ns_cbranch_scc1 {L}")
            for k in range(c['pfKB']):
                a(f"global_load_dword v83, v84, s[78:79] offset:{k*1024}"); a.vm.pop()
            a(f"{L}:")
        def issue(j):
            if c['touch'] and j >= c['IQ'] and j % c['touch'] == 0 and not c['staged']: touch()
            jj = j % NS
            srd = "s[40:43]" if j < NS else "s[44:47]"
            if jj % 4 == 0: a(f"s_add_u32 s51, s60, {(jj//4)*48*4096}\ns_and_b32 s51, s51, 0x1fffff")
            a(f"buffer_load_dwordx4 v[{ring(j)}:{ring(j)+3}], v1, {srd}, s51 offen offset:{(jj % 4) * 1024} nt", tag=('kv', j))
        self.code_prefetch("s48", c['pfA'], 52)
        def common():
            self.sels(); self.q_setup()
            if with_t: self.t_addr()
            self.get_tag()
        IM = c['IQ']
        if heads == 'only_s1':
            a(f"s_cmp_eq_u32 s66, 2\ns_cbranch_scc1 {self.end}"); self.head_s1(issue, 0, common); return
        if heads == 'only_s2':
            a(f"s_cmp_lg_u32 s66, 2\ns_cbranch_scc1 {self.end}"); self.head_s2(issue, 0, common); return
        if heads:
            L2 = a.newlabel("L_heads2"); LM = a.newlabel("L_merge")
            a(f"s_cmp_eq_u32 s66, 2\ns_cbranch_scc1 {L2}")
            self.head_s1(issue, IM, common)
            a(f"s_branch {LM}\n{L2}:"); a.vm = []; a.lg = []; a.hist = []
            self.head_s2(issue, IM, common)
            a(f"{LM}:")
            a.vm = [('kv', j) for j in range(IM - W, IM)]
        else:
            for j in range(W): issue(j)
            common()
            for j in range(W, IM): a.wait_vm_n(W - 1); issue(j)
        I = IM
        if c['touch'] and not c['staged']:
            Lp = a.newlabel("L_pc")
            a(f"s_getpc_b64 s[78:79]\n{Lp}:\ns_sub_u32 s78, s78, {Lp}-{KN}\ns_subb_u32 s79, s79, 0\ns_mul_i32 s52, s3, {c['pfKB']*1024}\nv_add_u32 v84, s52, v1")
        a(f"v_mov_b32 v26, {NEGINF}\nv_mov_b32 v27, 0\nv_mov_b32 v32, 0\nv_mov_b32 v33, 0\nv_mov_b32 v34, 0\nv_mov_b32 v35, 0")
        self.qissue()
        while I < c['ICHK']:
            a.wait_vm_n(W - 1 + (4 if I < IM + W else 0)); issue(I); I += 1
        if not c['s2flagstamp']: self.stamp(1)
        self.poll_granules(self.qissue, [11, 13, 15, 17, 19, 21, 23, 25], 48, 1, first_issued=True)
        self.stamp(2)
        C = 0
        def landed(j): return ('kv', j) not in a.vm
        def consumeK(n):
            self.qk_group([ring(4 * n + t) for t in range(4)], 10, 36, [44, 45, 46, 47])
            a("v_cvt_pk_bf16_f32 v48, v44, v45\nv_cvt_pk_bf16_f32 v50, v46, v47\nv_max3_f32 v26, v26, v44, v45")
            a("v_and_b32 v49, 0xffff0000, v48\nv_lshlrev_b32 v48, 16, v48\nv_and_b32 v51, 0xffff0000, v50\nv_lshlrev_b32 v50, 16, v50")
            a("v_max3_f32 v26, v26, v46, v47")
            for r in (48, 49, 50, 51): a(f"v_mul_f32 v{r}, {SCALE}, v{r}")
            a(f"v_cvt_pk_bf16_f32 v{SREG+2*n}, v48, v49\nv_cvt_pk_bf16_f32 v{SREG+2*n+1}, v50, v51")
        def consumeV(n):
            a(f"v_lshlrev_b32 v60, 16, v{SREG+n}\nv_and_b32 v61, 0xffff0000, v{SREG+n}")
            a("v_fma_f32 v60, v60, s58, -v26\nv_fma_f32 v61, v61, s58, -v26")
            a("v_exp_f32 v60, v60\nv_exp_f32 v61, v61\nv_add_f32 v27, v27, v60\nv_cvt_pk_bf16_f32 v62, v60, v61\nv_add_f32 v27, v27, v61")
            self.bop(52, 62, 2); self.bop(56, 62, 6)
            for k in range(2):
                j = NS + 2 * n + k
                a.wait_vm(('kv', j))
                a(f"v_mfma_f32_16x16x32_bf16 v[32:35], v[{ring(j)}:{ring(j)+3}], v[{52+4*k}:{55+4*k}], v[32:35]")
        def unit_last(C): return C + 3 if C < NS else C + 1
        def consume():
            nonlocal C
            if C < NS:
                a.wait_vm(('kv', C + 3)); consumeK(C // 4); C += 4
                if C == NS:
                    self.redrows(26, 48, "v_max_f32"); self.round_scaled(26, 48)
                    a(f"v_mul_f32 v26, {LOG2E}, v26"); self.stamp(3)
            else:
                consumeV((C - NS) // 2); C += 2
        def pace(n):
            tiles = [x for x in a.vm if x[0] != 'tk']
            if len(tiles) > n: a.wait_vm(tiles[len(tiles) - n - 1])
        while I < 2 * NS:
            if I - R < C:
                pace((W if I < c['iW2'] else c['W2']) - 1)
                if I == 2 * NS - 5: self.ticket(0)
                if I == 2 * NS - 3: self.ticket(1)
                issue(I); I += 1
                k = 0
                while k < c['burst'] and landed(unit_last(C)) and unit_last(C) < I: consume(); k += 1
            else: consume()
        for k in range(2):
            pace(2); self.unit_first(k)
            while C < 2 * NS and landed(unit_last(C)): consume()
        while C < 2 * NS: consume()
        self.stamp(10)
    def h_stream(self):
        a = self.a; c = self.c; WH = c['WH']
        QR = 64; DV = 240; STG = 176
        self.code_prefetch("s2", c['pfH'], 52)
        self.b_dma_setup(DV)
        for t in range(WH): self.dma1(t, DV, 'd')
        self.b_setup()
        self.tb1_addr(59)
        a("s_lshl_b32 s52, s3, 13\nv_add_u32 v57, s52, v29\nv_add_u32 v58, 0x10000, v57")
        self.get_tag()
        for t in range(WH, 16):
            a.wait_vm_n(WH - 1); self.dma1(t % 8, DV, 'd')
        for t in range(16):
            q = t % 8; r = R2[q] if t < 8 else UV + 4 * q
            a.wait_vm_n(WH - 1)
            if q == 0: a("s_and_b32 s62, s62, 0x7fffff")
            a(f"s_add_u32 s51, s62, {q*8192}\nbuffer_load_dwordx4 v[{r}:{r+3}], v{DV + (q & 1)}, s[76:79], s51 offen nt", tag='r')
            if q == 7: a("s_add_u32 s62, s62, 0x200000")
        self.stamp(1)
        self.poll_flags(28, 3, 2)
        for n in range(4): a(f"buffer_load_dwordx4 v[{STG+4*n}:{STG+4*n+3}], v29, s[36:39], s65 offen offset:{n*1024} sc1", tag=('q', n))
        for n in range(4):
            a.wait_vm(('q', n)); a(f"ds_write_b128 v30, v[{STG+4*n}:{STG+4*n+3}] offset:{n*1024}")
        a.wait_lg(); a("s_barrier")
        for ks in range(16):
            a(f"ds_read_b128 v[{QR+4*ks}:{QR+4*ks+3}], v31 offset:{ks*1024}")
            if ks == 11: a.wait_lg()
        a.wait_lg()
        self.stamp(2)
    def b_tile_wait(self): pass
    def b_refill(self):
        a = self.a
        L1 = a.newlabel("L_rf"); L2 = a.newlabel("L_rf")
        a(f"s_cmp_lg_u32 s61, 0\ns_cbranch_scc1 {L1}")
        for q in range(8): a(f"ds_write_b128 v57, v[{R2[q]}:{R2[q]+3}] offset:{q*1024}")
        a(f"{L1}:\ns_cmp_lg_u32 s61, 1\ns_cbranch_scc1 {L2}")
        for q in range(8): a(f"ds_write_b128 v58, v[{UV+4*q}:{UV+4*q+3}] offset:{q*1024}")
        a("s_waitcnt lgkmcnt(0)")
        if self.with_uv: self.tb1_loads(UV, 59)
        a(f"{L2}:\ns_waitcnt lgkmcnt(0)"); a.lg = []
    def h_join(self):
        a = self.a
        a("s_lshr_b32 s49, s2, 1\ns_and_b32 s50, s2, 1\ns_add_u32 s50, s50, 6\ns_mov_b32 s59, 1")
        self.q_setup()
        self.poll_granules(self.qissue, [11, 13, 15, 17, 19, 21, 23, 25], 48, 9)
    def h_enter(self, tickets_out):
        a = self.a
        self.kv_setup()
        a("v_mov_b32 v26, 0xf149f2ca\nv_mov_b32 v27, 0\nv_mov_b32 v32, 0\nv_mov_b32 v33, 0\nv_mov_b32 v34, 0\nv_mov_b32 v35, 0")
        if not tickets_out: self.ticket(0); self.ticket(1)
        self.unit_first(0); self.unit_first(1)
    def build(self):
        a = self.a; LDS = 163840
        hdr = open("gated_mix__gqa_block_cached__compressed_kv_cla__decode.s.ref").read().split("; Override launch")[0]
        a.raw(hdr.rstrip())
        def reset(): a.vm = []; a.lg = []; a.hist = []
        self.ring = lambda j: TW[j - 2 * G2.NT]
        if self.c['staged']:
            self.with_uv = False
            names = ["s1_kernel", "s2_kernel", "b_kernel", "tb1_kernel", "a_kernel", "t_kernel", "f_kernel"]
            for n in names: a.raw(f"; @launch kernel={n} grid=(256,1,1) block=(512,1,1) lds={LDS}")
            a.raw('.amdgcn_target "amdgcn-amd-amdhsa--gfx950"\n.text')
            self.prologue("s1_kernel"); self.only(64, 256); self.role_A(False, 'only_s1'); self.finish()
            self.prologue("s2_kernel"); self.only(64, 256); self.role_A(False, 'only_s2'); self.finish()
            self.prologue("b_kernel"); self.only(0, 64); self.h_stream(); self.role_B(); self.finish()
            self.prologue("tb1_kernel"); self.only(0, 64); self.get_tag(); self.tb1(True); self.finish()
            self.prologue("a_kernel")
            LA = a.newlabel("L_roleA"); LP = a.newlabel("L_topool")
            a(f"s_cmp_ge_u32 s2, 64\ns_cbranch_scc1 {LA}")
            self.get_tag(); self.sels(); self.h_join(); self.h_enter(False); a(f"s_branch {LP}\n{LA}:"); reset()
            self.role_A(False, False); a(f"{LP}:"); self.pool_loop(False); self.a_epilogue(); self.finish()
            self.prologue("t_kernel"); self.only(64, 256); self.get_tag(); self.t_main(True); self.finish()
            self.prologue("f_kernel"); self.only(0, 64); self.get_tag(); self.role_F(); self.finish()
        else:
            self.with_uv = True
            names = [KN]
            a.raw(f"; @launch grid=(256,1,1) block=(512,1,1) lds={LDS}")
            a.raw('.amdgcn_target "amdgcn-amd-amdhsa--gfx950"\n.text')
            self.prologue(KN)
            LA, LE, LP, LF = (a.newlabel(x) for x in ("L_roleA", "L_fin", "L_topool", "L_toF"))
            a(f"s_cmp_ge_u32 s2, 64\ns_cbranch_scc1 {LA}")
            self.h_stream(); self.role_B()
            if self.c['hjoin']:
                self.h_join(); self.tb1(); self.h_enter(True); a(f"s_branch {LP}")
            else: self.tb1()
            a(f"{LF}:"); reset()
            self.role_F(); a(f"s_branch {LE}")
            a(f"{LA}:"); reset()
            self.role_A()
            a(f"{LP}:"); self.pool_loop(True); self.a_epilogue()
            a(f"s_cmp_eq_u32 s59, 1\ns_cbranch_scc1 {LF}")
            self.t_main()
            a(f"{LE}:"); self.finish()
            a.raw(f"L_codeend:\n.fill ({8*1024*self.c['pfKB']} - (L_codeend - {KN})) / 4, 4, 0xbf810000")
        a.raw('.section .rodata,"a"')
        for n in names:
            a.raw(".p2align 6"); self.kd(n)
        return a.text()

def gen(**kw): return G(**kw).build()
if __name__ == "__main__":
    cfg = json.loads(sys.argv[2]) if len(sys.argv) > 2 else {}
    open(sys.argv[1], "w").write(gen(**cfg))
```

```python
import sys, json
sys.path.insert(0, "dev")
from asmlib import Asm
import gen as G1
from gen import KN, EPOCH, Q, QABS, FQ, FB, PBS, FE, REC, PO, PB, STAMP, WS_USED, LOG2E, SCALE, SCL2E, NEGINF

DEF = dict(staged=False, mimicA=True, mimicB=True, W=3, W2=4, iW2=50, R=40, IQ=26, ICHK=30, burst=1, WH=4, iq2=10, W0=0, n0=8, bar=0,
           stamps=False, spin=40000, sleep_long=8, rotb=2, fsleep=4, pfA=32, pfH=0, pfKB=4)
NT = 43
PL = 131072; ML = PL + 4608; SC = 137216; S2O = 153600

class G(G1.G):
    def __init__(self, **kw):
        self.c = dict(DEF); self.c.update(kw)
        self.a = Asm()
    def prologue(self, name):
        a = self.a
        a.raw(f".globl {name}\n.p2align 8\n.type {name},@function\n{name}:")
        a.hist = []; a.vm = []; a.lg = []
        self.end = a.newlabel("L_end")
        a(f"s_cmp_ge_u32 s2, 256\ns_cbranch_scc1 {self.end}")
        if self.c['stamps'] or self.c.get('padto'): a("s_memrealtime s[80:81]")
        a("""s_load_dwordx16 s[4:19], s[0:1], 0
        s_load_dwordx8 s[20:27], s[0:1], 64
        s_load_dwordx4 s[28:31], s[0:1], 96
        s_load_dwordx2 s[32:33], s[0:1], 112
        v_lshrrev_b32 v1, 6, v0
        v_and_b32 v0, 63, v0
        v_readfirstlane_b32 s3, v1
        s_waitcnt lgkmcnt(0)
        s_load_dword s34, s[32:33], 0""")
        a(f"s_mov_b32 s36, s32\ns_and_b32 s37, s33, 0xffff\ns_mov_b32 s38, {WS_USED}\ns_mov_b32 s39, 0x20000")
    def qk_group(self, K, q, T, U):
        a = self.a; n = len(K)
        for kk in range(4):
            for t in range(n):
                for h in range(2):
                    src2 = "0" if kk == 0 else f"v{T+2*t+h}"
                    a(f"v_dot2_f32_bf16 v{T+2*t+h}, v{K[t]+kk}, v{q+8*h+2*kk}, {src2}")
        for t in range(n): a(f"v_add_f32_dpp v{U[t]}, v{T+2*t}, v{T+2*t} row_ror:8 row_mask:0xf bank_mask:0x3")
        for t in range(n): a(f"v_add_f32_dpp v{U[t]}, v{T+2*t+1}, v{T+2*t+1} row_ror:8 row_mask:0xf bank_mask:0xc")
        for m in ("row_half_mirror", "quad_perm:[1,0,3,2]", "quad_perm:[2,3,0,1]"):
            for t in range(n): a(f"v_add_f32_dpp v{U[t]}, v{U[t]}, v{U[t]} {m} row_mask:0xf bank_mask:0xf")

    def code_prefetch(self, cond_reg, limit, dst):
        a = self.a; n = self.c['pfKB']
        if not limit or self.c['staged']: return
        L = a.newlabel("L_nopf"); Lp = a.newlabel("L_pc")
        a(f"s_cmp_ge_u32 {cond_reg}, {limit}\ns_cbranch_scc1 {L}")
        a(f"s_getpc_b64 s[76:77]\n{Lp}:\ns_sub_u32 s76, s76, {Lp}-{KN}\ns_subb_u32 s77, s77, 0")
        a(f"s_mul_i32 s52, s3, {n*1024}\nv_lshlrev_b32 v{dst}, 4, v0\nv_add_u32 v{dst}, s52, v{dst}")
        for k in range(n):
            a(f"global_load_dwordx4 v[244:247], v{dst}, s[76:77] offset:{k*1024}"); a.vm.pop()
        a(f"{L}:")
    def a_ids(self):
        self.a("s_sub_u32 s48, s2, 64\ns_mul_i32 s49, s48, 171\ns_lshr_b32 s49, s49, 10\ns_mul_i32 s50, s49, 6\ns_sub_u32 s50, s48, s50")
    def t_addr(self):
        a = self.a
        a("""s_cmp_ge_u32 s48, 96
        s_cselect_b32 s63, 1, 0
        s_cselect_b32 s54, s24, s12
        s_cselect_b32 s55, s25, s13
        s_cselect_b32 s67, 2.0, 1.0
        s_mul_i32 s52, s63, 96
        s_sub_u32 s52, s48, s52
        s_mul_i32 s64, s52, 171
        s_lshr_b32 s64, s64, 9
        s_mul_i32 s65, s64, 3
        s_sub_u32 s65, s52, s65""")
        self.srd(68, "s54", "s55", 4096 * 1152)
        a("""s_lshl_b32 s52, s64, 3
        s_add_u32 s52, s52, s3
        s_mul_i32 s52, s52, 18432
        s_mul_i32 s54, s65, 384
        s_add_u32 s52, s52, s54
        v_lshrrev_b32 v48, 4, v0
        v_mul_u32_u24 v30, 4608, v48
        v_add_u32 v30, s52, v30
        v_bfe_u32 v49, v0, 3, 1
        v_mul_u32_u24 v31, 1152, v49
        v_add_u32 v31, v31, v30
        v_and_b32 v50, 7, v0
        v_lshl_add_u32 v31, v50, 4, v31
        v_add_u32 v31, 256, v31
        v_and_b32 v51, 15, v0
        v_lshl_add_u32 v30, v51, 4, v30""")
    def t_load(self, k, reg):
        a = self.a
        if k < 4: a(f"buffer_load_dwordx4 v[{reg}:{reg+3}], v30, s[68:71], 0 offen offset:{k*1152} nt", tag=('kv', 2*NT + k))
        else: a(f"buffer_load_dwordx4 v[{reg}:{reg+3}], v31, s[68:71], 0 offen offset:{(k-4)*2304} nt", tag=('kv', 2*NT + k))
    def role_A(self, with_t=True, heads=True):
        a = self.a; c = self.c
        W, R = c['W'], c['R']; mim = c['mimicA']
        SREG = 64; RING = 88 if mim else 108
        assert RING + 4 * R <= 256
        NL = 2 * NT + (6 if with_t else 0)
        self.a_ids()
        a("""s_lshl_b32 s52, s49, 21
        s_add_u32 s54, s6, s52
        s_addc_u32 s55, s7, 0
        s_add_u32 s56, s8, s52
        s_addc_u32 s57, s9, 0""")
        self.srd(40, "s54", "s55", 0x200000); self.srd(44, "s56", "s57", 0x200000)
        a(f"""s_lshl_b32 s59, s50, 3
        s_add_u32 s59, s59, s3
        s_lshl_b32 s52, s49, 16
        s_lshl_b32 s60, s59, 12
        s_add_u32 s60, s60, s52
        s_lshl_b32 s61, s59, 10
        s_add_u32 s61, s61, s52
        s_add_u32 s61, s61, {1920*1024}
        s_cmp_lt_u32 s59, 32
        s_cselect_b32 s62, 0, {NEGINF}
        s_cselect_b32 s66, 0, 0x40000000
        v_lshlrev_b32 v1, 4, v0""")
        def ring(j): return RING + 4 * (j % R)
        self.ring = ring
        def issue(j):
            if j >= 2 * NT: self.t_load(j - 2 * NT, ring(j)); return
            jj = j % NT
            srd = "s[40:43]" if j < NT else "s[44:47]"
            off = 0
            if jj < 40:
                if jj % 4 == 0: a(f"s_add_u32 s51, s60, {(jj//4)*48*4096}\ns_and_b32 s51, s51, 0x1fffff")
                off = (jj % 4) * 1024
            else:
                a(f"s_add_u32 s51, s61, {(jj-40)*48*1024}\ns_and_b32 s51, s51, 0x1fffff")
                if jj == 42: a("s_or_b32 s51, s51, s66")
            a(f"buffer_load_dwordx4 v[{ring(j)}:{ring(j)+3}], v1, {srd}, s51 offen offset:{off} nt", tag=('kv', j))
        def qissue():
            for h in range(2):
                for k in range(2):
                    a(f"buffer_load_dwordx4 v[{10+8*h+4*k}:{13+8*h+4*k}], v29, s[36:39], 0 offen offset:{512*h+16*k} sc1", tag='pg')
        self.code_prefetch("s48", c['pfA'], 52)
        def common():
            self.sels()
            a(f"s_lshl_b32 s52, s49, 10\ns_add_u32 s52, s52, {Q}\nv_and_b32 v29, 15, v0\nv_lshlrev_b32 v29, 5, v29\nv_add_u32 v29, s52, v29")
            if with_t: self.t_addr()
            self.get_tag()
        IM = c['IQ']
        if heads == 'only_s1':
            self.head_s1(issue, 0, common); return
        if heads == 'only_s2':
            self.head_s2(issue, 0, common); return
        if heads:
            L2 = a.newlabel("L_heads2"); LM = a.newlabel("L_merge")
            a(f"s_cmp_ge_u32 s48, 128\ns_cbranch_scc1 {L2}")
            self.head_s1(issue, IM, common)
            a(f"s_branch {LM}\n{L2}:"); a.vm = []; a.lg = []; a.hist = []
            self.head_s2(issue, IM, common)
            a(f"{LM}:")
            a.vm = [('kv', j) for j in range(IM - W, IM)]
        else:
            for j in range(W): issue(j)
            common()
            for j in range(W, IM): a.wait_vm_n(W - 1); issue(j)
        I = IM
        a(f"v_mov_b32 v26, {NEGINF}\nv_mov_b32 v27, 0\nv_mov_b32 v32, 0\nv_mov_b32 v33, 0\nv_mov_b32 v34, 0\nv_mov_b32 v35, 0")
        qissue()
        while I < c['ICHK']:
            a.wait_vm_n(W - 1 + (4 if I < IM + W else 0)); issue(I); I += 1
        self.stamp(1)
        self.poll_granules(qissue, [11, 13, 15, 17, 19, 21, 23, 25], 48, 1, first_issued=True)
        self.stamp(2)
        C = 0
        def landed(j): return ('kv', j) not in a.vm
        def consumeK(n):
            nt = min(4, NT - 4 * n)
            K = [ring(4 * n + t) for t in range(nt)]
            U = [44, 45, 46, 47] if mim else [SREG + 4 * n + t for t in range(4)]
            self.qk_group(K, 10, 36, U)
            if nt == 3: a(f"v_add_f32 v{U[2]}, s62, v{U[2]}\nv_mov_b32 v{U[3]}, {NEGINF}")
            if mim:
                a("v_cvt_pk_bf16_f32 v48, v44, v45\nv_cvt_pk_bf16_f32 v50, v46, v47\nv_max3_f32 v26, v26, v44, v45")
                a("v_and_b32 v49, 0xffff0000, v48\nv_lshlrev_b32 v48, 16, v48\nv_and_b32 v51, 0xffff0000, v50\nv_lshlrev_b32 v50, 16, v50")
                a("v_max3_f32 v26, v26, v46, v47")
                for r in (48, 49, 50, 51): a(f"v_mul_f32 v{r}, {SCALE}, v{r}")
                a(f"v_cvt_pk_bf16_f32 v{SREG+2*n}, v48, v49\nv_cvt_pk_bf16_f32 v{SREG+2*n+1}, v50, v51")
            else:
                a(f"v_max3_f32 v26, v26, v{U[0]}, v{U[1]}\nv_max3_f32 v26, v26, v{U[2]}, v{U[3]}")
        def finishK():
            self.redrows(26, 48, "v_max_f32")
            if mim:
                self.round_scaled(26, 48)
                a(f"v_mul_f32 v26, {LOG2E}, v26\ns_mov_b32 s58, {LOG2E}")
            else:
                a(f"v_mul_f32 v26, {SCL2E}, v26\ns_mov_b32 s58, {SCL2E}")
            self.stamp(3)
        def consumeV(n):
            nt = min(2, NT - 2 * n)
            if mim:
                a(f"v_lshlrev_b32 v60, 16, v{SREG+n}\nv_and_b32 v61, 0xffff0000, v{SREG+n}")
                a("v_fma_f32 v60, v60, s58, -v26\nv_fma_f32 v61, v61, s58, -v26")
            else:
                a(f"v_fma_f32 v60, v{SREG+2*n}, s58, -v26\nv_fma_f32 v61, v{SREG+2*n+1}, s58, -v26")
            a("v_exp_f32 v60, v60\nv_exp_f32 v61, v61\nv_add_f32 v27, v27, v60\nv_cvt_pk_bf16_f32 v62, v60, v61\nv_add_f32 v27, v27, v61")
            self.bop(52, 62, 2)
            if nt == 2: self.bop(56, 62, 6)
            for k in range(nt):
                j = NT + 2 * n + k
                a.wait_vm(('kv', j))
                a(f"v_mfma_f32_16x16x32_bf16 v[32:35], v[{ring(j)}:{ring(j)+3}], v[{52+4*k}:{55+4*k}], v[32:35]")
        def unit_last(C): return min(C + 3, NT - 1) if C < NT else min(C + 1, 2 * NT - 1)
        def consume():
            nonlocal C
            if C < NT:
                a.wait_vm(('kv', unit_last(C))); consumeK(C // 4); C = unit_last(C) + 1
                if C == NT: finishK()
            else:
                consumeV((C - NT) // 2); C = unit_last(C) + 1
        while C < 2 * NT:
            if I < NL and I - R < C:
                a.wait_vm_n((W if I < c['iW2'] else c['W2']) - 1); issue(I); I += 1
                if c['bar'] and I % c['bar'] == 0 and I < 2 * NT - 2: a("s_barrier")
                while 2 * NT < I < NL: issue(I); I += 1
                k = 0
                while C < 2 * NT and k < c['burst'] and landed(unit_last(C)) and unit_last(C) < I: consume(); k += 1
            else:
                consume()
        while I < NL: issue(I); I += 1
        self.stamp(4)
        self.redrows(27, 48, "v_add_f32")
        a("v_lshlrev_b32 v48, 4, v0\ns_lshl_b32 s52, s3, 10\nv_add_u32 v48, s52, v48")
        a("v_bfe_u32 v49, v0, 3, 1\nv_lshlrev_b32 v49, 6, v49\ns_lshl_b32 s52, s3, 3\ns_add_u32 s52, s52, 8192\nv_add_u32 v49, s52, v49")
        a("ds_write_b64 v49, v[26:27]\nds_write_b128 v48, v[32:35]")
        self.acc_addr(28, 52)
        a(f"""s_lshr_b32 s52, s3, 1
        s_lshl_b32 s54, s49, 1
        s_add_u32 s52, s52, s54
        s_lshl_b32 s52, s52, 3
        s_add_u32 s52, s52, s50
        s_mul_i32 s52, s52, 1152
        s_add_u32 s52, s52, {REC}
        s_and_b32 s54, s3, 1
        s_lshl_b32 s55, s54, 9
        v_lshlrev_b32 v50, 3, v0
        v_add_u32 v50, s55, v50
        s_lshr_b32 s55, s3, 1
        s_lshl_b32 s55, s55, 6
        s_add_u32 s55, s55, 8192
        v_mov_b32 v51, s55""")
        a.wait_lg(); a("s_barrier")
        self.stamp(8)
        Lu = a.newlabel("L_aup")
        a(f"s_cmp_ge_u32 s3, 4\ns_cbranch_scc1 {Lu}")
        for k in range(4): a(f"ds_read_b128 v[{10+4*k}:{13+4*k}], v51 offset:{16*k}")
        for w in range(8): a(f"ds_read_b32 v{36+w}, v28 offset:{1024*w}")
        a.wait_lg()
        a("v_max3_f32 v52, v10, v12, v14\nv_max3_f32 v53, v16, v18, v20\nv_max3_f32 v52, v52, v22, v24\nv_max_f32 v52, v52, v53")
        for w in range(8): a(f"v_sub_f32 v{10+2*w}, v{10+2*w}, v52")
        for w in range(8): a(f"v_exp_f32 v{10+2*w}, v{10+2*w}")
        a("v_mul_f32 v53, v10, v11\nv_mul_f32 v54, v10, v36")
        for w in range(1, 8): a(f"v_fmac_f32 v53, v{10+2*w}, v{11+2*w}\nv_fmac_f32 v54, v{10+2*w}, v{36+w}")
        a("v_rcp_f32 v55, v53\nv_log_f32 v56, v53\nv_mov_b32 v59, s35\nv_mov_b32 v57, s35\nv_mul_f32 v58, v54, v55\nv_add_f32 v56, v56, v52")
        a("buffer_store_dwordx2 v[58:59], v50, s[36:39], s52 offen sc1"); a.vm.pop()
        a(f"s_cmp_lg_u32 s54, 0\ns_cbranch_scc1 {Lu}\ns_mov_b64 exec, 1")
        a("buffer_store_dwordx2 v[56:57], v50, s[36:39], s52 offen offset:1024 sc1"); a.vm.pop()
        a(f"s_mov_b64 exec, -1\n{Lu}:")
        self.stamp(5)
    def t_main(self, standalone=False):
        a = self.a; c = self.c
        if standalone:
            self.a_ids(); self.sels(); self.t_addr()
            if not hasattr(self, 'ticket'): self.ring = lambda j: 88 + 4 * (j % 40)
            for k in range(6): self.t_load(k, self.ring(2 * NT + k))
        WR = [self.ring(2 * NT + k) for k in range(6)]
        a(f"""v_and_b32 v50, 7, v0
        v_min_u32 v51, {7 if self.c.get('hjoin') else 5}, v50
        v_and_b32 v52, 1, v0
        s_cmp_eq_u32 s63, 0
        s_cselect_b64 vcc, -1, 0
        s_cselect_b32 s66, {7 if self.c.get('hjoin') else 5}, 7
        v_cndmask_b32 v51, v52, v51, vcc
        v_bfe_u32 v49, v0, 3, 1
        v_lshl_add_u32 v29, v49, 8, v51
        v_mul_u32_u24 v29, 1152, v29
        s_lshl_b32 s52, s63, 6
        s_add_u32 s52, s52, s64
        s_mul_i32 s52, s52, 9216
        s_add_u32 s52, s52, {REC}
        v_add_u32 v29, s52, v29
        v_lshrrev_b32 v48, 4, v0
        v_lshlrev_b32 v1, 5, v48
        s_lshl_b32 s52, s3, 7
        v_add_u32 v1, s52, v1
        v_add_u32 v1, v1, v29
        v_cmp_lt_u32 s[72:73], s66, v50""")
        def gissue():
            for k in range(2): a(f"buffer_load_dwordx4 v[{10+4*k}:{13+4*k}], v1, s[36:39], 0 offen offset:{16*k} sc1", tag='pg')
            a("buffer_load_dwordx2 v[18:19], v29, s[36:39], 0 offen offset:1024 sc1", tag='pg')
        gissue()
        for r in range(32, 44): a(f"v_mov_b32 v{r}, 0")
        a("""v_and_b32 v26, 7, v0
        v_lshlrev_b32 v26, 4, v26
        v_bfe_u32 v48, v0, 3, 2
        v_lshl_add_u32 v26, v48, 2, v26
        v_lshrrev_b32 v48, 5, v0
        s_cmp_ge_u32 s3, 4
        s_cselect_b32 s52, 9, 8
        s_cselect_b32 s54, 8, 9
        s_cselect_b32 s55, 8192, 0
        s_cselect_b32 s56, 1024, 0
        s_add_u32 s55, s55, 16384
        v_lshl_add_u32 v26, v48, s52, v26
        s_and_b32 s57, s3, 1
        s_lshl_b32 s57, s57, s54
        s_add_u32 s56, s56, s57
        s_add_u32 s55, s55, s57
        s_bfe_u32 s57, s3, 0x10001
        s_lshl_b32 s52, s57, 7
        s_add_u32 s55, s55, s52
        v_add_u32 v26, s55, v26
        v_lshlrev_b32 v27, 4, v0
        s_lshl_b32 s52, s3, 10
        s_add_u32 s52, s52, 16384
        v_add_u32 v27, s52, v27
        v_lshlrev_b32 v23, 3, v0
        v_add_u32 v23, s56, v23""")
        a(f"""s_lshl_b32 s74, s63, 5
        s_add_u32 s74, s74, s64
        s_lshl_b32 s74, s74, 1
        s_add_u32 s74, s74, s57
        s_mul_i32 s74, s74, 4608
        s_mul_i32 s54, s65, 1536
        s_add_u32 s74, s74, s54
        s_add_u32 s74, s74, {PO}
        v_mov_b32 v59, s35
        v_mov_b32 v47, {NEGINF}""")
        self.poll_granules(gissue, [11, 13, 15, 17, 19], 48, 6, first_issued=True)
        self.stamp(6)
        a("v_cndmask_b32 v18, v18, v47, s[72:73]\nv_mov_b32 v44, v18")
        self.red8([44], "v_max_f32")
        a("v_sub_f32 v44, v18, v44\nv_exp_f32 v44, v44\nv_mov_b32 v45, v44")
        self.red8([45], "v_add_f32")
        a("v_rcp_f32 v45, v45\nv_mul_f32 v44, s67, v44\nv_mul_f32 v44, v44, v45")
        for t in range(4): a(f"v_mul_f32 v{52+t}, v44, v{10+2*t}")
        self.red8([52, 53, 54, 55], "v_add_f32")
        for k in range(2): a(f"v_cvt_pk_bf16_f32 v{20+k}, v{52+2*k}, v{53+2*k}")
        for k in range(2):
            self.bop(44, 20 + k, 2); self.bop(48, 20 + k, 6)
            a(f"v_mfma_f32_16x16x32_bf16 v[36:39], v[{WR[4+k]}:{WR[4+k]+3}], v[44:47], v[36:39]")
            a(f"v_mfma_f32_16x16x32_bf16 v[40:43], v[{WR[4+k]}:{WR[4+k]+3}], v[48:51], v[40:43]")
            a(f"v_mfma_f32_16x16x32_bf16 v[32:35], v[{WR[2*k]}:{WR[2*k]+3}], v[44:47], v[32:35]")
            a(f"v_mfma_f32_16x16x32_bf16 v[32:35], v[{WR[2*k+1]}:{WR[2*k+1]+3}], v[48:51], v[32:35]")
        a("v_cmp_lt_u32 vcc, 31, v0")
        for r in range(4): a(f"v_cndmask_b32 v{36+r}, v{36+r}, v{40+r}, vcc")
        a("ds_write_b128 v27, v[36:39] offset:8192\nds_write_b128 v27, v[32:35]")
        a.wait_lg(); a("s_barrier")
        for w in range(8): a(f"ds_read_b32 v{44+w}, v26 offset:{1024*w}")
        a.wait_lg()
        a("v_add_f32 v44, v44, v45\nv_add_f32 v46, v46, v47\nv_add_f32 v48, v48, v49\nv_add_f32 v50, v50, v51\nv_add_f32 v44, v44, v46\nv_add_f32 v48, v48, v50\nv_add_f32 v58, v44, v48")
        Lf = a.newlabel("L_tfull")
        a(f"s_cmp_lt_u32 s3, 4\ns_cbranch_scc1 {Lf}")
        a("v_mov_b32 v49, v58\nv_permlane32_swap_b32 v58, v49\nv_add_f32 v58, v58, v49\ns_mov_b32 exec_hi, 0")
        a(f"{Lf}:\nbuffer_store_dwordx2 v[58:59], v23, s[36:39], s74 offen sc1\ns_mov_b64 exec, -1")
        self.stamp(7)

    def s1_finish(self):
        a = self.a; base = 32768
        a(f"v_cmp_lt_u32 vcc, 31, v0\nv_lshlrev_b32 v48, 4, v0\ns_lshl_b32 s52, s3, 10\ns_add_u32 s52, s52, {base}\nv_add_u32 v48, s52, v48")
        for r in range(4): a(f"v_cndmask_b32 v{32+r}, v{32+r}, v{36+r}, vcc")
        a("ds_write_b128 v48, v[32:35]")
        a.wait_lg(); a("s_barrier")
        Ls = a.newlabel("L_s1skip")
        a(f"s_cmp_ge_u32 s3, 2\ns_cbranch_scc1 {Ls}")
        a(f"""v_and_b32 v48, 7, v0
        v_lshlrev_b32 v48, 4, v48
        v_bfe_u32 v49, v0, 3, 2
        v_lshl_add_u32 v48, v49, 2, v48
        v_lshrrev_b32 v49, 5, v0
        v_lshl_add_u32 v48, v49, 8, v48
        s_lshl_b32 s52, s3, 7
        s_add_u32 s52, s52, {base}
        v_add_u32 v48, s52, v48""")
        for s in range(16):
            a(f"ds_read_b32 v{32+s}, v48 offset:{512*s}")
            if s == 11: a.wait_lg()
        a("""s_lshl_b32 s52, s3, 14
        s_add_u32 s52, s52, s56
        v_mov_b32 v53, s35""")
        self.s1_dest()
        a.wait_lg()
        for st in (8, 4, 2, 1):
            for s in range(st): a(f"v_add_f32 v{32+s}, v{32+s}, v{32+s+st}")
        a("v_mov_b32_dpp v33, v32 quad_perm:[1,0,3,2] row_mask:0xf bank_mask:0xf")
        a("v_cvt_pk_bf16_f32 v52, v32, v33\ns_mov_b32 exec_lo, 0x55555555\ns_mov_b32 exec_hi, 0x55555555")
        a("buffer_store_dwordx2 v[52:53], v50, s[36:39], s52 offen sc1\ns_mov_b64 exec, -1"); a.vm.pop()
        a(f"{Ls}:")
    def s1_dest(self): self.a("v_lshlrev_b32 v50, 2, v0")
    def head_s1(self, kissue, IM, common):
        a = self.a; W = self.c['W']; WR = 212
        a(f"""s_cmp_lt_u32 s48, 64
        s_cselect_b32 s54, s18, s10
        s_cselect_b32 s55, s19, s11
        s_cselect_b32 s56, 32768, 0
        s_and_b32 s57, s48, 63""")
        self.srd(72, "s54", "s55", 576 * 8192); self.srd(76, "s4", "s5", 2304)
        a("""v_lshrrev_b32 v48, 4, v0
        v_mul_u32_u24 v49, 18, v48
        v_bfe_u32 v50, v0, 3, 1
        v_add_u32 v51, v49, v50
        s_mul_i32 s52, s3, 72
        v_add_u32 v51, s52, v51
        v_lshlrev_b32 v28, 13, v51
        v_and_b32 v51, 7, v0
        v_lshl_add_u32 v28, v51, 4, v28
        s_lshl_b32 s54, s57, 7
        v_add_u32 v28, s54, v28
        v_mul_u32_u24 v63, 1152, v50
        v_lshl_add_u32 v63, v49, 1, v63
        s_lshl_b32 s52, s52, 1
        v_add_u32 v63, s52, v63""")
        seq = [('w', t) for t in range(9)] + [('kv', j) for j in range(IM)]
        I = 0
        def issue():
            nonlocal I
            x = seq[I]; I += 1
            if x[0] == 'kv': kissue(x[1])
            else: a(f"s_mov_b32 s51, {x[1]*16384}\nbuffer_load_dwordx4 v[{WR+4*x[1]}:{WR+4*x[1]+3}], v28, s[72:75], s51 offen nt", tag=x)
        a("buffer_load_dwordx4 v[10:13], v63, s[76:79], 0 offen\nbuffer_load_dwordx4 v[14:17], v63, s[76:79], 0 offen offset:16\nbuffer_load_dword v18, v63, s[76:79], 0 offen offset:32", tag='x')
        W0 = self.c['W0']
        def yield_a():
            if W0 and I < self.c['n0']:
                L = a.newlabel("L_y")
                a(f"s_cmp_lt_u32 s48, 64\ns_cbranch_scc1 {L}\ns_waitcnt vmcnt({W0 - 1})\n{L}:")
        for k in range(4):
            if k >= (W0 or 4): yield_a()
            issue()
        a(f"s_lshl_b32 s54, s57, 8\ns_add_u32 s56, s56, s54\ns_add_u32 s56, s56, {Q}")
        common()
        for r in range(32, 40): a(f"v_mov_b32 v{r}, 0")
        a.wait_vm('x')
        for t in range(9):
            self.bop(40, 10 + t, 2); self.bop(44, 10 + t, 6)
            a.wait_vm(('w', t))
            while I < len(seq) and len(a.vm) < (4 if I < 9 else W): yield_a(); issue()
            r = WR + 4 * t
            a(f"v_mfma_f32_16x16x32_bf16 v[32:35], v[{r}:{r+3}], v[40:43], v[32:35]")
            a(f"v_mfma_f32_16x16x32_bf16 v[36:39], v[{r}:{r+3}], v[44:47], v[36:39]")
        self.s1_finish()
        self.stamp(9)
        while I < len(seq): a.wait_vm_n(W - 1); issue()
    def head_s2(self, kissue, IM, common):
        a = self.a; c = self.c; W = c['W']; UR = 216; S2O = 49152
        self.srd(72, "s20", "s21", 512 * 8192)
        if not hasattr(self, 'ticket'): a("s_sub_u32 s57, s48, 128")
        a(f"""s_mov_b32 s77, s57
        s_lshr_b32 s56, s57, 4
        s_and_b32 s57, s57, 15
        s_lshl_b32 s52, s57, 2
        s_lshr_b32 s54, s3, 1
        s_add_u32 s52, s52, s54
        s_lshl_b32 s52, s52, 16
        s_lshl_b32 s54, s56, 1
        s_and_b32 s55, s3, 1
        s_add_u32 s54, s54, s55
        s_lshl_b32 s55, s54, 10
        s_add_u32 s52, s52, s55
        v_add_u32 v28, s52, v1""")
        seq = [('u', t) for t in range(8)] + [('kv', j) for j in range(IM)]
        I = 0
        def issue():
            nonlocal I
            x = seq[I]; I += 1
            if x[0] == 'kv': kissue(x[1])
            else: a(f"s_mov_b32 s51, {x[1]*8192}\nbuffer_load_dwordx4 v[{UR+4*x[1]}:{UR+4*x[1]+3}], v28, s[72:75], s51 offen nt", tag=x)
        W0 = c['W0'] or W
        def more(n=1):
            for _ in range(n):
                if I < len(seq): a.wait_vm_n((W0 if I < c['n0'] else W) - 1); issue()
        for _ in range(W0): issue()
        a(f"""s_lshl_b32 s54, s54, 11
        s_add_u32 s54, s54, {Q + 32768}
        v_lshrrev_b32 v48, 4, v0
        v_lshlrev_b32 v63, 9, v48
        v_and_b32 v49, 15, v0
        v_lshl_add_u32 v63, v49, {4 if hasattr(self, 'ticket') else 5}, v63
        v_add_u32 v63, s54, v63
        s_mov_b32 s76, 16384
        v_bfe_u32 v50, v0, 3, 1
        v_lshlrev_b32 v60, 9, v50
        v_lshl_add_u32 v60, v48, 4, v60
        s_lshr_b32 s52, s3, 1
        s_lshl_b32 s52, s52, 7
        s_and_b32 s55, s3, 1
        s_lshl_b32 s55, s55, 6
        s_add_u32 s52, s52, s55
        s_add_u32 s52, s52, {S2O}
        v_add_u32 v60, s52, v60
        v_add_u32 v51, {S2O + 1024}, v1
        v_and_b32 v50, 7, v0
        v_cmp_lt_u32 vcc, 0, v50
        v_cndmask_b32 v60, v60, v51, vcc
        v_mov_b32 v59, v63""")
        common()
        while ('u', 7) in seq[I:] or ('kv', c['iq2'] - 1) in seq[I:]: more()
        def qissue():
            for b in range(2):
                for k in range(2):
                    so = "s76" if b else "0"
                    a(f"buffer_load_dwordx4 v[{10+8*b+4*k}:{13+8*b+4*k}], v59, s[36:39], {so} offen offset:{(256 if hasattr(self, 'ticket') else 16)*k} sc1", tag='pg')
        qissue()
        while I < len(seq) and sum(1 for x in a.vm[a.vm.index('pg'):] if x != 'pg') < W - 1:
            a.wait_vm_n(W + 3); issue()
        self.poll_granules(qissue, [11, 13, 15, 17, 19, 21, 23, 25], 48, 2, first_issued=True, sleep=1)
        self.stamp(9)
        while I < len(seq) and len(a.vm) < W: issue()
        for n in range(2):
            self.qk_group([UR + 16 * n + 4 * t for t in range(4)], 10, 36, [44 + 4 * n + t for t in range(4)])
            more()
        for k in range(4): a(f"v_cvt_pk_bf16_f32 v{52+k}, v{44+2*k}, v{45+2*k}")
        a("ds_write_b128 v60, v[52:55]")
        a.wait_lg(); a("s_barrier")
        Ls = a.newlabel("L_s2skip")
        a(f"s_cmp_lg_u32 s3, 7\ns_cbranch_scc1 {Ls}")
        a(f"v_add_u32 v48, {S2O}, v1\nds_read_b128 v[52:55], v48")
        a(f"""v_lshrrev_b32 v49, 5, v0
        v_lshlrev_b32 v49, 15, v49
        v_bfe_u32 v50, v0, 3, 2
        v_lshl_add_u32 v49, v50, 10, v49
        v_and_b32 v50, 7, v0
        v_lshl_add_u32 v49, v50, 4, v49
        s_lshr_b32 s52, s56, 1
        s_lshl_b32 s52, s52, 14
        s_and_b32 s54, s57, 3
        s_lshl_b32 s54, s54, 12
        s_add_u32 s52, s52, s54
        s_lshr_b32 s54, s57, 2
        s_lshl_b32 s54, s54, 8
        s_add_u32 s52, s52, s54
        s_and_b32 s54, s56, 1
        s_lshl_b32 s54, s54, 7
        s_add_u32 s52, s52, s54
        s_add_u32 s52, s52, {QABS}""")
        a.wait_lg()
        a("buffer_store_dwordx4 v[52:55], v49, s[36:39], s52 offen sc1"); a.vm.pop()
        a(f"{Ls}:")
        i_store = I
        more(W - 1)
        Ls = a.newlabel("L_s2flag")
        a(f"s_cmp_lg_u32 s3, 7\ns_cbranch_scc1 {Ls}")
        a(f"s_lshl_b32 s54, s77, 7\ns_add_u32 s54, s54, {FQ}\nv_mov_b32 v50, s35\nv_mov_b32 v51, 0")
        a(f"s_waitcnt vmcnt({I - i_store})\ns_mov_b64 exec, 1")
        a("buffer_store_dword v50, v51, s[36:39], s54 offen sc1\ns_mov_b64 exec, -1"); a.vm.pop()
        a(f"{Ls}:")
        self.stamp(1 if c.get('s2flagstamp') else 10)
        while I < len(seq): more()
    def h_stream(self, with_uv):
        a = self.a; c = self.c; WH = c['WH']
        QR = 64; DV = 240; STG = 176; UV = 208
        self.code_prefetch("s2", c['pfH'], 52)
        self.b_dma_setup(DV)
        for t in range(WH): self.dma1(t, DV, 'd')
        self.b_setup()
        if with_uv: self.tb1_addr(59)
        self.get_tag()
        for t in range(WH, 16):
            a.wait_vm_n(WH - 1); self.dma1(t % 8, DV, 'd')
        if with_uv:
            for t in range(8):
                a.wait_vm_n(WH - 1)
                a(f"s_mov_b32 s51, {t*8192}\nbuffer_load_dwordx4 v[{UV+4*t}:{UV+4*t+3}], v59, s[44:47], s51 offen nt", tag='v')
        self.stamp(1)
        self.poll_flags(28, 3, 2)
        self.stamp(4)
        for n in range(4): a(f"buffer_load_dwordx4 v[{STG+4*n}:{STG+4*n+3}], v29, s[36:39], s65 offen offset:{n*1024} sc1", tag=('q', n))
        for n in range(4):
            a.wait_vm(('q', n)); a(f"ds_write_b128 v30, v[{STG+4*n}:{STG+4*n+3}] offset:{n*1024}")
        a.wait_lg(); a("s_barrier")
        for ks in range(16):
            a(f"ds_read_b128 v[{QR+4*ks}:{QR+4*ks+3}], v31 offset:{ks*1024}")
            if ks == 11: a.wait_lg()
        a.wait_lg()
        self.stamp(2)
    def b_dma_setup(self, DV):
        a = self.a; c = self.c
        a("""s_lshr_b32 s63, s2, 5
        s_and_b32 s64, s2, 31
        s_lshl_b32 s52, s63, 23
        s_add_u32 s54, s16, s52
        s_addc_u32 s55, s17, 0""")
        self.srd(76, "s54", "s55", 0x800000)
        a("v_lshrrev_b32 v48, 3, v0\nv_and_b32 v49, 7, v0\ns_lshl_b32 s52, s3, 7\nv_lshlrev_b32 v50, 10, v48\nv_add_u32 v50, s52, v50\nv_lshrrev_b32 v52, 4, v0")
        for q in range(2): a(f"v_add_u32 v51, {4*q}, v52\nv_xor_b32 v51, v51, v49\nv_lshl_add_u32 v{DV+q}, v51, 4, v50")
        a(f"s_lshl_b32 s60, s3, 13\ns_mul_i32 s62, s63, {c['rotb']}\ns_lshl_b32 s62, s62, 21\ns_lshl_b32 s52, s64, 16\ns_add_u32 s62, s62, s52")
    def dma1(self, q, DV, tag):
        a = self.a
        if q == 0: a("s_and_b32 s62, s62, 0x7fffff")
        a(f"s_add_u32 m0, s60, {q*1024}\ns_add_u32 s51, s62, {q*8192}")
        a(f"buffer_load_dwordx4 v{DV + (q & 1)}, s[76:79], s51 offen nt lds", tag=tag)
        if q == 7: a("s_add_u32 s62, s62, 0x200000\ns_xor_b32 s60, s60, 0x10000")
    def b_setup(self):
        a = self.a; c = self.c; mim = c['mimicB']
        ACC = 128; SA = 160; TA = 168
        a("v_lshrrev_b32 v52, 4, v0")
        a("""v_and_b32 v50, 1, v0
        v_bfe_u32 v51, v0, 1, 1
        v_bfe_u32 v53, v0, 2, 2
        v_lshl_add_u32 v51, v51, 2, v53
        v_lshl_add_u32 v50, v51, 1, v50
        v_lshlrev_b32 v50, 7, v50
        v_lshl_add_u32 v50, v51, 4, v50
        v_lshl_add_u32 v50, v52, 14, v50
        s_and_b32 s52, s3, 3
        s_lshl_b32 s52, s52, 11
        v_add_u32 v50, s52, v50""")
        for ks in range(8): a(f"v_xor_b32 v{SA+ks}, {16*ks}, v50")
        a("""v_bfe_u32 v50, v0, 3, 1
        v_lshlrev_b32 v50, 2, v50
        v_lshrrev_b32 v51, 5, v0
        v_lshl_add_u32 v50, v51, 1, v50
        v_bfe_u32 v51, v0, 4, 1
        v_lshlrev_b32 v51, 1, v51
        v_bfe_u32 v53, v0, 1, 1
        v_add_u32 v51, v51, v53
        v_and_b32 v53, 1, v0
        v_lshlrev_b32 v53, 3, v53
        v_bfe_u32 v54, v0, 2, 1
        v_lshl_add_u32 v53, v54, 7, v53
        s_lshl_b32 s52, s3, 13
        v_add_u32 v53, s52, v53""")
        for hi in range(2):
            a(f"v_add_u32 v54, {hi}, v50\nv_xor_b32 v55, v54, v51\nv_lshl_add_u32 v55, v55, 4, v53\nv_lshl_add_u32 v55, v54, 8, v55")
            for cb in range(2): a(f"v_xor_b32 v{TA + 2*cb + hi}, {64*cb}, v55")
        a(f"""s_lshr_b32 s52, s3, 2
        s_lshl_b32 s52, s52, 4
        v_and_b32 v49, 15, v0
        v_add_u32 v50, s52, v49
        v_mul_u32_u24 v2, 144, v50
        v_lshl_add_u32 v2, v52, 3, v2
        s_and_b32 s54, s3, 3
        s_lshl_b32 s55, s54, 5
        s_add_u32 s55, s55, {PL}
        v_add_u32 v2, s55, v2
        v_and_b32 v51, 31, v0
        v_mul_u32_u24 v3, 144, v51
        v_lshrrev_b32 v53, 5, v0
        v_lshl_add_u32 v3, v53, 4, v3
        v_add_u32 v3, {PL}, v3
        v_lshlrev_b32 v5, 2, v50
        v_add_u32 v5, {ML}, v5
        s_lshl_b32 s55, s54, 7
        v_add_u32 v4, s55, v5
        v_lshlrev_b32 v6, 2, v51
        v_add_u32 v6, {ML}, v6
        v_mov_b32 v7, {NEGINF}
        v_mov_b32 v8, {NEGINF}
        v_mov_b32 v9, 0
        v_lshlrev_b32 v28, 7, v0
        v_add_u32 v28, {FQ}, v28
        s_mov_b32 s58, {LOG2E if mim else SCL2E}""")
        for r in range(32): a(f"v_mov_b32 v{ACC+r}, 0")
        a(f"s_lshl_b32 s65, s63, 15\ns_lshl_b32 s54, s3, 12\ns_add_u32 s65, s65, s54\ns_add_u32 s65, s65, {QABS}\nv_lshlrev_b32 v29, 4, v0")
        a(f"s_add_u32 s54, s54, {PL}\nv_add_u32 v30, s54, v29\ns_lshr_b32 s54, s3, 2\ns_lshl_b32 s54, s54, 14\ns_add_u32 s54, s54, {PL}\nv_add_u32 v31, s54, v29")
    def role_B(self):
        a = self.a; c = self.c; mim = c['mimicB']
        QR = 64; ACC = 128; SA = 160; TA = 168; DV = 240; STG = 176
        def dma():
            for q in range(8): self.dma1(q, DV, 'd')
        a("s_mov_b32 s61, 0")
        Lloop = a.newlabel("L_btile")
        a(f"{Lloop}:")
        self.b_tile_wait()
        a("s_barrier")
        if c.get('fine') == 'b': self.stamp(1)
        for r in range(4): a(f"v_mov_b32 v{32+r}, 0")
        for ks in range(8): a(f"ds_read_b128 v[{STG+4*ks}:{STG+4*ks+3}], v{SA+ks}", tag=('s', ks))
        for ks in range(16):
            a.wait_lg(('s', ks))
            s = STG + 4 * (ks % 8)
            a(f"v_mfma_f32_16x16x32_bf16 v[32:35], v[{s}:{s+3}], v[{QR+4*ks}:{QR+4*ks+3}], v[32:35]")
            if ks + 8 < 16: a(f"ds_read_b128 v[{s}:{s+3}], v{SA+ks} offset:8192", tag=('s', ks + 8))
        for ks in range(8): a(f"v_xor_b32 v{SA+ks}, 0x10000, v{SA+ks}")
        if mim:
            a("v_cvt_pk_bf16_f32 v36, v32, v33\nv_cvt_pk_bf16_f32 v38, v34, v35")
            a("v_and_b32 v37, 0xffff0000, v36\nv_lshlrev_b32 v36, 16, v36\nv_and_b32 v39, 0xffff0000, v38\nv_lshlrev_b32 v38, 16, v38")
            for r in (36, 37, 38, 39): a(f"v_mul_f32 v{r}, {SCALE}, v{r}")
            a("v_cvt_pk_bf16_f32 v36, v36, v37\nv_cvt_pk_bf16_f32 v38, v38, v39")
            a("v_lshlrev_b32 v32, 16, v36\nv_and_b32 v33, 0xffff0000, v36\nv_lshlrev_b32 v34, 16, v38\nv_and_b32 v35, 0xffff0000, v38")
        a("v_max3_f32 v36, v32, v33, v34\nv_max_f32 v36, v36, v35")
        self.redrows(36, 37, "v_max_f32")
        if c.get('fine') == 'b': self.stamp(3)
        a("ds_write_b32 v4, v36")
        a.wait_lg(); a("s_barrier")
        if c.get('fine') == 'b': self.stamp(4)
        a("ds_read2_b32 v[36:37], v5 offset1:32\nds_read2_b32 v[38:39], v5 offset0:64 offset1:96\nds_read2_b32 v[40:41], v6 offset1:32\nds_read2_b32 v[42:43], v6 offset0:64 offset1:96")
        a.wait_lg()
        a("v_max3_f32 v36, v36, v37, v7\nv_max3_f32 v40, v40, v41, v8\nv_max3_f32 v36, v36, v38, v39\nv_max3_f32 v38, v40, v42, v43")
        a("v_sub_f32 v40, v7, v36\nv_sub_f32 v41, v8, v38\nv_mul_f32 v37, s58, v36\nv_mul_f32 v40, s58, v40\nv_mul_f32 v42, s58, v41")
        for r in range(4): a(f"v_fma_f32 v{32+r}, v{32+r}, s58, -v37")
        a("v_exp_f32 v40, v40\nv_exp_f32 v42, v42")
        for r in range(4): a(f"v_exp_f32 v{32+r}, v{32+r}")
        a("v_mov_b32 v7, v36\nv_mov_b32 v8, v38\nv_cvt_pk_bf16_f32 v44, v32, v33\nv_cvt_pk_bf16_f32 v45, v34, v35")
        a("ds_write_b64 v2, v[44:45]")
        a("v_fma_f32 v9, v9, v40, v32\nv_add_f32 v33, v33, v34\nv_add_f32 v9, v9, v35\nv_add_f32 v9, v9, v33\nv_mov_b32 v43, v42")
        for r in range(0, 32, 2): a(f"v_pk_mul_f32 v[{ACC+r}:{ACC+r+1}], v[{ACC+r}:{ACC+r+1}], v[42:43]")
        a.wait_lg(); a("s_barrier")
        if c.get('fine') == 'b': self.stamp(6)
        for s in range(4): a(f"ds_read_b128 v[{32+4*s}:{35+4*s}], v3 offset:{32*s}", tag='p')
        seq = [(s, cb) for s in range(4) for cb in range(2)]
        def trd(i):
            s, cb = seq[i]
            for hi in range(2):
                a(f"ds_read_b64_tr_b16 v[{STG+4*i+2*hi}:{STG+4*i+2*hi+1}], v{TA+2*cb+hi} offset:{2048*s}", tag=('t', i))
        for i in range(5): trd(i)
        for i in range(8):
            s, cb = seq[i]
            a.wait_lg(('t', i))
            a(f"v_mfma_f32_32x32x16_bf16 v[{ACC+16*cb}:{ACC+16*cb+15}], v[{STG+4*i}:{STG+4*i+3}], v[{32+4*s}:{35+4*s}], v[{ACC+16*cb}:{ACC+16*cb+15}]")
            if i + 5 < 8: trd(i + 5)
        for k in range(4): a(f"v_xor_b32 v{TA+k}, 0x10000, v{TA+k}")
        self.b_refill()
        a(f"s_add_u32 s61, s61, 1\ns_cmp_lg_u32 s61, 4\ns_cbranch_scc1 {Lloop}")
        a.vm = []
        self.stamp(5)
        self.redrows(9, 37, "v_add_f32")
        a("ds_write_b32 v4, v9 offset:512")
        a.wait_lg(); a("s_barrier")
        a("ds_read2_b32 v[36:37], v6 offset0:128 offset1:160\nds_read2_b32 v[38:39], v6 offset0:192 offset1:224")
        a("""v_and_b32 v48, 31, v0
        v_mul_u32_u24 v48, 144, v48
        v_lshrrev_b32 v49, 5, v0
        v_lshl_add_u32 v48, v49, 3, v48
        s_lshl_b32 s54, s3, 13
        v_add_u32 v48, s54, v48
        v_lshrrev_b32 v49, 3, v0
        v_mul_u32_u24 v50, 144, v49
        v_and_b32 v51, 7, v0
        v_lshl_add_u32 v50, v51, 4, v50
        v_add_u32 v50, s54, v50
        v_lshlrev_b32 v52, 10, v49
        v_lshl_add_u32 v52, v51, 4, v52""")
        a(f"s_mul_i32 s52, s2, {c.get('pbs', 32768)}\ns_lshl_b32 s54, s3, 7\ns_add_u32 s52, s52, s54\ns_add_u32 s52, s52, {PB}")
        a.wait_lg()
        a("v_add_f32 v36, v36, v37\nv_add_f32 v38, v38, v39\nv_add_f32 v36, v36, v38\nv_rcp_f32 v38, v36\nv_log_f32 v40, v36\nv_mov_b32 v39, v38\nv_fma_f32 v40, v8, s58, v40")
        for cb in range(2):
            for rq in range(4):
                r = ACC + 16 * cb + 4 * rq
                a(f"v_pk_mul_f32 v[{r}:{r+1}], v[{r}:{r+1}], v[38:39]\nv_pk_mul_f32 v[{r+2}:{r+3}], v[{r+2}:{r+3}], v[38:39]")
                a(f"v_cvt_pk_bf16_f32 v{r}, v{r}, v{r+1}\nv_cvt_pk_bf16_f32 v{r+1}, v{r+2}, v{r+3}")
                a(f"ds_write_b64 v48, v[{r}:{r+1}] offset:{64*cb + 16*rq}")
        a.wait_lg()
        for n in range(4): a(f"ds_read_b128 v[{STG+4*n}:{STG+4*n+3}], v50 offset:{n*8*144}", tag=('r', n))
        for n in range(4):
            a.wait_lg(('r', n))
            a(f"buffer_store_dwordx4 v[{STG+4*n}:{STG+4*n+3}], v52, s[36:39], s52 offen sc1\ns_add_u32 s52, s52, 8192")
        Ls = a.newlabel("L_nopbs")
        a(f"s_cmp_lg_u32 s3, 0\ns_cbranch_scc1 {Ls}")
        a(f"s_lshl_b32 s52, s2, 7\ns_add_u32 s52, s52, {PBS}\nv_lshlrev_b32 v48, 2, v0\ns_mov_b32 exec_hi, 0")
        a(f"buffer_store_dword v40, v48, s[36:39], s52 offen sc1\ns_mov_b64 exec, -1\n{Ls}:")
        self.stamp(8)
        a("s_waitcnt vmcnt(0)\ns_barrier"); a.vm = []
        self.stamp(9)
        Ls = a.newlabel("L_nofb")
        a(f"s_cmp_lg_u32 s3, 0\ns_cbranch_scc1 {Ls}")
        a(f"s_lshl_b32 s52, s2, 7\ns_add_u32 s52, s52, {FB}\nv_mov_b32 v48, s35\nv_mov_b32 v49, 0\ns_mov_b64 exec, 1")
        a(f"buffer_store_dword v48, v49, s[36:39], s52 offen sc1\ns_mov_b64 exec, -1\n{Ls}:")
        a.vm = []
    def b_tile_wait(self):
        a = self.a
        L1 = a.newlabel("L_bw"); L2 = a.newlabel("L_bw")
        a(f"s_cmp_eq_u32 s61, 3\ns_cbranch_scc1 {L1}\ns_cmp_lt_u32 s61, 2\ns_cbranch_scc1 {L2}\ns_waitcnt vmcnt(8)\ns_branch {L2}\n{L1}:\ns_waitcnt vmcnt(0)\n{L2}:")
    def b_refill(self):
        a = self.a; Ln = a.newlabel("L_norefill")
        a(f"s_cmp_ge_u32 s61, 2\ns_cbranch_scc1 {Ln}")
        for q in range(8): self.dma1(q, 240, 'd')
        a(f"{Ln}:")
    def tb1_addr(self, vr=10):
        a = self.a
        self.srd(44, "s22", "s23", 512 * 8192)
        a(f"""s_and_b32 s52, s2, 1
        s_lshl_b32 s52, s52, 3
        s_add_u32 s52, s52, s3
        s_lshl_b32 s52, s52, 18
        s_lshr_b32 s54, s2, 1
        s_lshl_b32 s54, s54, 8
        s_add_u32 s52, s52, s54
        v_lshrrev_b32 v48, 4, v0
        v_lshlrev_b32 v{vr}, 16, v48
        v_and_b32 v49, 15, v0
        v_lshl_add_u32 v{vr}, v49, 4, v{vr}
        v_add_u32 v{vr}, s52, v{vr}""")
    def tb1_loads(self, UV, vr=10):
        for t in range(8):
            self.a(f"s_mov_b32 s51, {t*8192}\nbuffer_load_dwordx4 v[{UV+4*t}:{UV+4*t+3}], v{vr}, s[44:47], s51 offen nt", tag=('uv', t))
    def tb1(self, standalone=False):
        a = self.a; UV = 208
        if standalone: self.tb1_addr(); self.tb1_loads(UV)
        self.sels()
        a(f"v_lshlrev_b32 v28, 7, v0\nv_add_u32 v28, {FB}, v28")
        a(f"""v_bfe_u32 v49, v0, 3, 1
        v_and_b32 v50, 7, v0
        v_lshlrev_b32 v50, 2, v50
        v_lshl_add_u32 v50, v49, 5, v50
        v_lshlrev_b32 v112, 7, v50
        v_mul_u32_u24 v31, {self.c.get('pbs', 32768)}, v50
        v_lshrrev_b32 v48, 4, v0
        v_lshl_add_u32 v31, v48, 4, v31
        s_lshr_b32 s54, s2, 1
        s_lshl_b32 s55, s54, 2
        s_add_u32 s55, s55, {PBS}
        s_lshl_b32 s56, s54, 10
        s_and_b32 s57, s2, 1
        s_lshl_b32 s57, s57, 3
        s_add_u32 s57, s57, s3
        s_lshl_b32 s57, s57, 6
        s_add_u32 s56, s56, s57
        s_add_u32 s56, s56, {PB}""")
        for r in range(32, 36): a(f"v_mov_b32 v{r}, 0")
        self.acc_addr(30, 48)
        self.poll_flags(28, 4, 1)
        self.stamp(10)
        for n in range(4): a(f"buffer_load_dword v{36+n}, v112, s[36:39], s55 offen offset:{128*n} sc1", tag='st')
        for n in range(4): a(f"buffer_load_dwordx4 v[{64+4*n}:{67+4*n}], v31, s[36:39], s56 offen sc1\ns_add_u32 s56, s56, {self.c.get('pbs', 32768)}", tag=('pb', n))
        if self.c.get('hjoin') and not standalone: self.ticket(0); self.ticket(1)
        a.wait_vm('st')
        if self.c.get('fine') == 'tb1': self.stamp(1)
        a("v_max3_f32 v40, v36, v37, v38\nv_max_f32 v40, v40, v39")
        self.red8([40], "v_max_f32")
        for n in range(4): a(f"v_sub_f32 v{36+n}, v{36+n}, v40")
        for n in range(4): a(f"v_exp_f32 v{36+n}, v{36+n}")
        a("v_add_f32 v40, v36, v37\nv_add_f32 v41, v38, v39\nv_add_f32 v40, v40, v41")
        self.red8([40], "v_add_f32")
        a("v_rcp_f32 v40, v40")
        for n in range(4): a(f"v_mul_f32 v{36+n}, v{36+n}, v40")
        for n in range(4):
            a.wait_vm(('pb', n))
            for k in range(4):
                a(f"v_lshlrev_b32 v40, 16, v{64+4*n+k}\nv_and_b32 v41, 0xffff0000, v{64+4*n+k}")
                if n == 0: a(f"v_mul_f32 v{104+2*k}, v36, v40\nv_mul_f32 v{105+2*k}, v36, v41")
                else: a(f"v_fmac_f32 v{104+2*k}, v{36+n}, v40\nv_fmac_f32 v{105+2*k}, v{36+n}, v41")
        if self.c.get('fine') == 'tb1': self.stamp(2)
        self.red8(list(range(104, 112)), "v_add_f32")
        for k in range(4): a(f"v_cvt_pk_bf16_f32 v{114+k}, v{104+2*k}, v{105+2*k}")
        for k in range(4):
            self.bop(40, 114 + k, 2); self.bop(44, 114 + k, 6)
            a(f"v_mfma_f32_16x16x32_bf16 v[32:35], v[{UV+8*k}:{UV+8*k+3}], v[40:43], v[32:35]")
            a(f"v_mfma_f32_16x16x32_bf16 v[32:35], v[{UV+8*k+4}:{UV+8*k+7}], v[44:47], v[32:35]")
        a("v_lshlrev_b32 v48, 4, v0\ns_lshl_b32 s52, s3, 10\nv_add_u32 v48, s52, v48")
        a(f"""s_lshr_b32 s52, s3, 1
        s_lshl_b32 s52, s52, 5
        s_lshr_b32 s54, s2, 1
        s_add_u32 s52, s52, s54
        s_add_u32 s52, s52, 64
        s_lshl_b32 s52, s52, 3
        s_and_b32 s55, s2, 1
        s_add_u32 s52, s52, s55
        s_mul_i32 s52, s52, 1152
        s_add_u32 s52, s52, {REC}
        s_and_b32 s54, s3, 1
        s_lshl_b32 s55, s54, 9
        v_lshlrev_b32 v50, 3, v0
        v_add_u32 v50, s55, v50
        v_mov_b32 v59, s35
        v_mov_b32 v57, s35
        v_mov_b32 v56, 0""")
        a("ds_write_b128 v48, v[32:35]")
        a.wait_vm(); a.wait_lg(); a("s_barrier")
        if self.c.get('fine') == 'tb1': self.stamp(3)
        Ls = a.newlabel("L_nostat")
        a(f"s_cmp_ge_u32 s3, 4\ns_cbranch_scc1 {Ls}")
        for w in range(8): a(f"ds_read_b32 v{40+w}, v30 offset:{1024*w}")
        a.wait_lg()
        a("v_add_f32 v40, v40, v41\nv_add_f32 v42, v42, v43\nv_add_f32 v44, v44, v45\nv_add_f32 v46, v46, v47\nv_add_f32 v40, v40, v42\nv_add_f32 v44, v44, v46\nv_add_f32 v58, v40, v44")
        a("buffer_store_dwordx2 v[58:59], v50, s[36:39], s52 offen sc1")
        a(f"s_cmp_lg_u32 s54, 0\ns_cbranch_scc1 {Ls}\ns_mov_b64 exec, 1")
        a("buffer_store_dwordx2 v[56:57], v50, s[36:39], s52 offen offset:1024 sc1")
        a(f"s_mov_b64 exec, -1\n{Ls}:")
        a.vm = []
        if self.c.get('fine') != 'b': self.stamp(6)
    def role_F(self):
        a = self.a; c = self.c
        Lx = a.newlabel("L_nof")
        a(f"""s_lshl_b32 s48, s3, 6
        s_add_u32 s48, s48, s2
        s_cmp_ge_u32 s48, 72
        s_cbranch_scc1 {Lx}
        s_cmp_ge_u32 s48, 36
        s_cselect_b32 s49, 1, 0
        s_mul_i32 s52, s49, 36
        s_sub_u32 s50, s48, s52""")
        a("s_mul_i32 s52, s49, 1152\ns_add_u32 s54, s4, s52\ns_addc_u32 s55, s5, 0")
        self.srd(40, "s54", "s55", 1152); self.srd(44, "s26", "s27", 1152)
        a("v_lshlrev_b32 v1, 2, v0")
        for k in range(5):
            a(f"buffer_load_dword v{10+k}, v1, s[40:43], 0 offen offset:{256*k}\nbuffer_load_dword v{16+k}, v1, s[44:47], 0 offen offset:{256*k}")
        a(f"""v_lshrrev_b32 v24, 3, v0
        v_mul_u32_u24 v31, 9216, v24
        v_and_b32 v24, 7, v0
        v_lshl_add_u32 v31, v24, 4, v31
        s_mul_i32 s52, s49, 4608
        s_lshl_b32 s54, s50, 7
        s_add_u32 s52, s52, s54
        s_add_u32 s52, s52, {PO}
        v_add_u32 v31, s52, v31
        v_mov_b32 v22, 0""")
        for n in range(8): a(f"s_mov_b32 s{64+n}, {n*73728}")
        a.wait_vm()
        for k in range(5):
            a(f"""v_lshlrev_b32 v24, 16, v{10+k}
            v_and_b32 v25, 0xffff0000, v{10+k}
            v_lshlrev_b32 v26, 16, v{16+k}
            v_and_b32 v27, 0xffff0000, v{16+k}
            v_mul_f32 v24, v24, v26
            v_mul_f32 v25, v25, v27
            v_cvt_pk_bf16_f32 v24, v24, v25
            v_lshlrev_b32 v25, 16, v24
            v_and_b32 v24, 0xffff0000, v24
            v_add_f32 v22, v22, v25
            v_add_f32 v22, v22, v24""")
        self.red8([22], "v_add_f32")
        a("v_add_f32_dpp v22, v22, v22 row_ror:8 row_mask:0xf bank_mask:0xf")
        self.redrows(22, 24, "v_add_f32")
        a(f"""v_cvt_pk_bf16_f32 v22, v22, v22
        v_and_b32 v22, 0xffff0000, v22
        v_mul_f32 v22, {LOG2E}, v22
        v_exp_f32 v22, -v22
        v_add_f32 v22, 1.0, v22
        v_rcp_f32 v22, v22
        v_cvt_pk_bf16_f32 v22, v22, v22
        v_and_b32 v22, 0xffff0000, v22
        v_sub_f32 v23, 1.0, v22
        v_cvt_pk_bf16_f32 v23, v23, v23
        v_and_b32 v23, 0xffff0000, v23""")
        self.srd(40, "s28", "s29", 2304)
        a("""v_and_b32 v21, 7, v0
        v_lshlrev_b32 v21, 2, v21
        v_bfe_u32 v24, v0, 4, 1
        v_lshl_add_u32 v21, v24, 1, v21
        s_mul_i32 s56, s49, 1152
        s_lshl_b32 s54, s50, 5
        s_add_u32 s56, s56, s54""")
        def g0(): a("buffer_load_dwordx4 v[64:67], v31, s[36:39], 0 offen sc1", tag='pg')
        self.poll_granules(g0, [65, 67], 48, 7, sleep=c['fsleep'])
        def gissue():
            for n in range(8): a(f"buffer_load_dwordx4 v[{64+4*n}:{67+4*n}], v31, s[36:39], s{64+n} offen sc1", tag='pg')
        self.poll_granules(gissue, [65 + 2 * k for k in range(16)], 48, 8)
        for k in range(2):
            a(f"v_add_f32 v{64+2*k}, v{64+2*k}, v{68+2*k}\nv_add_f32 v{72+2*k}, v{72+2*k}, v{76+2*k}")
            a(f"v_add_f32 v{80+2*k}, v{80+2*k}, v{84+2*k}\nv_add_f32 v{88+2*k}, v{88+2*k}, v{92+2*k}")
        for k in range(2): a(f"v_add_f32 v{64+2*k}, v{64+2*k}, v{72+2*k}\nv_add_f32 v{80+2*k}, v{80+2*k}, v{88+2*k}")
        a("""v_permlane32_swap_b32 v64, v80
        v_permlane32_swap_b32 v66, v82
        v_add_f32 v64, v64, v80
        v_add_f32 v66, v66, v82
        v_permlane16_swap_b32 v64, v66
        v_add_f32 v64, v64, v66
        v_add_f32_dpp v42, v64, v64 row_ror:8 row_mask:0xf bank_mask:0xf
        v_cvt_pk_bf16_f32 v42, v42, v42
        v_and_b32 v42, 0xffff0000, v42
        v_mov_b32 v43, v42
        v_permlane32_swap_b32 v42, v43
        v_mul_f32 v42, v22, v42
        v_mul_f32 v43, v23, v43
        v_cvt_pk_bf16_f32 v42, v42, v43
        v_lshlrev_b32 v43, 16, v42
        v_and_b32 v42, 0xffff0000, v42
        v_add_f32 v42, v42, v43
        v_cvt_pk_bf16_f32 v42, v42, v42
        s_mov_b32 exec_lo, 0x00ff00ff
        s_mov_b32 exec_hi, 0
        buffer_store_short v42, v21, s[40:43], s56 offen""")
        Ls = a.newlabel("L_noep")
        a(f"s_cmp_lg_u32 s48, 0\ns_cbranch_scc1 {Ls}\ns_mov_b64 exec, 1\nv_mov_b32 v44, s35\nv_mov_b32 v45, 0")
        a(f"buffer_store_dword v44, v45, s[36:39], 0 offen\n{Ls}:\ns_mov_b64 exec, -1")
        self.stamp(7)
        if c.get('padto'):
            Lq = a.newlabel("L_pad")
            a(f"s_cmp_lg_u32 s48, 0\ns_cbranch_scc1 {Lx}\ns_memrealtime s[78:79]\ns_waitcnt lgkmcnt(0)\ns_sub_u32 s52, s78, s80\nv_mov_b32 v62, s52\nv_mov_b32 v63, 0\nglobal_store_dword v63, v62, s[30:31] offset:4")
            a(f"{Lq}:\ns_memrealtime s[78:79]\ns_waitcnt lgkmcnt(0)\ns_sub_u32 s52, s78, s80\ns_cmp_lt_u32 s52, {c['padto']*100}\ns_cbranch_scc1 {Lq}")
        a(f"{Lx}:")
    def build(self):
        a = self.a; LDS = 163840
        hdr = open("gated_mix__gqa_block_cached__compressed_kv_cla__decode.s.ref").read().split("; Override launch")[0]
        a.raw(hdr.rstrip())
        def reset(): a.vm = []; a.lg = []; a.hist = []
        if self.c['staged']:
            names = ["s1_kernel", "s2_kernel", "ab_kernel", "tb1_kernel", "t_kernel", "f_kernel"]
            for n in names: a.raw(f"; @launch kernel={n} grid=(256,1,1) block=(512,1,1) lds={LDS}")
            a.raw('.amdgcn_target "amdgcn-amd-amdhsa--gfx950"\n.text')
            self.prologue("s1_kernel"); self.only(64, 192); self.role_A(False, 'only_s1'); self.finish()
            self.prologue("s2_kernel"); self.only(192, 256); self.role_A(False, 'only_s2'); self.finish()
            self.prologue("ab_kernel")
            LA = a.newlabel("L_roleA"); LE = a.newlabel("L_fin")
            a(f"s_cmp_ge_u32 s2, 64\ns_cbranch_scc1 {LA}")
            self.h_stream(False); self.role_B(); a(f"s_branch {LE}\n{LA}:"); reset()
            self.role_A(False, False); a(f"{LE}:"); self.finish()
            self.prologue("tb1_kernel"); self.only(0, 64); self.get_tag(); self.tb1(True); self.finish()
            self.prologue("t_kernel"); self.only(64, 256); self.get_tag(); self.t_main(True); self.finish()
            self.prologue("f_kernel"); self.only(0, 64); self.get_tag(); self.role_F(); self.finish()
        else:
            names = [KN]
            a.raw(f"; @launch grid=(256,1,1) block=(512,1,1) lds={LDS}")
            a.raw('.amdgcn_target "amdgcn-amd-amdhsa--gfx950"\n.text')
            self.prologue(KN)
            LA, LE = (a.newlabel(x) for x in ("L_roleA", "L_fin"))
            a(f"s_cmp_ge_u32 s2, 64\ns_cbranch_scc1 {LA}")
            self.h_stream(True); self.role_B(); self.tb1(); self.role_F(); a(f"s_branch {LE}")
            a(f"{LA}:"); reset()
            self.role_A(); self.t_main()
            a(f"{LE}:"); self.finish()
            a.raw(f"L_codeend:\n.fill ({8*1024*self.c['pfKB']} - (L_codeend - {KN})) / 4, 4, 0xbf810000")
        a.raw('.section .rodata,"a"')
        for n in names:
            a.raw(".p2align 6"); self.kd(n)
        return a.text()

def gen(**kw): return G(**kw).build()
if __name__ == "__main__":
    cfg = json.loads(sys.argv[2]) if len(sys.argv) > 2 else {}
    open(sys.argv[1], "w").write(gen(**cfg))
```

```python
import sys, json
sys.path.insert(0, "dev")
from asmlib import Asm
import gen as G1
import gen2 as G2
from gen import KN, EPOCH, Q, QABS, FQ, FB, PBS, FE, REC, PO, PB, STAMP, WS_USED, LOG2E, SCALE, SCL2E, NEGINF
CNT = FE
DEF = dict(staged=False, mimicA=True, mimicB=True, W=4, W2=4, iW2=50, R=40, NS=36, IQ=22, ICHK=26, burst=1, WH=4, iq2=12, W0=2, n0=8,
           stamps=False, spin=40000, rotb=2, fsleep=4, pfA=0, pfH=0, pfKB=4, hjoin=False, subrot=3, nsub=4, twlate=1, UT=1, pbs=32768, touch=0, touchA=32, s2flagstamp=False)
PL = G2.PL; ML = G2.ML
EB = 65536
RING = 88; SREG = 64; ZERO = 85; TK = 86
FK = [88, 104]; FV = [96, 112]; TW = [120 + 4 * k for k in range(6)]
R2 = [12, 16, 20, 24, 172, 244, 248, 252]; UV = 208

class G(G2.G):
    def __init__(self, **kw):
        self.c = dict(DEF); self.c.update(kw)
        self.a = Asm()
        self.NF = (2048 - 48 * self.c['NS']) // self.c['nsub'] // self.c['UT']
        self.USH = 10 + self.c['UT'] - 1
        self.TSH = self.USH + self.c['nsub'].bit_length() - 1
    def kv_setup(self):
        a = self.a; NS = self.c['NS']
        a("""s_lshl_b32 s52, s49, 21
        s_add_u32 s54, s6, s52
        s_addc_u32 s55, s7, 0""")
        self.srd(40, "s54", "s55", 0x200000)
        a("s_add_u32 s54, s8, s52\ns_addc_u32 s55, s9, 0")
        self.srd(44, "s54", "s55", 0x200000)
        a(f"""s_mul_i32 s52, s50, {self.c['subrot']}
        s_add_u32 s52, s52, s3
        s_and_b32 s61, s52, {self.c['nsub'] - 1}
        s_lshl_b32 s61, s61, {self.USH}
        s_lshl_b32 s52, s49, 16
        s_add_u32 s61, s61, s52
        s_add_u32 s61, s61, {NS*48*1024}
        v_lshlrev_b32 v1, 4, v0""")
    def q_setup(self):
        self.a(f"""s_lshl_b32 s52, s49, 10
        s_add_u32 s52, s52, {Q}
        v_and_b32 v29, 15, v0
        v_lshlrev_b32 v29, 4, v29
        v_add_u32 v29, s52, v29
        s_mul_i32 s52, s50, {self.c['subrot']}
        s_add_u32 s52, s52, s3
        s_and_b32 s52, s52, {self.c['nsub'] - 1}
        s_lshl_b32 s62, s49, 3
        s_add_u32 s62, s62, s52
        s_lshl_b32 s62, s62, 7
        s_add_u32 s62, s62, {CNT}
        s_mov_b32 s58, {LOG2E}
        v_mov_b32 v{ZERO}, 0""")
    def qissue(self):
        for h in range(2):
            for k in range(2):
                self.a(f"buffer_load_dwordx4 v[{10+8*h+4*k}:{13+8*h+4*k}], v29, s[36:39], 0 offen offset:{512*h+256*k} sc1", tag='pg')
    def ticket(self, k):
        self.a(f"v_mov_b32 v{TK+k}, 1\ns_mov_b64 exec, 1\nbuffer_atomic_add v{TK+k}, v{ZERO}, s[36:39], s62 offen sc0\ns_mov_b64 exec, -1", tag=('tk', k))
    def unit_first(self, k):
        a = self.a
        a.wait_vm(('tk', k))
        a(f"""v_readfirstlane_b32 s52, v{TK+k}
        s_cmp_lt_u32 s52, {self.NF}
        s_cselect_b32 s{76+k}, 0, {NEGINF}
        s_cselect_b32 s54, 0, 0x40000000
        s_lshl_b32 s52, s52, {self.TSH}
        s_add_u32 s51, s61, s52
        s_and_b32 s51, s51, 0x1fffff
        s_or_b32 s51, s51, s54""")
        self.unit_loads(FK[k], "s[40:43]", ('fk', k)); self.unit_loads(FV[k], "s[44:47]", ('fv', k))
        self.ticket(k)
    def unit_loads(self, r, srd, tag=None):
        for t in range(self.c['UT']):
            self.a(f"buffer_load_dwordx4 v[{r+4*t}:{r+4*t+3}], v1, {srd}, s51 offen offset:{1024*t} nt", tag=tag)
    def unit_compute(self, k, refill):
        a = self.a; UT = self.c['UT']
        for kk in range(4):
            for t in range(UT):
                for h in range(2):
                    a(f"v_dot2_f32_bf16 v{36+2*t+h}, v{FK[k]+4*t+kk}, v{10+8*h+2*kk}, {'0' if kk == 0 else f'v{36+2*t+h}'}")
        if refill: self.unit_loads(FK[k], "s[40:43]")
        for t in range(UT): a(f"v_add_f32_dpp v{44+t}, v{36+2*t}, v{36+2*t} row_ror:8 row_mask:0xf bank_mask:0x3")
        for t in range(UT): a(f"v_add_f32_dpp v{44+t}, v{37+2*t}, v{37+2*t} row_ror:8 row_mask:0xf bank_mask:0xc")
        for m in ("row_half_mirror", "quad_perm:[1,0,3,2]", "quad_perm:[2,3,0,1]"):
            for t in range(UT): a(f"v_add_f32_dpp v{44+t}, v{44+t}, v{44+t} {m} row_mask:0xf bank_mask:0xf")
        u1 = 44 + UT - 1
        a(f"v_cvt_pk_bf16_f32 v48, v44, v{u1}\nv_and_b32 v49, 0xffff0000, v48\nv_lshlrev_b32 v48, 16, v48")
        a(f"v_mul_f32 v49, {SCALE}, v49\nv_mul_f32 v48, {SCALE}, v48\nv_cvt_pk_bf16_f32 v48, v48, v49")
        a(f"v_lshlrev_b32 v44, 16, v48\nv_and_b32 v45, 0xffff0000, v48\nv_add_f32 v44, s{76+k}, v44\nv_add_f32 v45, s{76+k}, v45")
        Ls = a.newlabel("L_nomax")
        a(f"v_fma_f32 v60, v44, s58, -v26\nv_fma_f32 v61, v45, s58, -v26\nv_max_f32 v46, v60, v61\nv_cmp_lt_f32 vcc, 0x41800000, v46\ns_cbranch_vccz {Ls}")
        a("v_max_f32 v46, v44, v45\nv_mul_f32 v46, s58, v46")
        self.redrows(46, 48, "v_max_f32")
        a("v_max_f32 v46, v46, v26\nv_sub_f32 v47, v26, v46\nv_exp_f32 v47, v47\nv_mov_b32 v26, v46\nv_fma_f32 v60, v44, s58, -v46\nv_fma_f32 v61, v45, s58, -v46\nv_mul_f32 v27, v27, v47")
        for r in range(32, 36): a(f"v_mul_f32 v{r}, v{r}, v47")
        a(f"{Ls}:\nv_exp_f32 v60, v60\nv_exp_f32 v61, v61\nv_add_f32 v27, v27, v60\nv_cvt_pk_bf16_f32 v62, v60, v61")
        if UT == 2: a("v_add_f32 v27, v27, v61")
        self.bop(52, 62, 2)
        if UT == 2: self.bop(56, 62, 6)
        for t in range(UT): a(f"v_mfma_f32_16x16x32_bf16 v[32:35], v[{FV[k]+4*t}:{FV[k]+4*t+3}], v[{52+4*t}:{55+4*t}], v[32:35]")
        if refill:
            a(f"s_mov_b32 s{76+k}, 0"); self.unit_loads(FV[k], "s[44:47]")
            self.ticket(k)
    def pool_loop(self, with_t):
        a = self.a
        Ll = a.newlabel("L_pool"); Ld = [a.newlabel("L_drain") for _ in range(2)]; Le = a.newlabel("L_poolend")
        a(f"{Ll}:")
        for k in range(2):
            a(f"""s_waitcnt vmcnt({2 * self.c['UT'] + 1})
            v_readfirstlane_b32 s52, v{TK+k}
            s_cmp_lt_u32 s52, {self.NF}
            s_cbranch_scc0 {Ld[k]}
            s_lshl_b32 s52, s52, {self.TSH}
            s_add_u32 s51, s61, s52
            s_and_b32 s51, s51, 0x1fffff""")
            if k == 0 and self.c['touch'] and not self.c['staged']:
                L = a.newlabel("L_nt")
                a(f"s_cmp_eq_u32 s59, 1\ns_cbranch_scc1 {L}\ns_cmp_ge_u32 s48, {self.c['touchA']}\ns_cbranch_scc1 {L}")
                for j in range(self.c['pfKB']): a(f"global_load_dword v83, v84, s[78:79] offset:{j*1024}")
                a(f"{L}:")
            self.unit_compute(k, True)
        a(f"s_branch {Ll}")
        for k in range(2):
            a(f"{Ld[k]}:"); a.hist = []
            Lw = a.newlabel("L_dw"); late = self.c['twlate']
            def tw():
                if not with_t: return
                Lh = a.newlabel("L_dh")
                a(f"s_cmp_eq_u32 s59, 1\ns_cbranch_scc1 {Lh}")
                for j in range(6): self.t_load(j, TW[j])
                a(f"{Lh}:")
            if late == 0: tw()
            self.unit_compute(k, False)
            if with_t and late == 0:
                Lh = a.newlabel("L_dh")
                a(f"s_cmp_eq_u32 s59, 1\ns_cbranch_scc1 {Lh}\ns_waitcnt vmcnt(7)\ns_branch {Lw}\n{Lh}:\ns_waitcnt vmcnt(1)\n{Lw}:")
            else: a("s_waitcnt vmcnt(1)")
            if late == 1: tw()
            self.unit_compute(1 - k, False)
            if k == 0: a(f"s_branch {Le}")
        a(f"{Le}:")
        a.vm = []
    def a_epilogue(self):
        a = self.a
        self.stamp(4)
        self.redrows(27, 48, "v_add_f32")
        a(f"s_lshl_b32 s52, s3, 10\ns_add_u32 s52, s52, {EB}\nv_add_u32 v48, s52, v1")
        a(f"v_bfe_u32 v49, v0, 3, 1\nv_lshlrev_b32 v49, 6, v49\ns_lshl_b32 s52, s3, 3\ns_add_u32 s52, s52, {EB + 8192}\nv_add_u32 v49, s52, v49")
        a("ds_write_b64 v49, v[26:27]\nds_write_b128 v48, v[32:35]")
        self.acc_addr(28, 52)
        a(f"""v_add_u32 v28, {EB}, v28
        s_lshr_b32 s52, s3, 1
        s_lshl_b32 s54, s49, 1
        s_add_u32 s52, s52, s54
        s_lshl_b32 s52, s52, 3
        s_add_u32 s52, s52, s50
        s_lshl_b32 s52, s52, 9
        s_add_u32 s52, s52, {REC}
        s_and_b32 s54, s3, 1
        s_lshl_b32 s55, s54, 8
        v_lshlrev_b32 v50, 2, v0
        v_add_u32 v50, s55, v50
        s_lshr_b32 s55, s3, 1
        s_lshl_b32 s55, s55, 6
        s_add_u32 s55, s55, {EB + 8192}
        v_mov_b32 v51, s55""")
        a.wait_lg(); a("s_barrier")
        self.stamp(8)
        Lu = a.newlabel("L_aup")
        a(f"s_cmp_ge_u32 s3, 4\ns_cbranch_scc1 {Lu}")
        for k in range(4): a(f"ds_read_b128 v[{10+4*k}:{13+4*k}], v51 offset:{16*k}")
        for w in range(8): a(f"ds_read_b32 v{36+w}, v28 offset:{1024*w}")
        a.wait_lg()
        a("v_max3_f32 v52, v10, v12, v14\nv_max3_f32 v53, v16, v18, v20\nv_max3_f32 v52, v52, v22, v24\nv_max_f32 v52, v52, v53")
        for w in range(8): a(f"v_sub_f32 v{10+2*w}, v{10+2*w}, v52")
        for w in range(8): a(f"v_exp_f32 v{10+2*w}, v{10+2*w}")
        a("v_mul_f32 v53, v10, v11\nv_mul_f32 v54, v10, v36")
        for w in range(1, 8): a(f"v_fmac_f32 v53, v{10+2*w}, v{11+2*w}\nv_fmac_f32 v54, v{10+2*w}, v{36+w}")
        a("v_max_f32 v55, 0x0da24260, v53\nv_log_f32 v58, v53\nv_rcp_f32 v55, v55\nv_mov_b32 v59, s35\nv_add_f32 v58, v58, v52\nv_mul_f32 v54, v54, v55")
        self.rec_store(54)
        a(f"s_mov_b64 exec, -1\n{Lu}:")
        self.stamp(5)
    def rec_store(self, r):
        a = self.a
        a(f"v_mov_b32_dpp v55, v{r} quad_perm:[1,0,3,2] row_mask:0xf bank_mask:0xf\nv_cvt_pk_bf16_f32 v56, v{r}, v55")
        a("v_mov_b32_dpp v57, v56 quad_perm:[2,3,0,1] row_mask:0xf bank_mask:0xf\ns_mov_b32 exec_lo, 0x11111111\ns_mov_b32 exec_hi, 0x11111111")
        a("buffer_store_dwordx4 v[56:59], v50, s[36:39], s52 offen sc1"); a.vm.pop()
    def s1_dest(self):
        self.a("""v_bfe_u32 v50, v0, 2, 1
        v_lshlrev_b32 v50, 8, v50
        v_lshrrev_b32 v51, 3, v0
        v_lshl_add_u32 v50, v51, 4, v50
        v_bfe_u32 v51, v0, 1, 1
        v_lshl_add_u32 v50, v51, 3, v50""")
    def t_main(self, standalone=False):
        a = self.a; c = self.c
        if standalone:
            self.a_ids(); self.sels(); self.t_addr()
            for k in range(6): self.t_load(k, TW[k])
        WR = TW; nsp = 7 if c['hjoin'] else 5
        a(f"""v_and_b32 v50, 7, v0
        v_min_u32 v51, {nsp}, v50
        v_and_b32 v52, 1, v0
        s_cmp_eq_u32 s63, 0
        s_cselect_b64 vcc, -1, 0
        s_cselect_b32 s66, {nsp}, 7
        v_cndmask_b32 v51, v52, v51, vcc
        v_bfe_u32 v49, v0, 3, 1
        v_lshl_add_u32 v29, v49, 8, v51
        v_lshlrev_b32 v29, 9, v29
        s_lshl_b32 s52, s63, 6
        s_add_u32 s52, s52, s64
        s_lshl_b32 s52, s52, 12
        s_lshl_b32 s54, s3, 6
        s_add_u32 s52, s52, s54
        s_add_u32 s75, s52, {REC}
        v_lshrrev_b32 v48, 4, v0
        v_lshl_add_u32 v29, v48, 4, v29""")
        def gissue(): a("buffer_load_dwordx4 v[10:13], v29, s[36:39], s75 offen sc1", tag='pg')
        gissue()
        a("v_cmp_lt_u32 s[72:73], s66, v50")
        for r in range(32, 44): a(f"v_mov_b32 v{r}, 0")
        a("""v_and_b32 v26, 7, v0
        v_lshlrev_b32 v26, 4, v26
        v_bfe_u32 v48, v0, 3, 2
        v_lshl_add_u32 v26, v48, 2, v26
        v_lshrrev_b32 v48, 5, v0
        s_cmp_ge_u32 s3, 4
        s_cselect_b32 s52, 9, 8
        s_cselect_b32 s54, 8, 9
        s_cselect_b32 s55, 8192, 0
        s_cselect_b32 s56, 1024, 0
        s_add_u32 s55, s55, 16384
        v_lshl_add_u32 v26, v48, s52, v26
        s_and_b32 s57, s3, 1
        s_lshl_b32 s57, s57, s54
        s_add_u32 s56, s56, s57
        s_add_u32 s55, s55, s57
        s_bfe_u32 s57, s3, 0x10001
        s_lshl_b32 s52, s57, 7
        s_add_u32 s55, s55, s52
        v_add_u32 v26, s55, v26
        v_lshlrev_b32 v27, 4, v0
        s_lshl_b32 s52, s3, 10
        s_add_u32 s52, s52, 16384
        v_add_u32 v27, s52, v27
        v_lshlrev_b32 v23, 3, v0
        v_add_u32 v23, s56, v23""")
        a(f"""s_lshl_b32 s74, s63, 5
        s_add_u32 s74, s74, s64
        s_lshl_b32 s74, s74, 1
        s_add_u32 s74, s74, s57
        s_mul_i32 s74, s74, 4608
        s_mul_i32 s54, s65, 1536
        s_add_u32 s74, s74, s54
        s_add_u32 s74, s74, {PO}
        v_mov_b32 v59, s35
        v_mov_b32 v47, {NEGINF}""")
        self.poll_granules(gissue, [13], 48, 6, first_issued=True)
        self.stamp(6)
        a("v_cndmask_b32 v12, v12, v47, s[72:73]\nv_lshlrev_b32 v52, 16, v10\nv_mov_b32 v44, v12\nv_and_b32 v53, 0xffff0000, v10\nv_lshlrev_b32 v54, 16, v11")
        self.red8([44], "v_max_f32")
        a("v_sub_f32 v44, v12, v44\nv_and_b32 v55, 0xffff0000, v11\nv_exp_f32 v44, v44\nv_mov_b32 v45, v44")
        self.red8([45], "v_add_f32")
        a("v_rcp_f32 v45, v45\nv_mul_f32 v44, s67, v44\nv_mul_f32 v44, v44, v45")
        for t in range(4): a(f"v_mul_f32 v{52+t}, v44, v{52+t}")
        self.red8([52, 53, 54, 55], "v_add_f32")
        for k in range(2): a(f"v_cvt_pk_bf16_f32 v{20+k}, v{52+2*k}, v{53+2*k}")
        for k in range(2):
            self.bop(44, 20 + k, 2); self.bop(48, 20 + k, 6)
            a(f"v_mfma_f32_16x16x32_bf16 v[36:39], v[{WR[4+k]}:{WR[4+k]+3}], v[44:47], v[36:39]")
            a(f"v_mfma_f32_16x16x32_bf16 v[40:43], v[{WR[4+k]}:{WR[4+k]+3}], v[48:51], v[40:43]")
            a(f"v_mfma_f32_16x16x32_bf16 v[32:35], v[{WR[2*k]}:{WR[2*k]+3}], v[44:47], v[32:35]")
            a(f"v_mfma_f32_16x16x32_bf16 v[32:35], v[{WR[2*k+1]}:{WR[2*k+1]+3}], v[48:51], v[32:35]")
        a("v_cmp_lt_u32 vcc, 31, v0")
        for r in range(4): a(f"v_cndmask_b32 v{36+r}, v{36+r}, v{40+r}, vcc")
        a("ds_write_b128 v27, v[36:39] offset:8192\nds_write_b128 v27, v[32:35]")
        a.wait_lg(); a("s_barrier")
        for w in range(8): a(f"ds_read_b32 v{44+w}, v26 offset:{1024*w}")
        a.wait_lg()
        a("v_add_f32 v44, v44, v45\nv_add_f32 v46, v46, v47\nv_add_f32 v48, v48, v49\nv_add_f32 v50, v50, v51\nv_add_f32 v44, v44, v46\nv_add_f32 v48, v48, v50\nv_add_f32 v58, v44, v48")
        Lf = a.newlabel("L_tfull")
        a(f"s_cmp_lt_u32 s3, 4\ns_cbranch_scc1 {Lf}")
        a("v_mov_b32 v49, v58\nv_permlane32_swap_b32 v58, v49\nv_add_f32 v58, v58, v49\ns_mov_b32 exec_hi, 0")
        a(f"{Lf}:\nbuffer_store_dwordx2 v[58:59], v23, s[36:39], s74 offen sc1\ns_mov_b64 exec, -1")
        self.stamp(7)
    def tb1(self, standalone=False):
        a = self.a; pbs = self.c['pbs']; PART = 16384; ST = PART + 16 * 1040
        if standalone: self.tb1_addr(); self.tb1_loads(UV)
        self.sels()
        a(f"""v_lshlrev_b32 v28, 7, v0
        v_add_u32 v28, {FB}, v28
        v_lshrrev_b32 v48, 5, v0
        v_lshlrev_b32 v112, 7, v48
        v_mul_u32_u24 v31, {pbs}, v48
        v_and_b32 v49, 31, v0
        v_lshl_add_u32 v31, v49, 4, v31
        s_lshr_b32 s54, s2, 1
        s_lshl_b32 s55, s54, 2
        s_lshl_b32 s52, s3, 10
        s_add_u32 s55, s55, s52
        s_add_u32 s55, s55, {PBS}
        s_lshl_b32 s56, s2, 9
        s_mul_i32 s52, s3, {8 * pbs}
        s_add_u32 s56, s56, s52
        s_add_u32 s56, s56, {PB}
        s_lshl_b32 s52, s3, 1
        v_add_u32 v50, s52, v48
        v_mul_u32_u24 v113, 1040, v50
        v_lshl_add_u32 v113, v49, 5, v113
        v_add_u32 v113, {PART}, v113
        v_and_b32 v50, 15, v0
        v_mul_u32_u24 v118, 1040, v50
        v_lshrrev_b32 v51, 4, v0
        v_lshl_add_u32 v118, v51, 5, v118
        s_lshl_b32 s52, s3, 7
        s_add_u32 s52, s52, {PART}
        v_add_u32 v118, s52, v118
        v_lshrrev_b32 v50, 1, v50
        v_lshlrev_b32 v119, 3, v50
        v_add_u32 v119, {ST}, v119
        s_lshl_b32 s52, s3, 3
        s_add_u32 s52, s52, {ST}
        v_mov_b32 v120, s52""")
        for r in range(32, 36): a(f"v_mov_b32 v{r}, 0")
        self.acc_addr(30, 48)
        self.poll_flags(28, 4, 1)
        self.stamp(10)
        for n in range(4): a(f"buffer_load_dword v{36+n}, v112, s[36:39], s55 offen offset:{256*n} sc1", tag='st')
        for n in range(4): a(f"buffer_load_dwordx4 v[{64+4*n}:{67+4*n}], v31, s[36:39], s56 offen sc1\ns_add_u32 s56, s56, {2 * pbs}", tag=('pb', n))
        if self.c['hjoin'] and not standalone: self.ticket(0); self.ticket(1)
        a.wait_vm('st')
        a("v_max3_f32 v40, v36, v37, v38\nv_max_f32 v40, v40, v39\nv_mov_b32 v41, v40\nv_permlane32_swap_b32 v40, v41\nv_max_f32 v40, v40, v41")
        for n in range(4): a(f"v_sub_f32 v{36+n}, v{36+n}, v40")
        for n in range(4): a(f"v_exp_f32 v{36+n}, v{36+n}")
        a("v_add_f32 v41, v36, v37\nv_add_f32 v42, v38, v39\nv_add_f32 v41, v41, v42\nv_mov_b32 v42, v41\nv_permlane32_swap_b32 v41, v42\nv_add_f32 v41, v41, v42")
        a("ds_write_b64 v120, v[40:41]")
        for n in range(4):
            a.wait_vm(('pb', n))
            for k in range(4):
                a(f"v_lshlrev_b32 v42, 16, v{64+4*n+k}\nv_and_b32 v43, 0xffff0000, v{64+4*n+k}")
                if n == 0: a(f"v_mul_f32 v{104+2*k}, v36, v42\nv_mul_f32 v{105+2*k}, v36, v43")
                else: a(f"v_fmac_f32 v{104+2*k}, v{36+n}, v42\nv_fmac_f32 v{105+2*k}, v{36+n}, v43")
        a("ds_write_b128 v113, v[104:107]\nds_write_b128 v113, v[108:111] offset:16")
        a.wait_vm(); a.wait_lg(); a("s_barrier")
        a("ds_read_b64 v[40:41], v119\nds_read_b128 v[104:107], v118\nds_read_b128 v[108:111], v118 offset:16")
        a(f"""v_lshlrev_b32 v48, 4, v0
        s_lshl_b32 s52, s3, 10
        v_add_u32 v48, s52, v48
        s_lshr_b32 s52, s3, 1
        s_lshl_b32 s52, s52, 5
        s_lshr_b32 s54, s2, 1
        s_add_u32 s52, s52, s54
        s_add_u32 s52, s52, 64
        s_lshl_b32 s52, s52, 3
        s_and_b32 s55, s2, 1
        s_add_u32 s52, s52, s55
        s_lshl_b32 s52, s52, 9
        s_add_u32 s52, s52, {REC}
        s_and_b32 s54, s3, 1
        s_lshl_b32 s55, s54, 8
        v_lshlrev_b32 v50, 2, v0
        v_add_u32 v50, s55, v50
        v_mov_b32 v59, s35
        v_mov_b32 v58, 0""")
        a.wait_lg()
        a("v_mov_b32 v42, v40")
        self.red8([42], "v_max_f32")
        a("v_sub_f32 v40, v40, v42\nv_exp_f32 v40, v40\nv_mul_f32 v41, v41, v40")
        self.red8([41], "v_add_f32")
        a("v_rcp_f32 v41, v41\nv_add_f32 v40, v40, v40\nv_mul_f32 v40, v40, v41")
        for k in range(8): a(f"v_mul_f32 v{104+k}, v40, v{104+k}")
        self.red8(list(range(104, 112)), "v_add_f32")
        for k in range(4): a(f"v_cvt_pk_bf16_f32 v{114+k}, v{104+2*k}, v{105+2*k}")
        for k in range(4):
            self.bop(40, 114 + k, 2); self.bop(44, 114 + k, 6)
            a(f"v_mfma_f32_16x16x32_bf16 v[32:35], v[{UV+8*k}:{UV+8*k+3}], v[40:43], v[32:35]")
            a(f"v_mfma_f32_16x16x32_bf16 v[32:35], v[{UV+8*k+4}:{UV+8*k+7}], v[44:47], v[32:35]")
        a("ds_write_b128 v48, v[32:35]")
        a.wait_lg(); a("s_barrier")
        Ls = a.newlabel("L_nostat")
        a(f"s_cmp_ge_u32 s3, 4\ns_cbranch_scc1 {Ls}")
        for w in range(8): a(f"ds_read_b32 v{40+w}, v30 offset:{1024*w}")
        a.wait_lg()
        a("v_add_f32 v40, v40, v41\nv_add_f32 v42, v42, v43\nv_add_f32 v44, v44, v45\nv_add_f32 v46, v46, v47\nv_add_f32 v40, v40, v42\nv_add_f32 v44, v44, v46\nv_add_f32 v54, v40, v44")
        self.rec_store(54)
        a(f"s_mov_b64 exec, -1\n{Ls}:")
        a.vm = []
        if self.c.get('fine') != 'b': self.stamp(6)
    def t_load(self, k, reg):
        a = self.a
        if k < 4: a(f"buffer_load_dwordx4 v[{reg}:{reg+3}], v30, s[68:71], 0 offen offset:{k*1152} nt", tag='tw')
        else: a(f"buffer_load_dwordx4 v[{reg}:{reg+3}], v31, s[68:71], 0 offen offset:{(k-4)*2304} nt", tag='tw')

    def a_ids(self):
        self.a("""s_sub_u32 s48, s2, 64
        s_mul_i32 s49, s48, 171
        s_lshr_b32 s49, s49, 10
        s_mul_i32 s50, s49, 6
        s_sub_u32 s50, s48, s50
        s_cmp_ge_u32 s50, 3
        s_cselect_b32 s52, 3, 0
        s_cselect_b32 s57, 1, 0
        s_sub_u32 s66, s50, s52
        s_lshl_b32 s52, s49, 1
        s_add_u32 s57, s57, s52
        s_mov_b32 s59, 0""")
    def head_s1(self, kissue, IM, common):
        a = self.a; W = self.c['W']; WR = 212
        a("""s_cmp_eq_u32 s66, 0
        s_cselect_b32 s54, s18, s10
        s_cselect_b32 s55, s19, s11
        s_cselect_b32 s56, 32768, 0""")
        self.srd(72, "s54", "s55", 576 * 8192); self.srd(76, "s4", "s5", 2304)
        a("""v_lshrrev_b32 v48, 4, v0
        v_mul_u32_u24 v49, 18, v48
        v_bfe_u32 v50, v0, 3, 1
        v_add_u32 v51, v49, v50
        s_mul_i32 s52, s3, 72
        v_add_u32 v51, s52, v51
        v_lshlrev_b32 v28, 13, v51
        v_and_b32 v51, 7, v0
        v_lshl_add_u32 v28, v51, 4, v28
        s_lshl_b32 s54, s57, 7
        v_add_u32 v28, s54, v28
        v_mul_u32_u24 v61, 144, v50
        v_lshl_add_u32 v61, v49, 1, v61
        s_lshl_b32 s54, s3, 9
        s_add_u32 s54, s54, 57344
        v_add_u32 v61, s54, v61
        v_lshlrev_b32 v63, 3, v0
        v_add_u32 v62, s54, v63
        v_add_u32 v51, 1008, v63
        v_cmp_lt_u32 vcc, 17, v0
        s_lshl_b32 s52, s52, 1
        v_cndmask_b32 v63, v63, v51, vcc
        v_add_u32 v63, s52, v63
        v_cmp_lt_u32 vcc, 35, v0
        v_mov_b32 v51, 0x10000
        v_cndmask_b32 v63, v63, v51, vcc""")
        seq = [('w', t) for t in range(9)] + [('kv', j) for j in range(IM)]
        I = 0
        def issue():
            nonlocal I
            x = seq[I]; I += 1
            if x[0] == 'kv': kissue(x[1])
            else: a(f"s_mov_b32 s51, {x[1]*16384}\nbuffer_load_dwordx4 v[{WR+4*x[1]}:{WR+4*x[1]+3}], v28, s[72:75], s51 offen nt", tag=x)
        a("buffer_load_dwordx2 v[20:21], v63, s[76:79], 0 offen", tag='x')
        W0 = self.c['W0']
        def yield_a():
            if W0 and I < self.c['n0']:
                L = a.newlabel("L_y")
                a(f"s_cmp_eq_u32 s66, 0\ns_cbranch_scc1 {L}\ns_waitcnt vmcnt({W0 - 1})\n{L}:")
        for k in range(4):
            if k >= (W0 or 4): yield_a()
            issue()
        Lz = a.newlabel("L_nozero")
        a(f"""s_and_b32 s52, s57, 3
        s_lshr_b32 s54, s3, 1
        s_or_b32 s52, s52, s54
        s_xor_b32 s54, s66, 1
        s_or_b32 s52, s52, s54
        s_cmp_lg_u32 s52, 0
        s_cbranch_scc1 {Lz}
        s_lshl_b32 s52, s3, 4
        s_lshr_b32 s54, s57, 2
        s_add_u32 s52, s52, s54
        s_lshl_b32 s52, s52, 10
        s_add_u32 s52, s52, {CNT}
        v_lshlrev_b32 v48, 7, v0
        v_mov_b32 v49, 0
        s_mov_b64 exec, 0xff
        buffer_store_dword v49, v48, s[36:39], s52 offen sc1
        s_mov_b64 exec, -1
        {Lz}:"""); a.vm.pop()
        a(f"s_lshr_b32 s54, s57, 1\ns_lshl_b32 s54, s54, 9\ns_add_u32 s56, s56, s54\ns_and_b32 s54, s57, 1\ns_lshl_b32 s54, s54, 7\ns_add_u32 s56, s56, s54\ns_add_u32 s56, s56, {Q}")
        common()
        for r in range(32, 40): a(f"v_mov_b32 v{r}, 0")
        a.wait_vm('x')
        a("ds_write_b64 v62, v[20:21]")
        for k in range(4): a(f"ds_read2_b32 v[{10+2*k}:{11+2*k}], v61 offset0:{2*k} offset1:{2*k+1}")
        a("ds_read_b32 v18, v61 offset:32")
        a.wait_lg()
        for t in range(9):
            self.bop(40, 10 + t, 2); self.bop(44, 10 + t, 6)
            a.wait_vm(('w', t))
            while I < len(seq) and len(a.vm) < (4 if I < 9 else W): yield_a(); issue()
            r = WR + 4 * t
            a(f"v_mfma_f32_16x16x32_bf16 v[32:35], v[{r}:{r+3}], v[40:43], v[32:35]")
            a(f"v_mfma_f32_16x16x32_bf16 v[36:39], v[{r}:{r+3}], v[44:47], v[36:39]")
        self.s1_finish()
        self.stamp(9)
        while I < len(seq): a.wait_vm_n(W - 1); issue()
    def role_A(self, with_t=True, heads=True):
        a = self.a; c = self.c
        W, R, NS = c['W'], c['R'], c['NS']
        assert RING + 4 * R <= 256 and NS % 4 == 0 and SREG + NS // 2 <= ZERO
        self.a_ids(); self.kv_setup()
        a("""s_lshl_b32 s60, s50, 3
        s_add_u32 s60, s60, s3
        s_lshl_b32 s60, s60, 12
        s_lshl_b32 s52, s49, 16
        s_add_u32 s60, s60, s52""")
        def ring(j): return RING + 4 * (j % R)
        assert all(ring(j) >= TW[5] + 4 for j in range(2 * NS - 10, 2 * NS))
        def touch():
            L = a.newlabel("L_nt")
            a(f"s_cmp_ge_u32 s48, {c['touchA']}\ns_cbranch_scc1 {L}")
            for k in range(c['pfKB']):
                a(f"global_load_dword v83, v84, s[78:79] offset:{k*1024}"); a.vm.pop()
            a(f"{L}:")
        def issue(j):
            if c['touch'] and j >= c['IQ'] and j % c['touch'] == 0 and not c['staged']: touch()
            jj = j % NS
            srd = "s[40:43]" if j < NS else "s[44:47]"
            if jj % 4 == 0: a(f"s_add_u32 s51, s60, {(jj//4)*48*4096}\ns_and_b32 s51, s51, 0x1fffff")
            a(f"buffer_load_dwordx4 v[{ring(j)}:{ring(j)+3}], v1, {srd}, s51 offen offset:{(jj % 4) * 1024} nt", tag=('kv', j))
        self.code_prefetch("s48", c['pfA'], 52)
        def common():
            self.sels(); self.q_setup()
            if with_t: self.t_addr()
            self.get_tag()
        IM = c['IQ']
        if heads == 'only_s1':
            a(f"s_cmp_eq_u32 s66, 2\ns_cbranch_scc1 {self.end}"); self.head_s1(issue, 0, common); return
        if heads == 'only_s2':
            a(f"s_cmp_lg_u32 s66, 2\ns_cbranch_scc1 {self.end}"); self.head_s2(issue, 0, common); return
        if heads:
            L2 = a.newlabel("L_heads2"); LM = a.newlabel("L_merge")
            a(f"s_cmp_eq_u32 s66, 2\ns_cbranch_scc1 {L2}")
            self.head_s1(issue, IM, common)
            a(f"s_branch {LM}\n{L2}:"); a.vm = []; a.lg = []; a.hist = []
            self.head_s2(issue, IM, common)
            a(f"{LM}:")
            a.vm = [('kv', j) for j in range(IM - W, IM)]
        else:
            for j in range(W): issue(j)
            common()
            for j in range(W, IM): a.wait_vm_n(W - 1); issue(j)
        I = IM
        if c['touch'] and not c['staged']:
            Lp = a.newlabel("L_pc")
            a(f"s_getpc_b64 s[78:79]\n{Lp}:\ns_sub_u32 s78, s78, {Lp}-{KN}\ns_subb_u32 s79, s79, 0\ns_mul_i32 s52, s3, {c['pfKB']*1024}\nv_add_u32 v84, s52, v1")
        a(f"v_mov_b32 v26, {NEGINF}\nv_mov_b32 v27, 0\nv_mov_b32 v32, 0\nv_mov_b32 v33, 0\nv_mov_b32 v34, 0\nv_mov_b32 v35, 0")
        self.qissue()
        while I < c['ICHK']:
            a.wait_vm_n(W - 1 + (4 if I < IM + W else 0)); issue(I); I += 1
        if not c['s2flagstamp']: self.stamp(1)
        self.poll_granules(self.qissue, [11, 13, 15, 17, 19, 21, 23, 25], 48, 1, first_issued=True)
        self.stamp(2)
        C = 0
        def landed(j): return ('kv', j) not in a.vm
        def consumeK(n):
            if c.get('nocomp'): return
            self.qk_group([ring(4 * n + t) for t in range(4)], 10, 36, [44, 45, 46, 47])
            a("v_cvt_pk_bf16_f32 v48, v44, v45\nv_cvt_pk_bf16_f32 v50, v46, v47\nv_max3_f32 v26, v26, v44, v45")
            a("v_and_b32 v49, 0xffff0000, v48\nv_lshlrev_b32 v48, 16, v48\nv_and_b32 v51, 0xffff0000, v50\nv_lshlrev_b32 v50, 16, v50")
            a("v_max3_f32 v26, v26, v46, v47")
            for r in (48, 49, 50, 51): a(f"v_mul_f32 v{r}, {SCALE}, v{r}")
            a(f"v_cvt_pk_bf16_f32 v{SREG+2*n}, v48, v49\nv_cvt_pk_bf16_f32 v{SREG+2*n+1}, v50, v51")
        def consumeV(n):
            if c.get('nocomp'):
                a.wait_vm(('kv', NS + 2 * n + 1)); return
            a(f"v_lshlrev_b32 v60, 16, v{SREG+n}\nv_and_b32 v61, 0xffff0000, v{SREG+n}")
            a("v_fma_f32 v60, v60, s58, -v26\nv_fma_f32 v61, v61, s58, -v26")
            a("v_exp_f32 v60, v60\nv_exp_f32 v61, v61\nv_add_f32 v27, v27, v60\nv_cvt_pk_bf16_f32 v62, v60, v61\nv_add_f32 v27, v27, v61")
            self.bop(52, 62, 2); self.bop(56, 62, 6)
            for k in range(2):
                j = NS + 2 * n + k
                a.wait_vm(('kv', j))
                a(f"v_mfma_f32_16x16x32_bf16 v[32:35], v[{ring(j)}:{ring(j)+3}], v[{52+4*k}:{55+4*k}], v[32:35]")
        def unit_last(C): return C + 3 if C < NS else C + 1
        def consume():
            nonlocal C
            if C < NS:
                a.wait_vm(('kv', C + 3)); consumeK(C // 4); C += 4
                if C == NS:
                    self.redrows(26, 48, "v_max_f32"); self.round_scaled(26, 48)
                    a(f"v_mul_f32 v26, {LOG2E}, v26"); self.stamp(3)
            else:
                consumeV((C - NS) // 2); C += 2
        def pace(n):
            tiles = [x for x in a.vm if x[0] != 'tk']
            if len(tiles) > n: a.wait_vm(tiles[len(tiles) - n - 1])
        while I < 2 * NS:
            if I - R < C:
                pace((W if I < c['iW2'] else c['W2']) - 1)
                if I == 2 * NS - 5: self.ticket(0)
                if I == 2 * NS - 3: self.ticket(1)
                issue(I); I += 1
                k = 0
                while k < c['burst'] and landed(unit_last(C)) and unit_last(C) < I: consume(); k += 1
            else: consume()
        for k in range(2):
            pace(c['W2'] - 2 + k * (2 * c['UT'] - 2)); self.unit_first(k)
            while C < 2 * NS and landed(unit_last(C)): consume()
        while C < 2 * NS: consume()
        self.stamp(10)
    def h_stream(self):
        a = self.a; c = self.c; WH = c['WH']
        QR = 64; DV = 240; STG = 176
        self.code_prefetch("s2", c['pfH'], 52)
        self.b_dma_setup(DV)
        for t in range(WH): self.dma1(t, DV, 'd')
        self.b_setup()
        self.tb1_addr(59)
        a("s_lshl_b32 s52, s3, 13\nv_add_u32 v57, s52, v29\nv_add_u32 v58, 0x10000, v57")
        self.get_tag()
        for t in range(WH, 16):
            a.wait_vm_n(WH - 1); self.dma1(t % 8, DV, 'd')
        for t in range(16):
            q = t % 8; r = R2[q] if t < 8 else UV + 4 * q
            a.wait_vm_n(WH - 1)
            if q == 0: a("s_and_b32 s62, s62, 0x7fffff")
            a(f"s_add_u32 s51, s62, {q*8192}\nbuffer_load_dwordx4 v[{r}:{r+3}], v{DV + (q & 1)}, s[76:79], s51 offen nt", tag='r')
            if q == 7: a("s_add_u32 s62, s62, 0x200000")
        self.stamp(1)
        self.poll_flags(28, 3, 2)
        for n in range(4): a(f"buffer_load_dwordx4 v[{STG+4*n}:{STG+4*n+3}], v29, s[36:39], s65 offen offset:{n*1024} sc1", tag=('q', n))
        for n in range(4):
            a.wait_vm(('q', n)); a(f"ds_write_b128 v30, v[{STG+4*n}:{STG+4*n+3}] offset:{n*1024}")
        a.wait_lg(); a("s_barrier")
        for ks in range(16):
            a(f"ds_read_b128 v[{QR+4*ks}:{QR+4*ks+3}], v31 offset:{ks*1024}")
            if ks == 11: a.wait_lg()
        a.wait_lg()
        self.stamp(2)
    def b_tile_wait(self): pass
    def b_refill(self):
        a = self.a
        L1 = a.newlabel("L_rf"); L2 = a.newlabel("L_rf")
        a(f"s_cmp_lg_u32 s61, 0\ns_cbranch_scc1 {L1}")
        for q in range(8): a(f"ds_write_b128 v57, v[{R2[q]}:{R2[q]+3}] offset:{q*1024}")
        a(f"{L1}:\ns_cmp_lg_u32 s61, 1\ns_cbranch_scc1 {L2}")
        for q in range(8): a(f"ds_write_b128 v58, v[{UV+4*q}:{UV+4*q+3}] offset:{q*1024}")
        a("s_waitcnt lgkmcnt(0)")
        if self.with_uv: self.tb1_loads(UV, 59)
        a(f"{L2}:\ns_waitcnt lgkmcnt(0)"); a.lg = []
    def h_join(self):
        a = self.a
        a("s_lshr_b32 s49, s2, 1\ns_and_b32 s50, s2, 1\ns_add_u32 s50, s50, 6\ns_mov_b32 s59, 1")
        self.q_setup()
        self.poll_granules(self.qissue, [11, 13, 15, 17, 19, 21, 23, 25], 48, 9)
    def h_enter(self, tickets_out):
        a = self.a
        self.kv_setup()
        a("v_mov_b32 v26, 0xf149f2ca\nv_mov_b32 v27, 0\nv_mov_b32 v32, 0\nv_mov_b32 v33, 0\nv_mov_b32 v34, 0\nv_mov_b32 v35, 0")
        if not tickets_out: self.ticket(0); self.ticket(1)
        self.unit_first(0); self.unit_first(1)
    def build(self):
        a = self.a; LDS = 163840
        hdr = open("gated_mix__gqa_block_cached__compressed_kv_cla__decode.s.ref").read().split("; Override launch")[0]
        a.raw(hdr.rstrip())
        def reset(): a.vm = []; a.lg = []; a.hist = []
        self.ring = lambda j: TW[j - 2 * G2.NT]
        if self.c['staged']:
            self.with_uv = False
            names = ["s1_kernel", "s2_kernel", "b_kernel", "tb1_kernel", "a_kernel", "t_kernel", "f_kernel"]
            for n in names: a.raw(f"; @launch kernel={n} grid=(256,1,1) block=(512,1,1) lds={LDS}")
            a.raw('.amdgcn_target "amdgcn-amd-amdhsa--gfx950"\n.text')
            self.prologue("s1_kernel"); self.only(64, 256); self.role_A(False, 'only_s1'); self.finish()
            self.prologue("s2_kernel"); self.only(64, 256); self.role_A(False, 'only_s2'); self.finish()
            self.prologue("b_kernel"); self.only(0, 64); self.h_stream(); self.role_B(); self.finish()
            self.prologue("tb1_kernel"); self.only(0, 64); self.get_tag(); self.tb1(True); self.finish()
            self.prologue("a_kernel")
            LA = a.newlabel("L_roleA"); LP = a.newlabel("L_topool")
            a(f"s_cmp_ge_u32 s2, 64\ns_cbranch_scc1 {LA}")
            self.get_tag(); self.sels(); self.h_join(); self.h_enter(False); a(f"s_branch {LP}\n{LA}:"); reset()
            self.role_A(False, False); a(f"{LP}:"); self.pool_loop(False); self.a_epilogue(); self.finish()
            self.prologue("t_kernel"); self.only(64, 256); self.get_tag(); self.t_main(True); self.finish()
            self.prologue("f_kernel"); self.only(0, 64); self.get_tag(); self.role_F(); self.finish()
        else:
            self.with_uv = True
            names = [KN]
            a.raw(f"; @launch grid=(256,1,1) block=(512,1,1) lds={LDS}")
            a.raw('.amdgcn_target "amdgcn-amd-amdhsa--gfx950"\n.text')
            self.prologue(KN)
            LA, LE, LP, LF = (a.newlabel(x) for x in ("L_roleA", "L_fin", "L_topool", "L_toF"))
            a(f"s_cmp_ge_u32 s2, 64\ns_cbranch_scc1 {LA}")
            self.h_stream(); self.role_B()
            if self.c['hjoin']:
                self.h_join(); self.tb1(); self.h_enter(True); a(f"s_branch {LP}")
            else: self.tb1()
            a(f"{LF}:"); reset()
            self.role_F(); a(f"s_branch {LE}")
            a(f"{LA}:"); reset()
            self.role_A()
            a(f"{LP}:"); self.pool_loop(True); self.a_epilogue()
            a(f"s_cmp_eq_u32 s59, 1\ns_cbranch_scc1 {LF}")
            self.t_main()
            a(f"{LE}:"); self.finish()
            a.raw(f"L_codeend:\n.fill ({8*1024*self.c['pfKB']} - (L_codeend - {KN})) / 4, 4, 0xbf810000")
        a.raw('.section .rodata,"a"')
        for n in names:
            a.raw(".p2align 6"); self.kd(n)
        return a.text()

def gen(**kw): return G(**kw).build()
if __name__ == "__main__":
    cfg = json.loads(sys.argv[2]) if len(sys.argv) > 2 else {}
    open(sys.argv[1], "w").write(gen(**cfg))
```

```python
import sys, json
sys.path.insert(0, "dev")
from asmlib import Asm
KN = "gated_mix__gqa_block_cached__compressed_kv_cla__decode_kernel"
Q     = 0x1000
QABS  = 0x11000
FQ    = 0x21000
FB    = 0x23000
PBS   = 0x25000
CNT   = 0x27000
REC   = 0x30000
PO    = 0x150000
PB    = 0x200000
STAMP = 0x800000
WS_USED = 0x1000000
LOG2E = 0x3fb8aa3b; SCALE = 0x3db504f3; NEGINF = 0xff800000
DEF = dict(W=4, W2=4, iW2=50, R=40, NS=36, IQ=22, ICHK=26, WH=4, iq2=12, W0=2, n0=8, nsub=4, subrot=3, UT=1, twpos=(0, 2),
           rotb=2, spin=40000, fsleep=2, ftrig='po', fgrp=4, fpipe=1, stamps=False, pbs=32768)
PL = 131072; ML = PL + 4608
TL = 16384; S1L = 32768; S2L = 49152; XL = 57344; EB = 65536
RING = 88; SREG = 64; ZERO = 85; TK = 86
FK = [88, 104]; FV = [96, 112]; TW = [120 + 4 * k for k in range(6)]
WR = 212; UR = 216
QR = 64; ACC = 128; SA = 160; TA = 168; STG = 176; UV = 208; DV = 240
R2 = [12, 16, 20, 24, 172, 244, 248, 252]
QTAGS = [11, 13, 15, 17, 19, 21, 23, 25]

class G:
    def __init__(self, **kw):
        self.c = dict(DEF); self.c.update(kw)
        self.a = Asm(); c = self.c
        self.NF = (2048 - 48 * c['NS']) // c['nsub'] // c['UT']
        self.USH = 10 + c['UT'] - 1
        self.TSH = self.USH + c['nsub'].bit_length() - 1
    def reset(self, vm=()): self.a.vm = list(vm); self.a.lg = []; self.a.hist = []
    def srd(self, d, lo, hi, size):
        self.a(f"s_mov_b32 s{d}, {lo}\ns_and_b32 s{d+1}, {hi}, 0xffff\ns_mov_b32 s{d+2}, {size}\ns_mov_b32 s{d+3}, 0x20000")
    def late_prologue(self):
        self.a("s_load_dword s34, s[32:33], 0"); self.srd(36, "s32", "s33", WS_USED)
    def get_tag(self):
        self.a("s_waitcnt lgkmcnt(0)\ns_mul_i32 s35, s34, 1664525\ns_add_u32 s35, s35, 1013904223"); self.a.lg = []
    def stamp(self, k):
        if self.c['stamps']: self.a(f"s_memrealtime s[{80+2*k}:{81+2*k}]")
    def stamp_flush(self):
        if not self.c['stamps']: return
        a = self.a; L = a.newlabel("L_nost")
        a(f"s_cmp_lg_u32 s3, 0\ns_cbranch_scc1 {L}\ns_waitcnt lgkmcnt(0)")
        for k in range(11): a(f"v_mov_b32 v{2+k}, s{80+2*k}")
        a(f"s_lshl_b32 s52, s2, 6\ns_add_u32 s52, s52, {STAMP}\nv_mov_b32 v1, 0\ns_mov_b64 exec, 1")
        for k in range(3): a(f"buffer_store_dwordx4 v[{2+4*k}:{5+4*k}], v1, s[36:39], s52 offen offset:{16*k}")
        a(f"s_mov_b64 exec, -1\n{L}:")
    def sels(self):
        a = self.a
        a("""v_and_b32 v48, 1, v0
        v_mov_b32 v49, 0x0c0c0100
        v_mov_b32 v50, 0x01000c0c
        v_mov_b32 v51, 0x0c0c0302
        v_mov_b32 v52, 0x03020c0c
        v_mov_b32 v53, 0x0c0c0c0c
        v_cmp_eq_u32 vcc, 1, v48
        v_bfe_u32 v54, v0, 1, 2
        v_cndmask_b32 v49, v49, v50, vcc
        v_cndmask_b32 v51, v51, v52, vcc""")
        for k in range(4): a(f"v_cmp_eq_u32 vcc, {k}, v54\nv_cndmask_b32 v{2+k}, v53, v49, vcc\nv_cndmask_b32 v{6+k}, v53, v51, vcc")
    def timeout(self, code):
        self.a(f"v_mov_b32 v62, {code}\nv_mov_b32 v63, 0\nglobal_store_dword v63, v62, s[30:31]")
    def poll_flags(self, voff, code, sleep):
        a = self.a; Ls = a.newlabel("L_pskip"); Lp = a.newlabel("L_poll")
        keep = a.vm[:]
        a(f"s_cmp_lg_u32 s3, 0\ns_cbranch_scc1 {Ls}\ns_mov_b32 s53, {self.c['spin']}\n{Lp}:")
        a(f"buffer_load_dword v61, v{voff}, s[36:39], 0 offen sc1\ns_waitcnt vmcnt(0)")
        a(f"v_cmp_ne_u32 vcc, s35, v61\ns_cbranch_vccz {Ls}\ns_sleep {sleep}\ns_sub_u32 s53, s53, 1\ns_cbranch_scc0 {Lp}")
        self.timeout(code)
        a(f"{Ls}:\ns_barrier"); a.vm = keep
    def tagcheck(self, tags, t):
        a = self.a
        a(f"v_xor_b32 v{t}, s35, v{tags[0]}")
        for r in tags[1:]: a(f"v_bitop3_b32 v{t}, v{t}, v{r}, s35 bitop3:0xf6")
        a(f"v_cmp_ne_u32 vcc, 0, v{t}")
    def poll_granules(self, issue, tags, code, first_issued=False, sleep=0):
        a = self.a; Lp = a.newlabel("L_gpoll"); Ld = a.newlabel("L_gdone"); Lc = a.newlabel("L_gchk")
        a(f"s_mov_b32 s53, {self.c['spin']}")
        if first_issued:
            a.wait_vm('pg'); self.tagcheck(tags, 48); a(f"s_cbranch_vccz {Ld}")
        save = a.vm[:]
        a(f"{Lp}:")
        issue(); a("s_waitcnt vmcnt(0)")
        self.tagcheck(tags, 48)
        a(f"s_cbranch_vccz {Ld}")
        if sleep: a(f"s_sleep {sleep}")
        a(f"s_sub_u32 s53, s53, 1\ns_cbranch_scc0 {Lp}")
        self.timeout(code)
        a(f"s_waitcnt vmcnt(0)\n{Ld}:")
        a.vm = save if first_issued else []
    def poll_pipe(self, issue, tags, nld, nset, code, take):
        a = self.a; Lp = a.newlabel("L_pp"); Ld = [a.newlabel("L_ppd") for _ in range(nset)]; Le = a.newlabel("L_ppe")
        a(f"s_mov_b32 s53, {self.c['spin']}")
        for k in range(nset - 1): issue(k)
        a(f"{Lp}:")
        for k in range(nset):
            issue((k + nset - 1) % nset)
            a(f"s_waitcnt vmcnt({(nset - 1) * nld})")
            self.tagcheck(tags(k), 48)
            a(f"s_cbranch_vccz {Ld[k]}")
        a(f"s_sub_u32 s53, s53, 1\ns_cbranch_scc0 {Lp}")
        self.timeout(code)
        for k in range(nset):
            a(f"{Ld[k]}:"); take(k)
            if k < nset - 1: a(f"s_branch {Le}")
        a(f"{Le}:"); a.vm = []
    def qk(self, K, T, U, mid=None):
        a = self.a; n = len(K)
        for kk in range(4):
            for t in range(n):
                for h in range(2):
                    a(f"v_dot2_f32_bf16 v{T+2*t+h}, v{K[t]+kk}, v{10+8*h+2*kk}, {'0' if kk == 0 else f'v{T+2*t+h}'}")
        if mid: mid()
        for t in range(n): a(f"v_add_f32_dpp v{U[t]}, v{T+2*t}, v{T+2*t} row_ror:8 row_mask:0xf bank_mask:0x3")
        for t in range(n): a(f"v_add_f32_dpp v{U[t]}, v{T+2*t+1}, v{T+2*t+1} row_ror:8 row_mask:0xf bank_mask:0xc")
        self.red8(U[:n], "v_add_f32")
    def bop(self, dst, src, sel):
        for k in range(4): self.a(f"v_perm_b32 v{dst+k}, v{src}, v{src}, v{sel+k}")
    def red8(self, regs, op):
        for m in ("row_half_mirror", "quad_perm:[1,0,3,2]", "quad_perm:[2,3,0,1]"):
            for r in regs: self.a(f"{op}_dpp v{r}, v{r}, v{r} {m} row_mask:0xf bank_mask:0xf")
    def redrows(self, r, t, op):
        self.a(f"v_mov_b32 v{t}, v{r}\nv_permlane16_swap_b32 v{r}, v{t}\n{op} v{r}, v{r}, v{t}")
        self.a(f"v_mov_b32 v{t}, v{r}\nv_permlane32_swap_b32 v{r}, v{t}\n{op} v{r}, v{r}, v{t}")
    def mfma16(self, d, A, B): self.a(f"v_mfma_f32_16x16x32_bf16 v[{d}:{d+3}], v[{A}:{A+3}], v[{B}:{B+3}], v[{d}:{d+3}]")
    def acc_addr(self, dst, t, base):
        self.a(f"""v_and_b32 v{dst}, 7, v0
        v_lshlrev_b32 v{dst}, 4, v{dst}
        v_bfe_u32 v{t}, v0, 3, 2
        v_lshl_add_u32 v{dst}, v{t}, 2, v{dst}
        v_lshrrev_b32 v{t}, 5, v0
        v_lshl_add_u32 v{dst}, v{t}, 8, v{dst}
        s_and_b32 s52, s3, 1
        s_lshl_b32 s52, s52, 9
        s_lshr_b32 s54, s3, 1
        s_lshl_b32 s54, s54, 7
        s_add_u32 s52, s52, s54
        s_add_u32 s52, s52, {base}
        v_add_u32 v{dst}, s52, v{dst}""")
    def rec_store(self, r):
        a = self.a
        a(f"v_mov_b32_dpp v55, v{r} quad_perm:[1,0,3,2] row_mask:0xf bank_mask:0xf\nv_cvt_pk_bf16_f32 v56, v{r}, v55")
        a("v_mov_b32_dpp v57, v56 quad_perm:[2,3,0,1] row_mask:0xf bank_mask:0xf\ns_mov_b32 exec_lo, 0x11111111\ns_mov_b32 exec_hi, 0x11111111")
        a("buffer_store_dwordx4 v[56:59], v50, s[36:39], s52 offen sc1\ns_mov_b64 exec, -1"); a.vm.pop()
    def flag_store(self, sreg):
        self.a(f"v_mov_b32 v50, s35\nv_mov_b32 v51, 0\ns_mov_b64 exec, 1\nbuffer_store_dword v50, v51, s[36:39], {sreg} offen sc1\ns_mov_b64 exec, -1"); self.a.vm.pop()

    def wload(self, t): self.a(f"s_mov_b32 s51, {t*16384}\nbuffer_load_dwordx4 v[{WR+4*t}:{WR+4*t+3}], v28, s[72:75], s51 offen nt", tag=('w', t))
    def uload(self, t): self.a(f"s_mov_b32 s51, {t*8192}\nbuffer_load_dwordx4 v[{UR+4*t}:{UR+4*t+3}], v28, s[72:75], s51 offen nt", tag=('u', t))
    def dma(self, t):
        a = self.a; q = t % 8
        if q == 0: a("s_and_b32 s62, s62, 0x7fffff")
        a(f"s_add_u32 m0, s60, {q*1024}\ns_add_u32 s51, s62, {q*8192}\nbuffer_load_dwordx4 v{DV + (q & 1)}, s[76:79], s51 offen nt lds", tag='d')
        if q == 7: a("s_add_u32 s62, s62, 0x200000\ns_xor_b32 s60, s60, 0x10000")
    def entry(self, LS1, LS2, LH, LE):
        a = self.a; c = self.c
        a.raw(f".globl {KN}\n.p2align 8\n.type {KN},@function\n{KN}:")
        a(f"s_cmp_ge_u32 s2, 256\ns_cbranch_scc1 {LE}")
        self.stamp(0)
        L2 = a.newlabel("L_e2"); L3 = a.newlabel("L_eh"); L4 = a.newlabel("L_e1")
        a(f"""s_load_dwordx16 s[4:19], s[0:1], 0
        s_load_dwordx8 s[20:27], s[0:1], 64
        s_load_dwordx4 s[28:31], s[0:1], 96
        s_load_dwordx2 s[32:33], s[0:1], 112
        v_lshrrev_b32 v1, 6, v0
        v_and_b32 v0, 63, v0
        v_readfirstlane_b32 s3, v1
        v_lshlrev_b32 v1, 4, v0
        s_cmp_lt_u32 s2, 64
        s_cbranch_scc1 {L3}""")
        a(f"""s_sub_u32 s48, s2, 64
        s_mul_i32 s49, s48, 171
        s_lshr_b32 s49, s49, 10
        s_mul_i32 s50, s49, 6
        s_sub_u32 s50, s48, s50
        s_cmp_ge_u32 s50, 3
        s_cselect_b32 s52, 3, 0
        s_cselect_b32 s57, 1, 0
        s_sub_u32 s66, s50, s52
        s_lshl_b32 s52, s49, 1
        s_add_u32 s57, s57, s52
        s_cmp_eq_u32 s66, 2
        s_cbranch_scc1 {L2}""")
        a("""v_lshrrev_b32 v48, 4, v0
        v_mul_u32_u24 v49, 18, v48
        v_bfe_u32 v50, v0, 3, 1
        v_add_u32 v51, v49, v50
        s_mul_i32 s52, s3, 72
        v_add_u32 v51, s52, v51
        v_lshlrev_b32 v28, 13, v51
        v_and_b32 v51, 7, v0
        v_lshl_add_u32 v28, v51, 4, v28
        s_lshl_b32 s54, s57, 7
        v_add_u32 v28, s54, v28
        v_lshlrev_b32 v62, 3, v0
        v_add_u32 v51, 1008, v62
        v_cmp_lt_u32 vcc, 17, v0
        s_lshl_b32 s52, s52, 1
        v_mov_b32 v52, 0x10000
        v_cndmask_b32 v63, v62, v51, vcc
        v_cmp_lt_u32 vcc, 35, v0
        v_add_u32 v63, s52, v63
        s_cmp_eq_u32 s66, 0
        v_cndmask_b32 v63, v63, v52, vcc
        s_waitcnt lgkmcnt(0)
        s_cselect_b32 s54, s18, s10
        s_cselect_b32 s55, s19, s11""")
        self.srd(72, "s54", "s55", 576 * 8192); self.srd(76, "s4", "s5", 2304)
        a("buffer_load_dwordx2 v[20:21], v63, s[76:79], 0 offen")
        for t in range(c['W0']): self.wload(t)
        a(f"s_cmp_lg_u32 s66, 0\ns_cbranch_scc1 {LS1}")
        for t in range(c['W0'], 4): self.wload(t)
        a(f"s_branch {LS1}")
        a(f"{L2}:"); self.reset()
        a("""s_lshr_b32 s56, s57, 4
        s_and_b32 s52, s57, 15
        s_lshl_b32 s52, s52, 2
        s_lshr_b32 s54, s3, 1
        s_add_u32 s52, s52, s54
        s_lshl_b32 s52, s52, 16
        s_lshl_b32 s54, s56, 1
        s_and_b32 s55, s3, 1
        s_add_u32 s54, s54, s55
        s_lshl_b32 s55, s54, 10
        s_add_u32 s52, s52, s55
        v_add_u32 v28, s52, v1
        s_waitcnt lgkmcnt(0)""")
        self.srd(72, "s20", "s21", 512 * 8192)
        for t in range(c['W0']): self.uload(t)
        a(f"s_branch {LS2}")
        a(f"{L3}:"); self.reset()
        a("v_lshrrev_b32 v48, 3, v0\nv_and_b32 v49, 7, v0\ns_lshl_b32 s52, s3, 7\nv_lshlrev_b32 v50, 10, v48\nv_add_u32 v50, s52, v50\nv_lshrrev_b32 v52, 4, v0")
        for q in range(2): a(f"v_add_u32 v51, {4*q}, v52\nv_xor_b32 v51, v51, v49\nv_lshl_add_u32 v{DV+q}, v51, 4, v50")
        a(f"""s_lshr_b32 s63, s2, 5
        s_and_b32 s64, s2, 31
        s_lshl_b32 s60, s3, 13
        s_mul_i32 s62, s63, {c['rotb'] << 21}
        s_lshl_b32 s52, s64, 16
        s_add_u32 s62, s62, s52
        s_lshl_b32 s52, s63, 23
        s_waitcnt lgkmcnt(0)
        s_add_u32 s54, s16, s52
        s_addc_u32 s55, s17, 0""")
        self.srd(76, "s54", "s55", 0x800000)
        for t in range(c['WH']): self.dma(t)
        a(f"s_branch {LH}")

    def a_common(self):
        a = self.a; c = self.c
        self.late_prologue()
        a("s_lshl_b32 s52, s49, 21\ns_add_u32 s54, s6, s52\ns_addc_u32 s55, s7, 0")
        self.srd(40, "s54", "s55", 0x200000)
        a("s_add_u32 s54, s8, s52\ns_addc_u32 s55, s9, 0")
        self.srd(44, "s54", "s55", 0x200000)
        a(f"""s_lshl_b32 s52, s49, 16
        s_lshl_b32 s60, s50, 3
        s_add_u32 s60, s60, s3
        s_lshl_b32 s60, s60, 12
        s_add_u32 s60, s60, s52
        s_mul_i32 s54, s50, {c['subrot']}
        s_add_u32 s54, s54, s3
        s_and_b32 s54, s54, {c['nsub'] - 1}
        s_lshl_b32 s61, s54, {self.USH}
        s_add_u32 s61, s61, s52
        s_add_u32 s61, s61, {c['NS']*48*1024}
        s_lshl_b32 s62, s49, 3
        s_add_u32 s62, s62, s54
        s_lshl_b32 s62, s62, 7
        s_add_u32 s62, s62, {CNT}
        s_lshl_b32 s52, s49, 10
        s_add_u32 s52, s52, {Q}
        v_and_b32 v29, 15, v0
        v_lshlrev_b32 v29, 4, v29
        v_add_u32 v29, s52, v29
        s_mov_b32 s58, {LOG2E}
        v_mov_b32 v{ZERO}, 0""")
        self.sels()
        a("""s_cmp_ge_u32 s48, 96
        s_cselect_b32 s63, 1, 0
        s_cselect_b32 s54, s24, s12
        s_cselect_b32 s55, s25, s13
        s_cselect_b32 s67, 2.0, 1.0
        s_mul_i32 s52, s63, 96
        s_sub_u32 s52, s48, s52
        s_mul_i32 s64, s52, 171
        s_lshr_b32 s64, s64, 9
        s_mul_i32 s65, s64, 3
        s_sub_u32 s65, s52, s65""")
        self.srd(68, "s54", "s55", 4096 * 1152)
        a("""s_lshl_b32 s52, s64, 3
        s_add_u32 s52, s52, s3
        s_mul_i32 s52, s52, 18432
        s_mul_i32 s54, s65, 384
        s_add_u32 s52, s52, s54
        v_lshrrev_b32 v48, 4, v0
        v_mul_u32_u24 v30, 4608, v48
        v_add_u32 v30, s52, v30
        v_bfe_u32 v49, v0, 3, 1
        v_mul_u32_u24 v31, 1152, v49
        v_add_u32 v31, v31, v30
        v_and_b32 v50, 7, v0
        v_lshl_add_u32 v31, v50, 4, v31
        v_add_u32 v31, 256, v31
        v_and_b32 v51, 15, v0
        v_lshl_add_u32 v30, v51, 4, v30""")
        self.get_tag()
    def ring(self, j): return RING + 4 * (j % self.c['R'])
    def kv(self, j):
        a = self.a; NS = self.c['NS']; jj = j % NS
        if jj % 4 == 0: a(f"s_add_u32 s51, s60, {(jj//4)*48*4096}\ns_and_b32 s51, s51, 0x1fffff")
        a(f"buffer_load_dwordx4 v[{self.ring(j)}:{self.ring(j)+3}], v1, {'s[40:43]' if j < NS else 's[44:47]'}, s51 offen offset:{(jj % 4) * 1024} nt", tag=('kv', j))
    def head_s1(self):
        a = self.a; c = self.c; W, W0, IM = c['W'], c['W0'], c['IQ']
        self.reset(['x'] + [('w', t) for t in range(4)])
        a(f"""v_lshrrev_b32 v48, 4, v0
        v_mul_u32_u24 v61, 36, v48
        v_bfe_u32 v50, v0, 3, 1
        v_mul_u32_u24 v50, 144, v50
        s_lshl_b32 s54, s3, 9
        s_add_u32 s54, s54, {XL}
        v_add3_u32 v61, v61, v50, s54
        v_add_u32 v62, s54, v62
        s_cmp_eq_u32 s66, 0
        s_cselect_b32 s56, 32768, 0
        s_lshr_b32 s54, s57, 1
        s_lshl_b32 s54, s54, 9
        s_add_u32 s56, s56, s54
        s_and_b32 s54, s57, 1
        s_lshl_b32 s54, s54, 7
        s_add_u32 s56, s56, s54
        s_add_u32 s56, s56, {Q}""")
        self.a_common()
        Ly = a.newlabel("L_y"); Lz = a.newlabel("L_nozero")
        a(f"s_cmp_eq_u32 s66, 0\ns_cbranch_scc1 {Ly}")
        a(f"""s_and_b32 s52, s57, 3
        s_lshr_b32 s54, s3, 1
        s_or_b32 s52, s52, s54
        s_cmp_lg_u32 s52, 0
        s_cbranch_scc1 {Lz}
        s_lshl_b32 s52, s3, 4
        s_lshr_b32 s54, s57, 2
        s_add_u32 s52, s52, s54
        s_lshl_b32 s52, s52, 10
        s_add_u32 s52, s52, {CNT}
        v_lshlrev_b32 v48, 7, v0
        s_mov_b64 exec, 0xff
        buffer_store_dword v{ZERO}, v48, s[36:39], s52 offen sc1
        s_mov_b64 exec, -1
        {Lz}:"""); a.vm.pop()
        keep = a.vm[:]
        for t in range(W0, 4): a(f"s_waitcnt vmcnt({W0 - 1})"); self.wload(t)
        a.vm = keep
        a(f"{Ly}:")
        seq = [('w', t) for t in range(4, 9)] + [('kv', j) for j in range(IM)]
        I = 0
        def issue():
            nonlocal I
            x = seq[I]; I += 1
            if I + 3 < c['n0']:
                L = a.newlabel("L_y"); a(f"s_cmp_eq_u32 s66, 0\ns_cbranch_scc1 {L}\ns_waitcnt vmcnt({W0 - 1})\n{L}:")
            self.kv(x[1]) if x[0] == 'kv' else self.wload(x[1])
        for r in range(32, 40): a(f"v_mov_b32 v{r}, 0")
        a.wait_vm('x')
        a("ds_write_b64 v62, v[20:21]")
        for k in range(4): a(f"ds_read2_b32 v[{10+2*k}:{11+2*k}], v61 offset0:{2*k} offset1:{2*k+1}")
        a("ds_read_b32 v18, v61 offset:32")
        a.wait_lg()
        for t in range(9):
            self.bop(40, 10 + t, 2); self.bop(44, 10 + t, 6)
            a.wait_vm(('w', t))
            while I < len(seq) and len(a.vm) < (4 if I < 5 else W): issue()
            self.mfma16(32, WR + 4 * t, 40); self.mfma16(36, WR + 4 * t, 44)
        a(f"v_cmp_lt_u32 vcc, 31, v0\ns_lshl_b32 s52, s3, 10\ns_add_u32 s52, s52, {S1L}\nv_add_u32 v48, s52, v1")
        for r in range(4): a(f"v_cndmask_b32 v{32+r}, v{32+r}, v{36+r}, vcc")
        a("ds_write_b128 v48, v[32:35]")
        a.wait_lg(); a("s_barrier")
        Ls = a.newlabel("L_s1skip")
        a(f"""s_cmp_ge_u32 s3, 2
        s_cbranch_scc1 {Ls}
        v_and_b32 v48, 7, v0
        v_lshlrev_b32 v48, 4, v48
        v_bfe_u32 v49, v0, 3, 2
        v_lshl_add_u32 v48, v49, 2, v48
        v_lshrrev_b32 v49, 5, v0
        v_lshl_add_u32 v48, v49, 8, v48
        s_lshl_b32 s52, s3, 7
        s_add_u32 s52, s52, {S1L}
        v_add_u32 v48, s52, v48""")
        for s in range(16):
            a(f"ds_read_b32 v{32+s}, v48 offset:{512*s}")
            if s == 11: a.wait_lg()
        a("""s_lshl_b32 s52, s3, 14
        s_add_u32 s52, s52, s56
        v_mov_b32 v53, s35
        v_bfe_u32 v50, v0, 2, 1
        v_lshlrev_b32 v50, 8, v50
        v_lshrrev_b32 v51, 3, v0
        v_lshl_add_u32 v50, v51, 4, v50
        v_bfe_u32 v51, v0, 1, 1
        v_lshl_add_u32 v50, v51, 3, v50""")
        a.wait_lg()
        for st in (8, 4, 2, 1):
            for s in range(st): a(f"v_add_f32 v{32+s}, v{32+s}, v{32+s+st}")
        a("v_mov_b32_dpp v33, v32 quad_perm:[1,0,3,2] row_mask:0xf bank_mask:0xf")
        a("v_cvt_pk_bf16_f32 v52, v32, v33\ns_mov_b32 exec_lo, 0x55555555\ns_mov_b32 exec_hi, 0x55555555")
        a("buffer_store_dwordx2 v[52:53], v50, s[36:39], s52 offen sc1\ns_mov_b64 exec, -1"); a.vm.pop()
        a(f"{Ls}:")
        self.stamp(9)
        while I < len(seq): a.wait_vm_n(W - 1); issue()
    def head_s2(self):
        a = self.a; c = self.c; W, W0, IM = c['W'], c['W0'], c['IQ']
        self.reset([('u', t) for t in range(W0)])
        a(f"""s_lshl_b32 s54, s54, 11
        s_add_u32 s54, s54, {Q + 32768}
        v_lshrrev_b32 v48, 4, v0
        v_lshlrev_b32 v59, 9, v48
        v_and_b32 v49, 15, v0
        v_lshl_add_u32 v59, v49, 4, v59
        v_add_u32 v59, s54, v59
        s_mov_b32 s76, 16384
        v_bfe_u32 v50, v0, 3, 1
        v_lshlrev_b32 v60, 9, v50
        v_lshl_add_u32 v60, v48, 4, v60
        s_lshr_b32 s52, s3, 1
        s_lshl_b32 s52, s52, 7
        s_and_b32 s55, s3, 1
        s_lshl_b32 s55, s55, 6
        s_add_u32 s52, s52, s55
        s_add_u32 s52, s52, {S2L}
        v_add_u32 v60, s52, v60
        v_add_u32 v51, {S2L + 1024}, v1
        v_and_b32 v50, 7, v0
        v_cmp_lt_u32 vcc, 0, v50
        v_cndmask_b32 v60, v60, v51, vcc""")
        self.a_common()
        seq = [('u', t) for t in range(8)] + [('kv', j) for j in range(IM)]
        I = W0
        def issue():
            nonlocal I
            x = seq[I]; I += 1
            self.kv(x[1]) if x[0] == 'kv' else self.uload(x[1])
        def more(n=1):
            for _ in range(n):
                if I < len(seq): a.wait_vm_n((W0 if I < c['n0'] else W) - 1); issue()
        while ('kv', c['iq2'] - 1) in seq[I:]: more()
        def qissue():
            for b in range(2):
                for k in range(2):
                    a(f"buffer_load_dwordx4 v[{10+8*b+4*k}:{13+8*b+4*k}], v59, s[36:39], {'s76' if b else '0'} offen offset:{256*k} sc1", tag='pg')
        qissue()
        while sum(1 for x in a.vm[a.vm.index('pg'):] if x != 'pg') < W - 1: a.wait_vm_n(W + 3); issue()
        self.poll_granules(qissue, QTAGS, 2, first_issued=True, sleep=1)
        self.stamp(9)
        while len(a.vm) < W: issue()
        for n in range(2):
            self.qk([UR + 16 * n + 4 * t for t in range(4)], 36, [44 + 4 * n + t for t in range(4)]); more()
        for k in range(4): a(f"v_cvt_pk_bf16_f32 v{52+k}, v{44+2*k}, v{45+2*k}")
        a("ds_write_b128 v60, v[52:55]")
        a.wait_lg(); a("s_barrier")
        Ls = a.newlabel("L_s2skip")
        a(f"""s_cmp_lg_u32 s3, 7
        s_cbranch_scc1 {Ls}
        v_add_u32 v48, {S2L}, v1
        ds_read_b128 v[52:55], v48
        v_lshrrev_b32 v49, 5, v0
        v_lshlrev_b32 v49, 15, v49
        v_bfe_u32 v50, v0, 3, 2
        v_lshl_add_u32 v49, v50, 10, v49
        v_and_b32 v50, 7, v0
        v_lshl_add_u32 v49, v50, 4, v49
        s_lshr_b32 s52, s56, 1
        s_lshl_b32 s52, s52, 14
        s_and_b32 s54, s57, 3
        s_lshl_b32 s54, s54, 12
        s_add_u32 s52, s52, s54
        s_bfe_u32 s54, s57, 0x20002
        s_lshl_b32 s54, s54, 8
        s_add_u32 s52, s52, s54
        s_and_b32 s54, s56, 1
        s_lshl_b32 s54, s54, 7
        s_add_u32 s52, s52, s54
        s_add_u32 s52, s52, {QABS}""")
        a.wait_lg()
        a("buffer_store_dwordx4 v[52:55], v49, s[36:39], s52 offen sc1"); a.vm.pop()
        a(f"{Ls}:")
        i_store = I
        more(W - 1)
        Ls = a.newlabel("L_s2flag")
        a(f"s_cmp_lg_u32 s3, 7\ns_cbranch_scc1 {Ls}\ns_lshl_b32 s54, s57, 7\ns_add_u32 s54, s54, {FQ}\ns_waitcnt vmcnt({I - i_store})")
        self.flag_store("s54")
        a(f"{Ls}:")
        while I < len(seq): more()
    def qissue(self):
        for h in range(2):
            for k in range(2):
                self.a(f"buffer_load_dwordx4 v[{10+8*h+4*k}:{13+8*h+4*k}], v29, s[36:39], 0 offen offset:{512*h+256*k} sc1", tag='pg')
    def ticket(self, k):
        self.a(f"v_mov_b32 v{TK+k}, 1\ns_mov_b64 exec, 1\nbuffer_atomic_add v{TK+k}, v{ZERO}, s[36:39], s62 offen sc0\ns_mov_b64 exec, -1", tag=('tk', k))
    def unit_loads(self, r, srd, tag=None):
        for t in range(self.c['UT']): self.a(f"buffer_load_dwordx4 v[{r+4*t}:{r+4*t+3}], v1, {srd}, s51 offen offset:{1024*t} nt", tag=tag)
    def t_load(self, k):
        r = TW[k]
        if k < 4: self.a(f"buffer_load_dwordx4 v[{r}:{r+3}], v30, s[68:71], 0 offen offset:{k*1152} nt")
        else: self.a(f"buffer_load_dwordx4 v[{r}:{r+3}], v31, s[68:71], 0 offen offset:{(k-4)*2304} nt")
    def a_static(self):
        a = self.a; c = self.c; W, R, NS, IM = c['W'], c['R'], c['NS'], c['IQ']; ring = self.ring
        assert RING + 4 * R <= 256 and NS % 4 == 0 and SREG + NS // 2 <= ZERO and ring(IM + W) < WR
        assert all(ring(j) >= TW[5] + 4 for j in range(2 * NS - 10, 2 * NS))
        self.reset([('kv', j) for j in range(IM - W, IM)])
        I = IM
        a(f"v_mov_b32 v26, {NEGINF}\nv_mov_b32 v27, 0\nv_mov_b32 v32, 0\nv_mov_b32 v33, 0\nv_mov_b32 v34, 0\nv_mov_b32 v35, 0")
        self.qissue()
        while I < c['ICHK']:
            a.wait_vm_n(W - 1 + (4 if I < IM + W else 0)); self.kv(I); I += 1
        self.stamp(1)
        self.poll_granules(self.qissue, QTAGS, 1, first_issued=True)
        self.stamp(2)
        C = 0
        def landed(j): return ('kv', j) not in a.vm
        def last(C): return C + 3 if C < NS else C + 1
        def consume():
            nonlocal C
            if C < NS:
                n = C // 4
                a.wait_vm(('kv', C + 3))
                self.qk([ring(C + t) for t in range(4)], 36, [44, 45, 46, 47])
                a("v_cvt_pk_bf16_f32 v48, v44, v45\nv_cvt_pk_bf16_f32 v50, v46, v47\nv_max3_f32 v26, v26, v44, v45")
                a("v_and_b32 v49, 0xffff0000, v48\nv_lshlrev_b32 v48, 16, v48\nv_and_b32 v51, 0xffff0000, v50\nv_lshlrev_b32 v50, 16, v50")
                a("v_max3_f32 v26, v26, v46, v47")
                for r in (48, 49, 50, 51): a(f"v_mul_f32 v{r}, {SCALE}, v{r}")
                a(f"v_cvt_pk_bf16_f32 v{SREG+2*n}, v48, v49\nv_cvt_pk_bf16_f32 v{SREG+2*n+1}, v50, v51")
                C += 4
                if C == NS:
                    self.redrows(26, 48, "v_max_f32")
                    a(f"v_cvt_pk_bf16_f32 v48, v26, v26\nv_and_b32 v48, 0xffff0000, v48\nv_mul_f32 v48, {SCALE}, v48")
                    a(f"v_cvt_pk_bf16_f32 v48, v48, v48\nv_and_b32 v26, 0xffff0000, v48\nv_mul_f32 v26, {LOG2E}, v26")
                    self.stamp(3)
            else:
                n = (C - NS) // 2
                a(f"v_lshlrev_b32 v60, 16, v{SREG+n}\nv_and_b32 v61, 0xffff0000, v{SREG+n}")
                a("v_fma_f32 v60, v60, s58, -v26\nv_fma_f32 v61, v61, s58, -v26")
                a("v_exp_f32 v60, v60\nv_exp_f32 v61, v61\nv_add_f32 v27, v27, v60\nv_cvt_pk_bf16_f32 v62, v60, v61\nv_add_f32 v27, v27, v61")
                self.bop(52, 62, 2); self.bop(56, 62, 6)
                for k in range(2):
                    a.wait_vm(('kv', C + k)); self.mfma16(32, ring(C + k), 52 + 4 * k)
                C += 2
        def pace(n):
            tiles = [x for x in a.vm if x[0] != 'tk']
            if len(tiles) > n: a.wait_vm(tiles[len(tiles) - n - 1])
        while I < 2 * NS:
            if I - R < C:
                pace((W if I < c['iW2'] else c['W2']) - 1)
                if I == 2 * NS - 5: self.ticket(0)
                if I == 2 * NS - 3: self.ticket(1)
                self.kv(I); I += 1
                if landed(last(C)) and last(C) < I: consume()
            else: consume()
        for k in range(2):
            pace(c['W2'] - 2 + k * (2 * c['UT'] - 2))
            a.wait_vm(('tk', k))
            a(f"""v_readfirstlane_b32 s52, v{TK+k}
            s_cmp_lt_u32 s52, {self.NF}
            s_cselect_b32 s{76+k}, 0, {NEGINF}
            s_cselect_b32 s54, 0, 0x40000000
            s_lshl_b32 s52, s52, {self.TSH}
            s_add_u32 s51, s61, s52
            s_and_b32 s51, s51, 0x1fffff
            s_or_b32 s51, s51, s54""")
            self.unit_loads(FK[k], "s[40:43]", ('fk', k)); self.unit_loads(FV[k], "s[44:47]", ('fv', k))
            self.ticket(k)
            while C < 2 * NS and landed(last(C)): consume()
        while C < 2 * NS: consume()
        self.stamp(10)
    def unit(self, k, refill):
        a = self.a; UT = self.c['UT']
        self.qk([FK[k] + 4 * t for t in range(UT)], 36, [44, 45], (lambda: self.unit_loads(FK[k], "s[40:43]")) if refill else None)
        a(f"v_cvt_pk_bf16_f32 v48, v44, v{44 + UT - 1}\nv_and_b32 v49, 0xffff0000, v48\nv_lshlrev_b32 v48, 16, v48")
        a(f"v_mul_f32 v49, {SCALE}, v49\nv_mul_f32 v48, {SCALE}, v48\nv_cvt_pk_bf16_f32 v48, v48, v49")
        a(f"v_lshlrev_b32 v44, 16, v48\nv_and_b32 v45, 0xffff0000, v48\nv_add_f32 v44, s{76+k}, v44\nv_add_f32 v45, s{76+k}, v45")
        Ls = a.newlabel("L_nomax")
        a(f"v_fma_f32 v60, v44, s58, -v26\nv_fma_f32 v61, v45, s58, -v26\nv_max_f32 v46, v60, v61\nv_cmp_lt_f32 vcc, 0x41800000, v46\ns_cbranch_vccz {Ls}")
        a("v_max_f32 v46, v44, v45\nv_mul_f32 v46, s58, v46")
        self.redrows(46, 48, "v_max_f32")
        a("v_max_f32 v46, v46, v26\nv_sub_f32 v47, v26, v46\nv_exp_f32 v47, v47\nv_mov_b32 v26, v46\nv_fma_f32 v60, v44, s58, -v46\nv_fma_f32 v61, v45, s58, -v46\nv_mul_f32 v27, v27, v47")
        for r in range(32, 36): a(f"v_mul_f32 v{r}, v{r}, v47")
        a(f"{Ls}:\nv_exp_f32 v60, v60\nv_exp_f32 v61, v61\nv_add_f32 v27, v27, v60\nv_cvt_pk_bf16_f32 v62, v60, v61")
        if UT == 2: a("v_add_f32 v27, v27, v61")
        for t in range(UT): self.bop(52 + 4 * t, 62, 2 + 4 * t)
        for t in range(UT): self.mfma16(32, FV[k] + 4 * t, 52 + 4 * t)
        if refill:
            a(f"s_mov_b32 s{76+k}, 0"); self.unit_loads(FV[k], "s[44:47]"); self.ticket(k)
    def a_pool(self):
        a = self.a; c = self.c
        Ll = a.newlabel("L_pool"); Ld = [a.newlabel("L_drain") for _ in range(2)]; Le = a.newlabel("L_poolend")
        a(f"{Ll}:")
        for k in range(2):
            a(f"""s_waitcnt vmcnt({2 * c['UT'] + 1})
            v_readfirstlane_b32 s52, v{TK+k}
            s_cmp_lt_u32 s52, {self.NF}
            s_cbranch_scc0 {Ld[k]}
            s_lshl_b32 s52, s52, {self.TSH}
            s_add_u32 s51, s61, s52
            s_and_b32 s51, s51, 0x1fffff""")
            self.unit(k, True)
        a(f"s_branch {Ll}")
        n0, n1 = c['twpos']
        for k in range(2):
            a(f"{Ld[k]}:")
            for j in range(n0): self.t_load(j)
            self.unit(k, False)
            for j in range(n0, n0 + n1): self.t_load(j)
            a(f"s_waitcnt vmcnt({1 + n0 + n1})")
            for j in range(n0 + n1, 6): self.t_load(j)
            self.unit(1 - k, False)
            if k == 0: a(f"s_branch {Le}")
        a(f"{Le}:"); a.vm = []
    def a_epilogue(self):
        a = self.a
        self.stamp(4)
        self.redrows(27, 48, "v_add_f32")
        a(f"s_lshl_b32 s52, s3, 10\ns_add_u32 s52, s52, {EB}\nv_add_u32 v48, s52, v1")
        a(f"v_bfe_u32 v49, v0, 3, 1\nv_lshlrev_b32 v49, 6, v49\ns_lshl_b32 s52, s3, 3\ns_add_u32 s52, s52, {EB + 8192}\nv_add_u32 v49, s52, v49")
        a("ds_write_b64 v49, v[26:27]\nds_write_b128 v48, v[32:35]")
        self.acc_addr(28, 52, EB)
        a(f"""s_lshr_b32 s52, s3, 1
        s_lshl_b32 s54, s49, 1
        s_add_u32 s52, s52, s54
        s_lshl_b32 s52, s52, 3
        s_add_u32 s52, s52, s50
        s_lshl_b32 s52, s52, 9
        s_add_u32 s52, s52, {REC}
        s_and_b32 s54, s3, 1
        s_lshl_b32 s55, s54, 8
        v_lshlrev_b32 v50, 2, v0
        v_add_u32 v50, s55, v50
        s_lshr_b32 s55, s3, 1
        s_lshl_b32 s55, s55, 6
        s_add_u32 s55, s55, {EB + 8192}
        v_mov_b32 v51, s55
        v_mov_b32 v59, s35""")
        a.wait_lg(); a("s_barrier")
        self.stamp(8)
        Lu = a.newlabel("L_aup")
        a(f"s_cmp_ge_u32 s3, 4\ns_cbranch_scc1 {Lu}")
        for k in range(4): a(f"ds_read_b128 v[{10+4*k}:{13+4*k}], v51 offset:{16*k}", tag='st')
        for w in range(8): a(f"ds_read_b32 v{36+w}, v28 offset:{1024*w}")
        a.wait_lg('st')
        a("v_max3_f32 v52, v10, v12, v14\nv_max3_f32 v53, v16, v18, v20\nv_max3_f32 v52, v52, v22, v24\nv_max_f32 v52, v52, v53")
        for w in range(8): a(f"v_sub_f32 v{10+2*w}, v{10+2*w}, v52")
        for w in range(8): a(f"v_exp_f32 v{10+2*w}, v{10+2*w}")
        a.wait_lg()
        a("v_mul_f32 v53, v10, v11\nv_mul_f32 v54, v10, v36")
        for w in range(1, 8): a(f"v_fmac_f32 v53, v{10+2*w}, v{11+2*w}\nv_fmac_f32 v54, v{10+2*w}, v{36+w}")
        a("v_rcp_f32 v55, v53\nv_log_f32 v58, v53\nv_mul_f32 v54, v54, v55\nv_add_f32 v58, v58, v52")
        self.rec_store(54)
        a(f"{Lu}:")
        self.stamp(5)
    def a_proj(self):
        a = self.a; c = self.c
        a(f"""v_and_b32 v50, 7, v0
        v_min_u32 v51, 5, v50
        v_and_b32 v52, 1, v0
        s_cmp_eq_u32 s63, 0
        s_cselect_b64 vcc, -1, 0
        s_cselect_b32 s66, 5, 7
        v_cndmask_b32 v51, v52, v51, vcc
        v_bfe_u32 v49, v0, 3, 1
        v_lshl_add_u32 v29, v49, 8, v51
        v_lshlrev_b32 v29, 9, v29
        s_lshl_b32 s52, s63, 6
        s_add_u32 s52, s52, s64
        s_lshl_b32 s52, s52, 12
        s_lshl_b32 s54, s3, 6
        s_add_u32 s52, s52, s54
        s_add_u32 s75, s52, {REC}
        v_lshrrev_b32 v48, 4, v0
        v_lshl_add_u32 v29, v48, 4, v29""")
        def gissue(): a("buffer_load_dwordx4 v[10:13], v29, s[36:39], s75 offen sc1", tag='pg')
        gissue()
        a("v_cmp_lt_u32 s[72:73], s66, v50")
        for r in range(32, 44): a(f"v_mov_b32 v{r}, 0")
        a(f"""v_and_b32 v26, 7, v0
        v_lshlrev_b32 v26, 4, v26
        v_bfe_u32 v48, v0, 3, 2
        v_lshl_add_u32 v26, v48, 2, v26
        v_lshrrev_b32 v48, 5, v0
        s_cmp_ge_u32 s3, 4
        s_cselect_b32 s52, 9, 8
        s_cselect_b32 s54, 8, 9
        s_cselect_b32 s55, 8192, 0
        s_cselect_b32 s56, 1024, 0
        s_add_u32 s55, s55, {TL}
        v_lshl_add_u32 v26, v48, s52, v26
        s_and_b32 s57, s3, 1
        s_lshl_b32 s57, s57, s54
        s_add_u32 s56, s56, s57
        s_add_u32 s55, s55, s57
        s_bfe_u32 s57, s3, 0x10001
        s_lshl_b32 s52, s57, 7
        s_add_u32 s55, s55, s52
        v_add_u32 v26, s55, v26
        s_lshl_b32 s52, s3, 10
        s_add_u32 s52, s52, {TL}
        v_add_u32 v27, s52, v1
        v_lshlrev_b32 v23, 3, v0
        v_add_u32 v23, s56, v23
        s_lshl_b32 s74, s63, 5
        s_add_u32 s74, s74, s64
        s_lshl_b32 s74, s74, 1
        s_add_u32 s74, s74, s57
        s_mul_i32 s74, s74, 4608
        s_mul_i32 s54, s65, 1536
        s_add_u32 s74, s74, s54
        s_add_u32 s74, s74, {PO}
        s_lshl_b32 s57, s57, 3
        v_mov_b32 v59, s35
        v_mov_b32 v47, {NEGINF}""")
        self.poll_granules(gissue, [13], 6, first_issued=True)
        self.stamp(6)
        a("v_cndmask_b32 v46, v12, v47, s[72:73]\nv_lshlrev_b32 v52, 16, v10\nv_mov_b32 v44, v46\nv_and_b32 v53, 0xffff0000, v10\nv_lshlrev_b32 v54, 16, v11")
        self.red8([44], "v_max_f32")
        a("v_sub_f32 v44, v46, v44\nv_and_b32 v55, 0xffff0000, v11\nv_exp_f32 v56, v44")
        for t in range(4): a(f"v_mul_f32 v{52+t}, v56, v{52+t}")
        self.red8([52, 53, 54, 55, 56], "v_add_f32")
        for k in range(2): a(f"v_cvt_pk_bf16_f32 v{20+k}, v{52+2*k}, v{53+2*k}")
        a("v_rcp_f32 v56, v56")
        for k in range(2):
            self.bop(44, 20 + k, 2); self.bop(48, 20 + k, 6)
            self.mfma16(36, TW[4 + k], 44); self.mfma16(40, TW[4 + k], 48)
            self.mfma16(32, TW[2 * k], 44); self.mfma16(32, TW[2 * k + 1], 48)
        a("v_cmp_lt_u32 vcc, 31, v0\nv_mul_f32 v56, s67, v56\nv_readlane_b32 s57, v56, s57")
        for r in range(4): a(f"v_cndmask_b32 v{36+r}, v{36+r}, v{40+r}, vcc")
        a("ds_write_b128 v27, v[36:39] offset:8192\nds_write_b128 v27, v[32:35]")
        a.wait_lg(); a("s_barrier")
        for w in range(8): a(f"ds_read_b32 v{44+w}, v26 offset:{1024*w}")
        a.wait_lg()
        a("v_add_f32 v44, v44, v45\nv_add_f32 v46, v46, v47\nv_add_f32 v48, v48, v49\nv_add_f32 v50, v50, v51\nv_add_f32 v44, v44, v46\nv_add_f32 v48, v48, v50\nv_add_f32 v58, v44, v48")
        Lf = a.newlabel("L_tfull")
        a(f"s_cmp_lt_u32 s3, 4\ns_cbranch_scc1 {Lf}")
        a("v_mov_b32 v49, v58\nv_permlane32_swap_b32 v58, v49\nv_add_f32 v58, v58, v49\ns_mov_b32 exec_hi, 0")
        a(f"{Lf}:\nv_mul_f32 v58, s57, v58\nbuffer_store_dwordx2 v[58:59], v23, s[36:39], s74 offen sc1\ns_mov_b64 exec, -1")
        self.stamp(7)

    def h_front(self):
        a = self.a; c = self.c; WH = c['WH']
        self.reset(['d'] * WH)
        self.late_prologue()
        a("""v_lshrrev_b32 v52, 4, v0
        v_and_b32 v50, 1, v0
        v_bfe_u32 v51, v0, 1, 1
        v_bfe_u32 v53, v0, 2, 2
        v_lshl_add_u32 v51, v51, 2, v53
        v_lshl_add_u32 v50, v51, 1, v50
        v_lshlrev_b32 v50, 7, v50
        v_lshl_add_u32 v50, v51, 4, v50
        v_lshl_add_u32 v50, v52, 14, v50
        s_and_b32 s52, s3, 3
        s_lshl_b32 s52, s52, 11
        v_add_u32 v50, s52, v50""")
        for ks in range(8): a(f"v_xor_b32 v{SA+ks}, {16*ks}, v50")
        a("""v_bfe_u32 v50, v0, 3, 1
        v_lshlrev_b32 v50, 2, v50
        v_lshrrev_b32 v51, 5, v0
        v_lshl_add_u32 v50, v51, 1, v50
        v_bfe_u32 v51, v0, 4, 1
        v_lshlrev_b32 v51, 1, v51
        v_bfe_u32 v53, v0, 1, 1
        v_add_u32 v51, v51, v53
        v_and_b32 v53, 1, v0
        v_lshlrev_b32 v53, 3, v53
        v_bfe_u32 v54, v0, 2, 1
        v_lshl_add_u32 v53, v54, 7, v53
        s_lshl_b32 s52, s3, 13
        v_add_u32 v53, s52, v53
        v_add_u32 v57, s52, v1
        v_add_u32 v58, 0x10000, v57""")
        for hi in range(2):
            a(f"v_add_u32 v54, {hi}, v50\nv_xor_b32 v55, v54, v51\nv_lshl_add_u32 v55, v55, 4, v53\nv_lshl_add_u32 v55, v54, 8, v55")
            for cb in range(2): a(f"v_xor_b32 v{TA + 2*cb + hi}, {64*cb}, v55")
        a(f"""s_lshr_b32 s52, s3, 2
        s_lshl_b32 s52, s52, 4
        v_and_b32 v49, 15, v0
        v_add_u32 v50, s52, v49
        v_mul_u32_u24 v2, 144, v50
        v_lshl_add_u32 v2, v52, 3, v2
        s_and_b32 s54, s3, 3
        s_lshl_b32 s55, s54, 5
        s_add_u32 s55, s55, {PL}
        v_add_u32 v2, s55, v2
        v_and_b32 v51, 31, v0
        v_mul_u32_u24 v3, 144, v51
        v_lshrrev_b32 v53, 5, v0
        v_lshl_add_u32 v3, v53, 4, v3
        v_add_u32 v3, {PL}, v3
        v_lshlrev_b32 v5, 2, v50
        v_add_u32 v5, {ML}, v5
        s_lshl_b32 s55, s54, 7
        v_add_u32 v4, s55, v5
        v_lshlrev_b32 v6, 2, v51
        v_add_u32 v6, {ML}, v6
        v_mov_b32 v7, {NEGINF}
        v_mov_b32 v8, {NEGINF}
        v_mov_b32 v9, 0
        v_lshlrev_b32 v28, 7, v0
        v_add_u32 v28, {FQ}, v28
        s_mov_b32 s58, {LOG2E}
        s_lshl_b32 s65, s63, 15
        s_lshl_b32 s54, s3, 12
        s_add_u32 s65, s65, s54
        s_add_u32 s65, s65, {QABS}
        s_add_u32 s54, s54, {PL}
        v_add_u32 v30, s54, v1
        s_lshr_b32 s54, s3, 2
        s_lshl_b32 s54, s54, 14
        s_add_u32 s54, s54, {PL}
        v_add_u32 v31, s54, v1""")
        for r in range(32): a(f"v_mov_b32 v{ACC+r}, 0")
        self.srd(44, "s22", "s23", 512 * 8192)
        a("""s_and_b32 s52, s2, 1
        s_lshl_b32 s52, s52, 3
        s_add_u32 s52, s52, s3
        s_lshl_b32 s52, s52, 18
        s_lshr_b32 s54, s2, 1
        s_lshl_b32 s54, s54, 8
        s_add_u32 s52, s52, s54
        v_lshlrev_b32 v59, 16, v52
        v_lshl_add_u32 v59, v49, 4, v59
        v_add_u32 v59, s52, v59""")
        self.get_tag()
        for t in range(WH, 16): a.wait_vm_n(WH - 1); self.dma(t)
        for t in range(16):
            q = t % 8; r = R2[q] if t < 8 else UV + 4 * q
            a.wait_vm_n(WH - 1)
            if q == 0: a("s_and_b32 s62, s62, 0x7fffff")
            a(f"s_add_u32 s51, s62, {q*8192}\nbuffer_load_dwordx4 v[{r}:{r+3}], v{DV + (q & 1)}, s[76:79], s51 offen nt", tag='r')
            if q == 7: a("s_add_u32 s62, s62, 0x200000")
        self.stamp(1)
        self.poll_flags(28, 3, 2)
        for n in range(4): a(f"buffer_load_dwordx4 v[{STG+4*n}:{STG+4*n+3}], v1, s[36:39], s65 offen offset:{n*1024} sc1", tag=('q', n))
        for n in range(4):
            a.wait_vm(('q', n)); a(f"ds_write_b128 v30, v[{STG+4*n}:{STG+4*n+3}] offset:{n*1024}")
        a.wait_lg(); a("s_barrier")
        for ks in range(16):
            a(f"ds_read_b128 v[{QR+4*ks}:{QR+4*ks+3}], v31 offset:{ks*1024}")
            if ks == 11: a.wait_lg()
        a.wait_lg()
        self.stamp(2)
    def h_attn(self):
        a = self.a; c = self.c
        Lloop = a.newlabel("L_btile")
        a(f"s_mov_b32 s61, 0\n{Lloop}:\ns_barrier")
        for r in range(4): a(f"v_mov_b32 v{32+r}, 0")
        for ks in range(8): a(f"ds_read_b128 v[{STG+4*ks}:{STG+4*ks+3}], v{SA+ks}", tag=('s', ks))
        for ks in range(16):
            a.wait_lg(('s', ks))
            s = STG + 4 * (ks % 8)
            self.mfma16(32, s, QR + 4 * ks)
            if ks + 8 < 16: a(f"ds_read_b128 v[{s}:{s+3}], v{SA+ks} offset:8192", tag=('s', ks + 8))
        for ks in range(8): a(f"v_xor_b32 v{SA+ks}, 0x10000, v{SA+ks}")
        a("v_cvt_pk_bf16_f32 v36, v32, v33\nv_cvt_pk_bf16_f32 v38, v34, v35")
        a("v_and_b32 v37, 0xffff0000, v36\nv_lshlrev_b32 v36, 16, v36\nv_and_b32 v39, 0xffff0000, v38\nv_lshlrev_b32 v38, 16, v38")
        for r in (36, 37, 38, 39): a(f"v_mul_f32 v{r}, {SCALE}, v{r}")
        a("v_cvt_pk_bf16_f32 v36, v36, v37\nv_cvt_pk_bf16_f32 v38, v38, v39")
        a("v_lshlrev_b32 v32, 16, v36\nv_and_b32 v33, 0xffff0000, v36\nv_lshlrev_b32 v34, 16, v38\nv_and_b32 v35, 0xffff0000, v38")
        a("v_max3_f32 v36, v32, v33, v34\nv_max_f32 v36, v36, v35")
        self.redrows(36, 37, "v_max_f32")
        a("ds_write_b32 v4, v36")
        a.wait_lg(); a("s_barrier")
        a("ds_read2_b32 v[36:37], v5 offset1:32\nds_read2_b32 v[38:39], v5 offset0:64 offset1:96\nds_read2_b32 v[40:41], v6 offset1:32\nds_read2_b32 v[42:43], v6 offset0:64 offset1:96")
        a.wait_lg()
        a("v_max3_f32 v36, v36, v37, v7\nv_max3_f32 v40, v40, v41, v8\nv_max3_f32 v36, v36, v38, v39\nv_max3_f32 v38, v40, v42, v43")
        a("v_sub_f32 v40, v7, v36\nv_sub_f32 v41, v8, v38\nv_mul_f32 v37, s58, v36\nv_mul_f32 v40, s58, v40\nv_mul_f32 v42, s58, v41")
        for r in range(4): a(f"v_fma_f32 v{32+r}, v{32+r}, s58, -v37")
        a("v_exp_f32 v40, v40\nv_exp_f32 v42, v42")
        for r in range(4): a(f"v_exp_f32 v{32+r}, v{32+r}")
        a("v_mov_b32 v7, v36\nv_mov_b32 v8, v38\nv_cvt_pk_bf16_f32 v44, v32, v33\nv_cvt_pk_bf16_f32 v45, v34, v35")
        a("ds_write_b64 v2, v[44:45]")
        a("v_fma_f32 v9, v9, v40, v32\nv_add_f32 v33, v33, v34\nv_add_f32 v9, v9, v35\nv_add_f32 v9, v9, v33\nv_mov_b32 v43, v42")
        for r in range(0, 32, 2): a(f"v_pk_mul_f32 v[{ACC+r}:{ACC+r+1}], v[{ACC+r}:{ACC+r+1}], v[42:43]")
        a.wait_lg(); a("s_barrier")
        for s in range(4): a(f"ds_read_b128 v[{32+4*s}:{35+4*s}], v3 offset:{32*s}", tag='p')
        seq = [(s, cb) for s in range(4) for cb in range(2)]
        def trd(i):
            s, cb = seq[i]
            for hi in range(2):
                a(f"ds_read_b64_tr_b16 v[{STG+4*i+2*hi}:{STG+4*i+2*hi+1}], v{TA+2*cb+hi} offset:{2048*s}", tag=('t', i))
        for i in range(5): trd(i)
        for i in range(8):
            s, cb = seq[i]
            a.wait_lg(('t', i))
            a(f"v_mfma_f32_32x32x16_bf16 v[{ACC+16*cb}:{ACC+16*cb+15}], v[{STG+4*i}:{STG+4*i+3}], v[{32+4*s}:{35+4*s}], v[{ACC+16*cb}:{ACC+16*cb+15}]")
            if i + 5 < 8: trd(i + 5)
        for k in range(4): a(f"v_xor_b32 v{TA+k}, 0x10000, v{TA+k}")
        L1 = a.newlabel("L_rf"); L2 = a.newlabel("L_rf")
        a(f"s_cmp_lg_u32 s61, 0\ns_cbranch_scc1 {L1}")
        for q in range(8): a(f"ds_write_b128 v57, v[{R2[q]}:{R2[q]+3}] offset:{q*1024}")
        a(f"{L1}:\ns_cmp_lg_u32 s61, 1\ns_cbranch_scc1 {L2}")
        for q in range(8): a(f"ds_write_b128 v58, v[{UV+4*q}:{UV+4*q+3}] offset:{q*1024}")
        a("s_waitcnt lgkmcnt(0)")
        for t in range(8): a(f"s_mov_b32 s51, {t*8192}\nbuffer_load_dwordx4 v[{UV+4*t}:{UV+4*t+3}], v59, s[44:47], s51 offen nt")
        a(f"{L2}:\ns_waitcnt lgkmcnt(0)\ns_add_u32 s61, s61, 1\ns_cmp_lg_u32 s61, 4\ns_cbranch_scc1 {Lloop}")
        a.vm = []; a.lg = []
        self.stamp(5)
        self.redrows(9, 37, "v_add_f32")
        a("ds_write_b32 v4, v9 offset:512")
        a.wait_lg(); a("s_barrier")
        a("ds_read2_b32 v[36:37], v6 offset0:128 offset1:160\nds_read2_b32 v[38:39], v6 offset0:192 offset1:224")
        a(f"""v_and_b32 v48, 31, v0
        v_mul_u32_u24 v48, 144, v48
        v_lshrrev_b32 v49, 5, v0
        v_lshl_add_u32 v48, v49, 3, v48
        s_lshl_b32 s54, s3, 13
        v_add_u32 v48, s54, v48
        v_lshrrev_b32 v49, 3, v0
        v_mul_u32_u24 v50, 144, v49
        v_and_b32 v51, 7, v0
        v_lshl_add_u32 v50, v51, 4, v50
        v_add_u32 v50, s54, v50
        v_lshlrev_b32 v52, 10, v49
        v_lshl_add_u32 v52, v51, 4, v52
        s_mul_i32 s52, s2, {c['pbs']}
        s_lshl_b32 s54, s3, 7
        s_add_u32 s52, s52, s54
        s_add_u32 s52, s52, {PB}""")
        a.wait_lg()
        a("v_add_f32 v36, v36, v37\nv_add_f32 v38, v38, v39\nv_add_f32 v36, v36, v38\nv_rcp_f32 v38, v36\nv_log_f32 v40, v36\nv_mov_b32 v39, v38\nv_fma_f32 v40, v8, s58, v40")
        for cb in range(2):
            for rq in range(4):
                r = ACC + 16 * cb + 4 * rq
                a(f"v_pk_mul_f32 v[{r}:{r+1}], v[{r}:{r+1}], v[38:39]\nv_pk_mul_f32 v[{r+2}:{r+3}], v[{r+2}:{r+3}], v[38:39]")
                a(f"v_cvt_pk_bf16_f32 v{r}, v{r}, v{r+1}\nv_cvt_pk_bf16_f32 v{r+1}, v{r+2}, v{r+3}")
                a(f"ds_write_b64 v48, v[{r}:{r+1}] offset:{64*cb + 16*rq}")
        a.wait_lg()
        for n in range(4): a(f"ds_read_b128 v[{STG+4*n}:{STG+4*n+3}], v50 offset:{n*8*144}", tag=('r', n))
        for n in range(4):
            a.wait_lg(('r', n))
            a(f"buffer_store_dwordx4 v[{STG+4*n}:{STG+4*n+3}], v52, s[36:39], s52 offen sc1\ns_add_u32 s52, s52, 8192")
        Ls = a.newlabel("L_nopbs")
        a(f"s_cmp_lg_u32 s3, 0\ns_cbranch_scc1 {Ls}")
        a(f"s_lshl_b32 s52, s2, 7\ns_add_u32 s52, s52, {PBS}\nv_lshlrev_b32 v48, 2, v0\ns_mov_b32 exec_hi, 0")
        a(f"buffer_store_dword v40, v48, s[36:39], s52 offen sc1\ns_mov_b64 exec, -1\n{Ls}:")
        self.stamp(8)
        a("s_waitcnt vmcnt(0)\ns_barrier"); a.vm = []
        self.stamp(9)
        Ls = a.newlabel("L_nofb")
        a(f"s_cmp_lg_u32 s3, 0\ns_cbranch_scc1 {Ls}\ns_lshl_b32 s52, s2, 7\ns_add_u32 s52, s52, {FB}")
        self.flag_store("s52")
        a(f"{Ls}:")
    def h_uv(self):
        a = self.a; pbs = self.c['pbs']; PART = 16384; ST = PART + 16 * 1040
        self.sels()
        a(f"""v_lshlrev_b32 v28, 7, v0
        v_add_u32 v28, {FB}, v28
        v_lshrrev_b32 v48, 5, v0
        v_lshlrev_b32 v29, 7, v48
        v_mul_u32_u24 v31, {pbs}, v48
        v_and_b32 v49, 31, v0
        v_lshl_add_u32 v31, v49, 4, v31
        s_lshr_b32 s54, s2, 1
        s_lshl_b32 s55, s54, 2
        s_lshl_b32 s52, s3, 10
        s_add_u32 s55, s55, s52
        s_add_u32 s55, s55, {PBS}
        v_add_u32 v25, s52, v1
        s_lshl_b32 s56, s2, 9
        s_mul_i32 s52, s3, {8 * pbs}
        s_add_u32 s56, s56, s52
        s_add_u32 s56, s56, {PB}
        s_lshl_b32 s52, s3, 1
        v_add_u32 v50, s52, v48
        v_mul_u32_u24 v26, 1040, v50
        v_lshl_add_u32 v26, v49, 5, v26
        v_add_u32 v26, {PART}, v26
        v_and_b32 v50, 15, v0
        v_mul_u32_u24 v27, 1040, v50
        v_lshrrev_b32 v51, 4, v0
        v_lshl_add_u32 v27, v51, 5, v27
        s_lshl_b32 s52, s3, 7
        s_add_u32 s52, s52, {PART}
        v_add_u32 v27, s52, v27
        v_lshrrev_b32 v50, 1, v50
        v_lshlrev_b32 v24, 3, v50
        v_add_u32 v24, {ST}, v24
        s_lshl_b32 s52, s3, 3
        s_add_u32 s52, s52, {ST}
        v_mov_b32 v23, s52""")
        for r in range(32, 36): a(f"v_mov_b32 v{r}, 0")
        self.acc_addr(30, 48, 0)
        a(f"""s_lshr_b32 s52, s3, 1
        s_lshl_b32 s52, s52, 5
        s_lshr_b32 s54, s2, 1
        s_add_u32 s52, s52, s54
        s_add_u32 s52, s52, 64
        s_lshl_b32 s52, s52, 3
        s_and_b32 s54, s2, 1
        s_add_u32 s52, s52, s54
        s_lshl_b32 s52, s52, 9
        s_add_u32 s52, s52, {REC}
        s_and_b32 s54, s3, 1
        s_lshl_b32 s54, s54, 8
        v_lshlrev_b32 v50, 2, v0
        v_add_u32 v50, s54, v50
        v_mov_b32 v59, s35
        v_mov_b32 v58, 0""")
        self.poll_flags(28, 4, 1)
        self.stamp(10)
        for n in range(4): a(f"buffer_load_dword v{36+n}, v29, s[36:39], s55 offen offset:{256*n} sc1", tag='st')
        for n in range(4): a(f"buffer_load_dwordx4 v[{64+4*n}:{67+4*n}], v31, s[36:39], s56 offen sc1\ns_add_u32 s56, s56, {2 * pbs}", tag=('pb', n))
        a.wait_vm('st')
        a("v_max3_f32 v40, v36, v37, v38\nv_max_f32 v40, v40, v39\nv_mov_b32 v41, v40\nv_permlane32_swap_b32 v40, v41\nv_max_f32 v40, v40, v41")
        for n in range(4): a(f"v_sub_f32 v{36+n}, v{36+n}, v40")
        for n in range(4): a(f"v_exp_f32 v{36+n}, v{36+n}")
        a("v_add_f32 v41, v36, v37\nv_add_f32 v42, v38, v39\nv_add_f32 v41, v41, v42\nv_mov_b32 v42, v41\nv_permlane32_swap_b32 v41, v42\nv_add_f32 v41, v41, v42")
        a("ds_write_b64 v23, v[40:41]")
        for n in range(4):
            a.wait_vm(('pb', n))
            for k in range(4):
                a(f"v_lshlrev_b32 v42, 16, v{64+4*n+k}\nv_and_b32 v43, 0xffff0000, v{64+4*n+k}")
                if n == 0: a(f"v_mul_f32 v{12+2*k}, v36, v42\nv_mul_f32 v{13+2*k}, v36, v43")
                else: a(f"v_fmac_f32 v{12+2*k}, v{36+n}, v42\nv_fmac_f32 v{13+2*k}, v{36+n}, v43")
        a("ds_write_b128 v26, v[12:15]\nds_write_b128 v26, v[16:19] offset:16")
        a.wait_lg(); a("s_barrier")
        a("ds_read_b64 v[40:41], v24\nds_read_b128 v[12:15], v27\nds_read_b128 v[16:19], v27 offset:16")
        a.wait_lg()
        a("v_mov_b32 v42, v40")
        self.red8([42], "v_max_f32")
        a("v_sub_f32 v40, v40, v42\nv_exp_f32 v40, v40\nv_mul_f32 v41, v41, v40")
        self.red8([41], "v_add_f32")
        a("v_rcp_f32 v41, v41\nv_add_f32 v40, v40, v40\nv_mul_f32 v40, v40, v41")
        for k in range(8): a(f"v_mul_f32 v{12+k}, v40, v{12+k}")
        self.red8(list(range(12, 20)), "v_add_f32")
        for k in range(4): a(f"v_cvt_pk_bf16_f32 v{60+k}, v{12+2*k}, v{13+2*k}")
        for k in range(4):
            self.bop(40, 60 + k, 2); self.bop(44, 60 + k, 6)
            self.mfma16(32, UV + 8 * k, 40); self.mfma16(32, UV + 8 * k + 4, 44)
        a("ds_write_b128 v25, v[32:35]")
        a.wait_lg(); a("s_barrier")
        Ls = a.newlabel("L_nostat")
        a(f"s_cmp_ge_u32 s3, 4\ns_cbranch_scc1 {Ls}")
        for w in range(8): a(f"ds_read_b32 v{40+w}, v30 offset:{1024*w}")
        a.wait_lg()
        a("v_add_f32 v40, v40, v41\nv_add_f32 v42, v42, v43\nv_add_f32 v44, v44, v45\nv_add_f32 v46, v46, v47\nv_add_f32 v40, v40, v42\nv_add_f32 v44, v44, v46\nv_add_f32 v54, v40, v44")
        self.rec_store(54)
        a(f"{Ls}:"); a.vm = []
        self.stamp(6)
    def h_final(self, LX):
        a = self.a; c = self.c
        a(f"""s_lshl_b32 s48, s3, 6
        s_add_u32 s48, s48, s2
        s_cmp_ge_u32 s48, 72
        s_cbranch_scc1 {LX}
        s_cmp_ge_u32 s48, 36
        s_cselect_b32 s49, 1, 0
        s_mul_i32 s52, s49, 36
        s_sub_u32 s50, s48, s52
        s_mul_i32 s56, s49, 1152
        s_add_u32 s54, s4, s56
        s_addc_u32 s55, s5, 0""")
        self.srd(40, "s54", "s55", 1152); self.srd(44, "s26", "s27", 1152)
        a("v_lshlrev_b32 v20, 2, v0")
        for k in range(5):
            a(f"buffer_load_dword v{10+k}, v20, s[40:43], 0 offen offset:{256*k}\nbuffer_load_dword v{15+k}, v20, s[44:47], 0 offen offset:{256*k}")
        a(f"""v_lshrrev_b32 v24, 3, v0
        v_mul_u32_u24 v31, 9216, v24
        v_and_b32 v24, 7, v0
        v_lshl_add_u32 v31, v24, 4, v31
        s_mul_i32 s52, s49, 4608
        s_lshl_b32 s54, s50, 7
        s_add_u32 s52, s52, s54
        s_add_u32 s52, s52, {PO}
        v_add_u32 v31, s52, v31
        v_lshlrev_b32 v21, 2, v24
        v_bfe_u32 v24, v0, 4, 1
        v_lshl_add_u32 v21, v24, 1, v21
        s_lshl_b32 s54, s50, 5
        s_add_u32 s56, s56, s54
        v_mov_b32 v22, 0""")
        for n in range(8): a(f"s_mov_b32 s{64+n}, {n*73728}")
        a.wait_vm()
        self.srd(40, "s28", "s29", 2304)
        for k in range(5):
            a(f"""v_lshlrev_b32 v24, 16, v{10+k}
            v_and_b32 v25, 0xffff0000, v{10+k}
            v_lshlrev_b32 v26, 16, v{15+k}
            v_and_b32 v27, 0xffff0000, v{15+k}
            v_mul_f32 v24, v24, v26
            v_mul_f32 v25, v25, v27
            v_cvt_pk_bf16_f32 v24, v24, v25
            v_lshlrev_b32 v25, 16, v24
            v_and_b32 v24, 0xffff0000, v24
            v_add_f32 v22, v22, v25
            v_add_f32 v22, v22, v24""")
        self.red8([22], "v_add_f32")
        a("v_add_f32_dpp v22, v22, v22 row_ror:8 row_mask:0xf bank_mask:0xf")
        self.redrows(22, 24, "v_add_f32")
        a(f"""v_cvt_pk_bf16_f32 v22, v22, v22
        v_and_b32 v22, 0xffff0000, v22
        v_mul_f32 v22, {LOG2E}, v22
        v_exp_f32 v22, -v22
        v_add_f32 v22, 1.0, v22
        v_rcp_f32 v22, v22
        v_cvt_pk_bf16_f32 v22, v22, v22
        v_and_b32 v22, 0xffff0000, v22
        v_sub_f32 v23, 1.0, v22
        v_cvt_pk_bf16_f32 v23, v23, v23
        v_and_b32 v23, 0xffff0000, v23""")
        if c['ftrig'] == 'rec':
            a(f"s_and_b32 s52, s48, 63\ns_lshl_b32 s52, s52, 12\ns_add_u32 s52, s52, {REC + 12}\nv_and_b32 v30, 3, v0\nv_lshlrev_b32 v30, 9, v30\nv_add_u32 v30, s52, v30")
            self.poll_granules(lambda: a("buffer_load_dword v65, v30, s[36:39], 0 offen sc1"), [65], 7, sleep=c['fsleep'])
        else:
            g = c.get('fgrp', 0)
            self.poll_granules(lambda: a(f"buffer_load_dwordx4 v[64:67], v31, s[36:39], s{64+g} offen sc1"), [65, 67], 7, sleep=c['fsleep'])
        def sums(R):
            for k in range(2):
                a(f"v_add_f32 v{32+k}, v{R+2*k}, v{R+4+2*k}\nv_add_f32 v{34+k}, v{R+8+2*k}, v{R+12+2*k}")
                a(f"v_add_f32 v{36+k}, v{R+16+2*k}, v{R+20+2*k}\nv_add_f32 v{38+k}, v{R+24+2*k}, v{R+28+2*k}")
        def gset(k):
            for n in range(8): a(f"buffer_load_dwordx4 v[{64+32*k+4*n}:{67+32*k+4*n}], v31, s[36:39], s{64+n} offen sc1")
        if c['fpipe'] > 1: self.poll_pipe(gset, lambda k: [65 + 32 * k + 2 * j for j in range(16)], 8, c['fpipe'], 8, lambda k: sums(64 + 32 * k))
        else:
            self.poll_granules(lambda: gset(0), [65 + 2 * k for k in range(16)], 8); sums(64)
        a("""v_add_f32 v32, v32, v34
        v_add_f32 v36, v36, v38
        v_add_f32 v33, v33, v35
        v_add_f32 v37, v37, v39
        v_permlane32_swap_b32 v32, v36
        v_permlane32_swap_b32 v33, v37
        v_add_f32 v32, v32, v36
        v_add_f32 v33, v33, v37
        v_permlane16_swap_b32 v32, v33
        v_add_f32 v32, v32, v33
        v_add_f32_dpp v42, v32, v32 row_ror:8 row_mask:0xf bank_mask:0xf
        v_cvt_pk_bf16_f32 v42, v42, v42
        v_and_b32 v42, 0xffff0000, v42
        v_mov_b32 v43, v42
        v_permlane32_swap_b32 v42, v43
        v_mul_f32 v42, v22, v42
        v_mul_f32 v43, v23, v43
        v_cvt_pk_bf16_f32 v42, v42, v43
        v_lshlrev_b32 v43, 16, v42
        v_and_b32 v42, 0xffff0000, v42
        v_add_f32 v42, v42, v43
        v_cvt_pk_bf16_f32 v42, v42, v42
        s_mov_b32 exec_lo, 0x00ff00ff
        s_mov_b32 exec_hi, 0
        buffer_store_short v42, v21, s[40:43], s56 offen""")
        Ls = a.newlabel("L_noep")
        a(f"s_cmp_lg_u32 s48, 0\ns_cbranch_scc1 {Ls}\ns_mov_b64 exec, 1\nv_mov_b32 v44, s35\nv_mov_b32 v45, 0")
        a(f"buffer_store_dword v44, v45, s[36:39], 0 offen\n{Ls}:\ns_mov_b64 exec, -1")
        self.stamp(7)

    def build(self):
        a = self.a
        hdr = open("gated_mix__gqa_block_cached__compressed_kv_cla__decode.s.ref").read().split("; Override launch")[0]
        a.raw(hdr.rstrip())
        a.raw("; @launch grid=(256,1,1) block=(512,1,1) lds=163840")
        a.raw('.amdgcn_target "amdgcn-amd-amdhsa--gfx950"\n.text')
        LS1, LS2, LH, LM, LF, LE = (a.newlabel(x) for x in ("L_headq", "L_headabs", "L_latent", "L_merge", "L_fin", "L_end"))
        self.entry(LS1, LS2, LH, LE)
        a(f"{LH}:"); self.h_front(); self.h_attn(); self.h_uv(); self.h_final(LF); a(f"s_branch {LF}")
        a(f"{LS2}:"); self.head_s2(); a(f"s_branch {LM}")
        a(f"{LS1}:"); self.head_s1()
        a(f"{LM}:"); self.a_static(); self.a_pool(); self.a_epilogue(); self.a_proj()
        a(f"{LF}:"); self.stamp_flush()
        a(f"{LE}:\ns_endpgm")
        a.raw(f""".section .rodata,"a"
.p2align 6
.amdhsa_kernel {KN}
  .amdhsa_next_free_vgpr 256
  .amdhsa_next_free_sgpr 102
  .amdhsa_accum_offset 256
  .amdhsa_group_segment_fixed_size 0
  .amdhsa_kernarg_size 120
  .amdhsa_user_sgpr_count 2
  .amdhsa_user_sgpr_kernarg_segment_ptr 1
  .amdhsa_system_sgpr_workgroup_id_x 1
.end_amdhsa_kernel""")
        return a.text()

def gen(**kw): return G(**kw).build()
if __name__ == "__main__":
    cfg = json.loads(sys.argv[2]) if len(sys.argv) > 2 else {}
    open(sys.argv[1], "w").write(gen(**cfg))
```

```python
import sys, json
sys.path.insert(0, "dev")
from asmlib import Asm
KN = "gated_mix__gqa_block_cached__compressed_kv_cla__decode_kernel"
Q     = 0x1000
QABS  = 0x11000
FQ    = 0x21000
FB    = 0x23000
PBS   = 0x25000
CNT   = 0x27000
REC   = 0x30000
PO    = 0x150000
PB    = 0x200000
STAMP = 0x800000
WS_USED = 0x1000000
LOG2E = 0x3fb8aa3b; SCALE = 0x3db504f3; NEGINF = 0xff800000
DEF = dict(W=4, W2=4, iW2=50, R=40, NS=36, IQ=22, ICHK=26, WH=4, iq2=13, W0=2, n0=8, nsub=4, subrot=3, UT=1, twpos=(0, 2),
           rotb=2, spin=40000, fsleep=6, fsleep2=1, ftrig='po', fgrp=4, fpipe=1, stamps=False, pbs=32768, wsb=0, outf='', rot=65536, xmap=1)
PL = 131072; ML = PL + 4608
TL = 16384; S1L = 32768; S2L = 49152; XL = 57344; EB = 65536
RING = 88; SREG = 64; ZERO = 85; TK = 86
FK = [88, 104]; FV = [96, 112]; TW = [120 + 4 * k for k in range(6)]
WR = 212; UR = 216
QR = 64; ACC = 128; SA = 160; TA = 168; STG = 176; UV = 208; DV = 240
R2 = [12, 16, 20, 24, 172, 244, 248, 252]
QTAGS = [11, 13, 15, 17, 19, 21, 23, 25]

class G:
    def __init__(self, **kw):
        self.c = dict(DEF); self.c.update(kw)
        self.a = Asm(); c = self.c
        self.NF = (2048 - 48 * c['NS']) // c['nsub'] // c['UT']
        self.USH = 10 + c['UT'] - 1
        self.TSH = self.USH + c['nsub'].bit_length() - 1
    def reset(self, vm=()): self.a.vm = list(vm); self.a.lg = []; self.a.hist = []
    def srd(self, d, lo, hi, size):
        self.a(f"s_mov_b32 s{d}, {lo}\ns_and_b32 s{d+1}, {hi}, 0xffff\ns_mov_b32 s{d+2}, {size}\ns_mov_b32 s{d+3}, 0x20000")
    def late_prologue(self):
        if self.c['wsb']: self.a(f"s_add_u32 s32, s32, {self.c['wsb']}\ns_addc_u32 s33, s33, 0")
        self.a("s_load_dword s34, s[32:33], 0"); self.srd(36, "s32", "s33", WS_USED)
    def get_tag(self):
        self.a("s_waitcnt lgkmcnt(0)\ns_mul_i32 s35, s34, 1664525\ns_add_u32 s35, s35, 1013904223"); self.a.lg = []
    def stamp(self, k):
        if self.c['stamps']: self.a(f"s_memrealtime s[{80+2*k}:{81+2*k}]")
    def stamp_flush(self):
        if not self.c['stamps']: return
        a = self.a; L = a.newlabel("L_nost")
        a(f"s_cmp_lg_u32 s3, 0\ns_cbranch_scc1 {L}\ns_waitcnt lgkmcnt(0)")
        for k in range(11): a(f"v_mov_b32 v{2+k}, s{80+2*k}")
        a(f"s_lshl_b32 s52, s2, 6\ns_add_u32 s52, s52, {STAMP}\nv_mov_b32 v1, 0\ns_mov_b64 exec, 1")
        for k in range(3): a(f"buffer_store_dwordx4 v[{2+4*k}:{5+4*k}], v1, s[36:39], s52 offen offset:{16*k}")
        a(f"s_mov_b64 exec, -1\n{L}:")
    def sels(self):
        a = self.a
        a("""v_and_b32 v48, 1, v0
        v_mov_b32 v49, 0x0c0c0100
        v_mov_b32 v50, 0x01000c0c
        v_mov_b32 v51, 0x0c0c0302
        v_mov_b32 v52, 0x03020c0c
        v_mov_b32 v53, 0x0c0c0c0c
        v_cmp_eq_u32 vcc, 1, v48
        v_bfe_u32 v54, v0, 1, 2
        v_cndmask_b32 v49, v49, v50, vcc
        v_cndmask_b32 v51, v51, v52, vcc""")
        for k in range(4): a(f"v_cmp_eq_u32 vcc, {k}, v54\nv_cndmask_b32 v{2+k}, v53, v49, vcc\nv_cndmask_b32 v{6+k}, v53, v51, vcc")
    def timeout(self, code):
        self.a(f"v_mov_b32 v62, {code}\nv_mov_b32 v63, 0\nglobal_store_dword v63, v62, s[30:31]")
    def poll_flags(self, voff, code, sleep):
        a = self.a; Ls = a.newlabel("L_pskip"); Lp = a.newlabel("L_poll")
        keep = a.vm[:]
        a(f"s_cmp_lg_u32 s3, 0\ns_cbranch_scc1 {Ls}\ns_mov_b32 s53, {self.c['spin']}\n{Lp}:")
        a(f"buffer_load_dword v61, v{voff}, s[36:39], 0 offen sc1\ns_waitcnt vmcnt(0)")
        a(f"v_cmp_ne_u32 vcc, s35, v61\ns_cbranch_vccz {Ls}\ns_sleep {sleep}\ns_sub_u32 s53, s53, 1\ns_cbranch_scc0 {Lp}")
        self.timeout(code)
        a(f"{Ls}:\ns_barrier"); a.vm = keep
    def tagcheck(self, tags, t):
        a = self.a
        a(f"v_xor_b32 v{t}, s35, v{tags[0]}")
        for r in tags[1:]: a(f"v_bitop3_b32 v{t}, v{t}, v{r}, s35 bitop3:0xf6")
        a(f"v_cmp_ne_u32 vcc, 0, v{t}")
    def poll_granules(self, issue, tags, code, first_issued=False, sleep=0):
        a = self.a; Lp = a.newlabel("L_gpoll"); Ld = a.newlabel("L_gdone"); Lc = a.newlabel("L_gchk")
        a(f"s_mov_b32 s53, {self.c['spin']}")
        if first_issued:
            a.wait_vm('pg'); self.tagcheck(tags, 48); a(f"s_cbranch_vccz {Ld}")
        save = a.vm[:]
        a(f"{Lp}:")
        issue(); a("s_waitcnt vmcnt(0)")
        self.tagcheck(tags, 48)
        a(f"s_cbranch_vccz {Ld}")
        if sleep: a(f"s_sleep {sleep}")
        a(f"s_sub_u32 s53, s53, 1\ns_cbranch_scc0 {Lp}")
        self.timeout(code)
        a(f"s_waitcnt vmcnt(0)\n{Ld}:")
        a.vm = save if first_issued else []
    def poll_pipe(self, issue, tags, nld, nset, code, take):
        a = self.a; Lp = a.newlabel("L_pp"); Ld = [a.newlabel("L_ppd") for _ in range(nset)]; Le = a.newlabel("L_ppe")
        a(f"s_mov_b32 s53, {self.c['spin']}")
        for k in range(nset - 1): issue(k)
        a(f"{Lp}:")
        for k in range(nset):
            issue((k + nset - 1) % nset)
            a(f"s_waitcnt vmcnt({(nset - 1) * nld})")
            self.tagcheck(tags(k), 48)
            a(f"s_cbranch_vccz {Ld[k]}")
        a(f"s_sub_u32 s53, s53, 1\ns_cbranch_scc0 {Lp}")
        self.timeout(code)
        for k in range(nset):
            a(f"{Ld[k]}:"); take(k)
            if k < nset - 1: a(f"s_branch {Le}")
        a(f"{Le}:"); a.vm = []
    def qk(self, K, T, U, mid=None):
        a = self.a; n = len(K)
        for kk in range(4):
            for t in range(n):
                for h in range(2):
                    a(f"v_dot2_f32_bf16 v{T+2*t+h}, v{K[t]+kk}, v{10+8*h+2*kk}, {'0' if kk == 0 else f'v{T+2*t+h}'}")
        if mid: mid()
        for t in range(n): a(f"v_add_f32_dpp v{U[t]}, v{T+2*t}, v{T+2*t} row_ror:8 row_mask:0xf bank_mask:0x3")
        for t in range(n): a(f"v_add_f32_dpp v{U[t]}, v{T+2*t+1}, v{T+2*t+1} row_ror:8 row_mask:0xf bank_mask:0xc")
        self.red8(U[:n], "v_add_f32")
    def bop(self, dst, src, sel):
        for k in range(4): self.a(f"v_perm_b32 v{dst+k}, v{src}, v{src}, v{sel+k}")
    def red8(self, regs, op):
        for m in ("row_half_mirror", "quad_perm:[1,0,3,2]", "quad_perm:[2,3,0,1]"):
            for r in regs: self.a(f"{op}_dpp v{r}, v{r}, v{r} {m} row_mask:0xf bank_mask:0xf")
    def redrows(self, r, t, op):
        self.a(f"v_mov_b32 v{t}, v{r}\nv_permlane16_swap_b32 v{r}, v{t}\n{op} v{r}, v{r}, v{t}")
        self.a(f"v_mov_b32 v{t}, v{r}\nv_permlane32_swap_b32 v{r}, v{t}\n{op} v{r}, v{r}, v{t}")
    def mfma16(self, d, A, B): self.a(f"v_mfma_f32_16x16x32_bf16 v[{d}:{d+3}], v[{A}:{A+3}], v[{B}:{B+3}], v[{d}:{d+3}]")
    def acc_addr(self, dst, t, base):
        self.a(f"""v_and_b32 v{dst}, 7, v0
        v_lshlrev_b32 v{dst}, 4, v{dst}
        v_bfe_u32 v{t}, v0, 3, 2
        v_lshl_add_u32 v{dst}, v{t}, 2, v{dst}
        v_lshrrev_b32 v{t}, 5, v0
        v_lshl_add_u32 v{dst}, v{t}, 8, v{dst}
        s_and_b32 s52, s3, 1
        s_lshl_b32 s52, s52, 9
        s_lshr_b32 s54, s3, 1
        s_lshl_b32 s54, s54, 7
        s_add_u32 s52, s52, s54
        s_add_u32 s52, s52, {base}
        v_add_u32 v{dst}, s52, v{dst}""")
    def rec_store(self, r):
        a = self.a
        a(f"v_mov_b32_dpp v55, v{r} quad_perm:[1,0,3,2] row_mask:0xf bank_mask:0xf\nv_cvt_pk_bf16_f32 v56, v{r}, v55")
        a("v_mov_b32_dpp v57, v56 quad_perm:[2,3,0,1] row_mask:0xf bank_mask:0xf\ns_mov_b32 exec_lo, 0x11111111\ns_mov_b32 exec_hi, 0x11111111")
        a("buffer_store_dwordx4 v[56:59], v50, s[36:39], s52 offen sc1\ns_mov_b64 exec, -1"); a.vm.pop()
    def flag_store(self, sreg):
        self.a(f"v_mov_b32 v50, s35\nv_mov_b32 v51, 0\ns_mov_b64 exec, 1\nbuffer_store_dword v50, v51, s[36:39], {sreg} offen sc1\ns_mov_b64 exec, -1"); self.a.vm.pop()

    def wload(self, t): self.a(f"s_mov_b32 s51, {t*16384}\nbuffer_load_dwordx4 v[{WR+4*t}:{WR+4*t+3}], v28, s[72:75], s51 offen nt", tag=('w', t))
    def uload(self, t): self.a(f"s_mov_b32 s51, {t*8192}\nbuffer_load_dwordx4 v[{UR+4*t}:{UR+4*t+3}], v28, s[72:75], s51 offen nt", tag=('u', t))
    def dma(self, t):
        a = self.a; q = t % 8
        if q == 0: a("s_and_b32 s62, s62, 0x7fffff")
        a(f"s_add_u32 m0, s60, {q*1024}\ns_add_u32 s51, s62, {q*8192}\nbuffer_load_dwordx4 v{DV + (q & 1)}, s[76:79], s51 offen nt lds", tag='d')
        if q == 7: a("s_add_u32 s62, s62, 0x200000\ns_xor_b32 s60, s60, 0x10000")
    def entry(self, LS1, LS2, LH, LE):
        a = self.a; c = self.c
        a.raw(f".globl {KN}\n.p2align 8\n.type {KN},@function\n{KN}:")
        a(f"s_cmp_ge_u32 s2, 256\ns_cbranch_scc1 {LE}")
        self.stamp(0)
        L2 = a.newlabel("L_e2"); L3 = a.newlabel("L_eh"); L4 = a.newlabel("L_e1")
        a(f"""s_load_dwordx16 s[4:19], s[0:1], 0
        s_load_dwordx8 s[20:27], s[0:1], 64
        s_load_dwordx4 s[28:31], s[0:1], 96
        s_load_dwordx2 s[32:33], s[0:1], 112
        v_lshrrev_b32 v1, 6, v0
        v_and_b32 v0, 63, v0
        v_readfirstlane_b32 s3, v1
        v_lshlrev_b32 v1, 4, v0
        s_cmp_lt_u32 s2, 64
        s_cbranch_scc1 {L3}""")
        if c['xmap']:
            a(f"""s_sub_u32 s48, s2, 64
            s_mul_i32 s49, s48, 171
            s_lshr_b32 s49, s49, 12
            s_mul_i32 s52, s49, 24
            s_sub_u32 s52, s48, s52
            s_lshr_b32 s54, s52, 3
            s_bfe_u32 s55, s52, 0x10002
            s_add_u32 s52, s52, s54
            s_add_u32 s52, s52, 1
            s_and_b32 s52, s52, 3
            s_lshl_b32 s49, s49, 2
            s_add_u32 s49, s49, s52
            s_lshl_b32 s50, s54, 1
            s_add_u32 s50, s50, s55
            s_lshl_b32 s57, s49, 1
            s_cmp_eq_u32 s54, 2
            s_cselect_b32 s66, 2, s55
            s_cselect_b32 s52, s55, s54
            s_add_u32 s57, s57, s52
            s_cmp_eq_u32 s66, 2
            s_cbranch_scc1 {L2}""")
        else:
            a(f"""s_sub_u32 s48, s2, 64
            s_mul_i32 s49, s48, 171
            s_lshr_b32 s49, s49, 10
            s_mul_i32 s50, s49, 6
            s_sub_u32 s50, s48, s50
            s_cmp_ge_u32 s50, 3
            s_cselect_b32 s52, 3, 0
            s_cselect_b32 s57, 1, 0
            s_sub_u32 s66, s50, s52
            s_lshl_b32 s52, s49, 1
            s_add_u32 s57, s57, s52
            s_cmp_eq_u32 s66, 2
            s_cbranch_scc1 {L2}""")
        a("""v_lshrrev_b32 v48, 4, v0
        v_mul_u32_u24 v49, 18, v48
        v_bfe_u32 v50, v0, 3, 1
        v_add_u32 v51, v49, v50
        s_mul_i32 s52, s3, 72
        v_add_u32 v51, s52, v51
        v_lshlrev_b32 v28, 13, v51
        v_and_b32 v51, 7, v0
        v_lshl_add_u32 v28, v51, 4, v28
        s_lshl_b32 s54, s57, 7
        v_add_u32 v28, s54, v28
        v_lshlrev_b32 v62, 3, v0
        v_add_u32 v51, 1008, v62
        v_cmp_lt_u32 vcc, 17, v0
        s_lshl_b32 s52, s52, 1
        v_mov_b32 v52, 0x10000
        v_cndmask_b32 v63, v62, v51, vcc
        v_cmp_lt_u32 vcc, 35, v0
        v_add_u32 v63, s52, v63
        s_cmp_eq_u32 s66, 0
        v_cndmask_b32 v63, v63, v52, vcc
        s_waitcnt lgkmcnt(0)
        s_cselect_b32 s54, s18, s10
        s_cselect_b32 s55, s19, s11""")
        self.srd(72, "s54", "s55", 576 * 8192); self.srd(76, "s4", "s5", 2304)
        a("buffer_load_dwordx2 v[20:21], v63, s[76:79], 0 offen")
        for t in range(c['W0']): self.wload(t)
        a(f"s_cmp_lg_u32 s66, 0\ns_cbranch_scc1 {LS1}")
        for t in range(c['W0'], 4): self.wload(t)
        a(f"s_branch {LS1}")
        a(f"{L2}:"); self.reset()
        a("""s_lshr_b32 s56, s57, 4
        s_and_b32 s52, s57, 15
        s_lshl_b32 s52, s52, 2
        s_lshr_b32 s54, s3, 1
        s_add_u32 s52, s52, s54
        s_lshl_b32 s52, s52, 16
        s_lshl_b32 s54, s56, 1
        s_and_b32 s55, s3, 1
        s_add_u32 s54, s54, s55
        s_lshl_b32 s55, s54, 10
        s_add_u32 s52, s52, s55
        v_add_u32 v28, s52, v1
        s_waitcnt lgkmcnt(0)""")
        self.srd(72, "s20", "s21", 512 * 8192)
        for t in range(c['W0']): self.uload(t)
        a(f"s_branch {LS2}")
        a(f"{L3}:"); self.reset()
        a("v_lshrrev_b32 v48, 3, v0\nv_and_b32 v49, 7, v0\ns_lshl_b32 s52, s3, 7\nv_lshlrev_b32 v50, 10, v48\nv_add_u32 v50, s52, v50\nv_lshrrev_b32 v52, 4, v0")
        for q in range(2): a(f"v_add_u32 v51, {4*q}, v52\nv_xor_b32 v51, v51, v49\nv_lshl_add_u32 v{DV+q}, v51, 4, v50")
        a(f"""s_lshr_b32 s63, s2, 5
        s_and_b32 s64, s2, 31
        s_lshl_b32 s60, s3, 13
        s_mul_i32 s62, s63, {c['rotb'] << 21}
        s_lshl_b32 s52, s64, 16
        s_add_u32 s62, s62, s52
        s_lshl_b32 s52, s63, 23
        s_waitcnt lgkmcnt(0)
        s_add_u32 s54, s16, s52
        s_addc_u32 s55, s17, 0""")
        self.srd(76, "s54", "s55", 0x800000)
        for t in range(c['WH']): self.dma(t)
        a(f"s_branch {LH}")

    def a_common(self):
        a = self.a; c = self.c
        self.late_prologue()
        a("s_lshl_b32 s52, s49, 21\ns_add_u32 s54, s6, s52\ns_addc_u32 s55, s7, 0")
        self.srd(40, "s54", "s55", 0x200000)
        a("s_add_u32 s54, s8, s52\ns_addc_u32 s55, s9, 0")
        self.srd(44, "s54", "s55", 0x200000)
        a(f"""s_mul_i32 s52, s49, {c['rot']}
        s_lshl_b32 s60, s50, 3
        s_add_u32 s60, s60, s3
        s_lshl_b32 s60, s60, 12
        s_add_u32 s60, s60, s52
        s_mul_i32 s54, s50, {c['subrot']}
        s_add_u32 s54, s54, s3
        s_and_b32 s54, s54, {c['nsub'] - 1}
        s_lshl_b32 s61, s54, {self.USH}
        s_add_u32 s61, s61, s52
        s_add_u32 s61, s61, {c['NS']*48*1024}
        s_lshl_b32 s62, s49, 3
        s_add_u32 s62, s62, s54
        s_lshl_b32 s62, s62, 7
        s_add_u32 s62, s62, {CNT}
        s_lshl_b32 s52, s49, 10
        s_add_u32 s52, s52, {Q}
        v_and_b32 v29, 15, v0
        v_lshlrev_b32 v29, 4, v29
        v_add_u32 v29, s52, v29
        s_mov_b32 s58, {LOG2E}
        v_mov_b32 v{ZERO}, 0""")
        self.sels()
        a("""s_cmp_ge_u32 s48, 96
        s_cselect_b32 s63, 1, 0
        s_cselect_b32 s54, s24, s12
        s_cselect_b32 s55, s25, s13
        s_cselect_b32 s67, 2.0, 1.0
        s_mul_i32 s52, s63, 96
        s_sub_u32 s52, s48, s52
        s_mul_i32 s64, s52, 171
        s_lshr_b32 s64, s64, 9
        s_mul_i32 s65, s64, 3
        s_sub_u32 s65, s52, s65""")
        self.srd(68, "s54", "s55", 4096 * 1152)
        a("""s_lshl_b32 s52, s64, 3
        s_add_u32 s52, s52, s3
        s_mul_i32 s52, s52, 18432
        s_mul_i32 s54, s65, 384
        s_add_u32 s52, s52, s54
        v_lshrrev_b32 v48, 4, v0
        v_mul_u32_u24 v30, 4608, v48
        v_add_u32 v30, s52, v30
        v_bfe_u32 v49, v0, 3, 1
        v_mul_u32_u24 v31, 1152, v49
        v_add_u32 v31, v31, v30
        v_and_b32 v50, 7, v0
        v_lshl_add_u32 v31, v50, 4, v31
        v_add_u32 v31, 256, v31
        v_and_b32 v51, 15, v0
        v_lshl_add_u32 v30, v51, 4, v30""")
        self.get_tag()
    def ring(self, j): return RING + 4 * (j % self.c['R'])
    def kv(self, j):
        a = self.a; NS = self.c['NS']; jj = j % NS
        if jj % 4 == 0: a(f"s_add_u32 s51, s60, {(jj//4)*48*4096}\ns_and_b32 s51, s51, 0x1fffff")
        a(f"buffer_load_dwordx4 v[{self.ring(j)}:{self.ring(j)+3}], v1, {'s[40:43]' if j < NS else 's[44:47]'}, s51 offen offset:{(jj % 4) * 1024} nt", tag=('kv', j))
    def head_s1(self):
        a = self.a; c = self.c; W, W0, IM = c['W'], c['W0'], c['IQ']
        self.reset(['x'] + [('w', t) for t in range(4)])
        a(f"""v_lshrrev_b32 v48, 4, v0
        v_mul_u32_u24 v61, 36, v48
        v_bfe_u32 v50, v0, 3, 1
        v_mul_u32_u24 v50, 144, v50
        s_lshl_b32 s54, s3, 9
        s_add_u32 s54, s54, {XL}
        v_add3_u32 v61, v61, v50, s54
        v_add_u32 v62, s54, v62
        s_cmp_eq_u32 s66, 0
        s_cselect_b32 s56, 32768, 0
        s_lshr_b32 s54, s57, 1
        s_lshl_b32 s54, s54, 9
        s_add_u32 s56, s56, s54
        s_and_b32 s54, s57, 1
        s_lshl_b32 s54, s54, 7
        s_add_u32 s56, s56, s54
        s_add_u32 s56, s56, {Q}""")
        self.a_common()
        Ly = a.newlabel("L_y"); Lz = a.newlabel("L_nozero")
        a(f"s_cmp_eq_u32 s66, 0\ns_cbranch_scc1 {Ly}")
        a(f"""s_and_b32 s52, s57, 3
        s_lshr_b32 s54, s3, 1
        s_or_b32 s52, s52, s54
        s_cmp_lg_u32 s52, 0
        s_cbranch_scc1 {Lz}
        s_lshl_b32 s52, s3, 4
        s_lshr_b32 s54, s57, 2
        s_add_u32 s52, s52, s54
        s_lshl_b32 s52, s52, 10
        s_add_u32 s52, s52, {CNT}
        v_lshlrev_b32 v48, 7, v0
        s_mov_b64 exec, 0xff
        buffer_store_dword v{ZERO}, v48, s[36:39], s52 offen sc1
        s_mov_b64 exec, -1
        {Lz}:"""); a.vm.pop()
        keep = a.vm[:]
        for t in range(W0, 4): a(f"s_waitcnt vmcnt({W0 - 1})"); self.wload(t)
        a.vm = keep
        a(f"{Ly}:")
        seq = [('w', t) for t in range(4, 9)] + [('kv', j) for j in range(IM)]
        I = 0
        def issue():
            nonlocal I
            x = seq[I]; I += 1
            if I + 3 < c['n0']:
                L = a.newlabel("L_y"); a(f"s_cmp_eq_u32 s66, 0\ns_cbranch_scc1 {L}\ns_waitcnt vmcnt({W0 - 1})\n{L}:")
            self.kv(x[1]) if x[0] == 'kv' else self.wload(x[1])
        for r in range(32, 40): a(f"v_mov_b32 v{r}, 0")
        a.wait_vm('x')
        a("ds_write_b64 v62, v[20:21]")
        for k in range(4): a(f"ds_read2_b32 v[{10+2*k}:{11+2*k}], v61 offset0:{2*k} offset1:{2*k+1}")
        a("ds_read_b32 v18, v61 offset:32")
        a.wait_lg()
        for t in range(9):
            self.bop(40, 10 + t, 2); self.bop(44, 10 + t, 6)
            a.wait_vm(('w', t))
            while I < len(seq) and len(a.vm) < (4 if I < 5 else W): issue()
            self.mfma16(32, WR + 4 * t, 40); self.mfma16(36, WR + 4 * t, 44)
        a(f"v_cmp_lt_u32 vcc, 31, v0\ns_lshl_b32 s52, s3, 10\ns_add_u32 s52, s52, {S1L}\nv_add_u32 v48, s52, v1")
        for r in range(4): a(f"v_cndmask_b32 v{32+r}, v{32+r}, v{36+r}, vcc")
        a("ds_write_b128 v48, v[32:35]")
        a.wait_lg(); a("s_barrier")
        Ls = a.newlabel("L_s1skip")
        a(f"""s_cmp_ge_u32 s3, 2
        s_cbranch_scc1 {Ls}
        v_and_b32 v48, 7, v0
        v_lshlrev_b32 v48, 4, v48
        v_bfe_u32 v49, v0, 3, 2
        v_lshl_add_u32 v48, v49, 2, v48
        v_lshrrev_b32 v49, 5, v0
        v_lshl_add_u32 v48, v49, 8, v48
        s_lshl_b32 s52, s3, 7
        s_add_u32 s52, s52, {S1L}
        v_add_u32 v48, s52, v48""")
        for s in range(16):
            a(f"ds_read_b32 v{32+s}, v48 offset:{512*s}")
            if s == 11: a.wait_lg()
        a("""s_lshl_b32 s52, s3, 14
        s_add_u32 s52, s52, s56
        v_mov_b32 v53, s35
        v_bfe_u32 v50, v0, 2, 1
        v_lshlrev_b32 v50, 8, v50
        v_lshrrev_b32 v51, 3, v0
        v_lshl_add_u32 v50, v51, 4, v50
        v_bfe_u32 v51, v0, 1, 1
        v_lshl_add_u32 v50, v51, 3, v50""")
        a.wait_lg()
        for st in (8, 4, 2, 1):
            for s in range(st): a(f"v_add_f32 v{32+s}, v{32+s}, v{32+s+st}")
        a("v_mov_b32_dpp v33, v32 quad_perm:[1,0,3,2] row_mask:0xf bank_mask:0xf")
        a("v_cvt_pk_bf16_f32 v52, v32, v33\ns_mov_b32 exec_lo, 0x55555555\ns_mov_b32 exec_hi, 0x55555555")
        a("buffer_store_dwordx2 v[52:53], v50, s[36:39], s52 offen sc1\ns_mov_b64 exec, -1"); a.vm.pop()
        a(f"{Ls}:")
        self.stamp(9)
        while I < len(seq): a.wait_vm_n(W - 1); issue()
    def head_s2(self):
        a = self.a; c = self.c; W, W0, IM = c['W'], c['W0'], c['IQ']
        self.reset([('u', t) for t in range(W0)])
        a(f"""s_lshl_b32 s54, s54, 11
        s_add_u32 s54, s54, {Q + 32768}
        v_lshrrev_b32 v48, 4, v0
        v_lshlrev_b32 v59, 9, v48
        v_and_b32 v49, 15, v0
        v_lshl_add_u32 v59, v49, 4, v59
        v_add_u32 v59, s54, v59
        s_mov_b32 s76, 16384
        v_bfe_u32 v50, v0, 3, 1
        v_lshlrev_b32 v60, 9, v50
        v_lshl_add_u32 v60, v48, 4, v60
        s_lshr_b32 s52, s3, 1
        s_lshl_b32 s52, s52, 7
        s_and_b32 s55, s3, 1
        s_lshl_b32 s55, s55, 6
        s_add_u32 s52, s52, s55
        s_add_u32 s52, s52, {S2L}
        v_add_u32 v60, s52, v60
        v_add_u32 v51, {S2L + 1024}, v1
        v_and_b32 v50, 7, v0
        v_cmp_lt_u32 vcc, 0, v50
        v_cndmask_b32 v60, v60, v51, vcc""")
        self.a_common()
        seq = [('u', t) for t in range(8)] + [('kv', j) for j in range(IM)]
        I = W0
        def issue():
            nonlocal I
            x = seq[I]; I += 1
            self.kv(x[1]) if x[0] == 'kv' else self.uload(x[1])
        def more(n=1):
            for _ in range(n):
                if I < len(seq): a.wait_vm_n((W0 if I < c['n0'] else W) - 1); issue()
        while ('kv', c['iq2'] - 1) in seq[I:]: more()
        def qissue():
            for b in range(2):
                for k in range(2):
                    a(f"buffer_load_dwordx4 v[{10+8*b+4*k}:{13+8*b+4*k}], v59, s[36:39], {'s76' if b else '0'} offen offset:{256*k} sc1", tag='pg')
        qissue()
        while sum(1 for x in a.vm[a.vm.index('pg'):] if x != 'pg') < W - 1: a.wait_vm_n(W + 3); issue()
        if not c.get('dQ'): self.poll_granules(qissue, QTAGS, 2, first_issued=True, sleep=1)
        self.stamp(9)
        while len(a.vm) < W: issue()
        for n in range(2):
            self.qk([UR + 16 * n + 4 * t for t in range(4)], 36, [44 + 4 * n + t for t in range(4)]); more()
        for k in range(4): a(f"v_cvt_pk_bf16_f32 v{52+k}, v{44+2*k}, v{45+2*k}")
        a("ds_write_b128 v60, v[52:55]")
        a.wait_lg(); a("s_barrier")
        Ls = a.newlabel("L_s2skip")
        a(f"""s_cmp_lg_u32 s3, 7
        s_cbranch_scc1 {Ls}
        v_add_u32 v48, {S2L}, v1
        ds_read_b128 v[52:55], v48
        v_lshrrev_b32 v49, 5, v0
        v_lshlrev_b32 v49, 15, v49
        v_bfe_u32 v50, v0, 3, 2
        v_lshl_add_u32 v49, v50, 10, v49
        v_and_b32 v50, 7, v0
        v_lshl_add_u32 v49, v50, 4, v49
        s_lshr_b32 s52, s56, 1
        s_lshl_b32 s52, s52, 14
        s_and_b32 s54, s57, 3
        s_lshl_b32 s54, s54, 12
        s_add_u32 s52, s52, s54
        s_bfe_u32 s54, s57, 0x20002
        s_lshl_b32 s54, s54, 8
        s_add_u32 s52, s52, s54
        s_and_b32 s54, s56, 1
        s_lshl_b32 s54, s54, 7
        s_add_u32 s52, s52, s54
        s_add_u32 s52, s52, {QABS}""")
        a.wait_lg()
        a("buffer_store_dwordx4 v[52:55], v49, s[36:39], s52 offen sc1"); a.vm.pop()
        a(f"{Ls}:")
        i_store = I
        more(W - 1)
        Ls = a.newlabel("L_s2flag")
        a(f"s_cmp_lg_u32 s3, 7\ns_cbranch_scc1 {Ls}\ns_lshl_b32 s54, s57, 7\ns_add_u32 s54, s54, {FQ}\ns_waitcnt vmcnt({I - i_store})")
        self.flag_store("s54")
        a(f"{Ls}:")
        while I < len(seq): more()
    def qissue(self):
        for h in range(2):
            for k in range(2):
                self.a(f"buffer_load_dwordx4 v[{10+8*h+4*k}:{13+8*h+4*k}], v29, s[36:39], 0 offen offset:{512*h+256*k} sc1", tag='pg')
    def ticket(self, k):
        self.a(f"v_mov_b32 v{TK+k}, 1\ns_mov_b64 exec, 1\nbuffer_atomic_add v{TK+k}, v{ZERO}, s[36:39], s62 offen sc0\ns_mov_b64 exec, -1", tag=('tk', k))
    def unit_loads(self, r, srd, tag=None):
        for t in range(self.c['UT']): self.a(f"buffer_load_dwordx4 v[{r+4*t}:{r+4*t+3}], v1, {srd}, s51 offen offset:{1024*t} nt", tag=tag)
    def t_load(self, k):
        r = TW[k]
        if k < 4: self.a(f"buffer_load_dwordx4 v[{r}:{r+3}], v30, s[68:71], 0 offen offset:{k*1152} nt")
        else: self.a(f"buffer_load_dwordx4 v[{r}:{r+3}], v31, s[68:71], 0 offen offset:{(k-4)*2304} nt")
    def a_static(self):
        a = self.a; c = self.c; W, R, NS, IM = c['W'], c['R'], c['NS'], c['IQ']; ring = self.ring
        assert RING + 4 * R <= 256 and NS % 4 == 0 and SREG + NS // 2 <= ZERO and ring(IM + W) < WR
        assert all(ring(j) >= TW[5] + 4 for j in range(2 * NS - 10, 2 * NS))
        self.reset([('kv', j) for j in range(IM - W, IM)])
        I = IM
        a(f"v_mov_b32 v26, {NEGINF}\nv_mov_b32 v27, 0\nv_mov_b32 v32, 0\nv_mov_b32 v33, 0\nv_mov_b32 v34, 0\nv_mov_b32 v35, 0")
        self.qissue()
        while I < c['ICHK']:
            a.wait_vm_n(W - 1 + (4 if I < IM + W else 0)); self.kv(I); I += 1
        self.stamp(1)
        if not c.get('dQ'): self.poll_granules(self.qissue, QTAGS, 1, first_issued=True)
        self.stamp(2)
        C = 0
        def landed(j): return ('kv', j) not in a.vm
        def last(C): return C + 3 if C < NS else C + 1
        def consume():
            nonlocal C
            if C < NS:
                n = C // 4
                a.wait_vm(('kv', C + 3))
                self.qk([ring(C + t) for t in range(4)], 36, [44, 45, 46, 47])
                a("v_cvt_pk_bf16_f32 v48, v44, v45\nv_cvt_pk_bf16_f32 v50, v46, v47\nv_max3_f32 v26, v26, v44, v45")
                a("v_and_b32 v49, 0xffff0000, v48\nv_lshlrev_b32 v48, 16, v48\nv_and_b32 v51, 0xffff0000, v50\nv_lshlrev_b32 v50, 16, v50")
                a("v_max3_f32 v26, v26, v46, v47")
                for r in (48, 49, 50, 51): a(f"v_mul_f32 v{r}, {SCALE}, v{r}")
                a(f"v_cvt_pk_bf16_f32 v{SREG+2*n}, v48, v49\nv_cvt_pk_bf16_f32 v{SREG+2*n+1}, v50, v51")
                C += 4
                if C == NS:
                    self.redrows(26, 48, "v_max_f32")
                    a(f"v_cvt_pk_bf16_f32 v48, v26, v26\nv_and_b32 v48, 0xffff0000, v48\nv_mul_f32 v48, {SCALE}, v48")
                    a(f"v_cvt_pk_bf16_f32 v48, v48, v48\nv_and_b32 v26, 0xffff0000, v48\nv_mul_f32 v26, {LOG2E}, v26")
                    self.stamp(3)
            else:
                n = (C - NS) // 2
                a(f"v_lshlrev_b32 v60, 16, v{SREG+n}\nv_and_b32 v61, 0xffff0000, v{SREG+n}")
                a("v_fma_f32 v60, v60, s58, -v26\nv_fma_f32 v61, v61, s58, -v26")
                a("v_exp_f32 v60, v60\nv_exp_f32 v61, v61\nv_add_f32 v27, v27, v60\nv_cvt_pk_bf16_f32 v62, v60, v61\nv_add_f32 v27, v27, v61")
                self.bop(52, 62, 2); self.bop(56, 62, 6)
                for k in range(2):
                    a.wait_vm(('kv', C + k)); self.mfma16(32, ring(C + k), 52 + 4 * k)
                C += 2
        def pace(n):
            tiles = [x for x in a.vm if x[0] != 'tk']
            if len(tiles) > n: a.wait_vm(tiles[len(tiles) - n - 1])
        while I < 2 * NS:
            if I - R < C:
                pace((W if I < c['iW2'] else c['W2']) - 1)
                if I == 2 * NS - 5: self.ticket(0)
                if I == 2 * NS - 3: self.ticket(1)
                self.kv(I); I += 1
                if landed(last(C)) and last(C) < I: consume()
            else: consume()
        for k in range(2):
            pace(c['W2'] - 2 + k * (2 * c['UT'] - 2))
            a.wait_vm(('tk', k))
            a(f"""v_readfirstlane_b32 s52, v{TK+k}
            s_cmp_lt_u32 s52, {self.NF}
            s_cselect_b32 s{76+k}, 0, {NEGINF}
            s_cselect_b32 s54, 0, 0x40000000
            s_lshl_b32 s52, s52, {self.TSH}
            s_add_u32 s51, s61, s52
            s_and_b32 s51, s51, 0x1fffff
            s_or_b32 s51, s51, s54""")
            self.unit_loads(FK[k], "s[40:43]", ('fk', k)); self.unit_loads(FV[k], "s[44:47]", ('fv', k))
            self.ticket(k)
            while C < 2 * NS and landed(last(C)): consume()
        while C < 2 * NS: consume()
        self.stamp(10)
    def unit(self, k, refill):
        a = self.a; UT = self.c['UT']
        self.qk([FK[k] + 4 * t for t in range(UT)], 36, [44, 45], (lambda: self.unit_loads(FK[k], "s[40:43]")) if refill else None)
        a(f"v_cvt_pk_bf16_f32 v48, v44, v{44 + UT - 1}\nv_and_b32 v49, 0xffff0000, v48\nv_lshlrev_b32 v48, 16, v48")
        a(f"v_mul_f32 v49, {SCALE}, v49\nv_mul_f32 v48, {SCALE}, v48\nv_cvt_pk_bf16_f32 v48, v48, v49")
        a(f"v_lshlrev_b32 v44, 16, v48\nv_and_b32 v45, 0xffff0000, v48\nv_add_f32 v44, s{76+k}, v44\nv_add_f32 v45, s{76+k}, v45")
        Ls = a.newlabel("L_nomax")
        a(f"v_fma_f32 v60, v44, s58, -v26\nv_fma_f32 v61, v45, s58, -v26\nv_max_f32 v46, v60, v61\nv_cmp_lt_f32 vcc, 0x41800000, v46\ns_cbranch_vccz {Ls}")
        a("v_max_f32 v46, v44, v45\nv_mul_f32 v46, s58, v46")
        self.redrows(46, 48, "v_max_f32")
        a("v_max_f32 v46, v46, v26\nv_sub_f32 v47, v26, v46\nv_exp_f32 v47, v47\nv_mov_b32 v26, v46\nv_fma_f32 v60, v44, s58, -v46\nv_fma_f32 v61, v45, s58, -v46\nv_mul_f32 v27, v27, v47")
        for r in range(32, 36): a(f"v_mul_f32 v{r}, v{r}, v47")
        a(f"{Ls}:\nv_exp_f32 v60, v60\nv_exp_f32 v61, v61\nv_add_f32 v27, v27, v60\nv_cvt_pk_bf16_f32 v62, v60, v61")
        if UT == 2: a("v_add_f32 v27, v27, v61")
        for t in range(UT): self.bop(52 + 4 * t, 62, 2 + 4 * t)
        for t in range(UT): self.mfma16(32, FV[k] + 4 * t, 52 + 4 * t)
        if refill:
            a(f"s_mov_b32 s{76+k}, 0"); self.unit_loads(FV[k], "s[44:47]"); self.ticket(k)
    def a_pool(self):
        a = self.a; c = self.c
        Ll = a.newlabel("L_pool"); Ld = [a.newlabel("L_drain") for _ in range(2)]; Le = a.newlabel("L_poolend")
        a(f"{Ll}:")
        for k in range(2):
            a(f"""s_waitcnt vmcnt({2 * c['UT'] + 1})
            v_readfirstlane_b32 s52, v{TK+k}
            s_cmp_lt_u32 s52, {self.NF}
            s_cbranch_scc0 {Ld[k]}
            s_lshl_b32 s52, s52, {self.TSH}
            s_add_u32 s51, s61, s52
            s_and_b32 s51, s51, 0x1fffff""")
            self.unit(k, True)
        a(f"s_branch {Ll}")
        n0, n1 = c['twpos']
        for k in range(2):
            a(f"{Ld[k]}:")
            for j in range(n0): self.t_load(j)
            self.unit(k, False)
            for j in range(n0, n0 + n1): self.t_load(j)
            a(f"s_waitcnt vmcnt({1 + n0 + n1})")
            for j in range(n0 + n1, 6): self.t_load(j)
            self.unit(1 - k, False)
            if k == 0: a(f"s_branch {Le}")
        a(f"{Le}:"); a.vm = []
    def a_epilogue(self):
        a = self.a
        self.stamp(4)
        self.redrows(27, 48, "v_add_f32")
        a(f"s_lshl_b32 s52, s3, 10\ns_add_u32 s52, s52, {EB}\nv_add_u32 v48, s52, v1")
        a(f"v_bfe_u32 v49, v0, 3, 1\nv_lshlrev_b32 v49, 6, v49\ns_lshl_b32 s52, s3, 3\ns_add_u32 s52, s52, {EB + 8192}\nv_add_u32 v49, s52, v49")
        a("ds_write_b64 v49, v[26:27]\nds_write_b128 v48, v[32:35]")
        self.acc_addr(28, 52, EB)
        a(f"""s_lshr_b32 s52, s3, 1
        s_lshl_b32 s54, s49, 1
        s_add_u32 s52, s52, s54
        s_lshl_b32 s52, s52, 3
        s_add_u32 s52, s52, s50
        s_lshl_b32 s52, s52, 9
        s_add_u32 s52, s52, {REC}
        s_and_b32 s54, s3, 1
        s_lshl_b32 s55, s54, 8
        v_lshlrev_b32 v50, 2, v0
        v_add_u32 v50, s55, v50
        s_lshr_b32 s55, s3, 1
        s_lshl_b32 s55, s55, 6
        s_add_u32 s55, s55, {EB + 8192}
        v_mov_b32 v51, s55
        v_mov_b32 v59, s35""")
        a.wait_lg(); a("s_barrier")
        self.stamp(8)
        Lu = a.newlabel("L_aup")
        a(f"s_cmp_ge_u32 s3, 4\ns_cbranch_scc1 {Lu}")
        for k in range(4): a(f"ds_read_b128 v[{10+4*k}:{13+4*k}], v51 offset:{16*k}", tag='st')
        for w in range(8): a(f"ds_read_b32 v{36+w}, v28 offset:{1024*w}")
        a.wait_lg('st')
        a("v_max3_f32 v52, v10, v12, v14\nv_max3_f32 v53, v16, v18, v20\nv_max3_f32 v52, v52, v22, v24\nv_max_f32 v52, v52, v53")
        for w in range(8): a(f"v_sub_f32 v{10+2*w}, v{10+2*w}, v52")
        for w in range(8): a(f"v_exp_f32 v{10+2*w}, v{10+2*w}")
        a.wait_lg()
        a("v_mul_f32 v53, v10, v11\nv_mul_f32 v54, v10, v36")
        for w in range(1, 8): a(f"v_fmac_f32 v53, v{10+2*w}, v{11+2*w}\nv_fmac_f32 v54, v{10+2*w}, v{36+w}")
        a("v_rcp_f32 v55, v53\nv_log_f32 v58, v53\nv_mul_f32 v54, v54, v55\nv_add_f32 v58, v58, v52")
        self.rec_store(54)
        a(f"{Lu}:")
        self.stamp(5)
    def a_proj(self):
        a = self.a; c = self.c
        a(f"""v_and_b32 v50, 7, v0
        v_min_u32 v51, 5, v50
        v_and_b32 v52, 1, v0
        s_cmp_eq_u32 s63, 0
        s_cselect_b64 vcc, -1, 0
        s_cselect_b32 s66, 5, 7
        v_cndmask_b32 v51, v52, v51, vcc
        v_bfe_u32 v49, v0, 3, 1
        v_lshl_add_u32 v29, v49, 8, v51
        v_lshlrev_b32 v29, 9, v29
        s_lshl_b32 s52, s63, 6
        s_add_u32 s52, s52, s64
        s_lshl_b32 s52, s52, 12
        s_lshl_b32 s54, s3, 6
        s_add_u32 s52, s52, s54
        s_add_u32 s75, s52, {REC}
        v_lshrrev_b32 v48, 4, v0
        v_lshl_add_u32 v29, v48, 4, v29""")
        def gissue(): a("buffer_load_dwordx4 v[10:13], v29, s[36:39], s75 offen sc1", tag='pg')
        gissue()
        a("v_cmp_lt_u32 s[72:73], s66, v50")
        for r in range(32, 44): a(f"v_mov_b32 v{r}, 0")
        a(f"""v_and_b32 v26, 7, v0
        v_lshlrev_b32 v26, 4, v26
        v_bfe_u32 v48, v0, 3, 2
        v_lshl_add_u32 v26, v48, 2, v26
        v_lshrrev_b32 v48, 5, v0
        s_cmp_ge_u32 s3, 4
        s_cselect_b32 s52, 9, 8
        s_cselect_b32 s54, 8, 9
        s_cselect_b32 s55, 8192, 0
        s_cselect_b32 s56, 1024, 0
        s_add_u32 s55, s55, {TL}
        v_lshl_add_u32 v26, v48, s52, v26
        s_and_b32 s57, s3, 1
        s_lshl_b32 s57, s57, s54
        s_add_u32 s56, s56, s57
        s_add_u32 s55, s55, s57
        s_bfe_u32 s57, s3, 0x10001
        s_lshl_b32 s52, s57, 7
        s_add_u32 s55, s55, s52
        v_add_u32 v26, s55, v26
        s_lshl_b32 s52, s3, 10
        s_add_u32 s52, s52, {TL}
        v_add_u32 v27, s52, v1
        v_lshlrev_b32 v23, 3, v0
        v_add_u32 v23, s56, v23
        s_lshl_b32 s74, s63, 5
        s_add_u32 s74, s74, s64
        s_lshl_b32 s74, s74, 1
        s_add_u32 s74, s74, s57
        s_mul_i32 s74, s74, 4608
        s_mul_i32 s54, s65, 1536
        s_add_u32 s74, s74, s54
        s_add_u32 s74, s74, {PO}
        s_lshl_b32 s57, s57, 3
        v_mov_b32 v59, s35
        v_mov_b32 v47, {NEGINF}""")
        if c.get('dT'): a(f"s_branch {self.LF}")
        self.poll_granules(gissue, [13], 6, first_issued=True, sleep=c.get('tsleep', 0))
        self.stamp(6)
        a("v_cndmask_b32 v46, v12, v47, s[72:73]\nv_lshlrev_b32 v52, 16, v10\nv_mov_b32 v44, v46\nv_and_b32 v53, 0xffff0000, v10\nv_lshlrev_b32 v54, 16, v11")
        self.red8([44], "v_max_f32")
        a("v_sub_f32 v44, v46, v44\nv_and_b32 v55, 0xffff0000, v11\nv_exp_f32 v56, v44")
        for t in range(4): a(f"v_mul_f32 v{52+t}, v56, v{52+t}")
        self.red8([52, 53, 54, 55, 56], "v_add_f32")
        for k in range(2): a(f"v_cvt_pk_bf16_f32 v{20+k}, v{52+2*k}, v{53+2*k}")
        a("v_rcp_f32 v56, v56")
        for k in range(2):
            self.bop(44, 20 + k, 2); self.bop(48, 20 + k, 6)
            self.mfma16(36, TW[4 + k], 44); self.mfma16(40, TW[4 + k], 48)
            self.mfma16(32, TW[2 * k], 44); self.mfma16(32, TW[2 * k + 1], 48)
        a("v_cmp_lt_u32 vcc, 31, v0\nv_mul_f32 v56, s67, v56\nv_readlane_b32 s57, v56, s57")
        for r in range(4): a(f"v_cndmask_b32 v{36+r}, v{36+r}, v{40+r}, vcc")
        a("ds_write_b128 v27, v[36:39] offset:8192\nds_write_b128 v27, v[32:35]")
        a.wait_lg(); a("s_barrier")
        for w in range(8): a(f"ds_read_b32 v{44+w}, v26 offset:{1024*w}")
        a.wait_lg()
        a("v_add_f32 v44, v44, v45\nv_add_f32 v46, v46, v47\nv_add_f32 v48, v48, v49\nv_add_f32 v50, v50, v51\nv_add_f32 v44, v44, v46\nv_add_f32 v48, v48, v50\nv_add_f32 v58, v44, v48")
        Lf = a.newlabel("L_tfull")
        a(f"s_cmp_lt_u32 s3, 4\ns_cbranch_scc1 {Lf}")
        a("v_mov_b32 v49, v58\nv_permlane32_swap_b32 v58, v49\nv_add_f32 v58, v58, v49\ns_mov_b32 exec_hi, 0")
        a(f"{Lf}:\nv_mul_f32 v58, s57, v58\nbuffer_store_dwordx2 v[58:59], v23, s[36:39], s74 offen sc1\ns_mov_b64 exec, -1")
        self.stamp(7)

    def h_front(self):
        a = self.a; c = self.c; WH = c['WH']
        self.reset(['d'] * WH)
        self.late_prologue()
        a("""v_lshrrev_b32 v52, 4, v0
        v_and_b32 v50, 1, v0
        v_bfe_u32 v51, v0, 1, 1
        v_bfe_u32 v53, v0, 2, 2
        v_lshl_add_u32 v51, v51, 2, v53
        v_lshl_add_u32 v50, v51, 1, v50
        v_lshlrev_b32 v50, 7, v50
        v_lshl_add_u32 v50, v51, 4, v50
        v_lshl_add_u32 v50, v52, 14, v50
        s_and_b32 s52, s3, 3
        s_lshl_b32 s52, s52, 11
        v_add_u32 v50, s52, v50""")
        for ks in range(8): a(f"v_xor_b32 v{SA+ks}, {16*ks}, v50")
        a("""v_bfe_u32 v50, v0, 3, 1
        v_lshlrev_b32 v50, 2, v50
        v_lshrrev_b32 v51, 5, v0
        v_lshl_add_u32 v50, v51, 1, v50
        v_bfe_u32 v51, v0, 4, 1
        v_lshlrev_b32 v51, 1, v51
        v_bfe_u32 v53, v0, 1, 1
        v_add_u32 v51, v51, v53
        v_and_b32 v53, 1, v0
        v_lshlrev_b32 v53, 3, v53
        v_bfe_u32 v54, v0, 2, 1
        v_lshl_add_u32 v53, v54, 7, v53
        s_lshl_b32 s52, s3, 13
        v_add_u32 v53, s52, v53
        v_add_u32 v57, s52, v1
        v_add_u32 v58, 0x10000, v57""")
        for hi in range(2):
            a(f"v_add_u32 v54, {hi}, v50\nv_xor_b32 v55, v54, v51\nv_lshl_add_u32 v55, v55, 4, v53\nv_lshl_add_u32 v55, v54, 8, v55")
            for cb in range(2): a(f"v_xor_b32 v{TA + 2*cb + hi}, {64*cb}, v55")
        a(f"""s_lshr_b32 s52, s3, 2
        s_lshl_b32 s52, s52, 4
        v_and_b32 v49, 15, v0
        v_add_u32 v50, s52, v49
        v_mul_u32_u24 v2, 144, v50
        v_lshl_add_u32 v2, v52, 3, v2
        s_and_b32 s54, s3, 3
        s_lshl_b32 s55, s54, 5
        s_add_u32 s55, s55, {PL}
        v_add_u32 v2, s55, v2
        v_and_b32 v51, 31, v0
        v_mul_u32_u24 v3, 144, v51
        v_lshrrev_b32 v53, 5, v0
        v_lshl_add_u32 v3, v53, 4, v3
        v_add_u32 v3, {PL}, v3
        v_lshlrev_b32 v5, 2, v50
        v_add_u32 v5, {ML}, v5
        s_lshl_b32 s55, s54, 7
        v_add_u32 v4, s55, v5
        v_lshlrev_b32 v6, 2, v51
        v_add_u32 v6, {ML}, v6
        v_mov_b32 v7, {NEGINF}
        v_mov_b32 v8, {NEGINF}
        v_mov_b32 v9, 0
        v_lshlrev_b32 v28, 7, v0
        v_add_u32 v28, {FQ}, v28
        s_mov_b32 s58, {LOG2E}
        s_lshl_b32 s65, s63, 15
        s_lshl_b32 s54, s3, 12
        s_add_u32 s65, s65, s54
        s_add_u32 s65, s65, {QABS}
        s_add_u32 s54, s54, {PL}
        v_add_u32 v30, s54, v1
        s_lshr_b32 s54, s3, 2
        s_lshl_b32 s54, s54, 14
        s_add_u32 s54, s54, {PL}
        v_add_u32 v31, s54, v1""")
        for r in range(32): a(f"v_mov_b32 v{ACC+r}, 0")
        self.srd(44, "s22", "s23", 512 * 8192)
        a("""s_and_b32 s52, s2, 1
        s_lshl_b32 s52, s52, 3
        s_add_u32 s52, s52, s3
        s_lshl_b32 s52, s52, 18
        s_lshr_b32 s54, s2, 1
        s_lshl_b32 s54, s54, 8
        s_add_u32 s52, s52, s54
        v_lshlrev_b32 v59, 16, v52
        v_lshl_add_u32 v59, v49, 4, v59
        v_add_u32 v59, s52, v59""")
        self.get_tag()
        for t in range(WH, 16): a.wait_vm_n(WH - 1); self.dma(t)
        for t in range(16):
            q = t % 8; r = R2[q] if t < 8 else UV + 4 * q
            a.wait_vm_n(WH - 1)
            if q == 0: a("s_and_b32 s62, s62, 0x7fffff")
            a(f"s_add_u32 s51, s62, {q*8192}\nbuffer_load_dwordx4 v[{r}:{r+3}], v{DV + (q & 1)}, s[76:79], s51 offen nt", tag='r')
            if q == 7: a("s_add_u32 s62, s62, 0x200000")
        self.stamp(1)
        if c.get('dH') == 1: a(f"s_waitcnt vmcnt(0)\ns_branch {self.LF}")
        if c.get('dH') == 4:
            for t in range(8): a(f"s_waitcnt vmcnt(3)\ns_mov_b32 s51, {t*8192}\nbuffer_load_dwordx4 v[{64+4*t}:{64+4*t+3}], v59, s[44:47], s51 offen nt")
            a(f"s_waitcnt vmcnt(0)\ns_branch {self.LF}")
        self.poll_flags(28, 3, 2)
        for n in range(4): a(f"buffer_load_dwordx4 v[{STG+4*n}:{STG+4*n+3}], v1, s[36:39], s65 offen offset:{n*1024} sc1", tag=('q', n))
        for n in range(4):
            a.wait_vm(('q', n)); a(f"ds_write_b128 v30, v[{STG+4*n}:{STG+4*n+3}] offset:{n*1024}")
        a.wait_lg(); a("s_barrier")
        for ks in range(16):
            a(f"ds_read_b128 v[{QR+4*ks}:{QR+4*ks+3}], v31 offset:{ks*1024}")
            if ks == 11: a.wait_lg()
        a.wait_lg()
        self.stamp(2)
    def h_attn(self):
        a = self.a; c = self.c
        Lloop = a.newlabel("L_btile")
        a(f"s_mov_b32 s61, 0\n{Lloop}:\ns_barrier")
        for r in range(4): a(f"v_mov_b32 v{32+r}, 0")
        for ks in range(8): a(f"ds_read_b128 v[{STG+4*ks}:{STG+4*ks+3}], v{SA+ks}", tag=('s', ks))
        for ks in range(16):
            a.wait_lg(('s', ks))
            s = STG + 4 * (ks % 8)
            self.mfma16(32, s, QR + 4 * ks)
            if ks + 8 < 16: a(f"ds_read_b128 v[{s}:{s+3}], v{SA+ks} offset:8192", tag=('s', ks + 8))
        for ks in range(8): a(f"v_xor_b32 v{SA+ks}, 0x10000, v{SA+ks}")
        a("v_cvt_pk_bf16_f32 v36, v32, v33\nv_cvt_pk_bf16_f32 v38, v34, v35")
        a("v_and_b32 v37, 0xffff0000, v36\nv_lshlrev_b32 v36, 16, v36\nv_and_b32 v39, 0xffff0000, v38\nv_lshlrev_b32 v38, 16, v38")
        for r in (36, 37, 38, 39): a(f"v_mul_f32 v{r}, {SCALE}, v{r}")
        a("v_cvt_pk_bf16_f32 v36, v36, v37\nv_cvt_pk_bf16_f32 v38, v38, v39")
        a("v_lshlrev_b32 v32, 16, v36\nv_and_b32 v33, 0xffff0000, v36\nv_lshlrev_b32 v34, 16, v38\nv_and_b32 v35, 0xffff0000, v38")
        a("v_max3_f32 v36, v32, v33, v34\nv_max_f32 v36, v36, v35")
        self.redrows(36, 37, "v_max_f32")
        a("ds_write_b32 v4, v36")
        a.wait_lg(); a("s_barrier")
        a("ds_read2_b32 v[36:37], v5 offset1:32\nds_read2_b32 v[38:39], v5 offset0:64 offset1:96\nds_read2_b32 v[40:41], v6 offset1:32\nds_read2_b32 v[42:43], v6 offset0:64 offset1:96")
        a.wait_lg()
        a("v_max3_f32 v36, v36, v37, v7\nv_max3_f32 v40, v40, v41, v8\nv_max3_f32 v36, v36, v38, v39\nv_max3_f32 v38, v40, v42, v43")
        a("v_sub_f32 v40, v7, v36\nv_sub_f32 v41, v8, v38\nv_mul_f32 v37, s58, v36\nv_mul_f32 v40, s58, v40\nv_mul_f32 v42, s58, v41")
        for r in range(4): a(f"v_fma_f32 v{32+r}, v{32+r}, s58, -v37")
        a("v_exp_f32 v40, v40\nv_exp_f32 v42, v42")
        for r in range(4): a(f"v_exp_f32 v{32+r}, v{32+r}")
        a("v_mov_b32 v7, v36\nv_mov_b32 v8, v38\nv_cvt_pk_bf16_f32 v44, v32, v33\nv_cvt_pk_bf16_f32 v45, v34, v35")
        a("ds_write_b64 v2, v[44:45]")
        a("v_fma_f32 v9, v9, v40, v32\nv_add_f32 v33, v33, v34\nv_add_f32 v9, v9, v35\nv_add_f32 v9, v9, v33\nv_mov_b32 v43, v42")
        for r in range(0, 32, 2): a(f"v_pk_mul_f32 v[{ACC+r}:{ACC+r+1}], v[{ACC+r}:{ACC+r+1}], v[42:43]")
        a.wait_lg(); a("s_barrier")
        for s in range(4): a(f"ds_read_b128 v[{32+4*s}:{35+4*s}], v3 offset:{32*s}", tag='p')
        seq = [(s, cb) for s in range(4) for cb in range(2)]
        def trd(i):
            s, cb = seq[i]
            for hi in range(2):
                a(f"ds_read_b64_tr_b16 v[{STG+4*i+2*hi}:{STG+4*i+2*hi+1}], v{TA+2*cb+hi} offset:{2048*s}", tag=('t', i))
        for i in range(5): trd(i)
        for i in range(8):
            s, cb = seq[i]
            a.wait_lg(('t', i))
            a(f"v_mfma_f32_32x32x16_bf16 v[{ACC+16*cb}:{ACC+16*cb+15}], v[{STG+4*i}:{STG+4*i+3}], v[{32+4*s}:{35+4*s}], v[{ACC+16*cb}:{ACC+16*cb+15}]")
            if i + 5 < 8: trd(i + 5)
        for k in range(4): a(f"v_xor_b32 v{TA+k}, 0x10000, v{TA+k}")
        L1 = a.newlabel("L_rf"); L2 = a.newlabel("L_rf")
        a(f"s_cmp_lg_u32 s61, 0\ns_cbranch_scc1 {L1}")
        for q in range(8): a(f"ds_write_b128 v57, v[{R2[q]}:{R2[q]+3}] offset:{q*1024}")
        a(f"{L1}:\ns_cmp_lg_u32 s61, 1\ns_cbranch_scc1 {L2}")
        for q in range(8): a(f"ds_write_b128 v58, v[{UV+4*q}:{UV+4*q+3}] offset:{q*1024}")
        a("s_waitcnt lgkmcnt(0)")
        for t in range(8): a(f"s_mov_b32 s51, {t*8192}\nbuffer_load_dwordx4 v[{UV+4*t}:{UV+4*t+3}], v59, s[44:47], s51 offen nt")
        a(f"{L2}:\ns_waitcnt lgkmcnt(0)\ns_add_u32 s61, s61, 1\ns_cmp_lg_u32 s61, 4\ns_cbranch_scc1 {Lloop}")
        a.vm = []; a.lg = []
        self.stamp(5)
        if c.get('dH') == 2: a(f"s_waitcnt vmcnt(0)\ns_branch {self.LF}")
        self.redrows(9, 37, "v_add_f32")
        a("ds_write_b32 v4, v9 offset:512")
        a.wait_lg(); a("s_barrier")
        a("ds_read2_b32 v[36:37], v6 offset0:128 offset1:160\nds_read2_b32 v[38:39], v6 offset0:192 offset1:224")
        a(f"""v_and_b32 v48, 31, v0
        v_mul_u32_u24 v48, 144, v48
        v_lshrrev_b32 v49, 5, v0
        v_lshl_add_u32 v48, v49, 3, v48
        s_lshl_b32 s54, s3, 13
        v_add_u32 v48, s54, v48
        v_lshrrev_b32 v49, 3, v0
        v_mul_u32_u24 v50, 144, v49
        v_and_b32 v51, 7, v0
        v_lshl_add_u32 v50, v51, 4, v50
        v_add_u32 v50, s54, v50
        v_lshlrev_b32 v52, 10, v49
        v_lshl_add_u32 v52, v51, 4, v52
        s_mul_i32 s52, s2, {c['pbs']}
        s_lshl_b32 s54, s3, 7
        s_add_u32 s52, s52, s54
        s_add_u32 s52, s52, {PB}""")
        a.wait_lg()
        a("v_add_f32 v36, v36, v37\nv_add_f32 v38, v38, v39\nv_add_f32 v36, v36, v38\nv_rcp_f32 v38, v36\nv_log_f32 v40, v36\nv_mov_b32 v39, v38\nv_fma_f32 v40, v8, s58, v40")
        for cb in range(2):
            for rq in range(4):
                r = ACC + 16 * cb + 4 * rq
                a(f"v_pk_mul_f32 v[{r}:{r+1}], v[{r}:{r+1}], v[38:39]\nv_pk_mul_f32 v[{r+2}:{r+3}], v[{r+2}:{r+3}], v[38:39]")
                a(f"v_cvt_pk_bf16_f32 v{r}, v{r}, v{r+1}\nv_cvt_pk_bf16_f32 v{r+1}, v{r+2}, v{r+3}")
                a(f"ds_write_b64 v48, v[{r}:{r+1}] offset:{64*cb + 16*rq}")
        a.wait_lg()
        for n in range(4): a(f"ds_read_b128 v[{STG+4*n}:{STG+4*n+3}], v50 offset:{n*8*144}", tag=('r', n))
        for n in range(4):
            a.wait_lg(('r', n))
            a(f"buffer_store_dwordx4 v[{STG+4*n}:{STG+4*n+3}], v52, s[36:39], s52 offen sc1\ns_add_u32 s52, s52, 8192")
        Ls = a.newlabel("L_nopbs")
        a(f"s_cmp_lg_u32 s3, 0\ns_cbranch_scc1 {Ls}")
        a(f"s_lshl_b32 s52, s2, 7\ns_add_u32 s52, s52, {PBS}\nv_lshlrev_b32 v48, 2, v0\ns_mov_b32 exec_hi, 0")
        a(f"buffer_store_dword v40, v48, s[36:39], s52 offen sc1\ns_mov_b64 exec, -1\n{Ls}:")
        self.stamp(8)
        a("s_waitcnt vmcnt(0)\ns_barrier"); a.vm = []
        self.stamp(9)
        if c.get('dH') == 3: a(f"s_branch {self.LF}")
        Ls = a.newlabel("L_nofb")
        a(f"s_cmp_lg_u32 s3, 0\ns_cbranch_scc1 {Ls}\ns_lshl_b32 s52, s2, 7\ns_add_u32 s52, s52, {FB}")
        self.flag_store("s52")
        a(f"{Ls}:")
    def h_uv(self):
        a = self.a; pbs = self.c['pbs']; PART = 16384; ST = PART + 16 * 1040
        self.sels()
        a(f"""v_lshlrev_b32 v28, 7, v0
        v_add_u32 v28, {FB}, v28
        v_lshrrev_b32 v48, 5, v0
        v_lshlrev_b32 v29, 7, v48
        v_mul_u32_u24 v31, {pbs}, v48
        v_and_b32 v49, 31, v0
        v_lshl_add_u32 v31, v49, 4, v31
        s_lshr_b32 s54, s2, 1
        s_lshl_b32 s55, s54, 2
        s_lshl_b32 s52, s3, 10
        s_add_u32 s55, s55, s52
        s_add_u32 s55, s55, {PBS}
        v_add_u32 v25, s52, v1
        s_lshl_b32 s56, s2, 9
        s_mul_i32 s52, s3, {8 * pbs}
        s_add_u32 s56, s56, s52
        s_add_u32 s56, s56, {PB}
        s_lshl_b32 s52, s3, 1
        v_add_u32 v50, s52, v48
        v_mul_u32_u24 v26, 1040, v50
        v_lshl_add_u32 v26, v49, 5, v26
        v_add_u32 v26, {PART}, v26
        v_and_b32 v50, 15, v0
        v_mul_u32_u24 v27, 1040, v50
        v_lshrrev_b32 v51, 4, v0
        v_lshl_add_u32 v27, v51, 5, v27
        s_lshl_b32 s52, s3, 7
        s_add_u32 s52, s52, {PART}
        v_add_u32 v27, s52, v27
        v_lshrrev_b32 v50, 1, v50
        v_lshlrev_b32 v24, 3, v50
        v_add_u32 v24, {ST}, v24
        s_lshl_b32 s52, s3, 3
        s_add_u32 s52, s52, {ST}
        v_mov_b32 v23, s52""")
        for r in range(32, 36): a(f"v_mov_b32 v{r}, 0")
        self.acc_addr(30, 48, 0)
        a(f"""s_lshr_b32 s52, s3, 1
        s_lshl_b32 s52, s52, 5
        s_lshr_b32 s54, s2, 1
        s_add_u32 s52, s52, s54
        s_add_u32 s52, s52, 64
        s_lshl_b32 s52, s52, 3
        s_and_b32 s54, s2, 1
        s_add_u32 s52, s52, s54
        s_lshl_b32 s52, s52, 9
        s_add_u32 s52, s52, {REC}
        s_and_b32 s54, s3, 1
        s_lshl_b32 s54, s54, 8
        v_lshlrev_b32 v50, 2, v0
        v_add_u32 v50, s54, v50
        v_mov_b32 v59, s35
        v_mov_b32 v58, 0""")
        self.poll_flags(28, 4, 1)
        self.stamp(10)
        for n in range(4): a(f"buffer_load_dword v{36+n}, v29, s[36:39], s55 offen offset:{256*n} sc1", tag='st')
        for n in range(4): a(f"buffer_load_dwordx4 v[{64+4*n}:{67+4*n}], v31, s[36:39], s56 offen sc1\ns_add_u32 s56, s56, {2 * pbs}", tag=('pb', n))
        a.wait_vm('st')
        a("v_max3_f32 v40, v36, v37, v38\nv_max_f32 v40, v40, v39\nv_mov_b32 v41, v40\nv_permlane32_swap_b32 v40, v41\nv_max_f32 v40, v40, v41")
        for n in range(4): a(f"v_sub_f32 v{36+n}, v{36+n}, v40")
        for n in range(4): a(f"v_exp_f32 v{36+n}, v{36+n}")
        a("v_add_f32 v41, v36, v37\nv_add_f32 v42, v38, v39\nv_add_f32 v41, v41, v42\nv_mov_b32 v42, v41\nv_permlane32_swap_b32 v41, v42\nv_add_f32 v41, v41, v42")
        a("ds_write_b64 v23, v[40:41]")
        for n in range(4):
            a.wait_vm(('pb', n))
            for k in range(4):
                a(f"v_lshlrev_b32 v42, 16, v{64+4*n+k}\nv_and_b32 v43, 0xffff0000, v{64+4*n+k}")
                if n == 0: a(f"v_mul_f32 v{12+2*k}, v36, v42\nv_mul_f32 v{13+2*k}, v36, v43")
                else: a(f"v_fmac_f32 v{12+2*k}, v{36+n}, v42\nv_fmac_f32 v{13+2*k}, v{36+n}, v43")
        a("ds_write_b128 v26, v[12:15]\nds_write_b128 v26, v[16:19] offset:16")
        a.wait_lg(); a("s_barrier")
        a("ds_read_b64 v[40:41], v24\nds_read_b128 v[12:15], v27\nds_read_b128 v[16:19], v27 offset:16")
        a.wait_lg()
        a("v_mov_b32 v42, v40")
        self.red8([42], "v_max_f32")
        a("v_sub_f32 v40, v40, v42\nv_exp_f32 v40, v40\nv_mul_f32 v41, v41, v40")
        self.red8([41], "v_add_f32")
        a("v_rcp_f32 v41, v41\nv_add_f32 v40, v40, v40\nv_mul_f32 v40, v40, v41")
        for k in range(8): a(f"v_mul_f32 v{12+k}, v40, v{12+k}")
        self.red8(list(range(12, 20)), "v_add_f32")
        for k in range(4): a(f"v_cvt_pk_bf16_f32 v{60+k}, v{12+2*k}, v{13+2*k}")
        for k in range(4):
            self.bop(40, 60 + k, 2); self.bop(44, 60 + k, 6)
            self.mfma16(32, UV + 8 * k, 40); self.mfma16(32, UV + 8 * k + 4, 44)
        a("ds_write_b128 v25, v[32:35]")
        a.wait_lg(); a("s_barrier")
        Ls = a.newlabel("L_nostat")
        a(f"s_cmp_ge_u32 s3, 4\ns_cbranch_scc1 {Ls}")
        for w in range(8): a(f"ds_read_b32 v{40+w}, v30 offset:{1024*w}")
        a.wait_lg()
        a("v_add_f32 v40, v40, v41\nv_add_f32 v42, v42, v43\nv_add_f32 v44, v44, v45\nv_add_f32 v46, v46, v47\nv_add_f32 v40, v40, v42\nv_add_f32 v44, v44, v46\nv_add_f32 v54, v40, v44")
        self.rec_store(54)
        a(f"{Ls}:"); a.vm = []
        self.stamp(6)
        if self.c.get('dH') == 5: a(f"s_branch {self.LF}")
    def h_final(self, LX):
        a = self.a; c = self.c
        a(f"""s_lshl_b32 s48, s3, 6
        s_add_u32 s48, s48, s2
        s_cmp_ge_u32 s48, 72
        s_cbranch_scc1 {LX}
        s_cmp_ge_u32 s48, 36
        s_cselect_b32 s49, 1, 0
        s_mul_i32 s52, s49, 36
        s_sub_u32 s50, s48, s52
        s_mul_i32 s56, s49, 1152
        s_add_u32 s54, s4, s56
        s_addc_u32 s55, s5, 0""")
        self.srd(40, "s54", "s55", 1152); self.srd(44, "s26", "s27", 1152)
        a("v_lshlrev_b32 v20, 2, v0")
        for k in range(5):
            a(f"buffer_load_dword v{10+k}, v20, s[40:43], 0 offen offset:{256*k}\nbuffer_load_dword v{15+k}, v20, s[44:47], 0 offen offset:{256*k}")
        a(f"""v_lshrrev_b32 v24, 3, v0
        v_mul_u32_u24 v31, 9216, v24
        v_and_b32 v24, 7, v0
        v_lshl_add_u32 v31, v24, 4, v31
        s_mul_i32 s52, s49, 4608
        s_lshl_b32 s54, s50, 7
        s_add_u32 s52, s52, s54
        s_add_u32 s52, s52, {PO}
        v_add_u32 v31, s52, v31
        v_lshlrev_b32 v21, 2, v24
        v_bfe_u32 v24, v0, 4, 1
        v_lshl_add_u32 v21, v24, 1, v21
        s_lshl_b32 s54, s50, 5
        s_add_u32 s56, s56, s54
        v_mov_b32 v22, 0""")
        for n in range(8): a(f"s_mov_b32 s{64+n}, {n*73728}")
        a.wait_vm()
        self.srd(40, "s28", "s29", 2304)
        for k in range(5):
            a(f"""v_lshlrev_b32 v24, 16, v{10+k}
            v_and_b32 v25, 0xffff0000, v{10+k}
            v_lshlrev_b32 v26, 16, v{15+k}
            v_and_b32 v27, 0xffff0000, v{15+k}
            v_mul_f32 v24, v24, v26
            v_mul_f32 v25, v25, v27
            v_cvt_pk_bf16_f32 v24, v24, v25
            v_lshlrev_b32 v25, 16, v24
            v_and_b32 v24, 0xffff0000, v24
            v_add_f32 v22, v22, v25
            v_add_f32 v22, v22, v24""")
        self.red8([22], "v_add_f32")
        a("v_add_f32_dpp v22, v22, v22 row_ror:8 row_mask:0xf bank_mask:0xf")
        self.redrows(22, 24, "v_add_f32")
        a(f"""v_cvt_pk_bf16_f32 v22, v22, v22
        v_and_b32 v22, 0xffff0000, v22
        v_mul_f32 v22, {LOG2E}, v22
        v_exp_f32 v22, -v22
        v_add_f32 v22, 1.0, v22
        v_rcp_f32 v22, v22
        v_cvt_pk_bf16_f32 v22, v22, v22
        v_and_b32 v22, 0xffff0000, v22
        v_sub_f32 v23, 1.0, v22
        v_cvt_pk_bf16_f32 v23, v23, v23
        v_and_b32 v23, 0xffff0000, v23""")
        if c['ftrig'] == 'rec':
            a(f"s_and_b32 s52, s48, 63\ns_lshl_b32 s52, s52, 12\ns_add_u32 s52, s52, {REC + 12}\nv_and_b32 v30, 3, v0\nv_lshlrev_b32 v30, 9, v30\nv_add_u32 v30, s52, v30")
            self.poll_granules(lambda: a("buffer_load_dword v65, v30, s[36:39], 0 offen sc1"), [65], 7, sleep=c['fsleep'])
        else:
            g = c.get('fgrp', 0)
            self.poll_granules(lambda: a(f"buffer_load_dwordx4 v[64:67], v31, s[36:39], s{64+g} offen sc1"), [65, 67], 7, sleep=c['fsleep'])
        def sums(R):
            for k in range(2):
                a(f"v_add_f32 v{32+k}, v{R+2*k}, v{R+4+2*k}\nv_add_f32 v{34+k}, v{R+8+2*k}, v{R+12+2*k}")
                a(f"v_add_f32 v{36+k}, v{R+16+2*k}, v{R+20+2*k}\nv_add_f32 v{38+k}, v{R+24+2*k}, v{R+28+2*k}")
        def gset(k):
            for n in range(8): a(f"buffer_load_dwordx4 v[{64+32*k+4*n}:{67+32*k+4*n}], v31, s[36:39], s{64+n} offen sc1")
        if c['fpipe'] > 1: self.poll_pipe(gset, lambda k: [65 + 32 * k + 2 * j for j in range(16)], 8, c['fpipe'], 8, lambda k: sums(64 + 32 * k))
        else:
            self.poll_granules(lambda: gset(0), [65 + 2 * k for k in range(16)], 8, sleep=c.get('fsleep2', 0)); sums(64)
        a("""v_add_f32 v32, v32, v34
        v_add_f32 v36, v36, v38
        v_add_f32 v33, v33, v35
        v_add_f32 v37, v37, v39
        v_permlane32_swap_b32 v32, v36
        v_permlane32_swap_b32 v33, v37
        v_add_f32 v32, v32, v36
        v_add_f32 v33, v33, v37
        v_permlane16_swap_b32 v32, v33
        v_add_f32 v32, v32, v33
        v_add_f32_dpp v42, v32, v32 row_ror:8 row_mask:0xf bank_mask:0xf
        v_cvt_pk_bf16_f32 v42, v42, v42
        v_and_b32 v42, 0xffff0000, v42
        v_mov_b32 v43, v42
        v_permlane32_swap_b32 v42, v43
        v_mul_f32 v42, v22, v42
        v_mul_f32 v43, v23, v43
        v_cvt_pk_bf16_f32 v42, v42, v43
        v_lshlrev_b32 v43, 16, v42
        v_and_b32 v42, 0xffff0000, v42
        v_add_f32 v42, v42, v43
        v_cvt_pk_bf16_f32 v42, v42, v42
        s_mov_b32 exec_lo, 0x00ff00ff
        s_mov_b32 exec_hi, 0
        buffer_store_short v42, v21, s[40:43], s56 offen """ + c['outf'])
        Ls = a.newlabel("L_noep")
        a(f"s_cmp_lg_u32 s48, 0\ns_cbranch_scc1 {Ls}\ns_mov_b64 exec, 1\nv_mov_b32 v44, s35\nv_mov_b32 v45, 0")
        a(f"buffer_store_dword v44, v45, s[36:39], 0 offen {c['outf']}\n{Ls}:\ns_mov_b64 exec, -1")
        self.stamp(7)

    def build(self):
        a = self.a
        hdr = open("gated_mix__gqa_block_cached__compressed_kv_cla__decode.s.ref").read().split("; Override launch")[0]
        a.raw(hdr.rstrip())
        a.raw("; @launch grid=(256,1,1) block=(512,1,1) lds=163840")
        a.raw('.amdgcn_target "amdgcn-amd-amdhsa--gfx950"\n.text')
        LS1, LS2, LH, LM, LF, LE = (a.newlabel(x) for x in ("L_headq", "L_headabs", "L_latent", "L_merge", "L_fin", "L_end"))
        self.LF = LF
        self.entry(LS1, LS2, LH, LE)
        a(f"{LH}:"); self.h_front(); self.h_attn(); self.h_uv(); self.h_final(LF); a(f"s_branch {LF}")
        a(f"{LS2}:"); self.head_s2(); a(f"s_branch {LM}")
        a(f"{LS1}:"); self.head_s1()
        a(f"{LM}:"); self.a_static(); self.a_pool(); self.a_epilogue(); self.a_proj()
        a(f"{LF}:"); self.stamp_flush()
        a(f"{LE}:\ns_endpgm")
        a.raw(f""".section .rodata,"a"
.p2align 6
.amdhsa_kernel {KN}
  .amdhsa_next_free_vgpr 256
  .amdhsa_next_free_sgpr 102
  .amdhsa_accum_offset 256
  .amdhsa_group_segment_fixed_size 0
  .amdhsa_kernarg_size 120
  .amdhsa_user_sgpr_count 2
  .amdhsa_user_sgpr_kernarg_segment_ptr 1
  .amdhsa_system_sgpr_workgroup_id_x 1
.end_amdhsa_kernel""")
        return a.text()

def gen(**kw): return G(**kw).build()
if __name__ == "__main__":
    cfg = json.loads(sys.argv[2]) if len(sys.argv) > 2 else {}
    open(sys.argv[1], "w").write(gen(**cfg))
```

```python
import sys, json
sys.path.insert(0, "dev")
from asmlib import Asm
KN = "gated_mix__gqa_block_cached__compressed_kv_cla__decode_kernel"
Q     = 0x1000
QABS  = 0x11000
FQ    = 0x21000
FB    = 0x23000
PBS   = 0x25000
CNT   = 0x27000
REC   = 0x30000
PO    = 0x150000
PB    = 0x200000
STAMP = 0x800000
WS_USED = 0x1000000
LOG2E = 0x3fb8aa3b; SCALE = 0x3db504f3; NEGINF = 0xff800000
DEF = dict(W=4, W2=4, iW2=50, R=40, NS=36, IQ=22, ICHK=26, WH=4, iq2=13, W0=2, n0=8, nsub=4, subrot=3, UT=1, twpos=(0, 2),
           rotb=2, spin=40000, fsleep=6, fsleep2=1, ftrig='po', fgrp=4, fpipe=1, stamps=False, pbs=32768, wsb=0, outf='', rot=65536, xmap=1)
PL = 131072; ML = PL + 4608
TL = 16384; S1L = 32768; S2L = 49152; XL = 57344; EB = 65536
RING = 88; SREG = 64; ZERO = 85; TK = 86
FK = [88, 104]; FV = [96, 112]; TW = [120 + 4 * k for k in range(6)]
WR = 212; UR = 216
QR = 64; ACC = 128; SA = 160; TA = 168; STG = 176; UV = 208; DV = 240
R2 = [12, 16, 20, 24, 172, 244, 248, 252]
QTAGS = [11, 13, 15, 17, 19, 21, 23, 25]

class G:
    def __init__(self, **kw):
        self.c = dict(DEF); self.c.update(kw)
        self.a = Asm(); c = self.c
        self.NF = (2048 - 48 * c['NS']) // c['nsub'] // c['UT']
        self.USH = 10 + c['UT'] - 1
        self.TSH = self.USH + c['nsub'].bit_length() - 1
    def reset(self, vm=()): self.a.vm = list(vm); self.a.lg = []; self.a.hist = []
    def srd(self, d, lo, hi, size):
        self.a(f"s_mov_b32 s{d}, {lo}\ns_and_b32 s{d+1}, {hi}, 0xffff\ns_mov_b32 s{d+2}, {size}\ns_mov_b32 s{d+3}, 0x20000")
    def late_prologue(self):
        if self.c['wsb']: self.a(f"s_add_u32 s32, s32, {self.c['wsb']}\ns_addc_u32 s33, s33, 0")
        self.a("s_load_dword s34, s[32:33], 0"); self.srd(36, "s32", "s33", WS_USED)
    def get_tag(self):
        self.a("s_waitcnt lgkmcnt(0)\ns_mul_i32 s35, s34, 1664525\ns_add_u32 s35, s35, 1013904223"); self.a.lg = []
    def stamp(self, k):
        e = self.c.get('enc')
        if self.c['stamps'] or (e and k in (0, e[1])): self.a(f"s_memrealtime s[{80+2*k}:{81+2*k}]")
    def stamp_flush(self):
        e = self.c.get('enc')
        if e:
            a = self.a; L = a.newlabel("L_noenc"); Lq = a.newlabel("L_enc")
            a(f"s_cmp_lg_u32 s3, 0\ns_cbranch_scc1 {L}\ns_cmp_lg_u32 s2, {e[0]}\ns_cbranch_scc1 {L}\ns_waitcnt lgkmcnt(0)")
            a(f"s_sub_u32 s52, s{80+2*e[1]}, s80\ns_mul_i32 s52, s52, {e[2]}\ns_add_u32 s52, s52, 5000\ns_min_u32 s52, s52, 100000")
            a(f"{Lq}:\ns_memrealtime s[78:79]\ns_waitcnt lgkmcnt(0)\ns_sub_u32 s54, s78, s80\ns_cmp_lt_u32 s54, s52\ns_cbranch_scc1 {Lq}\n{L}:")
        if not self.c['stamps']: return
        a = self.a; L = a.newlabel("L_nost")
        a(f"s_cmp_lg_u32 s3, 0\ns_cbranch_scc1 {L}\ns_waitcnt lgkmcnt(0)")
        for k in range(11): a(f"v_mov_b32 v{2+k}, s{80+2*k}")
        a(f"s_lshl_b32 s52, s2, 6\ns_add_u32 s52, s52, {STAMP}\nv_mov_b32 v1, 0\ns_mov_b64 exec, 1")
        for k in range(3): a(f"buffer_store_dwordx4 v[{2+4*k}:{5+4*k}], v1, s[36:39], s52 offen offset:{16*k}")
        a(f"s_mov_b64 exec, -1\n{L}:")
    def sels(self):
        a = self.a
        a("""v_and_b32 v48, 1, v0
        v_mov_b32 v49, 0x0c0c0100
        v_mov_b32 v50, 0x01000c0c
        v_mov_b32 v51, 0x0c0c0302
        v_mov_b32 v52, 0x03020c0c
        v_mov_b32 v53, 0x0c0c0c0c
        v_cmp_eq_u32 vcc, 1, v48
        v_bfe_u32 v54, v0, 1, 2
        v_cndmask_b32 v49, v49, v50, vcc
        v_cndmask_b32 v51, v51, v52, vcc""")
        for k in range(4): a(f"v_cmp_eq_u32 vcc, {k}, v54\nv_cndmask_b32 v{2+k}, v53, v49, vcc\nv_cndmask_b32 v{6+k}, v53, v51, vcc")
    def timeout(self, code):
        self.a(f"v_mov_b32 v62, {code}\nv_mov_b32 v63, 0\nglobal_store_dword v63, v62, s[30:31]")
    def poll_flags(self, voff, code, sleep):
        a = self.a; Ls = a.newlabel("L_pskip"); Lp = a.newlabel("L_poll")
        keep = a.vm[:]
        a(f"s_cmp_lg_u32 s3, 0\ns_cbranch_scc1 {Ls}\ns_mov_b32 s53, {self.c['spin']}\n{Lp}:")
        a(f"buffer_load_dword v61, v{voff}, s[36:39], 0 offen sc1\ns_waitcnt vmcnt(0)")
        a(f"v_cmp_ne_u32 vcc, s35, v61\ns_cbranch_vccz {Ls}\ns_sleep {sleep}\ns_sub_u32 s53, s53, 1\ns_cbranch_scc0 {Lp}")
        self.timeout(code)
        a(f"{Ls}:\ns_barrier"); a.vm = keep
    def tagcheck(self, tags, t):
        a = self.a
        a(f"v_xor_b32 v{t}, s35, v{tags[0]}")
        for r in tags[1:]: a(f"v_bitop3_b32 v{t}, v{t}, v{r}, s35 bitop3:0xf6")
        a(f"v_cmp_ne_u32 vcc, 0, v{t}")
    def poll_granules(self, issue, tags, code, first_issued=False, sleep=0):
        a = self.a; Lp = a.newlabel("L_gpoll"); Ld = a.newlabel("L_gdone"); Lc = a.newlabel("L_gchk")
        a(f"s_mov_b32 s53, {self.c['spin']}")
        if first_issued:
            a.wait_vm('pg'); self.tagcheck(tags, 48); a(f"s_cbranch_vccz {Ld}")
        save = a.vm[:]
        a(f"{Lp}:")
        issue(); a("s_waitcnt vmcnt(0)")
        self.tagcheck(tags, 48)
        a(f"s_cbranch_vccz {Ld}")
        if sleep: a(f"s_sleep {sleep}")
        a(f"s_sub_u32 s53, s53, 1\ns_cbranch_scc0 {Lp}")
        self.timeout(code)
        a(f"s_waitcnt vmcnt(0)\n{Ld}:")
        a.vm = save if first_issued else []
    def poll_pipe(self, issue, tags, nld, nset, code, take):
        a = self.a; Lp = a.newlabel("L_pp"); Ld = [a.newlabel("L_ppd") for _ in range(nset)]; Le = a.newlabel("L_ppe")
        a(f"s_mov_b32 s53, {self.c['spin']}")
        for k in range(nset - 1): issue(k)
        a(f"{Lp}:")
        for k in range(nset):
            issue((k + nset - 1) % nset)
            a(f"s_waitcnt vmcnt({(nset - 1) * nld})")
            self.tagcheck(tags(k), 48)
            a(f"s_cbranch_vccz {Ld[k]}")
        a(f"s_sub_u32 s53, s53, 1\ns_cbranch_scc0 {Lp}")
        self.timeout(code)
        for k in range(nset):
            a(f"{Ld[k]}:"); take(k)
            if k < nset - 1: a(f"s_branch {Le}")
        a(f"{Le}:"); a.vm = []
    def qk(self, K, T, U, mid=None):
        a = self.a; n = len(K)
        for kk in range(4):
            for t in range(n):
                for h in range(2):
                    a(f"v_dot2_f32_bf16 v{T+2*t+h}, v{K[t]+kk}, v{10+8*h+2*kk}, {'0' if kk == 0 else f'v{T+2*t+h}'}")
        if mid: mid()
        for t in range(n): a(f"v_add_f32_dpp v{U[t]}, v{T+2*t}, v{T+2*t} row_ror:8 row_mask:0xf bank_mask:0x3")
        for t in range(n): a(f"v_add_f32_dpp v{U[t]}, v{T+2*t+1}, v{T+2*t+1} row_ror:8 row_mask:0xf bank_mask:0xc")
        self.red8(U[:n], "v_add_f32")
    def bop(self, dst, src, sel):
        for k in range(4): self.a(f"v_perm_b32 v{dst+k}, v{src}, v{src}, v{sel+k}")
    def red8(self, regs, op):
        for m in ("row_half_mirror", "quad_perm:[1,0,3,2]", "quad_perm:[2,3,0,1]"):
            for r in regs: self.a(f"{op}_dpp v{r}, v{r}, v{r} {m} row_mask:0xf bank_mask:0xf")
    def redrows(self, r, t, op):
        self.a(f"v_mov_b32 v{t}, v{r}\nv_permlane16_swap_b32 v{r}, v{t}\n{op} v{r}, v{r}, v{t}")
        self.a(f"v_mov_b32 v{t}, v{r}\nv_permlane32_swap_b32 v{r}, v{t}\n{op} v{r}, v{r}, v{t}")
    def mfma16(self, d, A, B): self.a(f"v_mfma_f32_16x16x32_bf16 v[{d}:{d+3}], v[{A}:{A+3}], v[{B}:{B+3}], v[{d}:{d+3}]")
    def acc_addr(self, dst, t, base):
        self.a(f"""v_and_b32 v{dst}, 7, v0
        v_lshlrev_b32 v{dst}, 4, v{dst}
        v_bfe_u32 v{t}, v0, 3, 2
        v_lshl_add_u32 v{dst}, v{t}, 2, v{dst}
        v_lshrrev_b32 v{t}, 5, v0
        v_lshl_add_u32 v{dst}, v{t}, 8, v{dst}
        s_and_b32 s52, s3, 1
        s_lshl_b32 s52, s52, 9
        s_lshr_b32 s54, s3, 1
        s_lshl_b32 s54, s54, 7
        s_add_u32 s52, s52, s54
        s_add_u32 s52, s52, {base}
        v_add_u32 v{dst}, s52, v{dst}""")
    def rec_store(self, r):
        a = self.a
        a(f"v_mov_b32_dpp v55, v{r} quad_perm:[1,0,3,2] row_mask:0xf bank_mask:0xf\nv_cvt_pk_bf16_f32 v56, v{r}, v55")
        a("v_mov_b32_dpp v57, v56 quad_perm:[2,3,0,1] row_mask:0xf bank_mask:0xf\ns_mov_b32 exec_lo, 0x11111111\ns_mov_b32 exec_hi, 0x11111111")
        a("buffer_store_dwordx4 v[56:59], v50, s[36:39], s52 offen sc1\ns_mov_b64 exec, -1"); a.vm.pop()
    def flag_store(self, sreg):
        self.a(f"v_mov_b32 v50, s35\nv_mov_b32 v51, 0\ns_mov_b64 exec, 1\nbuffer_store_dword v50, v51, s[36:39], {sreg} offen sc1\ns_mov_b64 exec, -1"); self.a.vm.pop()

    def wload(self, t): self.a(f"s_mov_b32 s51, {t*16384}\nbuffer_load_dwordx4 v[{WR+4*t}:{WR+4*t+3}], v28, s[72:75], s51 offen nt", tag=('w', t))
    def uload(self, t): self.a(f"s_mov_b32 s51, {t*8192}\nbuffer_load_dwordx4 v[{UR+4*t}:{UR+4*t+3}], v28, s[72:75], s51 offen nt", tag=('u', t))
    def dma(self, t):
        a = self.a; q = t % 8
        if q == 0: a("s_and_b32 s62, s62, 0x7fffff")
        a(f"s_add_u32 m0, s60, {q*1024}\ns_add_u32 s51, s62, {q*8192}\nbuffer_load_dwordx4 v{DV + (q & 1)}, s[76:79], s51 offen nt lds", tag='d')
        if q == 7: a("s_add_u32 s62, s62, 0x200000\ns_xor_b32 s60, s60, 0x10000")
    def entry(self, LS1, LS2, LH, LE):
        a = self.a; c = self.c
        a.raw(f".globl {KN}\n.p2align 8\n.type {KN},@function\n{KN}:")
        a(f"s_cmp_ge_u32 s2, 256\ns_cbranch_scc1 {LE}")
        self.stamp(0)
        L2 = a.newlabel("L_e2"); L3 = a.newlabel("L_eh"); L4 = a.newlabel("L_e1")
        a(f"""s_load_dwordx16 s[4:19], s[0:1], 0
        s_load_dwordx8 s[20:27], s[0:1], 64
        s_load_dwordx4 s[28:31], s[0:1], 96
        s_load_dwordx2 s[32:33], s[0:1], 112
        v_lshrrev_b32 v1, 6, v0
        v_and_b32 v0, 63, v0
        v_readfirstlane_b32 s3, v1
        v_lshlrev_b32 v1, 4, v0
        s_cmp_lt_u32 s2, 64
        s_cbranch_scc1 {L3}""")
        if c['xmap']:
            a(f"""s_sub_u32 s48, s2, 64
            s_mul_i32 s49, s48, 171
            s_lshr_b32 s49, s49, 12
            s_mul_i32 s52, s49, 24
            s_sub_u32 s52, s48, s52
            s_lshr_b32 s54, s52, 3
            s_bfe_u32 s55, s52, 0x10002
            s_add_u32 s52, s52, s54
            s_add_u32 s52, s52, 1
            s_and_b32 s52, s52, 3
            s_lshl_b32 s49, s49, 2
            s_add_u32 s49, s49, s52
            s_lshl_b32 s50, s54, 1
            s_add_u32 s50, s50, s55
            s_lshl_b32 s57, s49, 1
            s_cmp_eq_u32 s54, 2
            s_cselect_b32 s66, 2, s55
            s_cselect_b32 s52, s55, s54
            s_add_u32 s57, s57, s52
            s_cmp_eq_u32 s66, 2
            s_cbranch_scc1 {L2}""")
        else:
            a(f"""s_sub_u32 s48, s2, 64
            s_mul_i32 s49, s48, 171
            s_lshr_b32 s49, s49, 10
            s_mul_i32 s50, s49, 6
            s_sub_u32 s50, s48, s50
            s_cmp_ge_u32 s50, 3
            s_cselect_b32 s52, 3, 0
            s_cselect_b32 s57, 1, 0
            s_sub_u32 s66, s50, s52
            s_lshl_b32 s52, s49, 1
            s_add_u32 s57, s57, s52
            s_cmp_eq_u32 s66, 2
            s_cbranch_scc1 {L2}""")
        a("""v_lshrrev_b32 v48, 4, v0
        v_mul_u32_u24 v49, 18, v48
        v_bfe_u32 v50, v0, 3, 1
        v_add_u32 v51, v49, v50
        s_mul_i32 s52, s3, 72
        v_add_u32 v51, s52, v51
        v_lshlrev_b32 v28, 13, v51
        v_and_b32 v51, 7, v0
        v_lshl_add_u32 v28, v51, 4, v28
        s_lshl_b32 s54, s57, 7
        v_add_u32 v28, s54, v28
        v_lshlrev_b32 v62, 3, v0
        v_add_u32 v51, 1008, v62
        v_cmp_lt_u32 vcc, 17, v0
        s_lshl_b32 s52, s52, 1
        v_mov_b32 v52, 0x10000
        v_cndmask_b32 v63, v62, v51, vcc
        v_cmp_lt_u32 vcc, 35, v0
        v_add_u32 v63, s52, v63
        s_cmp_eq_u32 s66, 0
        v_cndmask_b32 v63, v63, v52, vcc
        s_waitcnt lgkmcnt(0)
        s_cselect_b32 s54, s18, s10
        s_cselect_b32 s55, s19, s11""")
        self.srd(72, "s54", "s55", 576 * 8192); self.srd(76, "s4", "s5", 2304)
        a("buffer_load_dwordx2 v[20:21], v63, s[76:79], 0 offen")
        for t in range(c['W0']): self.wload(t)
        a(f"s_cmp_lg_u32 s66, 0\ns_cbranch_scc1 {LS1}")
        for t in range(c['W0'], 4): self.wload(t)
        a(f"s_branch {LS1}")
        a(f"{L2}:"); self.reset()
        a("""s_lshr_b32 s56, s57, 4
        s_and_b32 s52, s57, 15
        s_lshl_b32 s52, s52, 2
        s_lshr_b32 s54, s3, 1
        s_add_u32 s52, s52, s54
        s_lshl_b32 s52, s52, 16
        s_lshl_b32 s54, s56, 1
        s_and_b32 s55, s3, 1
        s_add_u32 s54, s54, s55
        s_lshl_b32 s55, s54, 10
        s_add_u32 s52, s52, s55
        v_add_u32 v28, s52, v1
        s_waitcnt lgkmcnt(0)""")
        self.srd(72, "s20", "s21", 512 * 8192)
        for t in range(c['W0']): self.uload(t)
        a(f"s_branch {LS2}")
        a(f"{L3}:"); self.reset()
        a("v_lshrrev_b32 v48, 3, v0\nv_and_b32 v49, 7, v0\ns_lshl_b32 s52, s3, 7\nv_lshlrev_b32 v50, 10, v48\nv_add_u32 v50, s52, v50\nv_lshrrev_b32 v52, 4, v0")
        for q in range(2): a(f"v_add_u32 v51, {4*q}, v52\nv_xor_b32 v51, v51, v49\nv_lshl_add_u32 v{DV+q}, v51, 4, v50")
        a(f"""s_lshr_b32 s63, s2, 5
        s_and_b32 s64, s2, 31
        s_lshl_b32 s60, s3, 13
        s_mul_i32 s62, s63, {c['rotb'] << 21}
        s_lshl_b32 s52, s64, 16
        s_add_u32 s62, s62, s52
        s_lshl_b32 s52, s63, 23
        s_waitcnt lgkmcnt(0)
        s_add_u32 s54, s16, s52
        s_addc_u32 s55, s17, 0""")
        self.srd(76, "s54", "s55", 0x800000)
        for t in range(c['WH']): self.dma(t)
        a(f"s_branch {LH}")

    def a_common(self):
        a = self.a; c = self.c
        self.late_prologue()
        a("s_lshl_b32 s52, s49, 21\ns_add_u32 s54, s6, s52\ns_addc_u32 s55, s7, 0")
        self.srd(40, "s54", "s55", 0x200000)
        a("s_add_u32 s54, s8, s52\ns_addc_u32 s55, s9, 0")
        self.srd(44, "s54", "s55", 0x200000)
        a(f"""s_mul_i32 s52, s49, {c['rot']}
        s_lshl_b32 s60, s50, 3
        s_add_u32 s60, s60, s3
        s_lshl_b32 s60, s60, 12
        s_add_u32 s60, s60, s52
        s_mul_i32 s54, s50, {c['subrot']}
        s_add_u32 s54, s54, s3
        s_and_b32 s54, s54, {c['nsub'] - 1}
        s_lshl_b32 s61, s54, {self.USH}
        s_add_u32 s61, s61, s52
        s_add_u32 s61, s61, {c['NS']*48*1024}
        s_lshl_b32 s62, s49, 3
        s_add_u32 s62, s62, s54
        s_lshl_b32 s62, s62, 7
        s_add_u32 s62, s62, {CNT}
        s_lshl_b32 s52, s49, 10
        s_add_u32 s52, s52, {Q}
        v_and_b32 v29, 15, v0
        v_lshlrev_b32 v29, 4, v29
        v_add_u32 v29, s52, v29
        s_mov_b32 s58, {LOG2E}
        v_mov_b32 v{ZERO}, 0""")
        self.sels()
        a("""s_cmp_ge_u32 s48, 96
        s_cselect_b32 s63, 1, 0
        s_cselect_b32 s54, s24, s12
        s_cselect_b32 s55, s25, s13
        s_cselect_b32 s67, 2.0, 1.0
        s_mul_i32 s52, s63, 96
        s_sub_u32 s52, s48, s52
        s_mul_i32 s64, s52, 171
        s_lshr_b32 s64, s64, 9
        s_mul_i32 s65, s64, 3
        s_sub_u32 s65, s52, s65""")
        self.srd(68, "s54", "s55", 4096 * 1152)
        a("""s_lshl_b32 s52, s64, 3
        s_add_u32 s52, s52, s3
        s_mul_i32 s52, s52, 18432
        s_mul_i32 s54, s65, 384
        s_add_u32 s52, s52, s54
        v_lshrrev_b32 v48, 4, v0
        v_mul_u32_u24 v30, 4608, v48
        v_add_u32 v30, s52, v30
        v_bfe_u32 v49, v0, 3, 1
        v_mul_u32_u24 v31, 1152, v49
        v_add_u32 v31, v31, v30
        v_and_b32 v50, 7, v0
        v_lshl_add_u32 v31, v50, 4, v31
        v_add_u32 v31, 256, v31
        v_and_b32 v51, 15, v0
        v_lshl_add_u32 v30, v51, 4, v30""")
        self.get_tag()
    def ring(self, j): return RING + 4 * (j % self.c['R'])
    def kv(self, j):
        a = self.a; NS = self.c['NS']; jj = j % NS
        if jj % 4 == 0: a(f"s_add_u32 s51, s60, {(jj//4)*48*4096}\ns_and_b32 s51, s51, 0x1fffff")
        a(f"buffer_load_dwordx4 v[{self.ring(j)}:{self.ring(j)+3}], v1, {'s[40:43]' if j < NS else 's[44:47]'}, s51 offen offset:{(jj % 4) * 1024} nt", tag=('kv', j))
    def head_s1(self):
        a = self.a; c = self.c; W, W0, IM = c['W'], c['W0'], c['IQ']
        self.reset(['x'] + [('w', t) for t in range(4)])
        a(f"""v_lshrrev_b32 v48, 4, v0
        v_mul_u32_u24 v61, 36, v48
        v_bfe_u32 v50, v0, 3, 1
        v_mul_u32_u24 v50, 144, v50
        s_lshl_b32 s54, s3, 9
        s_add_u32 s54, s54, {XL}
        v_add3_u32 v61, v61, v50, s54
        v_add_u32 v62, s54, v62
        s_cmp_eq_u32 s66, 0
        s_cselect_b32 s56, 32768, 0
        s_lshr_b32 s54, s57, 1
        s_lshl_b32 s54, s54, 9
        s_add_u32 s56, s56, s54
        s_and_b32 s54, s57, 1
        s_lshl_b32 s54, s54, 7
        s_add_u32 s56, s56, s54
        s_add_u32 s56, s56, {Q}""")
        self.a_common()
        Ly = a.newlabel("L_y"); Lz = a.newlabel("L_nozero")
        a(f"s_cmp_eq_u32 s66, 0\ns_cbranch_scc1 {Ly}")
        a(f"""s_and_b32 s52, s57, 3
        s_lshr_b32 s54, s3, 1
        s_or_b32 s52, s52, s54
        s_cmp_lg_u32 s52, 0
        s_cbranch_scc1 {Lz}
        s_lshl_b32 s52, s3, 4
        s_lshr_b32 s54, s57, 2
        s_add_u32 s52, s52, s54
        s_lshl_b32 s52, s52, 10
        s_add_u32 s52, s52, {CNT}
        v_lshlrev_b32 v48, 7, v0
        s_mov_b64 exec, 0xff
        buffer_store_dword v{ZERO}, v48, s[36:39], s52 offen sc1
        s_mov_b64 exec, -1
        {Lz}:"""); a.vm.pop()
        keep = a.vm[:]
        for t in range(W0, 4): a(f"s_waitcnt vmcnt({W0 - 1})"); self.wload(t)
        a.vm = keep
        a(f"{Ly}:")
        seq = [('w', t) for t in range(4, 9)] + [('kv', j) for j in range(IM)]
        I = 0
        def issue():
            nonlocal I
            x = seq[I]; I += 1
            if I + 3 < c['n0']:
                L = a.newlabel("L_y"); a(f"s_cmp_eq_u32 s66, 0\ns_cbranch_scc1 {L}\ns_waitcnt vmcnt({W0 - 1})\n{L}:")
            self.kv(x[1]) if x[0] == 'kv' else self.wload(x[1])
        for r in range(32, 40): a(f"v_mov_b32 v{r}, 0")
        a.wait_vm('x')
        a("ds_write_b64 v62, v[20:21]")
        for k in range(4): a(f"ds_read2_b32 v[{10+2*k}:{11+2*k}], v61 offset0:{2*k} offset1:{2*k+1}")
        a("ds_read_b32 v18, v61 offset:32")
        a.wait_lg()
        for t in range(9):
            self.bop(40, 10 + t, 2); self.bop(44, 10 + t, 6)
            a.wait_vm(('w', t))
            while I < len(seq) and len(a.vm) < (4 if I < 5 else W): issue()
            self.mfma16(32, WR + 4 * t, 40); self.mfma16(36, WR + 4 * t, 44)
        a(f"v_cmp_lt_u32 vcc, 31, v0\ns_lshl_b32 s52, s3, 10\ns_add_u32 s52, s52, {S1L}\nv_add_u32 v48, s52, v1")
        for r in range(4): a(f"v_cndmask_b32 v{32+r}, v{32+r}, v{36+r}, vcc")
        a("ds_write_b128 v48, v[32:35]")
        a.wait_lg(); a("s_barrier")
        Ls = a.newlabel("L_s1skip")
        a(f"""s_cmp_ge_u32 s3, 2
        s_cbranch_scc1 {Ls}
        v_and_b32 v48, 7, v0
        v_lshlrev_b32 v48, 4, v48
        v_bfe_u32 v49, v0, 3, 2
        v_lshl_add_u32 v48, v49, 2, v48
        v_lshrrev_b32 v49, 5, v0
        v_lshl_add_u32 v48, v49, 8, v48
        s_lshl_b32 s52, s3, 7
        s_add_u32 s52, s52, {S1L}
        v_add_u32 v48, s52, v48""")
        for s in range(16):
            a(f"ds_read_b32 v{32+s}, v48 offset:{512*s}")
            if s == 11: a.wait_lg()
        a("""s_lshl_b32 s52, s3, 14
        s_add_u32 s52, s52, s56
        v_mov_b32 v53, s35
        v_bfe_u32 v50, v0, 2, 1
        v_lshlrev_b32 v50, 8, v50
        v_lshrrev_b32 v51, 3, v0
        v_lshl_add_u32 v50, v51, 4, v50
        v_bfe_u32 v51, v0, 1, 1
        v_lshl_add_u32 v50, v51, 3, v50""")
        a.wait_lg()
        for st in (8, 4, 2, 1):
            for s in range(st): a(f"v_add_f32 v{32+s}, v{32+s}, v{32+s+st}")
        a("v_mov_b32_dpp v33, v32 quad_perm:[1,0,3,2] row_mask:0xf bank_mask:0xf")
        a("v_cvt_pk_bf16_f32 v52, v32, v33\ns_mov_b32 exec_lo, 0x55555555\ns_mov_b32 exec_hi, 0x55555555")
        a("buffer_store_dwordx2 v[52:53], v50, s[36:39], s52 offen sc1\ns_mov_b64 exec, -1"); a.vm.pop()
        a(f"{Ls}:")
        self.stamp(9)
        while I < len(seq): a.wait_vm_n(W - 1); issue()
    def head_s2(self):
        a = self.a; c = self.c; W, W0, IM = c['W'], c['W0'], c['IQ']
        self.reset([('u', t) for t in range(W0)])
        a(f"""s_lshl_b32 s54, s54, 11
        s_add_u32 s54, s54, {Q + 32768}
        v_lshrrev_b32 v48, 4, v0
        v_lshlrev_b32 v59, 9, v48
        v_and_b32 v49, 15, v0
        v_lshl_add_u32 v59, v49, 4, v59
        v_add_u32 v59, s54, v59
        s_mov_b32 s76, 16384
        v_bfe_u32 v50, v0, 3, 1
        v_lshlrev_b32 v60, 9, v50
        v_lshl_add_u32 v60, v48, 4, v60
        s_lshr_b32 s52, s3, 1
        s_lshl_b32 s52, s52, 7
        s_and_b32 s55, s3, 1
        s_lshl_b32 s55, s55, 6
        s_add_u32 s52, s52, s55
        s_add_u32 s52, s52, {S2L}
        v_add_u32 v60, s52, v60
        v_add_u32 v51, {S2L + 1024}, v1
        v_and_b32 v50, 7, v0
        v_cmp_lt_u32 vcc, 0, v50
        v_cndmask_b32 v60, v60, v51, vcc""")
        self.a_common()
        seq = [('u', t) for t in range(8)] + [('kv', j) for j in range(IM)]
        I = W0
        def issue():
            nonlocal I
            x = seq[I]; I += 1
            self.kv(x[1]) if x[0] == 'kv' else self.uload(x[1])
        def more(n=1):
            for _ in range(n):
                if I < len(seq): a.wait_vm_n((W0 if I < c['n0'] else W) - 1); issue()
        while ('kv', c['iq2'] - 1) in seq[I:]: more()
        def qissue():
            for b in range(2):
                for k in range(2):
                    a(f"buffer_load_dwordx4 v[{10+8*b+4*k}:{13+8*b+4*k}], v59, s[36:39], {'s76' if b else '0'} offen offset:{256*k} sc1", tag='pg')
        qissue()
        while sum(1 for x in a.vm[a.vm.index('pg'):] if x != 'pg') < W - 1: a.wait_vm_n(W + 3); issue()
        if not c.get('dQ'): self.poll_granules(qissue, QTAGS, 2, first_issued=True, sleep=1)
        self.stamp(9)
        while len(a.vm) < W: issue()
        for n in range(2):
            self.qk([UR + 16 * n + 4 * t for t in range(4)], 36, [44 + 4 * n + t for t in range(4)]); more()
        for k in range(4): a(f"v_cvt_pk_bf16_f32 v{52+k}, v{44+2*k}, v{45+2*k}")
        a("ds_write_b128 v60, v[52:55]")
        a.wait_lg(); a("s_barrier")
        Ls = a.newlabel("L_s2skip")
        a(f"""s_cmp_lg_u32 s3, 7
        s_cbranch_scc1 {Ls}
        v_add_u32 v48, {S2L}, v1
        ds_read_b128 v[52:55], v48
        v_lshrrev_b32 v49, 5, v0
        v_lshlrev_b32 v49, 15, v49
        v_bfe_u32 v50, v0, 3, 2
        v_lshl_add_u32 v49, v50, 10, v49
        v_and_b32 v50, 7, v0
        v_lshl_add_u32 v49, v50, 4, v49
        s_lshr_b32 s52, s56, 1
        s_lshl_b32 s52, s52, 14
        s_and_b32 s54, s57, 3
        s_lshl_b32 s54, s54, 12
        s_add_u32 s52, s52, s54
        s_bfe_u32 s54, s57, 0x20002
        s_lshl_b32 s54, s54, 8
        s_add_u32 s52, s52, s54
        s_and_b32 s54, s56, 1
        s_lshl_b32 s54, s54, 7
        s_add_u32 s52, s52, s54
        s_add_u32 s52, s52, {QABS}""")
        a.wait_lg()
        a("buffer_store_dwordx4 v[52:55], v49, s[36:39], s52 offen sc1"); a.vm.pop()
        a(f"{Ls}:")
        i_store = I
        more(W - 1)
        Ls = a.newlabel("L_s2flag")
        a(f"s_cmp_lg_u32 s3, 7\ns_cbranch_scc1 {Ls}\ns_lshl_b32 s54, s57, 7\ns_add_u32 s54, s54, {FQ}\ns_waitcnt vmcnt({I - i_store})")
        self.flag_store("s54")
        a(f"{Ls}:")
        while I < len(seq): more()
    def qissue(self):
        for h in range(2):
            for k in range(2):
                self.a(f"buffer_load_dwordx4 v[{10+8*h+4*k}:{13+8*h+4*k}], v29, s[36:39], 0 offen offset:{512*h+256*k} sc1", tag='pg')
    def ticket(self, k):
        self.a(f"v_mov_b32 v{TK+k}, 1\ns_mov_b64 exec, 1\nbuffer_atomic_add v{TK+k}, v{ZERO}, s[36:39], s62 offen sc0\ns_mov_b64 exec, -1", tag=('tk', k))
    def unit_loads(self, r, srd, tag=None):
        for t in range(self.c['UT']): self.a(f"buffer_load_dwordx4 v[{r+4*t}:{r+4*t+3}], v1, {srd}, s51 offen offset:{1024*t} nt", tag=tag)
    def t_load(self, k):
        r = TW[k]
        if k < 4: self.a(f"buffer_load_dwordx4 v[{r}:{r+3}], v30, s[68:71], 0 offen offset:{k*1152} nt")
        else: self.a(f"buffer_load_dwordx4 v[{r}:{r+3}], v31, s[68:71], 0 offen offset:{(k-4)*2304} nt")
    def a_static(self):
        a = self.a; c = self.c; W, R, NS, IM = c['W'], c['R'], c['NS'], c['IQ']; ring = self.ring
        assert RING + 4 * R <= 256 and NS % 4 == 0 and SREG + NS // 2 <= ZERO and ring(IM + W) < WR
        assert all(ring(j) >= TW[5] + 4 for j in range(2 * NS - 10, 2 * NS))
        self.reset([('kv', j) for j in range(IM - W, IM)])
        I = IM
        a(f"v_mov_b32 v26, {NEGINF}\nv_mov_b32 v27, 0\nv_mov_b32 v32, 0\nv_mov_b32 v33, 0\nv_mov_b32 v34, 0\nv_mov_b32 v35, 0")
        self.qissue()
        while I < c['ICHK']:
            a.wait_vm_n(W - 1 + (4 if I < IM + W else 0)); self.kv(I); I += 1
        self.stamp(1)
        if not c.get('dQ'): self.poll_granules(self.qissue, QTAGS, 1, first_issued=True)
        self.stamp(2)
        C = 0
        def landed(j): return ('kv', j) not in a.vm
        def last(C): return C + 3 if C < NS else C + 1
        def consume():
            nonlocal C
            if C < NS:
                n = C // 4
                a.wait_vm(('kv', C + 3))
                self.qk([ring(C + t) for t in range(4)], 36, [44, 45, 46, 47])
                a("v_cvt_pk_bf16_f32 v48, v44, v45\nv_cvt_pk_bf16_f32 v50, v46, v47\nv_max3_f32 v26, v26, v44, v45")
                a("v_and_b32 v49, 0xffff0000, v48\nv_lshlrev_b32 v48, 16, v48\nv_and_b32 v51, 0xffff0000, v50\nv_lshlrev_b32 v50, 16, v50")
                a("v_max3_f32 v26, v26, v46, v47")
                for r in (48, 49, 50, 51): a(f"v_mul_f32 v{r}, {SCALE}, v{r}")
                a(f"v_cvt_pk_bf16_f32 v{SREG+2*n}, v48, v49\nv_cvt_pk_bf16_f32 v{SREG+2*n+1}, v50, v51")
                C += 4
                if C == NS:
                    self.redrows(26, 48, "v_max_f32")
                    a(f"v_cvt_pk_bf16_f32 v48, v26, v26\nv_and_b32 v48, 0xffff0000, v48\nv_mul_f32 v48, {SCALE}, v48")
                    a(f"v_cvt_pk_bf16_f32 v48, v48, v48\nv_and_b32 v26, 0xffff0000, v48\nv_mul_f32 v26, {LOG2E}, v26")
                    self.stamp(3)
            else:
                n = (C - NS) // 2
                a(f"v_lshlrev_b32 v60, 16, v{SREG+n}\nv_and_b32 v61, 0xffff0000, v{SREG+n}")
                a("v_fma_f32 v60, v60, s58, -v26\nv_fma_f32 v61, v61, s58, -v26")
                a("v_exp_f32 v60, v60\nv_exp_f32 v61, v61\nv_add_f32 v27, v27, v60\nv_cvt_pk_bf16_f32 v62, v60, v61\nv_add_f32 v27, v27, v61")
                self.bop(52, 62, 2); self.bop(56, 62, 6)
                for k in range(2):
                    a.wait_vm(('kv', C + k)); self.mfma16(32, ring(C + k), 52 + 4 * k)
                C += 2
        def pace(n):
            tiles = [x for x in a.vm if x[0] != 'tk']
            if len(tiles) > n: a.wait_vm(tiles[len(tiles) - n - 1])
        while I < 2 * NS:
            if I - R < C:
                pace((W if I < c['iW2'] else c['W2']) - 1)
                if I == 2 * NS - 5: self.ticket(0)
                if I == 2 * NS - 3: self.ticket(1)
                self.kv(I); I += 1
                if landed(last(C)) and last(C) < I: consume()
            else: consume()
        for k in range(2):
            pace(c['W2'] - 2 + k * (2 * c['UT'] - 2))
            a.wait_vm(('tk', k))
            a(f"""v_readfirstlane_b32 s52, v{TK+k}
            s_cmp_lt_u32 s52, {self.NF}
            s_cselect_b32 s{76+k}, 0, {NEGINF}
            s_cselect_b32 s54, 0, 0x40000000
            s_lshl_b32 s52, s52, {self.TSH}
            s_add_u32 s51, s61, s52
            s_and_b32 s51, s51, 0x1fffff
            s_or_b32 s51, s51, s54""")
            self.unit_loads(FK[k], "s[40:43]", ('fk', k)); self.unit_loads(FV[k], "s[44:47]", ('fv', k))
            self.ticket(k)
            while C < 2 * NS and landed(last(C)): consume()
        while C < 2 * NS: consume()
        self.stamp(10)
    def unit(self, k, refill):
        a = self.a; UT = self.c['UT']
        self.qk([FK[k] + 4 * t for t in range(UT)], 36, [44, 45], (lambda: self.unit_loads(FK[k], "s[40:43]")) if refill else None)
        a(f"v_cvt_pk_bf16_f32 v48, v44, v{44 + UT - 1}\nv_and_b32 v49, 0xffff0000, v48\nv_lshlrev_b32 v48, 16, v48")
        a(f"v_mul_f32 v49, {SCALE}, v49\nv_mul_f32 v48, {SCALE}, v48\nv_cvt_pk_bf16_f32 v48, v48, v49")
        a(f"v_lshlrev_b32 v44, 16, v48\nv_and_b32 v45, 0xffff0000, v48\nv_add_f32 v44, s{76+k}, v44\nv_add_f32 v45, s{76+k}, v45")
        Ls = a.newlabel("L_nomax")
        a(f"v_fma_f32 v60, v44, s58, -v26\nv_fma_f32 v61, v45, s58, -v26\nv_max_f32 v46, v60, v61\nv_cmp_lt_f32 vcc, 0x41800000, v46\ns_cbranch_vccz {Ls}")
        a("v_max_f32 v46, v44, v45\nv_mul_f32 v46, s58, v46")
        self.redrows(46, 48, "v_max_f32")
        a("v_max_f32 v46, v46, v26\nv_sub_f32 v47, v26, v46\nv_exp_f32 v47, v47\nv_mov_b32 v26, v46\nv_fma_f32 v60, v44, s58, -v46\nv_fma_f32 v61, v45, s58, -v46\nv_mul_f32 v27, v27, v47")
        for r in range(32, 36): a(f"v_mul_f32 v{r}, v{r}, v47")
        a(f"{Ls}:\nv_exp_f32 v60, v60\nv_exp_f32 v61, v61\nv_add_f32 v27, v27, v60\nv_cvt_pk_bf16_f32 v62, v60, v61")
        if UT == 2: a("v_add_f32 v27, v27, v61")
        for t in range(UT): self.bop(52 + 4 * t, 62, 2 + 4 * t)
        for t in range(UT): self.mfma16(32, FV[k] + 4 * t, 52 + 4 * t)
        if refill:
            a(f"s_mov_b32 s{76+k}, 0"); self.unit_loads(FV[k], "s[44:47]"); self.ticket(k)
    def a_pool(self):
        a = self.a; c = self.c
        Ll = a.newlabel("L_pool"); Ld = [a.newlabel("L_drain") for _ in range(2)]; Le = a.newlabel("L_poolend")
        a(f"{Ll}:")
        for k in range(2):
            a(f"""s_waitcnt vmcnt({2 * c['UT'] + 1})
            v_readfirstlane_b32 s52, v{TK+k}
            s_cmp_lt_u32 s52, {self.NF}
            s_cbranch_scc0 {Ld[k]}
            s_lshl_b32 s52, s52, {self.TSH}
            s_add_u32 s51, s61, s52
            s_and_b32 s51, s51, 0x1fffff""")
            self.unit(k, True)
        a(f"s_branch {Ll}")
        n0, n1 = c['twpos']
        for k in range(2):
            a(f"{Ld[k]}:")
            for j in range(n0): self.t_load(j)
            self.unit(k, False)
            for j in range(n0, n0 + n1): self.t_load(j)
            a(f"s_waitcnt vmcnt({1 + n0 + n1})")
            for j in range(n0 + n1, 6): self.t_load(j)
            self.unit(1 - k, False)
            if k == 0: a(f"s_branch {Le}")
        a(f"{Le}:"); a.vm = []
    def a_epilogue(self):
        a = self.a
        self.stamp(4)
        self.redrows(27, 48, "v_add_f32")
        a(f"s_lshl_b32 s52, s3, 10\ns_add_u32 s52, s52, {EB}\nv_add_u32 v48, s52, v1")
        a(f"v_bfe_u32 v49, v0, 3, 1\nv_lshlrev_b32 v49, 6, v49\ns_lshl_b32 s52, s3, 3\ns_add_u32 s52, s52, {EB + 8192}\nv_add_u32 v49, s52, v49")
        a("ds_write_b64 v49, v[26:27]\nds_write_b128 v48, v[32:35]")
        self.acc_addr(28, 52, EB)
        a(f"""s_lshr_b32 s52, s3, 1
        s_lshl_b32 s54, s49, 1
        s_add_u32 s52, s52, s54
        s_lshl_b32 s52, s52, 3
        s_add_u32 s52, s52, s50
        s_lshl_b32 s52, s52, 9
        s_add_u32 s52, s52, {REC}
        s_and_b32 s54, s3, 1
        s_lshl_b32 s55, s54, 8
        v_lshlrev_b32 v50, 2, v0
        v_add_u32 v50, s55, v50
        s_lshr_b32 s55, s3, 1
        s_lshl_b32 s55, s55, 6
        s_add_u32 s55, s55, {EB + 8192}
        v_mov_b32 v51, s55
        v_mov_b32 v59, s35""")
        a.wait_lg(); a("s_barrier")
        self.stamp(8)
        Lu = a.newlabel("L_aup")
        a(f"s_cmp_ge_u32 s3, 4\ns_cbranch_scc1 {Lu}")
        for k in range(4): a(f"ds_read_b128 v[{10+4*k}:{13+4*k}], v51 offset:{16*k}", tag='st')
        for w in range(8): a(f"ds_read_b32 v{36+w}, v28 offset:{1024*w}")
        a.wait_lg('st')
        a("v_max3_f32 v52, v10, v12, v14\nv_max3_f32 v53, v16, v18, v20\nv_max3_f32 v52, v52, v22, v24\nv_max_f32 v52, v52, v53")
        for w in range(8): a(f"v_sub_f32 v{10+2*w}, v{10+2*w}, v52")
        for w in range(8): a(f"v_exp_f32 v{10+2*w}, v{10+2*w}")
        a.wait_lg()
        a("v_mul_f32 v53, v10, v11\nv_mul_f32 v54, v10, v36")
        for w in range(1, 8): a(f"v_fmac_f32 v53, v{10+2*w}, v{11+2*w}\nv_fmac_f32 v54, v{10+2*w}, v{36+w}")
        a("v_rcp_f32 v55, v53\nv_log_f32 v58, v53\nv_mul_f32 v54, v54, v55\nv_add_f32 v58, v58, v52")
        self.rec_store(54)
        a(f"{Lu}:")
        self.stamp(5)
    def a_proj(self):
        a = self.a; c = self.c
        a(f"""v_and_b32 v50, 7, v0
        v_min_u32 v51, 5, v50
        v_and_b32 v52, 1, v0
        s_cmp_eq_u32 s63, 0
        s_cselect_b64 vcc, -1, 0
        s_cselect_b32 s66, 5, 7
        v_cndmask_b32 v51, v52, v51, vcc
        v_bfe_u32 v49, v0, 3, 1
        v_lshl_add_u32 v29, v49, 8, v51
        v_lshlrev_b32 v29, 9, v29
        s_lshl_b32 s52, s63, 6
        s_add_u32 s52, s52, s64
        s_lshl_b32 s52, s52, 12
        s_lshl_b32 s54, s3, 6
        s_add_u32 s52, s52, s54
        s_add_u32 s75, s52, {REC}
        v_lshrrev_b32 v48, 4, v0
        v_lshl_add_u32 v29, v48, 4, v29""")
        def gissue(): a("buffer_load_dwordx4 v[10:13], v29, s[36:39], s75 offen sc1", tag='pg')
        gissue()
        a("v_cmp_lt_u32 s[72:73], s66, v50")
        for r in range(32, 44): a(f"v_mov_b32 v{r}, 0")
        a(f"""v_and_b32 v26, 7, v0
        v_lshlrev_b32 v26, 4, v26
        v_bfe_u32 v48, v0, 3, 2
        v_lshl_add_u32 v26, v48, 2, v26
        v_lshrrev_b32 v48, 5, v0
        s_cmp_ge_u32 s3, 4
        s_cselect_b32 s52, 9, 8
        s_cselect_b32 s54, 8, 9
        s_cselect_b32 s55, 8192, 0
        s_cselect_b32 s56, 1024, 0
        s_add_u32 s55, s55, {TL}
        v_lshl_add_u32 v26, v48, s52, v26
        s_and_b32 s57, s3, 1
        s_lshl_b32 s57, s57, s54
        s_add_u32 s56, s56, s57
        s_add_u32 s55, s55, s57
        s_bfe_u32 s57, s3, 0x10001
        s_lshl_b32 s52, s57, 7
        s_add_u32 s55, s55, s52
        v_add_u32 v26, s55, v26
        s_lshl_b32 s52, s3, 10
        s_add_u32 s52, s52, {TL}
        v_add_u32 v27, s52, v1
        v_lshlrev_b32 v23, 3, v0
        v_add_u32 v23, s56, v23
        s_lshl_b32 s74, s63, 5
        s_add_u32 s74, s74, s64
        s_lshl_b32 s74, s74, 1
        s_add_u32 s74, s74, s57
        s_mul_i32 s74, s74, 4608
        s_mul_i32 s54, s65, 1536
        s_add_u32 s74, s74, s54
        s_add_u32 s74, s74, {PO}
        s_lshl_b32 s57, s57, 3
        v_mov_b32 v59, s35
        v_mov_b32 v47, {NEGINF}""")
        if c.get('dT'): a(f"s_branch {self.LF}")
        self.poll_granules(gissue, [13], 6, first_issued=True, sleep=c.get('tsleep', 0))
        self.stamp(6)
        a("v_cndmask_b32 v46, v12, v47, s[72:73]\nv_lshlrev_b32 v52, 16, v10\nv_mov_b32 v44, v46\nv_and_b32 v53, 0xffff0000, v10\nv_lshlrev_b32 v54, 16, v11")
        self.red8([44], "v_max_f32")
        a("v_sub_f32 v44, v46, v44\nv_and_b32 v55, 0xffff0000, v11\nv_exp_f32 v56, v44")
        for t in range(4): a(f"v_mul_f32 v{52+t}, v56, v{52+t}")
        self.red8([52, 53, 54, 55, 56], "v_add_f32")
        for k in range(2): a(f"v_cvt_pk_bf16_f32 v{20+k}, v{52+2*k}, v{53+2*k}")
        a("v_rcp_f32 v56, v56")
        for k in range(2):
            self.bop(44, 20 + k, 2); self.bop(48, 20 + k, 6)
            self.mfma16(36, TW[4 + k], 44); self.mfma16(40, TW[4 + k], 48)
            self.mfma16(32, TW[2 * k], 44); self.mfma16(32, TW[2 * k + 1], 48)
        a("v_cmp_lt_u32 vcc, 31, v0\nv_mul_f32 v56, s67, v56\nv_readlane_b32 s57, v56, s57")
        for r in range(4): a(f"v_cndmask_b32 v{36+r}, v{36+r}, v{40+r}, vcc")
        a("ds_write_b128 v27, v[36:39] offset:8192\nds_write_b128 v27, v[32:35]")
        a.wait_lg(); a("s_barrier")
        for w in range(8): a(f"ds_read_b32 v{44+w}, v26 offset:{1024*w}")
        a.wait_lg()
        a("v_add_f32 v44, v44, v45\nv_add_f32 v46, v46, v47\nv_add_f32 v48, v48, v49\nv_add_f32 v50, v50, v51\nv_add_f32 v44, v44, v46\nv_add_f32 v48, v48, v50\nv_add_f32 v58, v44, v48")
        Lf = a.newlabel("L_tfull")
        a(f"s_cmp_lt_u32 s3, 4\ns_cbranch_scc1 {Lf}")
        a("v_mov_b32 v49, v58\nv_permlane32_swap_b32 v58, v49\nv_add_f32 v58, v58, v49\ns_mov_b32 exec_hi, 0")
        a(f"{Lf}:\nv_mul_f32 v58, s57, v58\nbuffer_store_dwordx2 v[58:59], v23, s[36:39], s74 offen sc1\ns_mov_b64 exec, -1")
        self.stamp(7)

    def h_front(self):
        a = self.a; c = self.c; WH = c['WH']
        self.reset(['d'] * WH)
        self.late_prologue()
        a("""v_lshrrev_b32 v52, 4, v0
        v_and_b32 v50, 1, v0
        v_bfe_u32 v51, v0, 1, 1
        v_bfe_u32 v53, v0, 2, 2
        v_lshl_add_u32 v51, v51, 2, v53
        v_lshl_add_u32 v50, v51, 1, v50
        v_lshlrev_b32 v50, 7, v50
        v_lshl_add_u32 v50, v51, 4, v50
        v_lshl_add_u32 v50, v52, 14, v50
        s_and_b32 s52, s3, 3
        s_lshl_b32 s52, s52, 11
        v_add_u32 v50, s52, v50""")
        for ks in range(8): a(f"v_xor_b32 v{SA+ks}, {16*ks}, v50")
        a("""v_bfe_u32 v50, v0, 3, 1
        v_lshlrev_b32 v50, 2, v50
        v_lshrrev_b32 v51, 5, v0
        v_lshl_add_u32 v50, v51, 1, v50
        v_bfe_u32 v51, v0, 4, 1
        v_lshlrev_b32 v51, 1, v51
        v_bfe_u32 v53, v0, 1, 1
        v_add_u32 v51, v51, v53
        v_and_b32 v53, 1, v0
        v_lshlrev_b32 v53, 3, v53
        v_bfe_u32 v54, v0, 2, 1
        v_lshl_add_u32 v53, v54, 7, v53
        s_lshl_b32 s52, s3, 13
        v_add_u32 v53, s52, v53
        v_add_u32 v57, s52, v1
        v_add_u32 v58, 0x10000, v57""")
        for hi in range(2):
            a(f"v_add_u32 v54, {hi}, v50\nv_xor_b32 v55, v54, v51\nv_lshl_add_u32 v55, v55, 4, v53\nv_lshl_add_u32 v55, v54, 8, v55")
            for cb in range(2): a(f"v_xor_b32 v{TA + 2*cb + hi}, {64*cb}, v55")
        a(f"""s_lshr_b32 s52, s3, 2
        s_lshl_b32 s52, s52, 4
        v_and_b32 v49, 15, v0
        v_add_u32 v50, s52, v49
        v_mul_u32_u24 v2, 144, v50
        v_lshl_add_u32 v2, v52, 3, v2
        s_and_b32 s54, s3, 3
        s_lshl_b32 s55, s54, 5
        s_add_u32 s55, s55, {PL}
        v_add_u32 v2, s55, v2
        v_and_b32 v51, 31, v0
        v_mul_u32_u24 v3, 144, v51
        v_lshrrev_b32 v53, 5, v0
        v_lshl_add_u32 v3, v53, 4, v3
        v_add_u32 v3, {PL}, v3
        v_lshlrev_b32 v5, 2, v50
        v_add_u32 v5, {ML}, v5
        s_lshl_b32 s55, s54, 7
        v_add_u32 v4, s55, v5
        v_lshlrev_b32 v6, 2, v51
        v_add_u32 v6, {ML}, v6
        v_mov_b32 v7, {NEGINF}
        v_mov_b32 v8, {NEGINF}
        v_mov_b32 v9, 0
        v_lshlrev_b32 v28, 7, v0
        v_add_u32 v28, {FQ}, v28
        s_mov_b32 s58, {LOG2E}
        s_lshl_b32 s65, s63, 15
        s_lshl_b32 s54, s3, 12
        s_add_u32 s65, s65, s54
        s_add_u32 s65, s65, {QABS}
        s_add_u32 s54, s54, {PL}
        v_add_u32 v30, s54, v1
        s_lshr_b32 s54, s3, 2
        s_lshl_b32 s54, s54, 14
        s_add_u32 s54, s54, {PL}
        v_add_u32 v31, s54, v1""")
        for r in range(32): a(f"v_mov_b32 v{ACC+r}, 0")
        self.srd(44, "s22", "s23", 512 * 8192)
        a("""s_and_b32 s52, s2, 1
        s_lshl_b32 s52, s52, 3
        s_add_u32 s52, s52, s3
        s_lshl_b32 s52, s52, 18
        s_lshr_b32 s54, s2, 1
        s_lshl_b32 s54, s54, 8
        s_add_u32 s52, s52, s54
        v_lshlrev_b32 v59, 16, v52
        v_lshl_add_u32 v59, v49, 4, v59
        v_add_u32 v59, s52, v59""")
        self.get_tag()
        for t in range(WH, 16): a.wait_vm_n(WH - 1); self.dma(t)
        for t in range(16):
            q = t % 8; r = R2[q] if t < 8 else UV + 4 * q
            a.wait_vm_n(WH - 1)
            if q == 0: a("s_and_b32 s62, s62, 0x7fffff")
            a(f"s_add_u32 s51, s62, {q*8192}\nbuffer_load_dwordx4 v[{r}:{r+3}], v{DV + (q & 1)}, s[76:79], s51 offen nt", tag='r')
            if q == 7: a("s_add_u32 s62, s62, 0x200000")
        self.stamp(1)
        if c.get('dH') == 1: a(f"s_waitcnt vmcnt(0)\ns_branch {self.LF}")
        if c.get('dH') == 4:
            for t in range(8): a(f"s_waitcnt vmcnt(3)\ns_mov_b32 s51, {t*8192}\nbuffer_load_dwordx4 v[{64+4*t}:{64+4*t+3}], v59, s[44:47], s51 offen nt")
            a(f"s_waitcnt vmcnt(0)\ns_branch {self.LF}")
        self.poll_flags(28, 3, 2)
        for n in range(4): a(f"buffer_load_dwordx4 v[{STG+4*n}:{STG+4*n+3}], v1, s[36:39], s65 offen offset:{n*1024} sc1", tag=('q', n))
        for n in range(4):
            a.wait_vm(('q', n)); a(f"ds_write_b128 v30, v[{STG+4*n}:{STG+4*n+3}] offset:{n*1024}")
        a.wait_lg(); a("s_barrier")
        for ks in range(16):
            a(f"ds_read_b128 v[{QR+4*ks}:{QR+4*ks+3}], v31 offset:{ks*1024}")
            if ks == 11: a.wait_lg()
        a.wait_lg()
        self.stamp(2)
    def h_attn(self):
        a = self.a; c = self.c
        Lloop = a.newlabel("L_btile")
        a(f"s_mov_b32 s61, 0\n{Lloop}:\ns_barrier")
        for r in range(4): a(f"v_mov_b32 v{32+r}, 0")
        for ks in range(8): a(f"ds_read_b128 v[{STG+4*ks}:{STG+4*ks+3}], v{SA+ks}", tag=('s', ks))
        for ks in range(16):
            a.wait_lg(('s', ks))
            s = STG + 4 * (ks % 8)
            self.mfma16(32, s, QR + 4 * ks)
            if ks + 8 < 16: a(f"ds_read_b128 v[{s}:{s+3}], v{SA+ks} offset:8192", tag=('s', ks + 8))
        for ks in range(8): a(f"v_xor_b32 v{SA+ks}, 0x10000, v{SA+ks}")
        a("v_cvt_pk_bf16_f32 v36, v32, v33\nv_cvt_pk_bf16_f32 v38, v34, v35")
        a("v_and_b32 v37, 0xffff0000, v36\nv_lshlrev_b32 v36, 16, v36\nv_and_b32 v39, 0xffff0000, v38\nv_lshlrev_b32 v38, 16, v38")
        for r in (36, 37, 38, 39): a(f"v_mul_f32 v{r}, {SCALE}, v{r}")
        a("v_cvt_pk_bf16_f32 v36, v36, v37\nv_cvt_pk_bf16_f32 v38, v38, v39")
        a("v_lshlrev_b32 v32, 16, v36\nv_and_b32 v33, 0xffff0000, v36\nv_lshlrev_b32 v34, 16, v38\nv_and_b32 v35, 0xffff0000, v38")
        a("v_max3_f32 v36, v32, v33, v34\nv_max_f32 v36, v36, v35")
        self.redrows(36, 37, "v_max_f32")
        a("ds_write_b32 v4, v36")
        a.wait_lg(); a("s_barrier")
        a("ds_read2_b32 v[36:37], v5 offset1:32\nds_read2_b32 v[38:39], v5 offset0:64 offset1:96\nds_read2_b32 v[40:41], v6 offset1:32\nds_read2_b32 v[42:43], v6 offset0:64 offset1:96")
        a.wait_lg()
        a("v_max3_f32 v36, v36, v37, v7\nv_max3_f32 v40, v40, v41, v8\nv_max3_f32 v36, v36, v38, v39\nv_max3_f32 v38, v40, v42, v43")
        a("v_sub_f32 v40, v7, v36\nv_sub_f32 v41, v8, v38\nv_mul_f32 v37, s58, v36\nv_mul_f32 v40, s58, v40\nv_mul_f32 v42, s58, v41")
        for r in range(4): a(f"v_fma_f32 v{32+r}, v{32+r}, s58, -v37")
        a("v_exp_f32 v40, v40\nv_exp_f32 v42, v42")
        for r in range(4): a(f"v_exp_f32 v{32+r}, v{32+r}")
        a("v_mov_b32 v7, v36\nv_mov_b32 v8, v38\nv_cvt_pk_bf16_f32 v44, v32, v33\nv_cvt_pk_bf16_f32 v45, v34, v35")
        a("ds_write_b64 v2, v[44:45]")
        a("v_fma_f32 v9, v9, v40, v32\nv_add_f32 v33, v33, v34\nv_add_f32 v9, v9, v35\nv_add_f32 v9, v9, v33\nv_mov_b32 v43, v42")
        for r in range(0, 32, 2): a(f"v_pk_mul_f32 v[{ACC+r}:{ACC+r+1}], v[{ACC+r}:{ACC+r+1}], v[42:43]")
        a.wait_lg(); a("s_barrier")
        for s in range(4): a(f"ds_read_b128 v[{32+4*s}:{35+4*s}], v3 offset:{32*s}", tag='p')
        seq = [(s, cb) for s in range(4) for cb in range(2)]
        def trd(i):
            s, cb = seq[i]
            for hi in range(2):
                a(f"ds_read_b64_tr_b16 v[{STG+4*i+2*hi}:{STG+4*i+2*hi+1}], v{TA+2*cb+hi} offset:{2048*s}", tag=('t', i))
        for i in range(5): trd(i)
        for i in range(8):
            s, cb = seq[i]
            a.wait_lg(('t', i))
            a(f"v_mfma_f32_32x32x16_bf16 v[{ACC+16*cb}:{ACC+16*cb+15}], v[{STG+4*i}:{STG+4*i+3}], v[{32+4*s}:{35+4*s}], v[{ACC+16*cb}:{ACC+16*cb+15}]")
            if i + 5 < 8: trd(i + 5)
        for k in range(4): a(f"v_xor_b32 v{TA+k}, 0x10000, v{TA+k}")
        L1 = a.newlabel("L_rf"); L2 = a.newlabel("L_rf")
        a(f"s_cmp_lg_u32 s61, 0\ns_cbranch_scc1 {L1}")
        for q in range(8): a(f"ds_write_b128 v57, v[{R2[q]}:{R2[q]+3}] offset:{q*1024}")
        a(f"{L1}:\ns_cmp_lg_u32 s61, 1\ns_cbranch_scc1 {L2}")
        for q in range(8): a(f"ds_write_b128 v58, v[{UV+4*q}:{UV+4*q+3}] offset:{q*1024}")
        a("s_waitcnt lgkmcnt(0)")
        for t in range(8): a(f"s_mov_b32 s51, {t*8192}\nbuffer_load_dwordx4 v[{UV+4*t}:{UV+4*t+3}], v59, s[44:47], s51 offen nt")
        a(f"{L2}:\ns_waitcnt lgkmcnt(0)\ns_add_u32 s61, s61, 1\ns_cmp_lg_u32 s61, 4\ns_cbranch_scc1 {Lloop}")
        a.vm = []; a.lg = []
        self.stamp(5)
        if c.get('dH') == 2: a(f"s_waitcnt vmcnt(0)\ns_branch {self.LF}")
        self.redrows(9, 37, "v_add_f32")
        a("ds_write_b32 v4, v9 offset:512")
        a.wait_lg(); a("s_barrier")
        a("ds_read2_b32 v[36:37], v6 offset0:128 offset1:160\nds_read2_b32 v[38:39], v6 offset0:192 offset1:224")
        a(f"""v_and_b32 v48, 31, v0
        v_mul_u32_u24 v48, 144, v48
        v_lshrrev_b32 v49, 5, v0
        v_lshl_add_u32 v48, v49, 3, v48
        s_lshl_b32 s54, s3, 13
        v_add_u32 v48, s54, v48
        v_lshrrev_b32 v49, 3, v0
        v_mul_u32_u24 v50, 144, v49
        v_and_b32 v51, 7, v0
        v_lshl_add_u32 v50, v51, 4, v50
        v_add_u32 v50, s54, v50
        v_lshlrev_b32 v52, 10, v49
        v_lshl_add_u32 v52, v51, 4, v52
        s_mul_i32 s52, s2, {c['pbs']}
        s_lshl_b32 s54, s3, 7
        s_add_u32 s52, s52, s54
        s_add_u32 s52, s52, {PB}""")
        a.wait_lg()
        a("v_add_f32 v36, v36, v37\nv_add_f32 v38, v38, v39\nv_add_f32 v36, v36, v38\nv_rcp_f32 v38, v36\nv_log_f32 v40, v36\nv_mov_b32 v39, v38\nv_fma_f32 v40, v8, s58, v40")
        for cb in range(2):
            for rq in range(4):
                r = ACC + 16 * cb + 4 * rq
                a(f"v_pk_mul_f32 v[{r}:{r+1}], v[{r}:{r+1}], v[38:39]\nv_pk_mul_f32 v[{r+2}:{r+3}], v[{r+2}:{r+3}], v[38:39]")
                a(f"v_cvt_pk_bf16_f32 v{r}, v{r}, v{r+1}\nv_cvt_pk_bf16_f32 v{r+1}, v{r+2}, v{r+3}")
                a(f"ds_write_b64 v48, v[{r}:{r+1}] offset:{64*cb + 16*rq}")
        a.wait_lg()
        for n in range(4): a(f"ds_read_b128 v[{STG+4*n}:{STG+4*n+3}], v50 offset:{n*8*144}", tag=('r', n))
        for n in range(4):
            a.wait_lg(('r', n))
            a(f"buffer_store_dwordx4 v[{STG+4*n}:{STG+4*n+3}], v52, s[36:39], s52 offen sc1\ns_add_u32 s52, s52, 8192")
        Ls = a.newlabel("L_nopbs")
        a(f"s_cmp_lg_u32 s3, 0\ns_cbranch_scc1 {Ls}")
        a(f"s_lshl_b32 s52, s2, 7\ns_add_u32 s52, s52, {PBS}\nv_lshlrev_b32 v48, 2, v0\ns_mov_b32 exec_hi, 0")
        a(f"buffer_store_dword v40, v48, s[36:39], s52 offen sc1\ns_mov_b64 exec, -1\n{Ls}:")
        self.stamp(8)
        a("s_waitcnt vmcnt(0)\ns_barrier"); a.vm = []
        self.stamp(9)
        if c.get('dH') == 3: a(f"s_branch {self.LF}")
        Ls = a.newlabel("L_nofb")
        a(f"s_cmp_lg_u32 s3, 0\ns_cbranch_scc1 {Ls}\ns_lshl_b32 s52, s2, 7\ns_add_u32 s52, s52, {FB}")
        self.flag_store("s52")
        a(f"{Ls}:")
    def h_uv(self):
        a = self.a; pbs = self.c['pbs']; PART = 16384; ST = PART + 16 * 1040
        self.sels()
        a(f"""v_lshlrev_b32 v28, 7, v0
        v_add_u32 v28, {FB}, v28
        v_lshrrev_b32 v48, 5, v0
        v_lshlrev_b32 v29, 7, v48
        v_mul_u32_u24 v31, {pbs}, v48
        v_and_b32 v49, 31, v0
        v_lshl_add_u32 v31, v49, 4, v31
        s_lshr_b32 s54, s2, 1
        s_lshl_b32 s55, s54, 2
        s_lshl_b32 s52, s3, 10
        s_add_u32 s55, s55, s52
        s_add_u32 s55, s55, {PBS}
        v_add_u32 v25, s52, v1
        s_lshl_b32 s56, s2, 9
        s_mul_i32 s52, s3, {8 * pbs}
        s_add_u32 s56, s56, s52
        s_add_u32 s56, s56, {PB}
        s_lshl_b32 s52, s3, 1
        v_add_u32 v50, s52, v48
        v_mul_u32_u24 v26, 1040, v50
        v_lshl_add_u32 v26, v49, 5, v26
        v_add_u32 v26, {PART}, v26
        v_and_b32 v50, 15, v0
        v_mul_u32_u24 v27, 1040, v50
        v_lshrrev_b32 v51, 4, v0
        v_lshl_add_u32 v27, v51, 5, v27
        s_lshl_b32 s52, s3, 7
        s_add_u32 s52, s52, {PART}
        v_add_u32 v27, s52, v27
        v_lshrrev_b32 v50, 1, v50
        v_lshlrev_b32 v24, 3, v50
        v_add_u32 v24, {ST}, v24
        s_lshl_b32 s52, s3, 3
        s_add_u32 s52, s52, {ST}
        v_mov_b32 v23, s52""")
        for r in range(32, 36): a(f"v_mov_b32 v{r}, 0")
        self.acc_addr(30, 48, 0)
        a(f"""s_lshr_b32 s52, s3, 1
        s_lshl_b32 s52, s52, 5
        s_lshr_b32 s54, s2, 1
        s_add_u32 s52, s52, s54
        s_add_u32 s52, s52, 64
        s_lshl_b32 s52, s52, 3
        s_and_b32 s54, s2, 1
        s_add_u32 s52, s52, s54
        s_lshl_b32 s52, s52, 9
        s_add_u32 s52, s52, {REC}
        s_and_b32 s54, s3, 1
        s_lshl_b32 s54, s54, 8
        v_lshlrev_b32 v50, 2, v0
        v_add_u32 v50, s54, v50
        v_mov_b32 v59, s35
        v_mov_b32 v58, 0""")
        self.poll_flags(28, 4, 1)
        self.stamp(10)
        for n in range(4): a(f"buffer_load_dword v{36+n}, v29, s[36:39], s55 offen offset:{256*n} sc1", tag='st')
        for n in range(4): a(f"buffer_load_dwordx4 v[{64+4*n}:{67+4*n}], v31, s[36:39], s56 offen sc1\ns_add_u32 s56, s56, {2 * pbs}", tag=('pb', n))
        a.wait_vm('st')
        a("v_max3_f32 v40, v36, v37, v38\nv_max_f32 v40, v40, v39\nv_mov_b32 v41, v40\nv_permlane32_swap_b32 v40, v41\nv_max_f32 v40, v40, v41")
        for n in range(4): a(f"v_sub_f32 v{36+n}, v{36+n}, v40")
        for n in range(4): a(f"v_exp_f32 v{36+n}, v{36+n}")
        a("v_add_f32 v41, v36, v37\nv_add_f32 v42, v38, v39\nv_add_f32 v41, v41, v42\nv_mov_b32 v42, v41\nv_permlane32_swap_b32 v41, v42\nv_add_f32 v41, v41, v42")
        a("ds_write_b64 v23, v[40:41]")
        for n in range(4):
            a.wait_vm(('pb', n))
            for k in range(4):
                a(f"v_lshlrev_b32 v42, 16, v{64+4*n+k}\nv_and_b32 v43, 0xffff0000, v{64+4*n+k}")
                if n == 0: a(f"v_mul_f32 v{12+2*k}, v36, v42\nv_mul_f32 v{13+2*k}, v36, v43")
                else: a(f"v_fmac_f32 v{12+2*k}, v{36+n}, v42\nv_fmac_f32 v{13+2*k}, v{36+n}, v43")
        a("ds_write_b128 v26, v[12:15]\nds_write_b128 v26, v[16:19] offset:16")
        a.wait_lg(); a("s_barrier")
        a("ds_read_b64 v[40:41], v24\nds_read_b128 v[12:15], v27\nds_read_b128 v[16:19], v27 offset:16")
        a.wait_lg()
        a("v_mov_b32 v42, v40")
        self.red8([42], "v_max_f32")
        a("v_sub_f32 v40, v40, v42\nv_exp_f32 v40, v40\nv_mul_f32 v41, v41, v40")
        self.red8([41], "v_add_f32")
        a("v_rcp_f32 v41, v41\nv_add_f32 v40, v40, v40\nv_mul_f32 v40, v40, v41")
        for k in range(8): a(f"v_mul_f32 v{12+k}, v40, v{12+k}")
        self.red8(list(range(12, 20)), "v_add_f32")
        for k in range(4): a(f"v_cvt_pk_bf16_f32 v{60+k}, v{12+2*k}, v{13+2*k}")
        for k in range(4):
            self.bop(40, 60 + k, 2); self.bop(44, 60 + k, 6)
            self.mfma16(32, UV + 8 * k, 40); self.mfma16(32, UV + 8 * k + 4, 44)
        a("ds_write_b128 v25, v[32:35]")
        a.wait_lg(); a("s_barrier")
        Ls = a.newlabel("L_nostat")
        a(f"s_cmp_ge_u32 s3, 4\ns_cbranch_scc1 {Ls}")
        for w in range(8): a(f"ds_read_b32 v{40+w}, v30 offset:{1024*w}")
        a.wait_lg()
        a("v_add_f32 v40, v40, v41\nv_add_f32 v42, v42, v43\nv_add_f32 v44, v44, v45\nv_add_f32 v46, v46, v47\nv_add_f32 v40, v40, v42\nv_add_f32 v44, v44, v46\nv_add_f32 v54, v40, v44")
        self.rec_store(54)
        a(f"{Ls}:"); a.vm = []
        self.stamp(6)
        if self.c.get('dH') == 5: a(f"s_branch {self.LF}")
    def h_final(self, LX):
        a = self.a; c = self.c
        a(f"""s_lshl_b32 s48, s3, 6
        s_add_u32 s48, s48, s2
        s_cmp_ge_u32 s48, 72
        s_cbranch_scc1 {LX}
        s_cmp_ge_u32 s48, 36
        s_cselect_b32 s49, 1, 0
        s_mul_i32 s52, s49, 36
        s_sub_u32 s50, s48, s52
        s_mul_i32 s56, s49, 1152
        s_add_u32 s54, s4, s56
        s_addc_u32 s55, s5, 0""")
        self.srd(40, "s54", "s55", 1152); self.srd(44, "s26", "s27", 1152)
        a("v_lshlrev_b32 v20, 2, v0")
        for k in range(5):
            a(f"buffer_load_dword v{10+k}, v20, s[40:43], 0 offen offset:{256*k}\nbuffer_load_dword v{15+k}, v20, s[44:47], 0 offen offset:{256*k}")
        a(f"""v_lshrrev_b32 v24, 3, v0
        v_mul_u32_u24 v31, 9216, v24
        v_and_b32 v24, 7, v0
        v_lshl_add_u32 v31, v24, 4, v31
        s_mul_i32 s52, s49, 4608
        s_lshl_b32 s54, s50, 7
        s_add_u32 s52, s52, s54
        s_add_u32 s52, s52, {PO}
        v_add_u32 v31, s52, v31
        v_lshlrev_b32 v21, 2, v24
        v_bfe_u32 v24, v0, 4, 1
        v_lshl_add_u32 v21, v24, 1, v21
        s_lshl_b32 s54, s50, 5
        s_add_u32 s56, s56, s54
        v_mov_b32 v22, 0""")
        for n in range(8): a(f"s_mov_b32 s{64+n}, {n*73728}")
        a.wait_vm()
        self.srd(40, "s28", "s29", 2304)
        for k in range(5):
            a(f"""v_lshlrev_b32 v24, 16, v{10+k}
            v_and_b32 v25, 0xffff0000, v{10+k}
            v_lshlrev_b32 v26, 16, v{15+k}
            v_and_b32 v27, 0xffff0000, v{15+k}
            v_mul_f32 v24, v24, v26
            v_mul_f32 v25, v25, v27
            v_cvt_pk_bf16_f32 v24, v24, v25
            v_lshlrev_b32 v25, 16, v24
            v_and_b32 v24, 0xffff0000, v24
            v_add_f32 v22, v22, v25
            v_add_f32 v22, v22, v24""")
        self.red8([22], "v_add_f32")
        a("v_add_f32_dpp v22, v22, v22 row_ror:8 row_mask:0xf bank_mask:0xf")
        self.redrows(22, 24, "v_add_f32")
        a(f"""v_cvt_pk_bf16_f32 v22, v22, v22
        v_and_b32 v22, 0xffff0000, v22
        v_mul_f32 v22, {LOG2E}, v22
        v_exp_f32 v22, -v22
        v_add_f32 v22, 1.0, v22
        v_rcp_f32 v22, v22
        v_cvt_pk_bf16_f32 v22, v22, v22
        v_and_b32 v22, 0xffff0000, v22
        v_sub_f32 v23, 1.0, v22
        v_cvt_pk_bf16_f32 v23, v23, v23
        v_and_b32 v23, 0xffff0000, v23""")
        if c['ftrig'] == 'rec':
            a(f"s_and_b32 s52, s48, 63\ns_lshl_b32 s52, s52, 12\ns_add_u32 s52, s52, {REC + 12}\nv_and_b32 v30, 3, v0\nv_lshlrev_b32 v30, 9, v30\nv_add_u32 v30, s52, v30")
            self.poll_granules(lambda: a("buffer_load_dword v65, v30, s[36:39], 0 offen sc1"), [65], 7, sleep=c['fsleep'])
        else:
            g = c.get('fgrp', 0)
            self.poll_granules(lambda: a(f"buffer_load_dwordx4 v[64:67], v31, s[36:39], s{64+g} offen sc1"), [65, 67], 7, sleep=c['fsleep'])
        def sums(R):
            for k in range(2):
                a(f"v_add_f32 v{32+k}, v{R+2*k}, v{R+4+2*k}\nv_add_f32 v{34+k}, v{R+8+2*k}, v{R+12+2*k}")
                a(f"v_add_f32 v{36+k}, v{R+16+2*k}, v{R+20+2*k}\nv_add_f32 v{38+k}, v{R+24+2*k}, v{R+28+2*k}")
        def gset(k):
            for n in range(8): a(f"buffer_load_dwordx4 v[{64+32*k+4*n}:{67+32*k+4*n}], v31, s[36:39], s{64+n} offen sc1")
        if c['fpipe'] > 1: self.poll_pipe(gset, lambda k: [65 + 32 * k + 2 * j for j in range(16)], 8, c['fpipe'], 8, lambda k: sums(64 + 32 * k))
        else:
            self.poll_granules(lambda: gset(0), [65 + 2 * k for k in range(16)], 8, sleep=c.get('fsleep2', 0)); sums(64)
        a("""v_add_f32 v32, v32, v34
        v_add_f32 v36, v36, v38
        v_add_f32 v33, v33, v35
        v_add_f32 v37, v37, v39
        v_permlane32_swap_b32 v32, v36
        v_permlane32_swap_b32 v33, v37
        v_add_f32 v32, v32, v36
        v_add_f32 v33, v33, v37
        v_permlane16_swap_b32 v32, v33
        v_add_f32 v32, v32, v33
        v_add_f32_dpp v42, v32, v32 row_ror:8 row_mask:0xf bank_mask:0xf
        v_cvt_pk_bf16_f32 v42, v42, v42
        v_and_b32 v42, 0xffff0000, v42
        v_mov_b32 v43, v42
        v_permlane32_swap_b32 v42, v43
        v_mul_f32 v42, v22, v42
        v_mul_f32 v43, v23, v43
        v_cvt_pk_bf16_f32 v42, v42, v43
        v_lshlrev_b32 v43, 16, v42
        v_and_b32 v42, 0xffff0000, v42
        v_add_f32 v42, v42, v43
        v_cvt_pk_bf16_f32 v42, v42, v42
        s_mov_b32 exec_lo, 0x00ff00ff
        s_mov_b32 exec_hi, 0
        buffer_store_short v42, v21, s[40:43], s56 offen """ + c['outf'])
        Ls = a.newlabel("L_noep")
        a(f"s_cmp_lg_u32 s48, 0\ns_cbranch_scc1 {Ls}\ns_mov_b64 exec, 1\nv_mov_b32 v44, s35\nv_mov_b32 v45, 0")
        a(f"buffer_store_dword v44, v45, s[36:39], 0 offen {c['outf']}\n{Ls}:\ns_mov_b64 exec, -1")
        self.stamp(7)

    def build(self):
        a = self.a
        hdr = open("gated_mix__gqa_block_cached__compressed_kv_cla__decode.s.ref").read().split("; Override launch")[0]
        a.raw(hdr.rstrip())
        a.raw("; @launch grid=(256,1,1) block=(512,1,1) lds=163840")
        a.raw('.amdgcn_target "amdgcn-amd-amdhsa--gfx950"\n.text')
        LS1, LS2, LH, LM, LF, LE = (a.newlabel(x) for x in ("L_headq", "L_headabs", "L_latent", "L_merge", "L_fin", "L_end"))
        self.LF = LF
        self.entry(LS1, LS2, LH, LE)
        a(f"{LH}:"); self.h_front(); self.h_attn(); self.h_uv(); self.h_final(LF); a(f"s_branch {LF}")
        a(f"{LS2}:"); self.head_s2(); a(f"s_branch {LM}")
        a(f"{LS1}:"); self.head_s1()
        a(f"{LM}:"); self.a_static(); self.a_pool(); self.a_epilogue(); self.a_proj()
        a(f"{LF}:"); self.stamp_flush()
        a(f"{LE}:\ns_endpgm")
        a.raw(f""".section .rodata,"a"
.p2align 6
.amdhsa_kernel {KN}
  .amdhsa_next_free_vgpr 256
  .amdhsa_next_free_sgpr 102
  .amdhsa_accum_offset 256
  .amdhsa_group_segment_fixed_size 0
  .amdhsa_kernarg_size 120
  .amdhsa_user_sgpr_count 2
  .amdhsa_user_sgpr_kernarg_segment_ptr 1
  .amdhsa_system_sgpr_workgroup_id_x 1
.end_amdhsa_kernel""")
        return a.text()

def gen(**kw): return G(**kw).build()
if __name__ == "__main__":
    cfg = json.loads(sys.argv[2]) if len(sys.argv) > 2 else {}
    open(sys.argv[1], "w").write(gen(**cfg))
```

```python
import sys, json
sys.path.insert(0, "dev")
from asmlib import Asm
KN = "gated_mix__gqa_block_cached__compressed_kv_cla__decode_kernel"
Q     = 0x1000
QABS  = 0x11000
FQ    = 0x21000
FB    = 0x23000
PBS   = 0x25000
CNT   = 0x27000
REC   = 0x30000
PO    = 0x150000
PB    = 0x200000
STAMP = 0x800000
WS_USED = 0x1000000
LOG2E = 0x3fb8aa3b; SCALE = 0x3db504f3; NEGINF = 0xff800000
DEF = dict(W=4, W2=4, iW2=50, R=40, NS=36, IQ=22, ICHK=26, WH=4, iq2=13, W0=2, n0=8, nsub=4, subrot=3, UT=1, twpos=(0, 1),
           rotb=2, spin=40000, fsleep=6, fsleep2=1, ftrig='po', fgrp=4, fpipe=1, stamps=False, pbs=32768, wsb=0, outf='', rot=65536, xmap=1, s2wait=0, pbst='', pbld='', twsplit=1, fsel=0)
PL = 131072; ML = PL + 4608
TL = 16384; S1L = 32768; S2L = 49152; XL = 57344; EB = 65536
RING = 88; SREG = 64; ZERO = 85; TK = 86
FK = [88, 104]; FV = [96, 112]; TW = [120 + 4 * k for k in range(6)]
WR = 212; UR = 216
QR = 64; ACC = 128; SA = 160; TA = 168; STG = 176; UV = 208; DV = 240
R2 = [12, 16, 20, 24, 172, 244, 248, 252]
QTAGS = [11, 13, 15, 17, 19, 21, 23, 25]

class G:
    def __init__(self, **kw):
        self.c = dict(DEF); self.c.update(kw)
        self.a = Asm(); c = self.c
        self.NF = (2048 - 48 * c['NS']) // c['nsub'] // c['UT']
        self.USH = 10 + c['UT'] - 1
        self.TSH = self.USH + c['nsub'].bit_length() - 1
    def reset(self, vm=()): self.a.vm = list(vm); self.a.lg = []; self.a.hist = []
    def srd(self, d, lo, hi, size):
        self.a(f"s_mov_b32 s{d}, {lo}\ns_and_b32 s{d+1}, {hi}, 0xffff\ns_mov_b32 s{d+2}, {size}\ns_mov_b32 s{d+3}, 0x20000")
    def late_prologue(self):
        if self.c['wsb']: self.a(f"s_add_u32 s32, s32, {self.c['wsb']}\ns_addc_u32 s33, s33, 0")
        self.a("s_load_dword s34, s[32:33], 0"); self.srd(36, "s32", "s33", WS_USED)
    def get_tag(self):
        self.a("s_waitcnt lgkmcnt(0)\ns_mul_i32 s35, s34, 1664525\ns_add_u32 s35, s35, 1013904223"); self.a.lg = []
    def stamp(self, k):
        e = self.c.get('enc')
        if self.c['stamps'] or (e and k in (0, e[1])): self.a(f"s_memrealtime s[{80+2*k}:{81+2*k}]")
    def stamp_flush(self):
        e = self.c.get('enc')
        if e:
            a = self.a; L = a.newlabel("L_noenc"); Lq = a.newlabel("L_enc")
            a(f"s_cmp_lg_u32 s3, 0\ns_cbranch_scc1 {L}\ns_cmp_lg_u32 s2, {e[0]}\ns_cbranch_scc1 {L}\ns_waitcnt lgkmcnt(0)")
            a(f"s_sub_u32 s52, s{80+2*e[1]}, s80\ns_mul_i32 s52, s52, {e[2]}\ns_add_u32 s52, s52, 5000\ns_min_u32 s52, s52, 100000")
            a(f"{Lq}:\ns_memrealtime s[78:79]\ns_waitcnt lgkmcnt(0)\ns_sub_u32 s54, s78, s80\ns_cmp_lt_u32 s54, s52\ns_cbranch_scc1 {Lq}\n{L}:")
        if not self.c['stamps']: return
        a = self.a; L = a.newlabel("L_nost")
        a(f"s_cmp_lg_u32 s3, 0\ns_cbranch_scc1 {L}\ns_waitcnt lgkmcnt(0)")
        for k in range(11): a(f"v_mov_b32 v{2+k}, s{80+2*k}")
        a(f"s_lshl_b32 s52, s2, 6\ns_add_u32 s52, s52, {STAMP}\nv_mov_b32 v1, 0\ns_mov_b64 exec, 1")
        for k in range(3): a(f"buffer_store_dwordx4 v[{2+4*k}:{5+4*k}], v1, s[36:39], s52 offen offset:{16*k}")
        a(f"s_mov_b64 exec, -1\n{L}:")
    def sels(self):
        a = self.a
        a("""v_and_b32 v48, 1, v0
        v_mov_b32 v49, 0x0c0c0100
        v_mov_b32 v50, 0x01000c0c
        v_mov_b32 v51, 0x0c0c0302
        v_mov_b32 v52, 0x03020c0c
        v_mov_b32 v53, 0x0c0c0c0c
        v_cmp_eq_u32 vcc, 1, v48
        v_bfe_u32 v54, v0, 1, 2
        v_cndmask_b32 v49, v49, v50, vcc
        v_cndmask_b32 v51, v51, v52, vcc""")
        for k in range(4): a(f"v_cmp_eq_u32 vcc, {k}, v54\nv_cndmask_b32 v{2+k}, v53, v49, vcc\nv_cndmask_b32 v{6+k}, v53, v51, vcc")
    def timeout(self, code):
        self.a(f"v_mov_b32 v62, {code}\nv_mov_b32 v63, 0\nglobal_store_dword v63, v62, s[30:31]")
    def poll_flags(self, voff, code, sleep):
        a = self.a; Ls = a.newlabel("L_pskip"); Lp = a.newlabel("L_poll")
        keep = a.vm[:]
        a(f"s_cmp_lg_u32 s3, 0\ns_cbranch_scc1 {Ls}\ns_mov_b32 s53, {self.c['spin']}\n{Lp}:")
        a(f"buffer_load_dword v61, v{voff}, s[36:39], 0 offen sc1\ns_waitcnt vmcnt(0)")
        a(f"v_cmp_ne_u32 vcc, s35, v61\ns_cbranch_vccz {Ls}\ns_sleep {sleep}\ns_sub_u32 s53, s53, 1\ns_cbranch_scc0 {Lp}")
        self.timeout(code)
        a(f"{Ls}:\ns_barrier"); a.vm = keep
    def tagcheck(self, tags, t):
        a = self.a
        a(f"v_xor_b32 v{t}, s35, v{tags[0]}")
        for r in tags[1:]: a(f"v_bitop3_b32 v{t}, v{t}, v{r}, s35 bitop3:0xf6")
        a(f"v_cmp_ne_u32 vcc, 0, v{t}")
    def poll_granules(self, issue, tags, code, first_issued=False, sleep=0):
        a = self.a; Lp = a.newlabel("L_gpoll"); Ld = a.newlabel("L_gdone"); Lc = a.newlabel("L_gchk")
        a(f"s_mov_b32 s53, {self.c['spin']}")
        if first_issued:
            a.wait_vm('pg'); self.tagcheck(tags, 48); a(f"s_cbranch_vccz {Ld}")
        save = a.vm[:]
        a(f"{Lp}:")
        issue(); a("s_waitcnt vmcnt(0)")
        self.tagcheck(tags, 48)
        a(f"s_cbranch_vccz {Ld}")
        if sleep: a(f"s_sleep {sleep}")
        a(f"s_sub_u32 s53, s53, 1\ns_cbranch_scc0 {Lp}")
        self.timeout(code)
        a(f"s_waitcnt vmcnt(0)\n{Ld}:")
        a.vm = save if first_issued else []
    def poll_pipe(self, issue, tags, nld, nset, code, take):
        a = self.a; Lp = a.newlabel("L_pp"); Ld = [a.newlabel("L_ppd") for _ in range(nset)]; Le = a.newlabel("L_ppe")
        a(f"s_mov_b32 s53, {self.c['spin']}")
        for k in range(nset - 1): issue(k)
        a(f"{Lp}:")
        for k in range(nset):
            issue((k + nset - 1) % nset)
            a(f"s_waitcnt vmcnt({(nset - 1) * nld})")
            self.tagcheck(tags(k), 48)
            a(f"s_cbranch_vccz {Ld[k]}")
        a(f"s_sub_u32 s53, s53, 1\ns_cbranch_scc0 {Lp}")
        self.timeout(code)
        for k in range(nset):
            a(f"{Ld[k]}:"); take(k)
            if k < nset - 1: a(f"s_branch {Le}")
        a(f"{Le}:"); a.vm = []
    def qk(self, K, T, U, mid=None):
        a = self.a; n = len(K)
        for kk in range(4):
            for t in range(n):
                for h in range(2):
                    a(f"v_dot2_f32_bf16 v{T+2*t+h}, v{K[t]+kk}, v{10+8*h+2*kk}, {'0' if kk == 0 else f'v{T+2*t+h}'}")
        if mid: mid()
        for t in range(n): a(f"v_add_f32_dpp v{U[t]}, v{T+2*t}, v{T+2*t} row_ror:8 row_mask:0xf bank_mask:0x3")
        for t in range(n): a(f"v_add_f32_dpp v{U[t]}, v{T+2*t+1}, v{T+2*t+1} row_ror:8 row_mask:0xf bank_mask:0xc")
        self.red8(U[:n], "v_add_f32")
    def bop(self, dst, src, sel):
        for k in range(4): self.a(f"v_perm_b32 v{dst+k}, v{src}, v{src}, v{sel+k}")
    def red8(self, regs, op):
        for m in ("row_half_mirror", "quad_perm:[1,0,3,2]", "quad_perm:[2,3,0,1]"):
            for r in regs: self.a(f"{op}_dpp v{r}, v{r}, v{r} {m} row_mask:0xf bank_mask:0xf")
    def redrows(self, r, t, op):
        self.a(f"v_mov_b32 v{t}, v{r}\nv_permlane16_swap_b32 v{r}, v{t}\n{op} v{r}, v{r}, v{t}")
        self.a(f"v_mov_b32 v{t}, v{r}\nv_permlane32_swap_b32 v{r}, v{t}\n{op} v{r}, v{r}, v{t}")
    def mfma16(self, d, A, B): self.a(f"v_mfma_f32_16x16x32_bf16 v[{d}:{d+3}], v[{A}:{A+3}], v[{B}:{B+3}], v[{d}:{d+3}]")
    def acc_addr(self, dst, t, base):
        self.a(f"""v_and_b32 v{dst}, 7, v0
        v_lshlrev_b32 v{dst}, 4, v{dst}
        v_bfe_u32 v{t}, v0, 3, 2
        v_lshl_add_u32 v{dst}, v{t}, 2, v{dst}
        v_lshrrev_b32 v{t}, 5, v0
        v_lshl_add_u32 v{dst}, v{t}, 8, v{dst}
        s_and_b32 s52, s3, 1
        s_lshl_b32 s52, s52, 9
        s_lshr_b32 s54, s3, 1
        s_lshl_b32 s54, s54, 7
        s_add_u32 s52, s52, s54
        s_add_u32 s52, s52, {base}
        v_add_u32 v{dst}, s52, v{dst}""")
    def rec_store(self, r, vo=50, so=52):
        a = self.a
        a(f"v_mov_b32_dpp v55, v{r} quad_perm:[1,0,3,2] row_mask:0xf bank_mask:0xf\nv_cvt_pk_bf16_f32 v56, v{r}, v55")
        a("v_mov_b32_dpp v57, v56 quad_perm:[2,3,0,1] row_mask:0xf bank_mask:0xf\ns_mov_b32 exec_lo, 0x11111111\ns_mov_b32 exec_hi, 0x11111111")
        a(f"buffer_store_dwordx4 v[56:59], v{vo}, s[36:39], s{so} offen sc1\ns_mov_b64 exec, -1"); a.vm.pop()
    def flag_store(self, sreg):
        self.a(f"v_mov_b32 v50, s35\nv_mov_b32 v51, 0\ns_mov_b64 exec, 1\nbuffer_store_dword v50, v51, s[36:39], {sreg} offen sc1\ns_mov_b64 exec, -1"); self.a.vm.pop()

    def wload(self, t): self.a(f"s_mov_b32 s51, {t*16384}\nbuffer_load_dwordx4 v[{WR+4*t}:{WR+4*t+3}], v28, s[72:75], s51 offen nt", tag=('w', t))
    def uload(self, t): self.a(f"s_mov_b32 s51, {t*8192}\nbuffer_load_dwordx4 v[{UR+4*t}:{UR+4*t+3}], v28, s[72:75], s51 offen nt", tag=('u', t))
    def dma(self, t):
        a = self.a; q = t % 8
        if q == 0: a("s_and_b32 s62, s62, 0x7fffff")
        a(f"s_add_u32 m0, s60, {q*1024}\ns_add_u32 s51, s62, {q*8192}\nbuffer_load_dwordx4 v{DV + (q & 1)}, s[76:79], s51 offen nt lds", tag='d')
        if q == 7: a("s_add_u32 s62, s62, 0x200000\ns_xor_b32 s60, s60, 0x10000")
    def entry(self, LS1, LS2, LH, LE):
        a = self.a; c = self.c
        a.raw(f".globl {KN}\n.p2align 8\n.type {KN},@function\n{KN}:")
        a(f"s_cmp_ge_u32 s2, 256\ns_cbranch_scc1 {LE}")
        self.stamp(0)
        L2 = a.newlabel("L_e2"); L3 = a.newlabel("L_eh"); L4 = a.newlabel("L_e1")
        a(f"""s_load_dwordx16 s[4:19], s[0:1], 0
        s_load_dwordx8 s[20:27], s[0:1], 64
        s_load_dwordx4 s[28:31], s[0:1], 96
        s_load_dwordx2 s[32:33], s[0:1], 112
        v_lshrrev_b32 v1, 6, v0
        v_and_b32 v0, 63, v0
        v_readfirstlane_b32 s3, v1
        v_lshlrev_b32 v1, 4, v0
        s_cmp_lt_u32 s2, 64
        s_cbranch_scc1 {L3}""")
        if c['xmap']:
            a(f"""s_sub_u32 s48, s2, 64
            s_mul_i32 s49, s48, 171
            s_lshr_b32 s49, s49, 12
            s_mul_i32 s52, s49, 24
            s_sub_u32 s52, s48, s52
            s_lshr_b32 s54, s52, 3
            s_bfe_u32 s55, s52, 0x10002
            s_add_u32 s52, s52, s54
            s_add_u32 s52, s52, 1
            s_and_b32 s52, s52, 3
            s_lshl_b32 s49, s49, 2
            s_add_u32 s49, s49, s52
            s_lshl_b32 s50, s54, 1
            s_add_u32 s50, s50, s55
            s_lshl_b32 s57, s49, 1
            s_cmp_eq_u32 s54, 2
            s_cselect_b32 s66, 2, s55
            s_cselect_b32 s52, s55, s54
            s_add_u32 s57, s57, s52
            s_cmp_eq_u32 s66, 2
            s_cbranch_scc1 {L2}""")
        else:
            a(f"""s_sub_u32 s48, s2, 64
            s_mul_i32 s49, s48, 171
            s_lshr_b32 s49, s49, 10
            s_mul_i32 s50, s49, 6
            s_sub_u32 s50, s48, s50
            s_cmp_ge_u32 s50, 3
            s_cselect_b32 s52, 3, 0
            s_cselect_b32 s57, 1, 0
            s_sub_u32 s66, s50, s52
            s_lshl_b32 s52, s49, 1
            s_add_u32 s57, s57, s52
            s_cmp_eq_u32 s66, 2
            s_cbranch_scc1 {L2}""")
        a("""v_lshrrev_b32 v48, 4, v0
        v_mul_u32_u24 v49, 18, v48
        v_bfe_u32 v50, v0, 3, 1
        v_add_u32 v51, v49, v50
        s_mul_i32 s52, s3, 72
        v_add_u32 v51, s52, v51
        v_lshlrev_b32 v28, 13, v51
        v_and_b32 v51, 7, v0
        v_lshl_add_u32 v28, v51, 4, v28
        s_lshl_b32 s54, s57, 7
        v_add_u32 v28, s54, v28
        v_lshlrev_b32 v62, 3, v0
        v_add_u32 v51, 1008, v62
        v_cmp_lt_u32 vcc, 17, v0
        s_lshl_b32 s52, s52, 1
        v_mov_b32 v52, 0x10000
        v_cndmask_b32 v63, v62, v51, vcc
        v_cmp_lt_u32 vcc, 35, v0
        v_add_u32 v63, s52, v63
        s_cmp_eq_u32 s66, 0
        v_cndmask_b32 v63, v63, v52, vcc
        s_waitcnt lgkmcnt(0)
        s_cselect_b32 s54, s18, s10
        s_cselect_b32 s55, s19, s11""")
        self.srd(72, "s54", "s55", 576 * 8192); self.srd(76, "s4", "s5", 2304)
        a("buffer_load_dwordx2 v[20:21], v63, s[76:79], 0 offen")
        for t in range(c['W0']): self.wload(t)
        a(f"s_cmp_lg_u32 s66, 0\ns_cbranch_scc1 {LS1}")
        for t in range(c['W0'], 4): self.wload(t)
        a(f"s_branch {LS1}")
        a(f"{L2}:"); self.reset()
        a("""s_lshr_b32 s56, s57, 4
        s_and_b32 s52, s57, 15
        s_lshl_b32 s52, s52, 2
        s_lshr_b32 s54, s3, 1
        s_add_u32 s52, s52, s54
        s_lshl_b32 s52, s52, 16
        s_lshl_b32 s54, s56, 1
        s_and_b32 s55, s3, 1
        s_add_u32 s54, s54, s55
        s_lshl_b32 s55, s54, 10
        s_add_u32 s52, s52, s55
        v_add_u32 v28, s52, v1
        s_waitcnt lgkmcnt(0)""")
        self.srd(72, "s20", "s21", 512 * 8192)
        for t in range(c['W0']): self.uload(t)
        a(f"s_branch {LS2}")
        a(f"{L3}:"); self.reset()
        a("v_lshrrev_b32 v48, 3, v0\nv_and_b32 v49, 7, v0\ns_lshl_b32 s52, s3, 7\nv_lshlrev_b32 v50, 10, v48\nv_add_u32 v50, s52, v50\nv_lshrrev_b32 v52, 4, v0")
        for q in range(2): a(f"v_add_u32 v51, {4*q}, v52\nv_xor_b32 v51, v51, v49\nv_lshl_add_u32 v{DV+q}, v51, 4, v50")
        a(f"""s_lshr_b32 s63, s2, 5
        s_and_b32 s64, s2, 31
        s_lshl_b32 s60, s3, 13
        s_mul_i32 s62, s63, {c['rotb'] << 21}
        s_lshl_b32 s52, s64, 16
        s_add_u32 s62, s62, s52
        s_lshl_b32 s52, s63, 23
        s_waitcnt lgkmcnt(0)
        s_add_u32 s54, s16, s52
        s_addc_u32 s55, s17, 0""")
        self.srd(76, "s54", "s55", 0x800000)
        for t in range(c['WH']): self.dma(t)
        a(f"s_branch {LH}")

    def a_common(self):
        a = self.a; c = self.c
        self.late_prologue()
        a("s_lshl_b32 s52, s49, 21\ns_add_u32 s54, s6, s52\ns_addc_u32 s55, s7, 0")
        self.srd(40, "s54", "s55", 0x200000)
        a("s_add_u32 s54, s8, s52\ns_addc_u32 s55, s9, 0")
        self.srd(44, "s54", "s55", 0x200000)
        a(f"""s_mul_i32 s52, s49, {c['rot']}
        s_lshl_b32 s60, s50, 3
        s_add_u32 s60, s60, s3
        s_lshl_b32 s60, s60, 12
        s_add_u32 s60, s60, s52
        s_mul_i32 s54, s50, {c['subrot']}
        s_add_u32 s54, s54, s3
        s_and_b32 s54, s54, {c['nsub'] - 1}
        s_lshl_b32 s61, s54, {self.USH}
        s_add_u32 s61, s61, s52
        s_add_u32 s61, s61, {c['NS']*48*1024}
        s_lshl_b32 s62, s49, 3
        s_add_u32 s62, s62, s54
        s_lshl_b32 s62, s62, 7
        s_add_u32 s62, s62, {CNT}
        s_lshl_b32 s52, s49, 10
        s_add_u32 s52, s52, {Q}
        v_and_b32 v29, 15, v0
        v_lshlrev_b32 v29, 4, v29
        v_add_u32 v29, s52, v29
        s_mov_b32 s58, {LOG2E}
        v_mov_b32 v{ZERO}, 0""")
        self.sels()
        a("""s_cmp_ge_u32 s48, 96
        s_cselect_b32 s63, 1, 0
        s_cselect_b32 s54, s24, s12
        s_cselect_b32 s55, s25, s13
        s_cselect_b32 s67, 2.0, 1.0
        s_mul_i32 s52, s63, 96
        s_sub_u32 s52, s48, s52
        s_mul_i32 s64, s52, 171
        s_lshr_b32 s64, s64, 9
        s_mul_i32 s65, s64, 3
        s_sub_u32 s65, s52, s65""")
        self.srd(68, "s54", "s55", 4096 * 1152)
        a("""s_lshl_b32 s52, s64, 3
        s_add_u32 s52, s52, s3
        s_mul_i32 s52, s52, 18432
        s_mul_i32 s54, s65, 384
        s_add_u32 s52, s52, s54
        v_lshrrev_b32 v48, 4, v0
        v_mul_u32_u24 v30, 4608, v48
        v_add_u32 v30, s52, v30
        v_bfe_u32 v49, v0, 3, 1
        v_mul_u32_u24 v31, 1152, v49
        v_add_u32 v31, v31, v30
        v_and_b32 v50, 7, v0
        v_lshl_add_u32 v31, v50, 4, v31
        v_add_u32 v31, 256, v31
        v_and_b32 v51, 15, v0
        v_lshl_add_u32 v30, v51, 4, v30""")
        self.get_tag()
    def ring(self, j): return RING + 4 * (j % self.c['R'])
    def kv(self, j):
        a = self.a; NS = self.c['NS']; jj = j % NS
        if jj % 4 == 0: a(f"s_add_u32 s51, s60, {(jj//4)*48*4096}\ns_and_b32 s51, s51, 0x1fffff")
        a(f"buffer_load_dwordx4 v[{self.ring(j)}:{self.ring(j)+3}], v1, {'s[40:43]' if j < NS else 's[44:47]'}, s51 offen offset:{(jj % 4) * 1024} nt", tag=('kv', j))
    def head_s1(self):
        a = self.a; c = self.c; W, W0, IM = c['W'], c['W0'], c['IQ']
        self.reset(['x'] + [('w', t) for t in range(4)])
        a(f"""v_lshrrev_b32 v48, 4, v0
        v_mul_u32_u24 v61, 36, v48
        v_bfe_u32 v50, v0, 3, 1
        v_mul_u32_u24 v50, 144, v50
        s_lshl_b32 s54, s3, 9
        s_add_u32 s54, s54, {XL}
        v_add3_u32 v61, v61, v50, s54
        v_add_u32 v62, s54, v62
        s_cmp_eq_u32 s66, 0
        s_cselect_b32 s56, 32768, 0
        s_lshr_b32 s54, s57, 1
        s_lshl_b32 s54, s54, 9
        s_add_u32 s56, s56, s54
        s_and_b32 s54, s57, 1
        s_lshl_b32 s54, s54, 7
        s_add_u32 s56, s56, s54
        s_add_u32 s56, s56, {Q}""")
        self.a_common()
        Ly = a.newlabel("L_y"); Lz = a.newlabel("L_nozero")
        a(f"s_cmp_eq_u32 s66, 0\ns_cbranch_scc1 {Ly}")
        a(f"""s_and_b32 s52, s57, 3
        s_lshr_b32 s54, s3, 1
        s_or_b32 s52, s52, s54
        s_cmp_lg_u32 s52, 0
        s_cbranch_scc1 {Lz}
        s_lshl_b32 s52, s3, 4
        s_lshr_b32 s54, s57, 2
        s_add_u32 s52, s52, s54
        s_lshl_b32 s52, s52, 10
        s_add_u32 s52, s52, {CNT}
        v_lshlrev_b32 v48, 7, v0
        s_mov_b64 exec, 0xff
        buffer_store_dword v{ZERO}, v48, s[36:39], s52 offen sc1
        s_mov_b64 exec, -1
        {Lz}:"""); a.vm.pop()
        keep = a.vm[:]
        for t in range(W0, 4): a(f"s_waitcnt vmcnt({W0 - 1})"); self.wload(t)
        a.vm = keep
        a(f"{Ly}:")
        seq = [('w', t) for t in range(4, 9)] + [('kv', j) for j in range(IM)]
        I = 0
        def issue():
            nonlocal I
            x = seq[I]; I += 1
            if I + 3 < c['n0']:
                L = a.newlabel("L_y"); a(f"s_cmp_eq_u32 s66, 0\ns_cbranch_scc1 {L}\ns_waitcnt vmcnt({W0 - 1})\n{L}:")
            self.kv(x[1]) if x[0] == 'kv' else self.wload(x[1])
        for r in range(32, 40): a(f"v_mov_b32 v{r}, 0")
        a.wait_vm('x')
        a("ds_write_b64 v62, v[20:21]")
        for k in range(4): a(f"ds_read2_b32 v[{10+2*k}:{11+2*k}], v61 offset0:{2*k} offset1:{2*k+1}")
        a("ds_read_b32 v18, v61 offset:32")
        a.wait_lg()
        for t in range(9):
            self.bop(40, 10 + t, 2); self.bop(44, 10 + t, 6)
            a.wait_vm(('w', t))
            while I < len(seq) and len(a.vm) < (4 if I < 5 else W): issue()
            self.mfma16(32, WR + 4 * t, 40); self.mfma16(36, WR + 4 * t, 44)
        a(f"v_cmp_lt_u32 vcc, 31, v0\ns_lshl_b32 s52, s3, 10\ns_add_u32 s52, s52, {S1L}\nv_add_u32 v48, s52, v1")
        for r in range(4): a(f"v_cndmask_b32 v{32+r}, v{32+r}, v{36+r}, vcc")
        a("ds_write_b128 v48, v[32:35]")
        a.wait_lg(); a("s_barrier")
        Ls = a.newlabel("L_s1skip")
        a(f"""s_cmp_ge_u32 s3, 2
        s_cbranch_scc1 {Ls}
        v_and_b32 v48, 7, v0
        v_lshlrev_b32 v48, 4, v48
        v_bfe_u32 v49, v0, 3, 2
        v_lshl_add_u32 v48, v49, 2, v48
        v_lshrrev_b32 v49, 5, v0
        v_lshl_add_u32 v48, v49, 8, v48
        s_lshl_b32 s52, s3, 7
        s_add_u32 s52, s52, {S1L}
        v_add_u32 v48, s52, v48""")
        for s in range(16):
            a(f"ds_read_b32 v{32+s}, v48 offset:{512*s}")
            if s == 11: a.wait_lg()
        a("""s_lshl_b32 s52, s3, 14
        s_add_u32 s52, s52, s56
        v_mov_b32 v53, s35
        v_bfe_u32 v50, v0, 2, 1
        v_lshlrev_b32 v50, 8, v50
        v_lshrrev_b32 v51, 3, v0
        v_lshl_add_u32 v50, v51, 4, v50
        v_bfe_u32 v51, v0, 1, 1
        v_lshl_add_u32 v50, v51, 3, v50""")
        a.wait_lg()
        for st in (8, 4, 2, 1):
            for s in range(st): a(f"v_add_f32 v{32+s}, v{32+s}, v{32+s+st}")
        Lw = a.newlabel("L_s1w")
        a(f"s_cmp_eq_u32 s66, 0\ns_cbranch_scc1 {Lw}\ns_waitcnt vmcnt(0)\n{Lw}:")
        a("v_mov_b32_dpp v33, v32 quad_perm:[1,0,3,2] row_mask:0xf bank_mask:0xf")
        a("v_cvt_pk_bf16_f32 v52, v32, v33\ns_mov_b32 exec_lo, 0x55555555\ns_mov_b32 exec_hi, 0x55555555")
        a("buffer_store_dwordx2 v[52:53], v50, s[36:39], s52 offen sc1\ns_mov_b64 exec, -1"); a.vm.pop()
        a(f"{Ls}:")
        self.stamp(9)
        while I < len(seq): a.wait_vm_n(W - 1); issue()
    def head_s2(self):
        a = self.a; c = self.c; W, W0, IM = c['W'], c['W0'], c['IQ']
        self.reset([('u', t) for t in range(W0)])
        a(f"""s_lshl_b32 s54, s54, 11
        s_add_u32 s54, s54, {Q + 32768}
        v_lshrrev_b32 v48, 4, v0
        v_lshlrev_b32 v59, 9, v48
        v_and_b32 v49, 15, v0
        v_lshl_add_u32 v59, v49, 4, v59
        v_add_u32 v59, s54, v59
        s_mov_b32 s76, 16384
        v_bfe_u32 v50, v0, 3, 1
        v_lshlrev_b32 v60, 9, v50
        v_lshl_add_u32 v60, v48, 4, v60
        s_lshr_b32 s52, s3, 1
        s_lshl_b32 s52, s52, 7
        s_and_b32 s55, s3, 1
        s_lshl_b32 s55, s55, 6
        s_add_u32 s52, s52, s55
        s_add_u32 s52, s52, {S2L}
        v_add_u32 v60, s52, v60
        v_add_u32 v51, {S2L + 1024}, v1
        v_and_b32 v50, 7, v0
        v_cmp_lt_u32 vcc, 0, v50
        v_cndmask_b32 v60, v60, v51, vcc""")
        self.a_common()
        seq = [('u', t) for t in range(8)] + [('kv', j) for j in range(IM)]
        I = W0
        def issue():
            nonlocal I
            x = seq[I]; I += 1
            self.kv(x[1]) if x[0] == 'kv' else self.uload(x[1])
        def more(n=1):
            for _ in range(n):
                if I < len(seq): a.wait_vm_n((W0 if I < c['n0'] else W) - 1); issue()
        while ('kv', c['iq2'] - 1) in seq[I:]: more()
        def qissue():
            for b in range(2):
                for k in range(2):
                    a(f"buffer_load_dwordx4 v[{10+8*b+4*k}:{13+8*b+4*k}], v59, s[36:39], {'s76' if b else '0'} offen offset:{256*k} sc1", tag='pg')
        qissue()
        while sum(1 for x in a.vm[a.vm.index('pg'):] if x != 'pg') < W - 1: a.wait_vm_n(W + 3); issue()
        if not c.get('dQ'): self.poll_granules(qissue, QTAGS, 2, first_issued=True, sleep=1)
        self.stamp(9)
        while len(a.vm) < W: issue()
        for n in range(2):
            self.qk([UR + 16 * n + 4 * t for t in range(4)], 36, [44 + 4 * n + t for t in range(4)]); more()
        for k in range(4): a(f"v_cvt_pk_bf16_f32 v{52+k}, v{44+2*k}, v{45+2*k}")
        a("ds_write_b128 v60, v[52:55]")
        a.wait_lg(); a("s_barrier")
        Ls = a.newlabel("L_s2skip")
        a(f"""s_cmp_lg_u32 s3, 7
        s_cbranch_scc1 {Ls}
        v_add_u32 v48, {S2L}, v1
        ds_read_b128 v[52:55], v48
        v_lshrrev_b32 v49, 5, v0
        v_lshlrev_b32 v49, 15, v49
        v_bfe_u32 v50, v0, 3, 2
        v_lshl_add_u32 v49, v50, 10, v49
        v_and_b32 v50, 7, v0
        v_lshl_add_u32 v49, v50, 4, v49
        s_lshr_b32 s52, s56, 1
        s_lshl_b32 s52, s52, 14
        s_and_b32 s54, s57, 3
        s_lshl_b32 s54, s54, 12
        s_add_u32 s52, s52, s54
        s_bfe_u32 s54, s57, 0x20002
        s_lshl_b32 s54, s54, 8
        s_add_u32 s52, s52, s54
        s_and_b32 s54, s56, 1
        s_lshl_b32 s54, s54, 7
        s_add_u32 s52, s52, s54
        s_add_u32 s52, s52, {QABS}""")
        a.wait_lg()
        a("buffer_store_dwordx4 v[52:55], v49, s[36:39], s52 offen sc1"); a.vm.pop()
        if c['s2wait'] == 0:
            a(f"s_lshl_b32 s54, s57, 7\ns_add_u32 s54, s54, {FQ}\ns_waitcnt vmcnt(0)")
            self.flag_store("s54")
            a(f"{Ls}:")
        else:
            a(f"{Ls}:")
            more(c['s2wait'])
            Ls = a.newlabel("L_s2flag")
            a(f"s_cmp_lg_u32 s3, 7\ns_cbranch_scc1 {Ls}\ns_lshl_b32 s54, s57, 7\ns_add_u32 s54, s54, {FQ}\ns_waitcnt vmcnt({c['s2wait'] if c.get('s2cnt') else 0})")
            self.flag_store("s54")
            a(f"{Ls}:")
        while I < len(seq): more()
    def qissue(self):
        for h in range(2):
            for k in range(2):
                self.a(f"buffer_load_dwordx4 v[{10+8*h+4*k}:{13+8*h+4*k}], v29, s[36:39], 0 offen offset:{512*h+256*k} sc1", tag='pg')
    def ticket(self, k):
        self.a(f"v_mov_b32 v{TK+k}, 1\ns_mov_b64 exec, 1\nbuffer_atomic_add v{TK+k}, v{ZERO}, s[36:39], s62 offen sc0\ns_mov_b64 exec, -1", tag=('tk', k))
    def unit_loads(self, r, srd, tag=None):
        for t in range(self.c['UT']): self.a(f"buffer_load_dwordx4 v[{r+4*t}:{r+4*t+3}], v1, {srd}, s51 offen offset:{1024*t} nt", tag=tag)
    def t_load(self, k):
        r = TW[k]
        if k < 4: self.a(f"buffer_load_dwordx4 v[{r}:{r+3}], v30, s[68:71], 0 offen offset:{k*1152} nt")
        else: self.a(f"buffer_load_dwordx4 v[{r}:{r+3}], v31, s[68:71], 0 offen offset:{(k-4)*2304} nt")
    def a_static(self):
        a = self.a; c = self.c; W, R, NS, IM = c['W'], c['R'], c['NS'], c['IQ']; ring = self.ring
        assert RING + 4 * R <= 256 and NS % 4 == 0 and SREG + NS // 2 <= 83 and ring(IM + W) < WR
        assert all(ring(j) >= TW[5] + 4 for j in range(2 * NS - 10, 2 * NS))
        self.reset([('kv', j) for j in range(IM - W, IM)])
        I = IM
        a(f"v_mov_b32 v26, {NEGINF}\nv_mov_b32 v27, 0\nv_mov_b32 v32, 0\nv_mov_b32 v33, 0\nv_mov_b32 v34, 0\nv_mov_b32 v35, 0")
        self.qissue()
        while I < c['ICHK']:
            a.wait_vm_n(W - 1 + (4 if I < IM + W else 0)); self.kv(I); I += 1
        self.stamp(1)
        if not c.get('dQ'): self.poll_granules(self.qissue, QTAGS, 1, first_issued=True)
        self.stamp(2)
        self.a_epi_addr()
        C = 0
        def landed(j): return ('kv', j) not in a.vm
        def last(C): return C + 3 if C < NS else C + 1
        def consume():
            nonlocal C
            if C < NS:
                n = C // 4
                a.wait_vm(('kv', C + 3))
                self.qk([ring(C + t) for t in range(4)], 36, [44, 45, 46, 47])
                a("v_cvt_pk_bf16_f32 v48, v44, v45\nv_cvt_pk_bf16_f32 v50, v46, v47\nv_max3_f32 v26, v26, v44, v45")
                a("v_and_b32 v49, 0xffff0000, v48\nv_lshlrev_b32 v48, 16, v48\nv_and_b32 v51, 0xffff0000, v50\nv_lshlrev_b32 v50, 16, v50")
                a("v_max3_f32 v26, v26, v46, v47")
                for r in (48, 49, 50, 51): a(f"v_mul_f32 v{r}, {SCALE}, v{r}")
                a(f"v_cvt_pk_bf16_f32 v{SREG+2*n}, v48, v49\nv_cvt_pk_bf16_f32 v{SREG+2*n+1}, v50, v51")
                C += 4
                if C == NS:
                    self.redrows(26, 48, "v_max_f32")
                    a(f"v_cvt_pk_bf16_f32 v48, v26, v26\nv_and_b32 v48, 0xffff0000, v48\nv_mul_f32 v48, {SCALE}, v48")
                    a(f"v_cvt_pk_bf16_f32 v48, v48, v48\nv_and_b32 v26, 0xffff0000, v48\nv_mul_f32 v26, {LOG2E}, v26")
                    self.stamp(3)
            else:
                n = (C - NS) // 2
                a(f"v_lshlrev_b32 v60, 16, v{SREG+n}\nv_and_b32 v61, 0xffff0000, v{SREG+n}")
                a("v_fma_f32 v60, v60, s58, -v26\nv_fma_f32 v61, v61, s58, -v26")
                a("v_exp_f32 v60, v60\nv_exp_f32 v61, v61\nv_add_f32 v27, v27, v60\nv_cvt_pk_bf16_f32 v62, v60, v61\nv_add_f32 v27, v27, v61")
                self.bop(52, 62, 2); self.bop(56, 62, 6)
                for k in range(2):
                    a.wait_vm(('kv', C + k)); self.mfma16(32, ring(C + k), 52 + 4 * k)
                C += 2
        def pace(n):
            tiles = [x for x in a.vm if x[0] != 'tk']
            if len(tiles) > n: a.wait_vm(tiles[len(tiles) - n - 1])
        while I < 2 * NS:
            if I - R < C:
                pace((W if I < c['iW2'] else c['W2']) - 1)
                if I == 2 * NS - 5: self.ticket(0)
                if I == 2 * NS - 3: self.ticket(1)
                self.kv(I); I += 1
                if landed(last(C)) and last(C) < I: consume()
            else: consume()
        for k in range(2):
            pace(c['W2'] - 2 + k * (2 * c['UT'] - 2))
            a.wait_vm(('tk', k))
            a(f"""v_readfirstlane_b32 s52, v{TK+k}
            s_cmp_lt_u32 s52, {self.NF}
            s_cselect_b32 s{76+k}, 0, {NEGINF}
            s_cselect_b32 s54, 0, 0x40000000
            s_lshl_b32 s52, s52, {self.TSH}
            s_add_u32 s51, s61, s52
            s_and_b32 s51, s51, 0x1fffff
            s_or_b32 s51, s51, s54""")
            self.unit_loads(FK[k], "s[40:43]", ('fk', k)); self.unit_loads(FV[k], "s[44:47]", ('fv', k))
            self.ticket(k)
            while C < 2 * NS and landed(last(C)): consume()
        while C < 2 * NS: consume()
        self.stamp(10)
    def unit(self, k, refill, vwait=None):
        a = self.a; UT = self.c['UT']
        self.qk([FK[k] + 4 * t for t in range(UT)], 36, [44, 45], (lambda: self.unit_loads(FK[k], "s[40:43]")) if refill else None)
        a(f"v_cvt_pk_bf16_f32 v48, v44, v{44 + UT - 1}\nv_and_b32 v49, 0xffff0000, v48\nv_lshlrev_b32 v48, 16, v48")
        a(f"v_mul_f32 v49, {SCALE}, v49\nv_mul_f32 v48, {SCALE}, v48\nv_cvt_pk_bf16_f32 v48, v48, v49")
        a(f"v_lshlrev_b32 v44, 16, v48\nv_and_b32 v45, 0xffff0000, v48\nv_add_f32 v44, s{76+k}, v44\nv_add_f32 v45, s{76+k}, v45")
        Ls = a.newlabel("L_nomax")
        a(f"v_fma_f32 v60, v44, s58, -v26\nv_fma_f32 v61, v45, s58, -v26\nv_max_f32 v46, v60, v61\nv_cmp_lt_f32 vcc, 0x41800000, v46\ns_cbranch_vccz {Ls}")
        a("v_max_f32 v46, v44, v45\nv_mul_f32 v46, s58, v46")
        self.redrows(46, 48, "v_max_f32")
        a("v_max_f32 v46, v46, v26\nv_sub_f32 v47, v26, v46\nv_exp_f32 v47, v47\nv_mov_b32 v26, v46\nv_fma_f32 v60, v44, s58, -v46\nv_fma_f32 v61, v45, s58, -v46\nv_mul_f32 v27, v27, v47")
        for r in range(32, 36): a(f"v_mul_f32 v{r}, v{r}, v47")
        a(f"{Ls}:\nv_exp_f32 v60, v60\nv_exp_f32 v61, v61\nv_add_f32 v27, v27, v60\nv_cvt_pk_bf16_f32 v62, v60, v61")
        if UT == 2: a("v_add_f32 v27, v27, v61")
        for t in range(UT): self.bop(52 + 4 * t, 62, 2 + 4 * t)
        if isinstance(vwait, tuple):
            L = a.newlabel("L_vw"); a(f"s_waitcnt vmcnt({vwait[1]})\ns_cmp_ge_u32 s3, 4\ns_cbranch_scc1 {L}\ns_waitcnt vmcnt({vwait[0]})\n{L}:")
        elif vwait is not None: a(f"s_waitcnt vmcnt({vwait})")
        for t in range(UT): self.mfma16(32, FV[k] + 4 * t, 52 + 4 * t)
        if refill:
            a(f"s_mov_b32 s{76+k}, 0"); self.unit_loads(FV[k], "s[44:47]"); self.ticket(k)
    def a_pool(self):
        a = self.a; c = self.c
        Ll = a.newlabel("L_pool"); Ld = [a.newlabel("L_drain") for _ in range(2)]; Le = a.newlabel("L_poolend")
        a(f"{Ll}:")
        for k in range(2):
            a(f"""s_waitcnt vmcnt({2 * c['UT'] + 1})
            v_readfirstlane_b32 s52, v{TK+k}
            s_cmp_lt_u32 s52, {self.NF}
            s_cbranch_scc0 {Ld[k]}
            s_lshl_b32 s52, s52, {self.TSH}
            s_add_u32 s51, s61, s52
            s_and_b32 s51, s51, 0x1fffff""")
            self.unit(k, True)
        a(f"s_branch {Ll}")
        n0, n1 = c['twpos']
        for k in range(2):
            a(f"{Ld[k]}:")
            for j in range(n0): self.t_load(j)
            self.unit(k, False)
            for j in range(n0, n0 + n1): self.t_load(j)
            a(f"s_waitcnt vmcnt({1 + n0 + n1 + c['UT']})")
            if c['twsplit']:
                L = a.newlabel("L_tws")
                a(f"s_cmp_lt_u32 s3, 4\ns_cbranch_scc1 {L}")
                for j in range(n0 + n1, 6): self.t_load(j)
                a(f"{L}:")
                self.unit(1 - k, False, (1 + n0 + n1, 7))
            else:
                for j in range(n0 + n1, 6): self.t_load(j)
                self.unit(1 - k, False, 7)
            if k == 0: a(f"s_branch {Le}")
        a(f"{Le}:"); a.vm = []
    def a_epi_addr(self):
        a = self.a
        a(f"s_lshl_b32 s52, s3, 10\ns_add_u32 s52, s52, {EB}\nv_add_u32 v83, s52, v1")
        a(f"v_bfe_u32 v84, v0, 3, 1\nv_lshlrev_b32 v84, 6, v84\ns_lshl_b32 s52, s3, 3\ns_add_u32 s52, s52, {EB + 8192}\nv_add_u32 v84, s52, v84")
        self.acc_addr(28, 48, EB)
        a(f"""s_lshr_b32 s52, s3, 1
        s_lshl_b32 s54, s49, 1
        s_add_u32 s52, s52, s54
        s_lshl_b32 s52, s52, 3
        s_add_u32 s52, s52, s50
        s_lshl_b32 s52, s52, 9
        s_add_u32 s78, s52, {REC}
        s_and_b32 s54, s3, 1
        s_lshl_b32 s55, s54, 8
        v_lshlrev_b32 v63, 2, v0
        v_add_u32 v63, s55, v63
        s_lshr_b32 s55, s3, 1
        s_lshl_b32 s55, s55, 6
        s_add_u32 s55, s55, {EB + 8192}
        v_mov_b32 v29, s55""")
    def a_epilogue(self):
        a = self.a
        self.stamp(4)
        self.redrows(27, 48, "v_add_f32")
        a("ds_write_b64 v84, v[26:27]\nds_write_b128 v83, v[32:35]\nv_mov_b32 v59, s35")
        a.wait_lg(); a("s_barrier")
        self.stamp(8)
        Lu = a.newlabel("L_aup")
        a(f"s_cmp_ge_u32 s3, 4\ns_cbranch_scc1 {Lu}")
        for k in range(4): a(f"ds_read_b128 v[{10+4*k}:{13+4*k}], v29 offset:{16*k}", tag='st')
        for w in range(8): a(f"ds_read_b32 v{36+w}, v28 offset:{1024*w}")
        a.wait_lg('st')
        a("v_max3_f32 v52, v10, v12, v14\nv_max3_f32 v53, v16, v18, v20\nv_max3_f32 v52, v52, v22, v24\nv_max_f32 v52, v52, v53")
        for w in range(8): a(f"v_sub_f32 v{10+2*w}, v{10+2*w}, v52")
        for w in range(8): a(f"v_exp_f32 v{10+2*w}, v{10+2*w}")
        a.wait_lg()
        a("v_mul_f32 v53, v10, v11\nv_mul_f32 v54, v10, v36")
        for w in range(1, 8): a(f"v_fmac_f32 v53, v{10+2*w}, v{11+2*w}\nv_fmac_f32 v54, v{10+2*w}, v{36+w}")
        a("v_rcp_f32 v55, v53\nv_log_f32 v58, v53\nv_mul_f32 v54, v54, v55\nv_add_f32 v58, v58, v52")
        self.rec_store(54, 63, 78)
        if self.c['twsplit']:
            for j in range(sum(self.c['twpos']), 6): self.t_load(j)
        a(f"{Lu}:")
        self.stamp(5)
    def a_proj(self):
        a = self.a; c = self.c
        a(f"""v_and_b32 v50, 7, v0
        v_min_u32 v51, 5, v50
        v_and_b32 v52, 1, v0
        s_cmp_eq_u32 s63, 0
        s_cselect_b64 vcc, -1, 0
        s_cselect_b32 s66, 5, 7
        v_cndmask_b32 v51, v52, v51, vcc
        v_bfe_u32 v49, v0, 3, 1
        v_lshl_add_u32 v29, v49, 8, v51
        v_lshlrev_b32 v29, 9, v29
        s_lshl_b32 s52, s63, 6
        s_add_u32 s52, s52, s64
        s_lshl_b32 s52, s52, 12
        s_lshl_b32 s54, s3, 6
        s_add_u32 s52, s52, s54
        s_add_u32 s75, s52, {REC}
        v_lshrrev_b32 v48, 4, v0
        v_lshl_add_u32 v29, v48, 4, v29""")
        def gissue(): a("buffer_load_dwordx4 v[10:13], v29, s[36:39], s75 offen sc1", tag='pg')
        gissue()
        a("v_cmp_lt_u32 s[72:73], s66, v50")
        for r in range(32, 44): a(f"v_mov_b32 v{r}, 0")
        a(f"""v_and_b32 v26, 7, v0
        v_lshlrev_b32 v26, 4, v26
        v_bfe_u32 v48, v0, 3, 2
        v_lshl_add_u32 v26, v48, 2, v26
        v_lshrrev_b32 v48, 5, v0
        s_cmp_ge_u32 s3, 4
        s_cselect_b32 s52, 9, 8
        s_cselect_b32 s54, 8, 9
        s_cselect_b32 s55, 8192, 0
        s_cselect_b32 s56, 1024, 0
        s_add_u32 s55, s55, {TL}
        v_lshl_add_u32 v26, v48, s52, v26
        s_and_b32 s57, s3, 1
        s_lshl_b32 s57, s57, s54
        s_add_u32 s56, s56, s57
        s_add_u32 s55, s55, s57
        s_bfe_u32 s57, s3, 0x10001
        s_lshl_b32 s52, s57, 7
        s_add_u32 s55, s55, s52
        v_add_u32 v26, s55, v26
        s_lshl_b32 s52, s3, 10
        s_add_u32 s52, s52, {TL}
        v_add_u32 v27, s52, v1
        v_lshlrev_b32 v23, 3, v0
        v_add_u32 v23, s56, v23
        s_lshl_b32 s74, s63, 5
        s_add_u32 s74, s74, s64
        s_lshl_b32 s74, s74, 1
        s_add_u32 s74, s74, s57
        s_mul_i32 s74, s74, 4608
        s_mul_i32 s54, s65, 1536
        s_add_u32 s74, s74, s54
        s_add_u32 s74, s74, {PO}
        s_lshl_b32 s57, s57, 3
        v_mov_b32 v59, s35
        v_mov_b32 v47, {NEGINF}""")
        if c.get('dT'): a(f"s_branch {self.LF}")
        self.poll_granules(gissue, [13], 6, first_issued=True, sleep=c.get('tsleep', 0))
        self.stamp(6)
        a("v_cndmask_b32 v46, v12, v47, s[72:73]\nv_lshlrev_b32 v52, 16, v10\nv_mov_b32 v44, v46\nv_and_b32 v53, 0xffff0000, v10\nv_lshlrev_b32 v54, 16, v11")
        self.red8([44], "v_max_f32")
        a("v_sub_f32 v44, v46, v44\nv_and_b32 v55, 0xffff0000, v11\nv_exp_f32 v56, v44")
        for t in range(4): a(f"v_mul_f32 v{52+t}, v56, v{52+t}")
        self.red8([52, 53, 54, 55, 56], "v_add_f32")
        for k in range(2): a(f"v_cvt_pk_bf16_f32 v{20+k}, v{52+2*k}, v{53+2*k}")
        a("v_rcp_f32 v56, v56")
        for k in range(2):
            self.bop(44, 20 + k, 2); self.bop(48, 20 + k, 6)
            self.mfma16(36, TW[4 + k], 44); self.mfma16(40, TW[4 + k], 48)
            self.mfma16(32, TW[2 * k], 44); self.mfma16(32, TW[2 * k + 1], 48)
        a("v_cmp_lt_u32 vcc, 31, v0\nv_mul_f32 v56, s67, v56\nv_readlane_b32 s57, v56, s57")
        for r in range(4): a(f"v_cndmask_b32 v{36+r}, v{36+r}, v{40+r}, vcc")
        a("ds_write_b128 v27, v[36:39] offset:8192\nds_write_b128 v27, v[32:35]")
        a.wait_lg(); a("s_barrier")
        for w in range(8): a(f"ds_read_b32 v{44+w}, v26 offset:{1024*w}")
        a.wait_lg()
        a("v_add_f32 v44, v44, v45\nv_add_f32 v46, v46, v47\nv_add_f32 v48, v48, v49\nv_add_f32 v50, v50, v51\nv_add_f32 v44, v44, v46\nv_add_f32 v48, v48, v50\nv_add_f32 v58, v44, v48")
        Lf = a.newlabel("L_tfull")
        a(f"s_cmp_lt_u32 s3, 4\ns_cbranch_scc1 {Lf}")
        a("v_mov_b32 v49, v58\nv_permlane32_swap_b32 v58, v49\nv_add_f32 v58, v58, v49\ns_mov_b32 exec_hi, 0")
        a(f"{Lf}:\nv_mul_f32 v58, s57, v58\nbuffer_store_dwordx2 v[58:59], v23, s[36:39], s74 offen sc1\ns_mov_b64 exec, -1")
        self.stamp(7)

    def h_front(self):
        a = self.a; c = self.c; WH = c['WH']
        self.reset(['d'] * WH)
        self.late_prologue()
        a("""v_lshrrev_b32 v52, 4, v0
        v_and_b32 v50, 1, v0
        v_bfe_u32 v51, v0, 1, 1
        v_bfe_u32 v53, v0, 2, 2
        v_lshl_add_u32 v51, v51, 2, v53
        v_lshl_add_u32 v50, v51, 1, v50
        v_lshlrev_b32 v50, 7, v50
        v_lshl_add_u32 v50, v51, 4, v50
        v_lshl_add_u32 v50, v52, 14, v50
        s_and_b32 s52, s3, 3
        s_lshl_b32 s52, s52, 11
        v_add_u32 v50, s52, v50""")
        for ks in range(8): a(f"v_xor_b32 v{SA+ks}, {16*ks}, v50")
        a("""v_bfe_u32 v50, v0, 3, 1
        v_lshlrev_b32 v50, 2, v50
        v_lshrrev_b32 v51, 5, v0
        v_lshl_add_u32 v50, v51, 1, v50
        v_bfe_u32 v51, v0, 4, 1
        v_lshlrev_b32 v51, 1, v51
        v_bfe_u32 v53, v0, 1, 1
        v_add_u32 v51, v51, v53
        v_and_b32 v53, 1, v0
        v_lshlrev_b32 v53, 3, v53
        v_bfe_u32 v54, v0, 2, 1
        v_lshl_add_u32 v53, v54, 7, v53
        s_lshl_b32 s52, s3, 13
        v_add_u32 v53, s52, v53
        v_add_u32 v57, s52, v1
        v_add_u32 v58, 0x10000, v57""")
        for hi in range(2):
            a(f"v_add_u32 v54, {hi}, v50\nv_xor_b32 v55, v54, v51\nv_lshl_add_u32 v55, v55, 4, v53\nv_lshl_add_u32 v55, v54, 8, v55")
            for cb in range(2): a(f"v_xor_b32 v{TA + 2*cb + hi}, {64*cb}, v55")
        a(f"""s_lshr_b32 s52, s3, 2
        s_lshl_b32 s52, s52, 4
        v_and_b32 v49, 15, v0
        v_add_u32 v50, s52, v49
        v_mul_u32_u24 v2, 144, v50
        v_lshl_add_u32 v2, v52, 3, v2
        s_and_b32 s54, s3, 3
        s_lshl_b32 s55, s54, 5
        s_add_u32 s55, s55, {PL}
        v_add_u32 v2, s55, v2
        v_and_b32 v51, 31, v0
        v_mul_u32_u24 v3, 144, v51
        v_lshrrev_b32 v53, 5, v0
        v_lshl_add_u32 v3, v53, 4, v3
        v_add_u32 v3, {PL}, v3
        v_lshlrev_b32 v5, 2, v50
        v_add_u32 v5, {ML}, v5
        s_lshl_b32 s55, s54, 7
        v_add_u32 v4, s55, v5
        v_lshlrev_b32 v6, 2, v51
        v_add_u32 v6, {ML}, v6
        v_mov_b32 v7, {NEGINF}
        v_mov_b32 v8, {NEGINF}
        v_mov_b32 v9, 0
        v_lshlrev_b32 v28, 7, v0
        v_add_u32 v28, {FQ}, v28
        s_mov_b32 s58, {LOG2E}
        s_lshl_b32 s65, s63, 15
        s_lshl_b32 s54, s3, 12
        s_add_u32 s65, s65, s54
        s_add_u32 s65, s65, {QABS}
        s_add_u32 s54, s54, {PL}
        v_add_u32 v30, s54, v1
        s_lshr_b32 s54, s3, 2
        s_lshl_b32 s54, s54, 14
        s_add_u32 s54, s54, {PL}
        v_add_u32 v31, s54, v1""")
        for r in range(32): a(f"v_mov_b32 v{ACC+r}, 0")
        self.srd(44, "s22", "s23", 512 * 8192)
        a("""s_and_b32 s52, s2, 1
        s_lshl_b32 s52, s52, 3
        s_add_u32 s52, s52, s3
        s_lshl_b32 s52, s52, 18
        s_lshr_b32 s54, s2, 1
        s_lshl_b32 s54, s54, 8
        s_add_u32 s52, s52, s54
        v_lshlrev_b32 v59, 16, v52
        v_lshl_add_u32 v59, v49, 4, v59
        v_add_u32 v59, s52, v59""")
        self.get_tag()
        for t in range(WH, 16): a.wait_vm_n(WH - 1); self.dma(t)
        for t in range(16):
            q = t % 8; r = R2[q] if t < 8 else UV + 4 * q
            a.wait_vm_n(WH - 1)
            if q == 0: a("s_and_b32 s62, s62, 0x7fffff")
            a(f"s_add_u32 s51, s62, {q*8192}\nbuffer_load_dwordx4 v[{r}:{r+3}], v{DV + (q & 1)}, s[76:79], s51 offen nt", tag='r')
            if q == 7: a("s_add_u32 s62, s62, 0x200000")
        self.stamp(1)
        if c.get('dH') == 1: a(f"s_waitcnt vmcnt(0)\ns_branch {self.LF}")
        if c.get('dH') == 4:
            for t in range(8): a(f"s_waitcnt vmcnt(3)\ns_mov_b32 s51, {t*8192}\nbuffer_load_dwordx4 v[{64+4*t}:{64+4*t+3}], v59, s[44:47], s51 offen nt")
            a(f"s_waitcnt vmcnt(0)\ns_branch {self.LF}")
        self.poll_flags(28, 3, 2)
        for n in range(4): a(f"buffer_load_dwordx4 v[{STG+4*n}:{STG+4*n+3}], v1, s[36:39], s65 offen offset:{n*1024} sc1", tag=('q', n))
        for n in range(4):
            a.wait_vm(('q', n)); a(f"ds_write_b128 v30, v[{STG+4*n}:{STG+4*n+3}] offset:{n*1024}")
        a.wait_lg(); a("s_barrier")
        for ks in range(16):
            a(f"ds_read_b128 v[{QR+4*ks}:{QR+4*ks+3}], v31 offset:{ks*1024}")
            if ks == 11: a.wait_lg()
        a.wait_lg()
        self.stamp(2)
    def h_attn(self):
        a = self.a; c = self.c
        Lloop = a.newlabel("L_btile")
        a(f"s_mov_b32 s61, 0\n{Lloop}:\ns_barrier")
        for r in range(4): a(f"v_mov_b32 v{32+r}, 0")
        for ks in range(8): a(f"ds_read_b128 v[{STG+4*ks}:{STG+4*ks+3}], v{SA+ks}", tag=('s', ks))
        for ks in range(16):
            a.wait_lg(('s', ks))
            s = STG + 4 * (ks % 8)
            self.mfma16(32, s, QR + 4 * ks)
            if ks + 8 < 16: a(f"ds_read_b128 v[{s}:{s+3}], v{SA+ks} offset:8192", tag=('s', ks + 8))
        for ks in range(8): a(f"v_xor_b32 v{SA+ks}, 0x10000, v{SA+ks}")
        a("v_cvt_pk_bf16_f32 v36, v32, v33\nv_cvt_pk_bf16_f32 v38, v34, v35")
        a("v_and_b32 v37, 0xffff0000, v36\nv_lshlrev_b32 v36, 16, v36\nv_and_b32 v39, 0xffff0000, v38\nv_lshlrev_b32 v38, 16, v38")
        for r in (36, 37, 38, 39): a(f"v_mul_f32 v{r}, {SCALE}, v{r}")
        a("v_cvt_pk_bf16_f32 v36, v36, v37\nv_cvt_pk_bf16_f32 v38, v38, v39")
        a("v_lshlrev_b32 v32, 16, v36\nv_and_b32 v33, 0xffff0000, v36\nv_lshlrev_b32 v34, 16, v38\nv_and_b32 v35, 0xffff0000, v38")
        a("v_max3_f32 v36, v32, v33, v34\nv_max_f32 v36, v36, v35")
        self.redrows(36, 37, "v_max_f32")
        a("ds_write_b32 v4, v36")
        a.wait_lg(); a("s_barrier")
        a("ds_read2_b32 v[36:37], v5 offset1:32\nds_read2_b32 v[38:39], v5 offset0:64 offset1:96\nds_read2_b32 v[40:41], v6 offset1:32\nds_read2_b32 v[42:43], v6 offset0:64 offset1:96")
        a.wait_lg()
        a("v_max3_f32 v36, v36, v37, v7\nv_max3_f32 v40, v40, v41, v8\nv_max3_f32 v36, v36, v38, v39\nv_max3_f32 v38, v40, v42, v43")
        a("v_sub_f32 v40, v7, v36\nv_sub_f32 v41, v8, v38\nv_mul_f32 v37, s58, v36\nv_mul_f32 v40, s58, v40\nv_mul_f32 v42, s58, v41")
        for r in range(4): a(f"v_fma_f32 v{32+r}, v{32+r}, s58, -v37")
        a("v_exp_f32 v40, v40\nv_exp_f32 v42, v42")
        for r in range(4): a(f"v_exp_f32 v{32+r}, v{32+r}")
        a("v_mov_b32 v7, v36\nv_mov_b32 v8, v38\nv_cvt_pk_bf16_f32 v44, v32, v33\nv_cvt_pk_bf16_f32 v45, v34, v35")
        a("ds_write_b64 v2, v[44:45]")
        a("v_fma_f32 v9, v9, v40, v32\nv_add_f32 v33, v33, v34\nv_add_f32 v9, v9, v35\nv_add_f32 v9, v9, v33\nv_mov_b32 v43, v42")
        for r in range(0, 32, 2): a(f"v_pk_mul_f32 v[{ACC+r}:{ACC+r+1}], v[{ACC+r}:{ACC+r+1}], v[42:43]")
        a.wait_lg(); a("s_barrier")
        for s in range(4): a(f"ds_read_b128 v[{32+4*s}:{35+4*s}], v3 offset:{32*s}", tag='p')
        seq = [(s, cb) for s in range(4) for cb in range(2)]
        def trd(i):
            s, cb = seq[i]
            for hi in range(2):
                a(f"ds_read_b64_tr_b16 v[{STG+4*i+2*hi}:{STG+4*i+2*hi+1}], v{TA+2*cb+hi} offset:{2048*s}", tag=('t', i))
        for i in range(5): trd(i)
        for i in range(8):
            s, cb = seq[i]
            a.wait_lg(('t', i))
            a(f"v_mfma_f32_32x32x16_bf16 v[{ACC+16*cb}:{ACC+16*cb+15}], v[{STG+4*i}:{STG+4*i+3}], v[{32+4*s}:{35+4*s}], v[{ACC+16*cb}:{ACC+16*cb+15}]")
            if i + 5 < 8: trd(i + 5)
        for k in range(4): a(f"v_xor_b32 v{TA+k}, 0x10000, v{TA+k}")
        L1 = a.newlabel("L_rf"); L2 = a.newlabel("L_rf")
        a(f"s_cmp_lg_u32 s61, 0\ns_cbranch_scc1 {L1}")
        for q in range(8): a(f"ds_write_b128 v57, v[{R2[q]}:{R2[q]+3}] offset:{q*1024}")
        a(f"{L1}:\ns_cmp_lg_u32 s61, 1\ns_cbranch_scc1 {L2}")
        for q in range(8): a(f"ds_write_b128 v58, v[{UV+4*q}:{UV+4*q+3}] offset:{q*1024}")
        a("s_waitcnt lgkmcnt(0)")
        for t in range(8): a(f"s_mov_b32 s51, {t*8192}\nbuffer_load_dwordx4 v[{UV+4*t}:{UV+4*t+3}], v59, s[44:47], s51 offen nt")
        a(f"{L2}:\ns_waitcnt lgkmcnt(0)\ns_add_u32 s61, s61, 1\ns_cmp_lg_u32 s61, 4\ns_cbranch_scc1 {Lloop}")
        a.vm = []; a.lg = []
        self.stamp(5)
        if c.get('dH') == 2: a(f"s_waitcnt vmcnt(0)\ns_branch {self.LF}")
        self.redrows(9, 37, "v_add_f32")
        a("ds_write_b32 v4, v9 offset:512")
        a.wait_lg(); a("s_barrier")
        a("ds_read2_b32 v[36:37], v6 offset0:128 offset1:160\nds_read2_b32 v[38:39], v6 offset0:192 offset1:224")
        a(f"""v_and_b32 v48, 31, v0
        v_mul_u32_u24 v48, 144, v48
        v_lshrrev_b32 v49, 5, v0
        v_lshl_add_u32 v48, v49, 3, v48
        s_lshl_b32 s54, s3, 13
        v_add_u32 v48, s54, v48
        v_lshrrev_b32 v49, 3, v0
        v_mul_u32_u24 v50, 144, v49
        v_and_b32 v51, 7, v0
        v_lshl_add_u32 v50, v51, 4, v50
        v_add_u32 v50, s54, v50
        v_lshlrev_b32 v52, 10, v49
        v_lshl_add_u32 v52, v51, 4, v52
        s_mul_i32 s52, s2, {c['pbs']}
        s_lshl_b32 s54, s3, 7
        s_add_u32 s52, s52, s54
        s_add_u32 s52, s52, {PB}""")
        a.wait_lg()
        a("v_add_f32 v36, v36, v37\nv_add_f32 v38, v38, v39\nv_add_f32 v36, v36, v38\nv_rcp_f32 v38, v36\nv_log_f32 v40, v36\nv_mov_b32 v39, v38\nv_fma_f32 v40, v8, s58, v40")
        for cb in range(2):
            for rq in range(4):
                r = ACC + 16 * cb + 4 * rq
                a(f"v_pk_mul_f32 v[{r}:{r+1}], v[{r}:{r+1}], v[38:39]\nv_pk_mul_f32 v[{r+2}:{r+3}], v[{r+2}:{r+3}], v[38:39]")
                a(f"v_cvt_pk_bf16_f32 v{r}, v{r}, v{r+1}\nv_cvt_pk_bf16_f32 v{r+1}, v{r+2}, v{r+3}")
                a(f"ds_write_b64 v48, v[{r}:{r+1}] offset:{64*cb + 16*rq}")
        a.wait_lg()
        for n in range(4): a(f"ds_read_b128 v[{STG+4*n}:{STG+4*n+3}], v50 offset:{n*8*144}", tag=('r', n))
        for n in range(4):
            a.wait_lg(('r', n))
            a(f"buffer_store_dwordx4 v[{STG+4*n}:{STG+4*n+3}], v52, s[36:39], s52 offen sc1 {c['pbst']}\ns_add_u32 s52, s52, 8192")
        Ls = a.newlabel("L_nopbs")
        a(f"s_cmp_lg_u32 s3, 0\ns_cbranch_scc1 {Ls}")
        a(f"s_lshl_b32 s52, s2, 7\ns_add_u32 s52, s52, {PBS}\nv_lshlrev_b32 v48, 2, v0\ns_mov_b32 exec_hi, 0")
        a(f"buffer_store_dword v40, v48, s[36:39], s52 offen sc1\ns_mov_b64 exec, -1\n{Ls}:")
        self.stamp(8)
        a("s_waitcnt vmcnt(0)\ns_barrier"); a.vm = []
        self.stamp(9)
        if c.get('dH') == 3: a(f"s_branch {self.LF}")
        Ls = a.newlabel("L_nofb")
        a(f"s_cmp_lg_u32 s3, 0\ns_cbranch_scc1 {Ls}\ns_lshl_b32 s52, s2, 7\ns_add_u32 s52, s52, {FB}")
        self.flag_store("s52")
        a(f"{Ls}:")
    def h_uv(self):
        a = self.a; pbs = self.c['pbs']; PART = 16384; ST = PART + 16 * 1040
        self.sels()
        a(f"""v_lshlrev_b32 v28, 7, v0
        v_add_u32 v28, {FB}, v28
        v_lshrrev_b32 v48, 5, v0
        v_lshlrev_b32 v29, 7, v48
        v_mul_u32_u24 v31, {pbs}, v48
        v_and_b32 v49, 31, v0
        v_lshl_add_u32 v31, v49, 4, v31
        s_lshr_b32 s54, s2, 1
        s_lshl_b32 s55, s54, 2
        s_lshl_b32 s52, s3, 10
        s_add_u32 s55, s55, s52
        s_add_u32 s55, s55, {PBS}
        v_add_u32 v25, s52, v1
        s_lshl_b32 s56, s2, 9
        s_mul_i32 s52, s3, {8 * pbs}
        s_add_u32 s56, s56, s52
        s_add_u32 s56, s56, {PB}
        s_lshl_b32 s52, s3, 1
        v_add_u32 v50, s52, v48
        v_mul_u32_u24 v26, 1040, v50
        v_lshl_add_u32 v26, v49, 5, v26
        v_add_u32 v26, {PART}, v26
        v_and_b32 v50, 15, v0
        v_mul_u32_u24 v27, 1040, v50
        v_lshrrev_b32 v51, 4, v0
        v_lshl_add_u32 v27, v51, 5, v27
        s_lshl_b32 s52, s3, 7
        s_add_u32 s52, s52, {PART}
        v_add_u32 v27, s52, v27
        v_lshrrev_b32 v50, 1, v50
        v_lshlrev_b32 v24, 3, v50
        v_add_u32 v24, {ST}, v24
        s_lshl_b32 s52, s3, 3
        s_add_u32 s52, s52, {ST}
        v_mov_b32 v23, s52""")
        for r in range(32, 36): a(f"v_mov_b32 v{r}, 0")
        self.acc_addr(30, 48, 0)
        a(f"""s_lshr_b32 s52, s3, 1
        s_lshl_b32 s52, s52, 5
        s_lshr_b32 s54, s2, 1
        s_add_u32 s52, s52, s54
        s_add_u32 s52, s52, 64
        s_lshl_b32 s52, s52, 3
        s_and_b32 s54, s2, 1
        s_add_u32 s52, s52, s54
        s_lshl_b32 s52, s52, 9
        s_add_u32 s52, s52, {REC}
        s_and_b32 s54, s3, 1
        s_lshl_b32 s54, s54, 8
        v_lshlrev_b32 v50, 2, v0
        v_add_u32 v50, s54, v50
        v_mov_b32 v59, s35
        v_mov_b32 v58, 0""")
        self.poll_flags(28, 4, 1)
        self.stamp(10)
        for n in range(4): a(f"buffer_load_dword v{36+n}, v29, s[36:39], s55 offen offset:{256*n} sc1", tag='st')
        for n in range(4): a(f"buffer_load_dwordx4 v[{64+4*n}:{67+4*n}], v31, s[36:39], s56 offen sc1 {self.c['pbld']}\ns_add_u32 s56, s56, {2 * pbs}", tag=('pb', n))
        a.wait_vm('st')
        a("v_max3_f32 v40, v36, v37, v38\nv_max_f32 v40, v40, v39\nv_mov_b32 v41, v40\nv_permlane32_swap_b32 v40, v41\nv_max_f32 v40, v40, v41")
        for n in range(4): a(f"v_sub_f32 v{36+n}, v{36+n}, v40")
        for n in range(4): a(f"v_exp_f32 v{36+n}, v{36+n}")
        a("v_add_f32 v41, v36, v37\nv_add_f32 v42, v38, v39\nv_add_f32 v41, v41, v42\nv_mov_b32 v42, v41\nv_permlane32_swap_b32 v41, v42\nv_add_f32 v41, v41, v42")
        a("ds_write_b64 v23, v[40:41]")
        for n in range(4):
            a.wait_vm(('pb', n))
            for k in range(4):
                a(f"v_lshlrev_b32 v42, 16, v{64+4*n+k}\nv_and_b32 v43, 0xffff0000, v{64+4*n+k}")
                if n == 0: a(f"v_mul_f32 v{12+2*k}, v36, v42\nv_mul_f32 v{13+2*k}, v36, v43")
                else: a(f"v_fmac_f32 v{12+2*k}, v{36+n}, v42\nv_fmac_f32 v{13+2*k}, v{36+n}, v43")
        a("ds_write_b128 v26, v[12:15]\nds_write_b128 v26, v[16:19] offset:16")
        a.wait_lg(); a("s_barrier")
        a("ds_read_b64 v[40:41], v24\nds_read_b128 v[12:15], v27\nds_read_b128 v[16:19], v27 offset:16")
        a.wait_lg()
        a("v_mov_b32 v42, v40")
        self.red8([42], "v_max_f32")
        a("v_sub_f32 v40, v40, v42\nv_exp_f32 v40, v40\nv_mul_f32 v41, v41, v40")
        self.red8([41], "v_add_f32")
        a("v_rcp_f32 v41, v41\nv_add_f32 v40, v40, v40\nv_mul_f32 v40, v40, v41")
        for k in range(8): a(f"v_mul_f32 v{12+k}, v40, v{12+k}")
        self.red8(list(range(12, 20)), "v_add_f32")
        for k in range(4): a(f"v_cvt_pk_bf16_f32 v{60+k}, v{12+2*k}, v{13+2*k}")
        for k in range(4):
            self.bop(40, 60 + k, 2); self.bop(44, 60 + k, 6)
            self.mfma16(32, UV + 8 * k, 40); self.mfma16(32, UV + 8 * k + 4, 44)
        a("ds_write_b128 v25, v[32:35]")
        a.wait_lg(); a("s_barrier")
        Ls = a.newlabel("L_nostat")
        a(f"s_cmp_ge_u32 s3, 4\ns_cbranch_scc1 {Ls}")
        for w in range(8): a(f"ds_read_b32 v{40+w}, v30 offset:{1024*w}")
        a.wait_lg()
        a("v_add_f32 v40, v40, v41\nv_add_f32 v42, v42, v43\nv_add_f32 v44, v44, v45\nv_add_f32 v46, v46, v47\nv_add_f32 v40, v40, v42\nv_add_f32 v44, v44, v46\nv_add_f32 v54, v40, v44")
        self.rec_store(54)
        a(f"{Ls}:"); a.vm = []
        self.stamp(6)
        if self.c.get('dH') == 5: a(f"s_branch {self.LF}")
    def h_final(self, LX):
        a = self.a; c = self.c
        a(f"""s_lshl_b32 s48, s3, 6
        s_add_u32 s48, s48, s2
        s_cmp_ge_u32 s48, 72
        s_cbranch_scc1 {LX}
        s_cmp_ge_u32 s48, 36
        s_cselect_b32 s49, 1, 0
        s_mul_i32 s52, s49, 36
        s_sub_u32 s50, s48, s52
        s_mul_i32 s56, s49, 1152
        s_add_u32 s54, s4, s56
        s_addc_u32 s55, s5, 0""")
        self.srd(40, "s54", "s55", 1152); self.srd(44, "s26", "s27", 1152)
        a("v_lshlrev_b32 v20, 2, v0")
        for k in range(5):
            a(f"buffer_load_dword v{10+k}, v20, s[40:43], 0 offen offset:{256*k}\nbuffer_load_dword v{15+k}, v20, s[44:47], 0 offen offset:{256*k}")
        a(f"""v_lshrrev_b32 v24, 3, v0
        v_mul_u32_u24 v31, 9216, v24
        v_and_b32 v24, 7, v0
        v_lshl_add_u32 v31, v24, 4, v31
        s_mul_i32 s52, s49, 4608
        s_lshl_b32 s54, s50, 7
        s_add_u32 s52, s52, s54
        s_add_u32 s52, s52, {PO}
        v_add_u32 v31, s52, v31
        v_lshlrev_b32 v21, 2, v24
        v_bfe_u32 v24, v0, 4, 1
        v_lshl_add_u32 v21, v24, 1, v21
        s_lshl_b32 s54, s50, 5
        s_add_u32 s56, s56, s54
        v_mov_b32 v22, 0""")
        for n in range(8): a(f"s_mov_b32 s{64+n}, {n*73728}")
        a.wait_vm()
        self.srd(40, "s28", "s29", 2304)
        for k in range(5):
            a(f"""v_lshlrev_b32 v24, 16, v{10+k}
            v_and_b32 v25, 0xffff0000, v{10+k}
            v_lshlrev_b32 v26, 16, v{15+k}
            v_and_b32 v27, 0xffff0000, v{15+k}
            v_mul_f32 v24, v24, v26
            v_mul_f32 v25, v25, v27
            v_cvt_pk_bf16_f32 v24, v24, v25
            v_lshlrev_b32 v25, 16, v24
            v_and_b32 v24, 0xffff0000, v24
            v_add_f32 v22, v22, v25
            v_add_f32 v22, v22, v24""")
        self.red8([22], "v_add_f32")
        a("v_add_f32_dpp v22, v22, v22 row_ror:8 row_mask:0xf bank_mask:0xf")
        self.redrows(22, 24, "v_add_f32")
        a(f"""v_cvt_pk_bf16_f32 v22, v22, v22
        v_and_b32 v22, 0xffff0000, v22
        v_mul_f32 v22, {LOG2E}, v22
        v_exp_f32 v22, -v22
        v_add_f32 v22, 1.0, v22
        v_rcp_f32 v22, v22
        v_cvt_pk_bf16_f32 v22, v22, v22
        v_and_b32 v22, 0xffff0000, v22
        v_sub_f32 v23, 1.0, v22
        v_cvt_pk_bf16_f32 v23, v23, v23
        v_and_b32 v23, 0xffff0000, v23""")
        if c['ftrig'] == 'rec':
            a(f"s_and_b32 s52, s48, 63\ns_lshl_b32 s52, s52, 12\ns_add_u32 s52, s52, {REC + 12}\nv_and_b32 v30, 3, v0\nv_lshlrev_b32 v30, 9, v30\nv_add_u32 v30, s52, v30")
            self.poll_granules(lambda: a("buffer_load_dword v65, v30, s[36:39], 0 offen sc1"), [65], 7, sleep=c['fsleep'])
        else:
            g = c.get('fgrp', 0)
            self.poll_granules(lambda: a(f"buffer_load_dwordx4 v[64:67], v31, s[36:39], s{64+g} offen sc1"), [65, 67], 7, sleep=c['fsleep'])
        def sums(R):
            for k in range(2):
                a(f"v_add_f32 v{32+k}, v{R+2*k}, v{R+4+2*k}\nv_add_f32 v{34+k}, v{R+8+2*k}, v{R+12+2*k}")
                a(f"v_add_f32 v{36+k}, v{R+16+2*k}, v{R+20+2*k}\nv_add_f32 v{38+k}, v{R+24+2*k}, v{R+28+2*k}")
        def gset(k):
            for n in range(8): a(f"buffer_load_dwordx4 v[{64+32*k+4*n}:{67+32*k+4*n}], v31, s[36:39], s{64+n} offen sc1")
        if c['fsel']:
            Lp = a.newlabel("L_fs"); Ld = a.newlabel("L_fsd")
            a(f"s_mov_b32 s53, {c['spin']}\ns_mov_b32 s72, 0xff\n{Lp}:")
            for n in range(8):
                L = a.newlabel("L_fi")
                a(f"s_bitcmp1_b32 s72, {n}\ns_cbranch_scc0 {L}\nbuffer_load_dwordx4 v[{64+4*n}:{67+4*n}], v31, s[36:39], s{64+n} offen sc1\n{L}:")
            a("s_waitcnt vmcnt(0)")
            for n in range(8):
                L = a.newlabel("L_fc")
                a(f"s_bitcmp1_b32 s72, {n}\ns_cbranch_scc0 {L}")
                self.tagcheck([65 + 4 * n, 67 + 4 * n], 48)
                a(f"s_cbranch_vccnz {L}\ns_bitset0_b32 s72, {n}\n{L}:")
            a(f"s_cmp_eq_u32 s72, 0\ns_cbranch_scc1 {Ld}\ns_sub_u32 s53, s53, 1\ns_cbranch_scc0 {Lp}")
            self.timeout(8)
            a(f"{Ld}:"); a.vm = []; sums(64)
        elif c['fpipe'] > 1: self.poll_pipe(gset, lambda k: [65 + 32 * k + 2 * j for j in range(16)], 8, c['fpipe'], 8, lambda k: sums(64 + 32 * k))
        else:
            self.poll_granules(lambda: gset(0), [65 + 2 * k for k in range(16)], 8, sleep=c.get('fsleep2', 0)); sums(64)
        a("""v_add_f32 v32, v32, v34
        v_add_f32 v36, v36, v38
        v_add_f32 v33, v33, v35
        v_add_f32 v37, v37, v39
        v_permlane32_swap_b32 v32, v36
        v_permlane32_swap_b32 v33, v37
        v_add_f32 v32, v32, v36
        v_add_f32 v33, v33, v37
        v_permlane16_swap_b32 v32, v33
        v_add_f32 v32, v32, v33
        v_add_f32_dpp v42, v32, v32 row_ror:8 row_mask:0xf bank_mask:0xf
        v_cvt_pk_bf16_f32 v42, v42, v42
        v_and_b32 v42, 0xffff0000, v42
        v_mov_b32 v43, v42
        v_permlane32_swap_b32 v42, v43
        v_mul_f32 v42, v22, v42
        v_mul_f32 v43, v23, v43
        v_cvt_pk_bf16_f32 v42, v42, v43
        v_lshlrev_b32 v43, 16, v42
        v_and_b32 v42, 0xffff0000, v42
        v_add_f32 v42, v42, v43
        v_cvt_pk_bf16_f32 v42, v42, v42
        s_mov_b32 exec_lo, 0x00ff00ff
        s_mov_b32 exec_hi, 0
        buffer_store_short v42, v21, s[40:43], s56 offen """ + c['outf'])
        Ls = a.newlabel("L_noep")
        a(f"s_cmp_lg_u32 s48, 0\ns_cbranch_scc1 {Ls}\ns_mov_b64 exec, 1\nv_mov_b32 v44, s35\nv_mov_b32 v45, 0")
        a(f"buffer_store_dword v44, v45, s[36:39], 0 offen {c['outf']}\n{Ls}:\ns_mov_b64 exec, -1")
        self.stamp(7)

    def build(self):
        a = self.a
        hdr = open("gated_mix__gqa_block_cached__compressed_kv_cla__decode.s.ref").read().split("; Override launch")[0]
        a.raw(hdr.rstrip())
        a.raw("; @launch grid=(256,1,1) block=(512,1,1) lds=163840")
        a.raw('.amdgcn_target "amdgcn-amd-amdhsa--gfx950"\n.text')
        LS1, LS2, LH, LM, LF, LE = (a.newlabel(x) for x in ("L_headq", "L_headabs", "L_latent", "L_merge", "L_fin", "L_end"))
        self.LF = LF
        self.entry(LS1, LS2, LH, LE)
        a(f"{LH}:"); self.h_front(); self.h_attn(); self.h_uv(); self.h_final(LF); a(f"s_branch {LF}")
        a(f"{LS2}:"); self.head_s2(); a(f"s_branch {LM}")
        a(f"{LS1}:"); self.head_s1()
        a(f"{LM}:"); self.a_static(); self.a_pool(); self.a_epilogue(); self.a_proj()
        a(f"{LF}:"); self.stamp_flush()
        a(f"{LE}:\ns_endpgm")
        a.raw(f""".section .rodata,"a"
.p2align 6
.amdhsa_kernel {KN}
  .amdhsa_next_free_vgpr 256
  .amdhsa_next_free_sgpr 102
  .amdhsa_accum_offset 256
  .amdhsa_group_segment_fixed_size 0
  .amdhsa_kernarg_size 120
  .amdhsa_user_sgpr_count 2
  .amdhsa_user_sgpr_kernarg_segment_ptr 1
  .amdhsa_system_sgpr_workgroup_id_x 1
.end_amdhsa_kernel""")
        return a.text()

def gen(**kw): return G(**kw).build()
if __name__ == "__main__":
    cfg = json.loads(sys.argv[2]) if len(sys.argv) > 2 else {}
    open(sys.argv[1], "w").write(gen(**cfg))
```

```python
import sys, json
sys.path.insert(0, "dev")
from asmlib import Asm
KN = "gated_mix__gqa_block_cached__compressed_kv_cla__decode_kernel"
Q     = 0x1000
QABS  = 0x11000
FQ    = 0x21000
FB    = 0x23000
PBS   = 0x25000
CNT   = 0x27000
REC   = 0x30000
PO    = 0x150000
PB    = 0x200000
STAMP = 0x800000
WS_USED = 0x1000000
LOG2E = 0x3fb8aa3b; SCALE = 0x3db504f3; NEGINF = 0xff800000
DEF = dict(W=4, W2=4, iW2=50, R=40, NS=36, IQ=22, ICHK=26, WH=4, iq2=13, W0=2, n0=8, nsub=4, subrot=3, UT=1, twpos=(0, 1),
           rotb=2, spin=40000, fsleep=6, fsleep2=1, ftrig='po', fgrp=4, fpipe=1, stamps=False, pbs=32768, wsb=0, outf='', rot=65536, xmap=1, s2wait=0, pbst='', pbld='', twsplit=3, fsel=0)
PL = 131072; ML = PL + 4608
TL = 16384; S1L = 32768; S2L = 49152; XL = 57344; EB = 65536
RING = 88; SREG = 64; ZERO = 85; TK = 86
FK = [88, 104]; FV = [96, 112]; TW = [120 + 4 * k for k in range(6)]
WR = 212; UR = 216
QR = 64; ACC = 128; SA = 160; TA = 168; STG = 176; UV = 208; DV = 240
R2 = [12, 16, 20, 24, 172, 244, 248, 252]
QTAGS = [11, 13, 15, 17, 19, 21, 23, 25]

DESC = """; One launch, 256 workgroups of 8 waves (one per CU); later ids exit at once. Generated by a script of the author's.
;  ids 64..255 one slice of the query projections, GQA attention of one (batch, kv head): 6912 keys split statically
; at d_ws[0], which the launch replaces by its tag at the end; every wait is bounded."""

class G:
    def __init__(self, **kw):
        self.c = dict(DEF); self.c.update(kw)
        self.a = Asm(); c = self.c
        self.NF = (2048 - 48 * c['NS']) // c['nsub'] // c['UT']
        self.USH = 10 + c['UT'] - 1
        self.TSH = self.USH + c['nsub'].bit_length() - 1
    def reset(self, vm=()): self.a.vm = list(vm); self.a.lg = []; self.a.hist = []
    def srd(self, d, lo, hi, size):
        self.a(f"s_mov_b32 s{d}, {lo}\ns_and_b32 s{d+1}, {hi}, 0xffff\ns_mov_b32 s{d+2}, {size}\ns_mov_b32 s{d+3}, 0x20000")
    def late_prologue(self):
        if self.c['wsb']: self.a(f"s_add_u32 s32, s32, {self.c['wsb']}\ns_addc_u32 s33, s33, 0")
        self.a("s_load_dword s34, s[32:33], 0"); self.srd(36, "s32", "s33", WS_USED)
    def get_tag(self):
        self.a("s_waitcnt lgkmcnt(0)\ns_mul_i32 s35, s34, 1664525\ns_add_u32 s35, s35, 1013904223"); self.a.lg = []
    def stamp(self, k):
        e = self.c.get('enc')
        if self.c['stamps'] or (e and k in (0, e[1])): self.a(f"s_memrealtime s[{80+2*k}:{81+2*k}]")
    def stamp_flush(self):
        e = self.c.get('enc')
        if e:
            a = self.a; L = a.newlabel("L_noenc"); Lq = a.newlabel("L_enc")
            a(f"s_cmp_lg_u32 s3, 0\ns_cbranch_scc1 {L}\ns_cmp_lg_u32 s2, {e[0]}\ns_cbranch_scc1 {L}\ns_waitcnt lgkmcnt(0)")
            a(f"s_sub_u32 s52, s{80+2*e[1]}, s80\ns_mul_i32 s52, s52, {e[2]}\ns_add_u32 s52, s52, 5000\ns_min_u32 s52, s52, 100000")
            a(f"{Lq}:\ns_memrealtime s[78:79]\ns_waitcnt lgkmcnt(0)\ns_sub_u32 s54, s78, s80\ns_cmp_lt_u32 s54, s52\ns_cbranch_scc1 {Lq}\n{L}:")
        if not self.c['stamps']: return
        a = self.a; L = a.newlabel("L_nost")
        a(f"s_cmp_lg_u32 s3, 0\ns_cbranch_scc1 {L}\ns_waitcnt lgkmcnt(0)")
        for k in range(11): a(f"v_mov_b32 v{2+k}, s{80+2*k}")
        a(f"s_lshl_b32 s52, s2, 6\ns_add_u32 s52, s52, {STAMP}\nv_mov_b32 v1, 0\ns_mov_b64 exec, 1")
        for k in range(3): a(f"buffer_store_dwordx4 v[{2+4*k}:{5+4*k}], v1, s[36:39], s52 offen offset:{16*k}")
        a(f"s_mov_b64 exec, -1\n{L}:")
    def sels(self):
        a = self.a
        a("""v_and_b32 v48, 1, v0
        v_mov_b32 v49, 0x0c0c0100
        v_mov_b32 v50, 0x01000c0c
        v_mov_b32 v51, 0x0c0c0302
        v_mov_b32 v52, 0x03020c0c
        v_mov_b32 v53, 0x0c0c0c0c
        v_cmp_eq_u32 vcc, 1, v48
        v_bfe_u32 v54, v0, 1, 2
        v_cndmask_b32 v49, v49, v50, vcc
        v_cndmask_b32 v51, v51, v52, vcc""")
        for k in range(4): a(f"v_cmp_eq_u32 vcc, {k}, v54\nv_cndmask_b32 v{2+k}, v53, v49, vcc\nv_cndmask_b32 v{6+k}, v53, v51, vcc")
    def timeout(self, code):
        self.a(f"v_mov_b32 v62, {code}\nv_mov_b32 v63, 0\nglobal_store_dword v63, v62, s[30:31]")
    def poll_flags(self, voff, code, sleep):
        a = self.a; Ls = a.newlabel("L_pskip"); Lp = a.newlabel("L_poll")
        keep = a.vm[:]
        a(f"s_cmp_lg_u32 s3, 0\ns_cbranch_scc1 {Ls}\ns_mov_b32 s53, {self.c['spin']}\n{Lp}:")
        a(f"buffer_load_dword v61, v{voff}, s[36:39], 0 offen sc1\ns_waitcnt vmcnt(0)")
        a(f"v_cmp_ne_u32 vcc, s35, v61\ns_cbranch_vccz {Ls}\ns_sleep {sleep}\ns_sub_u32 s53, s53, 1\ns_cbranch_scc0 {Lp}")
        self.timeout(code)
        a(f"{Ls}:\ns_barrier"); a.vm = keep
    def tagcheck(self, tags, t):
        a = self.a
        a(f"v_xor_b32 v{t}, s35, v{tags[0]}")
        for r in tags[1:]: a(f"v_bitop3_b32 v{t}, v{t}, v{r}, s35 bitop3:0xf6")
        a(f"v_cmp_ne_u32 vcc, 0, v{t}")
    def poll_granules(self, issue, tags, code, first_issued=False, sleep=0):
        a = self.a; Lp = a.newlabel("L_gpoll"); Ld = a.newlabel("L_gdone"); Lc = a.newlabel("L_gchk")
        a(f"s_mov_b32 s53, {self.c['spin']}")
        if first_issued:
            a.wait_vm('pg'); self.tagcheck(tags, 48); a(f"s_cbranch_vccz {Ld}")
        save = a.vm[:]
        a(f"{Lp}:")
        issue(); a("s_waitcnt vmcnt(0)")
        self.tagcheck(tags, 48)
        a(f"s_cbranch_vccz {Ld}")
        if sleep: a(f"s_sleep {sleep}")
        a(f"s_sub_u32 s53, s53, 1\ns_cbranch_scc0 {Lp}")
        self.timeout(code)
        a(f"s_waitcnt vmcnt(0)\n{Ld}:")
        a.vm = save if first_issued else []
    def poll_pipe(self, issue, tags, nld, nset, code, take):
        a = self.a; Lp = a.newlabel("L_pp"); Ld = [a.newlabel("L_ppd") for _ in range(nset)]; Le = a.newlabel("L_ppe")
        a(f"s_mov_b32 s53, {self.c['spin']}")
        for k in range(nset - 1): issue(k)
        a(f"{Lp}:")
        for k in range(nset):
            issue((k + nset - 1) % nset)
            a(f"s_waitcnt vmcnt({(nset - 1) * nld})")
            self.tagcheck(tags(k), 48)
            a(f"s_cbranch_vccz {Ld[k]}")
        a(f"s_sub_u32 s53, s53, 1\ns_cbranch_scc0 {Lp}")
        self.timeout(code)
        for k in range(nset):
            a(f"{Ld[k]}:"); take(k)
            if k < nset - 1: a(f"s_branch {Le}")
        a(f"{Le}:"); a.vm = []
    def qk(self, K, T, U, mid=None):
        a = self.a; n = len(K)
        for kk in range(4):
            for t in range(n):
                for h in range(2):
                    a(f"v_dot2_f32_bf16 v{T+2*t+h}, v{K[t]+kk}, v{10+8*h+2*kk}, {'0' if kk == 0 else f'v{T+2*t+h}'}")
        if mid: mid()
        for t in range(n): a(f"v_add_f32_dpp v{U[t]}, v{T+2*t}, v{T+2*t} row_ror:8 row_mask:0xf bank_mask:0x3")
        for t in range(n): a(f"v_add_f32_dpp v{U[t]}, v{T+2*t+1}, v{T+2*t+1} row_ror:8 row_mask:0xf bank_mask:0xc")
        self.red8(U[:n], "v_add_f32")
    def bop(self, dst, src, sel):
        for k in range(4): self.a(f"v_perm_b32 v{dst+k}, v{src}, v{src}, v{sel+k}")
    def red8(self, regs, op):
        for m in ("row_half_mirror", "quad_perm:[1,0,3,2]", "quad_perm:[2,3,0,1]"):
            for r in regs: self.a(f"{op}_dpp v{r}, v{r}, v{r} {m} row_mask:0xf bank_mask:0xf")
    def redrows(self, r, t, op):
        self.a(f"v_mov_b32 v{t}, v{r}\nv_permlane16_swap_b32 v{r}, v{t}\n{op} v{r}, v{r}, v{t}")
        self.a(f"v_mov_b32 v{t}, v{r}\nv_permlane32_swap_b32 v{r}, v{t}\n{op} v{r}, v{r}, v{t}")
    def mfma16(self, d, A, B): self.a(f"v_mfma_f32_16x16x32_bf16 v[{d}:{d+3}], v[{A}:{A+3}], v[{B}:{B+3}], v[{d}:{d+3}]")
    def acc_addr(self, dst, t, base):
        self.a(f"""v_and_b32 v{dst}, 7, v0
        v_lshlrev_b32 v{dst}, 4, v{dst}
        v_bfe_u32 v{t}, v0, 3, 2
        v_lshl_add_u32 v{dst}, v{t}, 2, v{dst}
        v_lshrrev_b32 v{t}, 5, v0
        v_lshl_add_u32 v{dst}, v{t}, 8, v{dst}
        s_and_b32 s52, s3, 1
        s_lshl_b32 s52, s52, 9
        s_lshr_b32 s54, s3, 1
        s_lshl_b32 s54, s54, 7
        s_add_u32 s52, s52, s54
        s_add_u32 s52, s52, {base}
        v_add_u32 v{dst}, s52, v{dst}""")
    def rec_store(self, r, vo=50, so=52):
        a = self.a
        a(f"v_mov_b32_dpp v55, v{r} quad_perm:[1,0,3,2] row_mask:0xf bank_mask:0xf\nv_cvt_pk_bf16_f32 v56, v{r}, v55")
        a("v_mov_b32_dpp v57, v56 quad_perm:[2,3,0,1] row_mask:0xf bank_mask:0xf\ns_mov_b32 exec_lo, 0x11111111\ns_mov_b32 exec_hi, 0x11111111")
        a(f"buffer_store_dwordx4 v[56:59], v{vo}, s[36:39], s{so} offen sc1\ns_mov_b64 exec, -1"); a.vm.pop()
    def flag_store(self, sreg):
        self.a(f"v_mov_b32 v50, s35\nv_mov_b32 v51, 0\ns_mov_b64 exec, 1\nbuffer_store_dword v50, v51, s[36:39], {sreg} offen sc1\ns_mov_b64 exec, -1"); self.a.vm.pop()

    def wload(self, t): self.a(f"s_mov_b32 s51, {t*16384}\nbuffer_load_dwordx4 v[{WR+4*t}:{WR+4*t+3}], v28, s[72:75], s51 offen nt", tag=('w', t))
    def uload(self, t): self.a(f"s_mov_b32 s51, {t*8192}\nbuffer_load_dwordx4 v[{UR+4*t}:{UR+4*t+3}], v28, s[72:75], s51 offen nt", tag=('u', t))
    def dma(self, t):
        a = self.a; q = t % 8
        if q == 0: a("s_and_b32 s62, s62, 0x7fffff")
        a(f"s_add_u32 m0, s60, {q*1024}\ns_add_u32 s51, s62, {q*8192}\nbuffer_load_dwordx4 v{DV + (q & 1)}, s[76:79], s51 offen nt lds", tag='d')
        if q == 7: a("s_add_u32 s62, s62, 0x200000\ns_xor_b32 s60, s60, 0x10000")
    def entry(self, LS1, LS2, LH, LE):
        a = self.a; c = self.c
        a.raw(f".globl {KN}\n.p2align 8\n.type {KN},@function\n{KN}:")
        a(f"s_cmp_ge_u32 s2, 256\ns_cbranch_scc1 {LE}")
        self.stamp(0)
        L2 = a.newlabel("L_e2"); L3 = a.newlabel("L_eh"); L4 = a.newlabel("L_e1")
        a(f"""s_load_dwordx16 s[4:19], s[0:1], 0
        s_load_dwordx8 s[20:27], s[0:1], 64
        s_load_dwordx4 s[28:31], s[0:1], 96
        s_load_dwordx2 s[32:33], s[0:1], 112
        v_lshrrev_b32 v1, 6, v0
        v_and_b32 v0, 63, v0
        v_readfirstlane_b32 s3, v1
        v_lshlrev_b32 v1, 4, v0
        s_cmp_lt_u32 s2, 64
        s_cbranch_scc1 {L3}""")
        if c['xmap']:
            a(f"""s_sub_u32 s48, s2, 64
            s_mul_i32 s49, s48, 171
            s_lshr_b32 s49, s49, 12
            s_mul_i32 s52, s49, 24
            s_sub_u32 s52, s48, s52
            s_lshr_b32 s54, s52, 3
            s_bfe_u32 s55, s52, 0x10002
            s_add_u32 s52, s52, s54
            s_add_u32 s52, s52, 1
            s_and_b32 s52, s52, 3
            s_lshl_b32 s49, s49, 2
            s_add_u32 s49, s49, s52
            s_lshl_b32 s50, s54, 1
            s_add_u32 s50, s50, s55
            s_lshl_b32 s57, s49, 1
            s_cmp_eq_u32 s54, 2
            s_cselect_b32 s66, 2, s55
            s_cselect_b32 s52, s55, s54
            s_add_u32 s57, s57, s52
            s_cmp_eq_u32 s66, 2
            s_cbranch_scc1 {L2}""")
        else:
            a(f"""s_sub_u32 s48, s2, 64
            s_mul_i32 s49, s48, 171
            s_lshr_b32 s49, s49, 10
            s_mul_i32 s50, s49, 6
            s_sub_u32 s50, s48, s50
            s_cmp_ge_u32 s50, 3
            s_cselect_b32 s52, 3, 0
            s_cselect_b32 s57, 1, 0
            s_sub_u32 s66, s50, s52
            s_lshl_b32 s52, s49, 1
            s_add_u32 s57, s57, s52
            s_cmp_eq_u32 s66, 2
            s_cbranch_scc1 {L2}""")
        a("""v_lshrrev_b32 v48, 4, v0
        v_mul_u32_u24 v49, 18, v48
        v_bfe_u32 v50, v0, 3, 1
        v_add_u32 v51, v49, v50
        s_mul_i32 s52, s3, 72
        v_add_u32 v51, s52, v51
        v_lshlrev_b32 v28, 13, v51
        v_and_b32 v51, 7, v0
        v_lshl_add_u32 v28, v51, 4, v28
        s_lshl_b32 s54, s57, 7
        v_add_u32 v28, s54, v28
        v_lshlrev_b32 v62, 3, v0
        v_add_u32 v51, 1008, v62
        v_cmp_lt_u32 vcc, 17, v0
        s_lshl_b32 s52, s52, 1
        v_mov_b32 v52, 0x10000
        v_cndmask_b32 v63, v62, v51, vcc
        v_cmp_lt_u32 vcc, 35, v0
        v_add_u32 v63, s52, v63
        s_cmp_eq_u32 s66, 0
        v_cndmask_b32 v63, v63, v52, vcc
        s_waitcnt lgkmcnt(0)
        s_cselect_b32 s54, s18, s10
        s_cselect_b32 s55, s19, s11""")
        self.srd(72, "s54", "s55", 576 * 8192); self.srd(76, "s4", "s5", 2304)
        a("buffer_load_dwordx2 v[20:21], v63, s[76:79], 0 offen")
        for t in range(c['W0']): self.wload(t)
        a(f"s_cmp_lg_u32 s66, 0\ns_cbranch_scc1 {LS1}")
        for t in range(c['W0'], 4): self.wload(t)
        a(f"s_branch {LS1}")
        a(f"{L2}:"); self.reset()
        a("""s_lshr_b32 s56, s57, 4
        s_and_b32 s52, s57, 15
        s_lshl_b32 s52, s52, 2
        s_lshr_b32 s54, s3, 1
        s_add_u32 s52, s52, s54
        s_lshl_b32 s52, s52, 16
        s_lshl_b32 s54, s56, 1
        s_and_b32 s55, s3, 1
        s_add_u32 s54, s54, s55
        s_lshl_b32 s55, s54, 10
        s_add_u32 s52, s52, s55
        v_add_u32 v28, s52, v1
        s_waitcnt lgkmcnt(0)""")
        self.srd(72, "s20", "s21", 512 * 8192)
        for t in range(c['W0']): self.uload(t)
        a(f"s_branch {LS2}")
        a(f"{L3}:"); self.reset()
        a("v_lshrrev_b32 v48, 3, v0\nv_and_b32 v49, 7, v0\ns_lshl_b32 s52, s3, 7\nv_lshlrev_b32 v50, 10, v48\nv_add_u32 v50, s52, v50\nv_lshrrev_b32 v52, 4, v0")
        for q in range(2): a(f"v_add_u32 v51, {4*q}, v52\nv_xor_b32 v51, v51, v49\nv_lshl_add_u32 v{DV+q}, v51, 4, v50")
        a(f"""s_lshr_b32 s63, s2, 5
        s_and_b32 s64, s2, 31
        s_lshl_b32 s60, s3, 13
        s_mul_i32 s62, s63, {c['rotb'] << 21}
        s_lshl_b32 s52, s64, 16
        s_add_u32 s62, s62, s52
        s_lshl_b32 s52, s63, 23
        s_waitcnt lgkmcnt(0)
        s_add_u32 s54, s16, s52
        s_addc_u32 s55, s17, 0""")
        self.srd(76, "s54", "s55", 0x800000)
        for t in range(c['WH']): self.dma(t)
        a(f"s_branch {LH}")

    def a_common(self):
        a = self.a; c = self.c
        self.late_prologue()
        a("s_lshl_b32 s52, s49, 21\ns_add_u32 s54, s6, s52\ns_addc_u32 s55, s7, 0")
        self.srd(40, "s54", "s55", 0x200000)
        a("s_add_u32 s54, s8, s52\ns_addc_u32 s55, s9, 0")
        self.srd(44, "s54", "s55", 0x200000)
        a(f"""s_mul_i32 s52, s49, {c['rot']}
        s_lshl_b32 s60, s50, 3
        s_add_u32 s60, s60, s3
        s_lshl_b32 s60, s60, 12
        s_add_u32 s60, s60, s52
        s_mul_i32 s54, s50, {c['subrot']}
        s_add_u32 s54, s54, s3
        s_and_b32 s54, s54, {c['nsub'] - 1}
        s_lshl_b32 s61, s54, {self.USH}
        s_add_u32 s61, s61, s52
        s_add_u32 s61, s61, {c['NS']*48*1024}
        s_lshl_b32 s62, s49, 3
        s_add_u32 s62, s62, s54
        s_lshl_b32 s62, s62, 7
        s_add_u32 s62, s62, {CNT}
        s_lshl_b32 s52, s49, 10
        s_add_u32 s52, s52, {Q}
        v_and_b32 v29, 15, v0
        v_lshlrev_b32 v29, 4, v29
        v_add_u32 v29, s52, v29
        s_mov_b32 s58, {LOG2E}
        v_mov_b32 v{ZERO}, 0""")
        self.sels()
        a("""s_cmp_ge_u32 s48, 96
        s_cselect_b32 s63, 1, 0
        s_cselect_b32 s54, s24, s12
        s_cselect_b32 s55, s25, s13
        s_cselect_b32 s67, 2.0, 1.0
        s_mul_i32 s52, s63, 96
        s_sub_u32 s52, s48, s52
        s_mul_i32 s64, s52, 171
        s_lshr_b32 s64, s64, 9
        s_mul_i32 s65, s64, 3
        s_sub_u32 s65, s52, s65""")
        self.srd(68, "s54", "s55", 4096 * 1152)
        a("""s_lshl_b32 s52, s64, 3
        s_add_u32 s52, s52, s3
        s_mul_i32 s52, s52, 18432
        s_mul_i32 s54, s65, 384
        s_add_u32 s52, s52, s54
        v_lshrrev_b32 v48, 4, v0
        v_mul_u32_u24 v30, 4608, v48
        v_add_u32 v30, s52, v30
        v_bfe_u32 v49, v0, 3, 1
        v_mul_u32_u24 v31, 1152, v49
        v_add_u32 v31, v31, v30
        v_and_b32 v50, 7, v0
        v_lshl_add_u32 v31, v50, 4, v31
        v_add_u32 v31, 256, v31
        v_and_b32 v51, 15, v0
        v_lshl_add_u32 v30, v51, 4, v30""")
        self.get_tag()
    def ring(self, j): return RING + 4 * (j % self.c['R'])
    def kv(self, j):
        a = self.a; NS = self.c['NS']; jj = j % NS
        if jj % 4 == 0: a(f"s_add_u32 s51, s60, {(jj//4)*48*4096}\ns_and_b32 s51, s51, 0x1fffff")
        a(f"buffer_load_dwordx4 v[{self.ring(j)}:{self.ring(j)+3}], v1, {'s[40:43]' if j < NS else 's[44:47]'}, s51 offen offset:{(jj % 4) * 1024} nt", tag=('kv', j))
    def head_s1(self):
        a = self.a; c = self.c; W, W0, IM = c['W'], c['W0'], c['IQ']
        self.reset(['x'] + [('w', t) for t in range(4)])
        a(f"""v_lshrrev_b32 v48, 4, v0
        v_mul_u32_u24 v61, 36, v48
        v_bfe_u32 v50, v0, 3, 1
        v_mul_u32_u24 v50, 144, v50
        s_lshl_b32 s54, s3, 9
        s_add_u32 s54, s54, {XL}
        v_add3_u32 v61, v61, v50, s54
        v_add_u32 v62, s54, v62
        s_cmp_eq_u32 s66, 0
        s_cselect_b32 s56, 32768, 0
        s_lshr_b32 s54, s57, 1
        s_lshl_b32 s54, s54, 9
        s_add_u32 s56, s56, s54
        s_and_b32 s54, s57, 1
        s_lshl_b32 s54, s54, 7
        s_add_u32 s56, s56, s54
        s_add_u32 s56, s56, {Q}""")
        self.a_common()
        Ly = a.newlabel("L_y"); Lz = a.newlabel("L_nozero")
        a(f"s_cmp_eq_u32 s66, 0\ns_cbranch_scc1 {Ly}")
        a(f"""s_and_b32 s52, s57, 3
        s_lshr_b32 s54, s3, 1
        s_or_b32 s52, s52, s54
        s_cmp_lg_u32 s52, 0
        s_cbranch_scc1 {Lz}
        s_lshl_b32 s52, s3, 4
        s_lshr_b32 s54, s57, 2
        s_add_u32 s52, s52, s54
        s_lshl_b32 s52, s52, 10
        s_add_u32 s52, s52, {CNT}
        v_lshlrev_b32 v48, 7, v0
        s_mov_b64 exec, 0xff
        buffer_store_dword v{ZERO}, v48, s[36:39], s52 offen sc1
        s_mov_b64 exec, -1
        {Lz}:"""); a.vm.pop()
        keep = a.vm[:]
        for t in range(W0, 4): a(f"s_waitcnt vmcnt({W0 - 1})"); self.wload(t)
        a.vm = keep
        a(f"{Ly}:")
        seq = [('w', t) for t in range(4, 9)] + [('kv', j) for j in range(IM)]
        I = 0
        def issue():
            nonlocal I
            x = seq[I]; I += 1
            if I + 3 < c['n0']:
                L = a.newlabel("L_y"); a(f"s_cmp_eq_u32 s66, 0\ns_cbranch_scc1 {L}\ns_waitcnt vmcnt({W0 - 1})\n{L}:")
            self.kv(x[1]) if x[0] == 'kv' else self.wload(x[1])
        for r in range(32, 40): a(f"v_mov_b32 v{r}, 0")
        a.wait_vm('x')
        a("ds_write_b64 v62, v[20:21]")
        for k in range(4): a(f"ds_read2_b32 v[{10+2*k}:{11+2*k}], v61 offset0:{2*k} offset1:{2*k+1}")
        a("ds_read_b32 v18, v61 offset:32")
        a.wait_lg()
        for t in range(9):
            self.bop(40, 10 + t, 2); self.bop(44, 10 + t, 6)
            a.wait_vm(('w', t))
            while I < len(seq) and len(a.vm) < (4 if I < 5 else W): issue()
            self.mfma16(32, WR + 4 * t, 40); self.mfma16(36, WR + 4 * t, 44)
        a(f"v_cmp_lt_u32 vcc, 31, v0\ns_lshl_b32 s52, s3, 10\ns_add_u32 s52, s52, {S1L}\nv_add_u32 v48, s52, v1")
        for r in range(4): a(f"v_cndmask_b32 v{32+r}, v{32+r}, v{36+r}, vcc")
        a("ds_write_b128 v48, v[32:35]")
        a.wait_lg(); a("s_barrier")
        Ls = a.newlabel("L_s1skip")
        a(f"""s_cmp_ge_u32 s3, 2
        s_cbranch_scc1 {Ls}
        v_and_b32 v48, 7, v0
        v_lshlrev_b32 v48, 4, v48
        v_bfe_u32 v49, v0, 3, 2
        v_lshl_add_u32 v48, v49, 2, v48
        v_lshrrev_b32 v49, 5, v0
        v_lshl_add_u32 v48, v49, 8, v48
        s_lshl_b32 s52, s3, 7
        s_add_u32 s52, s52, {S1L}
        v_add_u32 v48, s52, v48""")
        for s in range(16):
            a(f"ds_read_b32 v{32+s}, v48 offset:{512*s}")
            if s == 11: a.wait_lg()
        a("""s_lshl_b32 s52, s3, 14
        s_add_u32 s52, s52, s56
        v_mov_b32 v53, s35
        v_bfe_u32 v50, v0, 2, 1
        v_lshlrev_b32 v50, 8, v50
        v_lshrrev_b32 v51, 3, v0
        v_lshl_add_u32 v50, v51, 4, v50
        v_bfe_u32 v51, v0, 1, 1
        v_lshl_add_u32 v50, v51, 3, v50""")
        a.wait_lg()
        for st in (8, 4, 2, 1):
            for s in range(st): a(f"v_add_f32 v{32+s}, v{32+s}, v{32+s+st}")
        Lw = a.newlabel("L_s1w")
        a(f"s_cmp_eq_u32 s66, 0\ns_cbranch_scc1 {Lw}\ns_waitcnt vmcnt(0)\n{Lw}:")
        a("v_mov_b32_dpp v33, v32 quad_perm:[1,0,3,2] row_mask:0xf bank_mask:0xf")
        a("v_cvt_pk_bf16_f32 v52, v32, v33\ns_mov_b32 exec_lo, 0x55555555\ns_mov_b32 exec_hi, 0x55555555")
        a("buffer_store_dwordx2 v[52:53], v50, s[36:39], s52 offen sc1\ns_mov_b64 exec, -1"); a.vm.pop()
        a(f"{Ls}:")
        self.stamp(9)
        while I < len(seq): a.wait_vm_n(W - 1); issue()
    def head_s2(self):
        a = self.a; c = self.c; W, W0, IM = c['W'], c['W0'], c['IQ']
        self.reset([('u', t) for t in range(W0)])
        a(f"""s_lshl_b32 s54, s54, 11
        s_add_u32 s54, s54, {Q + 32768}
        v_lshrrev_b32 v48, 4, v0
        v_lshlrev_b32 v59, 9, v48
        v_and_b32 v49, 15, v0
        v_lshl_add_u32 v59, v49, 4, v59
        v_add_u32 v59, s54, v59
        s_mov_b32 s76, 16384
        v_bfe_u32 v50, v0, 3, 1
        v_lshlrev_b32 v60, 9, v50
        v_lshl_add_u32 v60, v48, 4, v60
        s_lshr_b32 s52, s3, 1
        s_lshl_b32 s52, s52, 7
        s_and_b32 s55, s3, 1
        s_lshl_b32 s55, s55, 6
        s_add_u32 s52, s52, s55
        s_add_u32 s52, s52, {S2L}
        v_add_u32 v60, s52, v60
        v_add_u32 v51, {S2L + 1024}, v1
        v_and_b32 v50, 7, v0
        v_cmp_lt_u32 vcc, 0, v50
        v_cndmask_b32 v60, v60, v51, vcc""")
        self.a_common()
        seq = [('u', t) for t in range(8)] + [('kv', j) for j in range(IM)]
        I = W0
        def issue():
            nonlocal I
            x = seq[I]; I += 1
            self.kv(x[1]) if x[0] == 'kv' else self.uload(x[1])
        def more(n=1):
            for _ in range(n):
                if I < len(seq): a.wait_vm_n((W0 if I < c['n0'] else W) - 1); issue()
        while ('kv', c['iq2'] - 1) in seq[I:]: more()
        def qissue():
            for b in range(2):
                for k in range(2):
                    a(f"buffer_load_dwordx4 v[{10+8*b+4*k}:{13+8*b+4*k}], v59, s[36:39], {'s76' if b else '0'} offen offset:{256*k} sc1", tag='pg')
        qissue()
        while sum(1 for x in a.vm[a.vm.index('pg'):] if x != 'pg') < W - 1: a.wait_vm_n(W + 3); issue()
        if not c.get('dQ'): self.poll_granules(qissue, QTAGS, 2, first_issued=True, sleep=1)
        self.stamp(9)
        while len(a.vm) < W: issue()
        for n in range(2):
            self.qk([UR + 16 * n + 4 * t for t in range(4)], 36, [44 + 4 * n + t for t in range(4)]); more()
        for k in range(4): a(f"v_cvt_pk_bf16_f32 v{52+k}, v{44+2*k}, v{45+2*k}")
        a("ds_write_b128 v60, v[52:55]")
        a.wait_lg(); a("s_barrier")
        Ls = a.newlabel("L_s2skip")
        a(f"""s_cmp_lg_u32 s3, 7
        s_cbranch_scc1 {Ls}
        v_add_u32 v48, {S2L}, v1
        ds_read_b128 v[52:55], v48
        v_lshrrev_b32 v49, 5, v0
        v_lshlrev_b32 v49, 15, v49
        v_bfe_u32 v50, v0, 3, 2
        v_lshl_add_u32 v49, v50, 10, v49
        v_and_b32 v50, 7, v0
        v_lshl_add_u32 v49, v50, 4, v49
        s_lshr_b32 s52, s56, 1
        s_lshl_b32 s52, s52, 14
        s_and_b32 s54, s57, 3
        s_lshl_b32 s54, s54, 12
        s_add_u32 s52, s52, s54
        s_bfe_u32 s54, s57, 0x20002
        s_lshl_b32 s54, s54, 8
        s_add_u32 s52, s52, s54
        s_and_b32 s54, s56, 1
        s_lshl_b32 s54, s54, 7
        s_add_u32 s52, s52, s54
        s_add_u32 s52, s52, {QABS}""")
        a.wait_lg()
        a("buffer_store_dwordx4 v[52:55], v49, s[36:39], s52 offen sc1"); a.vm.pop()
        if c['s2wait'] == 0:
            a(f"s_lshl_b32 s54, s57, 7\ns_add_u32 s54, s54, {FQ}\ns_waitcnt vmcnt(0)")
            self.flag_store("s54")
            a(f"{Ls}:")
        else:
            a(f"{Ls}:")
            more(c['s2wait'])
            Ls = a.newlabel("L_s2flag")
            a(f"s_cmp_lg_u32 s3, 7\ns_cbranch_scc1 {Ls}\ns_lshl_b32 s54, s57, 7\ns_add_u32 s54, s54, {FQ}\ns_waitcnt vmcnt({c['s2wait'] if c.get('s2cnt') else 0})")
            self.flag_store("s54")
            a(f"{Ls}:")
        while I < len(seq): more()
    def qissue(self):
        for h in range(2):
            for k in range(2):
                self.a(f"buffer_load_dwordx4 v[{10+8*h+4*k}:{13+8*h+4*k}], v29, s[36:39], 0 offen offset:{512*h+256*k} sc1", tag='pg')
    def ticket(self, k):
        self.a(f"v_mov_b32 v{TK+k}, 1\ns_mov_b64 exec, 1\nbuffer_atomic_add v{TK+k}, v{ZERO}, s[36:39], s62 offen sc0\ns_mov_b64 exec, -1", tag=('tk', k))
    def unit_loads(self, r, srd, tag=None):
        for t in range(self.c['UT']): self.a(f"buffer_load_dwordx4 v[{r+4*t}:{r+4*t+3}], v1, {srd}, s51 offen offset:{1024*t} nt", tag=tag)
    def t_load(self, k):
        r = TW[k]
        if k < 4: self.a(f"buffer_load_dwordx4 v[{r}:{r+3}], v30, s[68:71], 0 offen offset:{k*1152} nt")
        else: self.a(f"buffer_load_dwordx4 v[{r}:{r+3}], v31, s[68:71], 0 offen offset:{(k-4)*2304} nt")
    def a_static(self):
        a = self.a; c = self.c; W, R, NS, IM = c['W'], c['R'], c['NS'], c['IQ']; ring = self.ring
        assert RING + 4 * R <= 256 and NS % 4 == 0 and SREG + NS // 2 <= 83 and ring(IM + W) < WR
        assert all(ring(j) >= TW[5] + 4 for j in range(2 * NS - 10, 2 * NS))
        self.reset([('kv', j) for j in range(IM - W, IM)])
        I = IM
        a(f"v_mov_b32 v26, {NEGINF}\nv_mov_b32 v27, 0\nv_mov_b32 v32, 0\nv_mov_b32 v33, 0\nv_mov_b32 v34, 0\nv_mov_b32 v35, 0")
        self.qissue()
        while I < c['ICHK']:
            a.wait_vm_n(W - 1 + (4 if I < IM + W else 0)); self.kv(I); I += 1
        self.stamp(1)
        if not c.get('dQ'): self.poll_granules(self.qissue, QTAGS, 1, first_issued=True)
        self.stamp(2)
        self.a_epi_addr()
        C = 0
        def landed(j): return ('kv', j) not in a.vm
        def last(C): return C + 3 if C < NS else C + 1
        def consume():
            nonlocal C
            if C < NS:
                n = C // 4
                a.wait_vm(('kv', C + 3))
                self.qk([ring(C + t) for t in range(4)], 36, [44, 45, 46, 47])
                a("v_cvt_pk_bf16_f32 v48, v44, v45\nv_cvt_pk_bf16_f32 v50, v46, v47\nv_max3_f32 v26, v26, v44, v45")
                a("v_and_b32 v49, 0xffff0000, v48\nv_lshlrev_b32 v48, 16, v48\nv_and_b32 v51, 0xffff0000, v50\nv_lshlrev_b32 v50, 16, v50")
                a("v_max3_f32 v26, v26, v46, v47")
                for r in (48, 49, 50, 51): a(f"v_mul_f32 v{r}, {SCALE}, v{r}")
                a(f"v_cvt_pk_bf16_f32 v{SREG+2*n}, v48, v49\nv_cvt_pk_bf16_f32 v{SREG+2*n+1}, v50, v51")
                C += 4
                if C == NS:
                    self.redrows(26, 48, "v_max_f32")
                    a(f"v_cvt_pk_bf16_f32 v48, v26, v26\nv_and_b32 v48, 0xffff0000, v48\nv_mul_f32 v48, {SCALE}, v48")
                    a(f"v_cvt_pk_bf16_f32 v48, v48, v48\nv_and_b32 v26, 0xffff0000, v48\nv_mul_f32 v26, {LOG2E}, v26")
                    self.stamp(3)
            else:
                n = (C - NS) // 2
                a(f"v_lshlrev_b32 v60, 16, v{SREG+n}\nv_and_b32 v61, 0xffff0000, v{SREG+n}")
                a("v_fma_f32 v60, v60, s58, -v26\nv_fma_f32 v61, v61, s58, -v26")
                a("v_exp_f32 v60, v60\nv_exp_f32 v61, v61\nv_add_f32 v27, v27, v60\nv_cvt_pk_bf16_f32 v62, v60, v61\nv_add_f32 v27, v27, v61")
                self.bop(52, 62, 2); self.bop(56, 62, 6)
                for k in range(2):
                    a.wait_vm(('kv', C + k)); self.mfma16(32, ring(C + k), 52 + 4 * k)
                C += 2
        def pace(n):
            tiles = [x for x in a.vm if x[0] != 'tk']
            if len(tiles) > n: a.wait_vm(tiles[len(tiles) - n - 1])
        while I < 2 * NS:
            if I - R < C:
                pace((W if I < c['iW2'] else c['W2']) - 1)
                if I == 2 * NS - 5: self.ticket(0)
                if I == 2 * NS - 3: self.ticket(1)
                self.kv(I); I += 1
                if landed(last(C)) and last(C) < I: consume()
            else: consume()
        for k in range(2):
            pace(c['W2'] - 2 + k * (2 * c['UT'] - 2))
            a.wait_vm(('tk', k))
            a(f"""v_readfirstlane_b32 s52, v{TK+k}
            s_cmp_lt_u32 s52, {self.NF}
            s_cselect_b32 s{76+k}, 0, {NEGINF}
            s_cselect_b32 s54, 0, 0x40000000
            s_lshl_b32 s52, s52, {self.TSH}
            s_add_u32 s51, s61, s52
            s_and_b32 s51, s51, 0x1fffff
            s_or_b32 s51, s51, s54""")
            self.unit_loads(FK[k], "s[40:43]", ('fk', k)); self.unit_loads(FV[k], "s[44:47]", ('fv', k))
            self.ticket(k)
            while C < 2 * NS and landed(last(C)): consume()
        while C < 2 * NS: consume()
        self.stamp(10)
    def unit(self, k, refill, vwait=None):
        a = self.a; UT = self.c['UT']
        self.qk([FK[k] + 4 * t for t in range(UT)], 36, [44, 45], (lambda: self.unit_loads(FK[k], "s[40:43]")) if refill else None)
        a(f"v_cvt_pk_bf16_f32 v48, v44, v{44 + UT - 1}\nv_and_b32 v49, 0xffff0000, v48\nv_lshlrev_b32 v48, 16, v48")
        a(f"v_mul_f32 v49, {SCALE}, v49\nv_mul_f32 v48, {SCALE}, v48\nv_cvt_pk_bf16_f32 v48, v48, v49")
        a(f"v_lshlrev_b32 v44, 16, v48\nv_and_b32 v45, 0xffff0000, v48\nv_add_f32 v44, s{76+k}, v44\nv_add_f32 v45, s{76+k}, v45")
        Ls = a.newlabel("L_nomax")
        a(f"v_fma_f32 v60, v44, s58, -v26\nv_fma_f32 v61, v45, s58, -v26\nv_max_f32 v46, v60, v61\nv_cmp_lt_f32 vcc, 0x41800000, v46\ns_cbranch_vccz {Ls}")
        a("v_max_f32 v46, v44, v45\nv_mul_f32 v46, s58, v46")
        self.redrows(46, 48, "v_max_f32")
        a("v_max_f32 v46, v46, v26\nv_sub_f32 v47, v26, v46\nv_exp_f32 v47, v47\nv_mov_b32 v26, v46\nv_fma_f32 v60, v44, s58, -v46\nv_fma_f32 v61, v45, s58, -v46\nv_mul_f32 v27, v27, v47")
        for r in range(32, 36): a(f"v_mul_f32 v{r}, v{r}, v47")
        a(f"{Ls}:\nv_exp_f32 v60, v60\nv_exp_f32 v61, v61\nv_add_f32 v27, v27, v60\nv_cvt_pk_bf16_f32 v62, v60, v61")
        if UT == 2: a("v_add_f32 v27, v27, v61")
        for t in range(UT): self.bop(52 + 4 * t, 62, 2 + 4 * t)
        if isinstance(vwait, tuple):
            L = a.newlabel("L_vw"); a(f"s_waitcnt vmcnt({vwait[1]})\ns_cmp_ge_u32 s3, 4\ns_cbranch_scc1 {L}\ns_waitcnt vmcnt({vwait[0]})\n{L}:")
        elif vwait is not None: a(f"s_waitcnt vmcnt({vwait})")
        for t in range(UT): self.mfma16(32, FV[k] + 4 * t, 52 + 4 * t)
        if refill:
            a(f"s_mov_b32 s{76+k}, 0"); self.unit_loads(FV[k], "s[44:47]"); self.ticket(k)
    def a_pool(self):
        a = self.a; c = self.c
        Ll = a.newlabel("L_pool"); Ld = [a.newlabel("L_drain") for _ in range(2)]; Le = a.newlabel("L_poolend")
        a(f"{Ll}:")
        for k in range(2):
            a(f"""s_waitcnt vmcnt({2 * c['UT'] + 1})
            v_readfirstlane_b32 s52, v{TK+k}
            s_cmp_lt_u32 s52, {self.NF}
            s_cbranch_scc0 {Ld[k]}
            s_lshl_b32 s52, s52, {self.TSH}
            s_add_u32 s51, s61, s52
            s_and_b32 s51, s51, 0x1fffff""")
            self.unit(k, True)
        a(f"s_branch {Ll}")
        n0, n1 = c['twpos']
        for k in range(2):
            a(f"{Ld[k]}:")
            for j in range(n0): self.t_load(j)
            self.unit(k, False)
            for j in range(n0, n0 + n1): self.t_load(j)
            a(f"s_waitcnt vmcnt({1 + n0 + n1 + c['UT']})")
            if c['twsplit']:
                L = a.newlabel("L_tws"); nd = 6 - c['twsplit']
                for j in range(n0 + n1, nd): self.t_load(j)
                a(f"s_cmp_lt_u32 s3, 4\ns_cbranch_scc1 {L}")
                for j in range(nd, 6): self.t_load(j)
                a(f"{L}:")
                self.unit(1 - k, False, (1 + nd, 7))
            else:
                for j in range(n0 + n1, 6): self.t_load(j)
                self.unit(1 - k, False, 7)
            if k == 0: a(f"s_branch {Le}")
        a(f"{Le}:"); a.vm = []
    def a_epi_addr(self):
        a = self.a
        a(f"s_lshl_b32 s52, s3, 10\ns_add_u32 s52, s52, {EB}\nv_add_u32 v83, s52, v1")
        a(f"v_bfe_u32 v84, v0, 3, 1\nv_lshlrev_b32 v84, 6, v84\ns_lshl_b32 s52, s3, 3\ns_add_u32 s52, s52, {EB + 8192}\nv_add_u32 v84, s52, v84")
        self.acc_addr(28, 48, EB)
        a(f"""s_lshr_b32 s52, s3, 1
        s_lshl_b32 s54, s49, 1
        s_add_u32 s52, s52, s54
        s_lshl_b32 s52, s52, 3
        s_add_u32 s52, s52, s50
        s_lshl_b32 s52, s52, 9
        s_add_u32 s78, s52, {REC}
        s_and_b32 s54, s3, 1
        s_lshl_b32 s55, s54, 8
        v_lshlrev_b32 v63, 2, v0
        v_add_u32 v63, s55, v63
        s_lshr_b32 s55, s3, 1
        s_lshl_b32 s55, s55, 6
        s_add_u32 s55, s55, {EB + 8192}
        v_mov_b32 v29, s55""")
    def a_epilogue(self):
        a = self.a
        self.stamp(4)
        self.redrows(27, 48, "v_add_f32")
        a("ds_write_b64 v84, v[26:27]\nds_write_b128 v83, v[32:35]\nv_mov_b32 v59, s35")
        a.wait_lg(); a("s_barrier")
        self.stamp(8)
        Lu = a.newlabel("L_aup")
        a(f"s_cmp_ge_u32 s3, 4\ns_cbranch_scc1 {Lu}")
        for k in range(4): a(f"ds_read_b128 v[{10+4*k}:{13+4*k}], v29 offset:{16*k}", tag='st')
        for w in range(8): a(f"ds_read_b32 v{36+w}, v28 offset:{1024*w}")
        a.wait_lg('st')
        a("v_max3_f32 v52, v10, v12, v14\nv_max3_f32 v53, v16, v18, v20\nv_max3_f32 v52, v52, v22, v24\nv_max_f32 v52, v52, v53")
        for w in range(8): a(f"v_sub_f32 v{10+2*w}, v{10+2*w}, v52")
        for w in range(8): a(f"v_exp_f32 v{10+2*w}, v{10+2*w}")
        a.wait_lg()
        a("v_mul_f32 v53, v10, v11\nv_mul_f32 v54, v10, v36")
        for w in range(1, 8): a(f"v_fmac_f32 v53, v{10+2*w}, v{11+2*w}\nv_fmac_f32 v54, v{10+2*w}, v{36+w}")
        a("v_rcp_f32 v55, v53\nv_log_f32 v58, v53\nv_mul_f32 v54, v54, v55\nv_add_f32 v58, v58, v52")
        self.rec_store(54, 63, 78)
        if self.c['twsplit']:
            for j in range(6 - self.c['twsplit'], 6): self.t_load(j)
        a(f"{Lu}:")
        self.stamp(5)
    def a_proj(self):
        a = self.a; c = self.c
        a(f"""v_and_b32 v50, 7, v0
        v_min_u32 v51, 5, v50
        v_and_b32 v52, 1, v0
        s_cmp_eq_u32 s63, 0
        s_cselect_b64 vcc, -1, 0
        s_cselect_b32 s66, 5, 7
        v_cndmask_b32 v51, v52, v51, vcc
        v_bfe_u32 v49, v0, 3, 1
        v_lshl_add_u32 v29, v49, 8, v51
        v_lshlrev_b32 v29, 9, v29
        s_lshl_b32 s52, s63, 6
        s_add_u32 s52, s52, s64
        s_lshl_b32 s52, s52, 12
        s_lshl_b32 s54, s3, 6
        s_add_u32 s52, s52, s54
        s_add_u32 s75, s52, {REC}
        v_lshrrev_b32 v48, 4, v0
        v_lshl_add_u32 v29, v48, 4, v29""")
        def gissue(): a("buffer_load_dwordx4 v[10:13], v29, s[36:39], s75 offen sc1", tag='pg')
        gissue()
        a("v_cmp_lt_u32 s[72:73], s66, v50")
        for r in range(32, 44): a(f"v_mov_b32 v{r}, 0")
        a(f"""v_and_b32 v26, 7, v0
        v_lshlrev_b32 v26, 4, v26
        v_bfe_u32 v48, v0, 3, 2
        v_lshl_add_u32 v26, v48, 2, v26
        v_lshrrev_b32 v48, 5, v0
        s_cmp_ge_u32 s3, 4
        s_cselect_b32 s52, 9, 8
        s_cselect_b32 s54, 8, 9
        s_cselect_b32 s55, 8192, 0
        s_cselect_b32 s56, 1024, 0
        s_add_u32 s55, s55, {TL}
        v_lshl_add_u32 v26, v48, s52, v26
        s_and_b32 s57, s3, 1
        s_lshl_b32 s57, s57, s54
        s_add_u32 s56, s56, s57
        s_add_u32 s55, s55, s57
        s_bfe_u32 s57, s3, 0x10001
        s_lshl_b32 s52, s57, 7
        s_add_u32 s55, s55, s52
        v_add_u32 v26, s55, v26
        s_lshl_b32 s52, s3, 10
        s_add_u32 s52, s52, {TL}
        v_add_u32 v27, s52, v1
        v_lshlrev_b32 v23, 3, v0
        v_add_u32 v23, s56, v23
        s_lshl_b32 s74, s63, 5
        s_add_u32 s74, s74, s64
        s_lshl_b32 s74, s74, 1
        s_add_u32 s74, s74, s57
        s_mul_i32 s74, s74, 4608
        s_mul_i32 s54, s65, 1536
        s_add_u32 s74, s74, s54
        s_add_u32 s74, s74, {PO}
        s_lshl_b32 s57, s57, 3
        v_mov_b32 v59, s35
        v_mov_b32 v47, {NEGINF}""")
        if c.get('dT'): a(f"s_branch {self.LF}")
        self.poll_granules(gissue, [13], 6, first_issued=True, sleep=c.get('tsleep', 0))
        self.stamp(6)
        a("v_cndmask_b32 v46, v12, v47, s[72:73]\nv_lshlrev_b32 v52, 16, v10\nv_mov_b32 v44, v46\nv_and_b32 v53, 0xffff0000, v10\nv_lshlrev_b32 v54, 16, v11")
        self.red8([44], "v_max_f32")
        a("v_sub_f32 v44, v46, v44\nv_and_b32 v55, 0xffff0000, v11\nv_exp_f32 v56, v44")
        for t in range(4): a(f"v_mul_f32 v{52+t}, v56, v{52+t}")
        self.red8([52, 53, 54, 55, 56], "v_add_f32")
        for k in range(2): a(f"v_cvt_pk_bf16_f32 v{20+k}, v{52+2*k}, v{53+2*k}")
        a("v_rcp_f32 v56, v56")
        for k in range(2):
            self.bop(44, 20 + k, 2); self.bop(48, 20 + k, 6)
            self.mfma16(36, TW[4 + k], 44); self.mfma16(40, TW[4 + k], 48)
            self.mfma16(32, TW[2 * k], 44); self.mfma16(32, TW[2 * k + 1], 48)
        a("v_cmp_lt_u32 vcc, 31, v0\nv_mul_f32 v56, s67, v56\nv_readlane_b32 s57, v56, s57")
        for r in range(4): a(f"v_cndmask_b32 v{36+r}, v{36+r}, v{40+r}, vcc")
        a("ds_write_b128 v27, v[36:39] offset:8192\nds_write_b128 v27, v[32:35]")
        a.wait_lg(); a("s_barrier")
        for w in range(8): a(f"ds_read_b32 v{44+w}, v26 offset:{1024*w}")
        a.wait_lg()
        a("v_add_f32 v44, v44, v45\nv_add_f32 v46, v46, v47\nv_add_f32 v48, v48, v49\nv_add_f32 v50, v50, v51\nv_add_f32 v44, v44, v46\nv_add_f32 v48, v48, v50\nv_add_f32 v58, v44, v48")
        Lf = a.newlabel("L_tfull")
        a(f"s_cmp_lt_u32 s3, 4\ns_cbranch_scc1 {Lf}")
        a("v_mov_b32 v49, v58\nv_permlane32_swap_b32 v58, v49\nv_add_f32 v58, v58, v49\ns_mov_b32 exec_hi, 0")
        a(f"{Lf}:\nv_mul_f32 v58, s57, v58\nbuffer_store_dwordx2 v[58:59], v23, s[36:39], s74 offen sc1\ns_mov_b64 exec, -1")
        self.stamp(7)

    def h_front(self):
        a = self.a; c = self.c; WH = c['WH']
        self.reset(['d'] * WH)
        self.late_prologue()
        a("""v_lshrrev_b32 v52, 4, v0
        v_and_b32 v50, 1, v0
        v_bfe_u32 v51, v0, 1, 1
        v_bfe_u32 v53, v0, 2, 2
        v_lshl_add_u32 v51, v51, 2, v53
        v_lshl_add_u32 v50, v51, 1, v50
        v_lshlrev_b32 v50, 7, v50
        v_lshl_add_u32 v50, v51, 4, v50
        v_lshl_add_u32 v50, v52, 14, v50
        s_and_b32 s52, s3, 3
        s_lshl_b32 s52, s52, 11
        v_add_u32 v50, s52, v50""")
        for ks in range(8): a(f"v_xor_b32 v{SA+ks}, {16*ks}, v50")
        a("""v_bfe_u32 v50, v0, 3, 1
        v_lshlrev_b32 v50, 2, v50
        v_lshrrev_b32 v51, 5, v0
        v_lshl_add_u32 v50, v51, 1, v50
        v_bfe_u32 v51, v0, 4, 1
        v_lshlrev_b32 v51, 1, v51
        v_bfe_u32 v53, v0, 1, 1
        v_add_u32 v51, v51, v53
        v_and_b32 v53, 1, v0
        v_lshlrev_b32 v53, 3, v53
        v_bfe_u32 v54, v0, 2, 1
        v_lshl_add_u32 v53, v54, 7, v53
        s_lshl_b32 s52, s3, 13
        v_add_u32 v53, s52, v53
        v_add_u32 v57, s52, v1
        v_add_u32 v58, 0x10000, v57""")
        for hi in range(2):
            a(f"v_add_u32 v54, {hi}, v50\nv_xor_b32 v55, v54, v51\nv_lshl_add_u32 v55, v55, 4, v53\nv_lshl_add_u32 v55, v54, 8, v55")
            for cb in range(2): a(f"v_xor_b32 v{TA + 2*cb + hi}, {64*cb}, v55")
        a(f"""s_lshr_b32 s52, s3, 2
        s_lshl_b32 s52, s52, 4
        v_and_b32 v49, 15, v0
        v_add_u32 v50, s52, v49
        v_mul_u32_u24 v2, 144, v50
        v_lshl_add_u32 v2, v52, 3, v2
        s_and_b32 s54, s3, 3
        s_lshl_b32 s55, s54, 5
        s_add_u32 s55, s55, {PL}
        v_add_u32 v2, s55, v2
        v_and_b32 v51, 31, v0
        v_mul_u32_u24 v3, 144, v51
        v_lshrrev_b32 v53, 5, v0
        v_lshl_add_u32 v3, v53, 4, v3
        v_add_u32 v3, {PL}, v3
        v_lshlrev_b32 v5, 2, v50
        v_add_u32 v5, {ML}, v5
        s_lshl_b32 s55, s54, 7
        v_add_u32 v4, s55, v5
        v_lshlrev_b32 v6, 2, v51
        v_add_u32 v6, {ML}, v6
        v_mov_b32 v7, {NEGINF}
        v_mov_b32 v8, {NEGINF}
        v_mov_b32 v9, 0
        v_lshlrev_b32 v28, 7, v0
        v_add_u32 v28, {FQ}, v28
        s_mov_b32 s58, {LOG2E}
        s_lshl_b32 s65, s63, 15
        s_lshl_b32 s54, s3, 12
        s_add_u32 s65, s65, s54
        s_add_u32 s65, s65, {QABS}
        s_add_u32 s54, s54, {PL}
        v_add_u32 v30, s54, v1
        s_lshr_b32 s54, s3, 2
        s_lshl_b32 s54, s54, 14
        s_add_u32 s54, s54, {PL}
        v_add_u32 v31, s54, v1""")
        for r in range(32): a(f"v_mov_b32 v{ACC+r}, 0")
        self.srd(44, "s22", "s23", 512 * 8192)
        a("""s_and_b32 s52, s2, 1
        s_lshl_b32 s52, s52, 3
        s_add_u32 s52, s52, s3
        s_lshl_b32 s52, s52, 18
        s_lshr_b32 s54, s2, 1
        s_lshl_b32 s54, s54, 8
        s_add_u32 s52, s52, s54
        v_lshlrev_b32 v59, 16, v52
        v_lshl_add_u32 v59, v49, 4, v59
        v_add_u32 v59, s52, v59""")
        self.get_tag()
        for t in range(WH, 16): a.wait_vm_n(WH - 1); self.dma(t)
        for t in range(16):
            q = t % 8; r = R2[q] if t < 8 else UV + 4 * q
            a.wait_vm_n(WH - 1)
            if q == 0: a("s_and_b32 s62, s62, 0x7fffff")
            a(f"s_add_u32 s51, s62, {q*8192}\nbuffer_load_dwordx4 v[{r}:{r+3}], v{DV + (q & 1)}, s[76:79], s51 offen nt", tag='r')
            if q == 7: a("s_add_u32 s62, s62, 0x200000")
        self.stamp(1)
        if c.get('dH') == 1: a(f"s_waitcnt vmcnt(0)\ns_branch {self.LF}")
        if c.get('dH') == 4:
            for t in range(8): a(f"s_waitcnt vmcnt(3)\ns_mov_b32 s51, {t*8192}\nbuffer_load_dwordx4 v[{64+4*t}:{64+4*t+3}], v59, s[44:47], s51 offen nt")
            a(f"s_waitcnt vmcnt(0)\ns_branch {self.LF}")
        self.poll_flags(28, 3, 2)
        for n in range(4): a(f"buffer_load_dwordx4 v[{STG+4*n}:{STG+4*n+3}], v1, s[36:39], s65 offen offset:{n*1024} sc1", tag=('q', n))
        for n in range(4):
            a.wait_vm(('q', n)); a(f"ds_write_b128 v30, v[{STG+4*n}:{STG+4*n+3}] offset:{n*1024}")
        a.wait_lg(); a("s_barrier")
        for ks in range(16):
            a(f"ds_read_b128 v[{QR+4*ks}:{QR+4*ks+3}], v31 offset:{ks*1024}")
            if ks == 11: a.wait_lg()
        a.wait_lg()
        self.stamp(2)
    def h_attn(self):
        a = self.a; c = self.c
        Lloop = a.newlabel("L_btile")
        a(f"s_mov_b32 s61, 0\n{Lloop}:\ns_barrier")
        for r in range(4): a(f"v_mov_b32 v{32+r}, 0")
        for ks in range(8): a(f"ds_read_b128 v[{STG+4*ks}:{STG+4*ks+3}], v{SA+ks}", tag=('s', ks))
        for ks in range(16):
            a.wait_lg(('s', ks))
            s = STG + 4 * (ks % 8)
            self.mfma16(32, s, QR + 4 * ks)
            if ks + 8 < 16: a(f"ds_read_b128 v[{s}:{s+3}], v{SA+ks} offset:8192", tag=('s', ks + 8))
        for ks in range(8): a(f"v_xor_b32 v{SA+ks}, 0x10000, v{SA+ks}")
        a("v_cvt_pk_bf16_f32 v36, v32, v33\nv_cvt_pk_bf16_f32 v38, v34, v35")
        a("v_and_b32 v37, 0xffff0000, v36\nv_lshlrev_b32 v36, 16, v36\nv_and_b32 v39, 0xffff0000, v38\nv_lshlrev_b32 v38, 16, v38")
        for r in (36, 37, 38, 39): a(f"v_mul_f32 v{r}, {SCALE}, v{r}")
        a("v_cvt_pk_bf16_f32 v36, v36, v37\nv_cvt_pk_bf16_f32 v38, v38, v39")
        a("v_lshlrev_b32 v32, 16, v36\nv_and_b32 v33, 0xffff0000, v36\nv_lshlrev_b32 v34, 16, v38\nv_and_b32 v35, 0xffff0000, v38")
        a("v_max3_f32 v36, v32, v33, v34\nv_max_f32 v36, v36, v35")
        self.redrows(36, 37, "v_max_f32")
        a("ds_write_b32 v4, v36")
        a.wait_lg(); a("s_barrier")
        a("ds_read2_b32 v[36:37], v5 offset1:32\nds_read2_b32 v[38:39], v5 offset0:64 offset1:96\nds_read2_b32 v[40:41], v6 offset1:32\nds_read2_b32 v[42:43], v6 offset0:64 offset1:96")
        a.wait_lg()
        a("v_max3_f32 v36, v36, v37, v7\nv_max3_f32 v40, v40, v41, v8\nv_max3_f32 v36, v36, v38, v39\nv_max3_f32 v38, v40, v42, v43")
        a("v_sub_f32 v40, v7, v36\nv_sub_f32 v41, v8, v38\nv_mul_f32 v37, s58, v36\nv_mul_f32 v40, s58, v40\nv_mul_f32 v42, s58, v41")
        for r in range(4): a(f"v_fma_f32 v{32+r}, v{32+r}, s58, -v37")
        a("v_exp_f32 v40, v40\nv_exp_f32 v42, v42")
        for r in range(4): a(f"v_exp_f32 v{32+r}, v{32+r}")
        a("v_mov_b32 v7, v36\nv_mov_b32 v8, v38\nv_cvt_pk_bf16_f32 v44, v32, v33\nv_cvt_pk_bf16_f32 v45, v34, v35")
        a("ds_write_b64 v2, v[44:45]")
        a("v_fma_f32 v9, v9, v40, v32\nv_add_f32 v33, v33, v34\nv_add_f32 v9, v9, v35\nv_add_f32 v9, v9, v33\nv_mov_b32 v43, v42")
        for r in range(0, 32, 2): a(f"v_pk_mul_f32 v[{ACC+r}:{ACC+r+1}], v[{ACC+r}:{ACC+r+1}], v[42:43]")
        a.wait_lg(); a("s_barrier")
        for s in range(4): a(f"ds_read_b128 v[{32+4*s}:{35+4*s}], v3 offset:{32*s}", tag='p')
        seq = [(s, cb) for s in range(4) for cb in range(2)]
        def trd(i):
            s, cb = seq[i]
            for hi in range(2):
                a(f"ds_read_b64_tr_b16 v[{STG+4*i+2*hi}:{STG+4*i+2*hi+1}], v{TA+2*cb+hi} offset:{2048*s}", tag=('t', i))
        for i in range(5): trd(i)
        for i in range(8):
            s, cb = seq[i]
            a.wait_lg(('t', i))
            a(f"v_mfma_f32_32x32x16_bf16 v[{ACC+16*cb}:{ACC+16*cb+15}], v[{STG+4*i}:{STG+4*i+3}], v[{32+4*s}:{35+4*s}], v[{ACC+16*cb}:{ACC+16*cb+15}]")
            if i + 5 < 8: trd(i + 5)
        for k in range(4): a(f"v_xor_b32 v{TA+k}, 0x10000, v{TA+k}")
        L1 = a.newlabel("L_rf"); L2 = a.newlabel("L_rf")
        a(f"s_cmp_lg_u32 s61, 0\ns_cbranch_scc1 {L1}")
        for q in range(8): a(f"ds_write_b128 v57, v[{R2[q]}:{R2[q]+3}] offset:{q*1024}")
        a(f"{L1}:\ns_cmp_lg_u32 s61, 1\ns_cbranch_scc1 {L2}")
        for q in range(8): a(f"ds_write_b128 v58, v[{UV+4*q}:{UV+4*q+3}] offset:{q*1024}")
        a("s_waitcnt lgkmcnt(0)")
        for t in range(8): a(f"s_mov_b32 s51, {t*8192}\nbuffer_load_dwordx4 v[{UV+4*t}:{UV+4*t+3}], v59, s[44:47], s51 offen nt")
        a(f"{L2}:\ns_waitcnt lgkmcnt(0)\ns_add_u32 s61, s61, 1\ns_cmp_lg_u32 s61, 4\ns_cbranch_scc1 {Lloop}")
        a.vm = []; a.lg = []
        self.stamp(5)
        if c.get('dH') == 2: a(f"s_waitcnt vmcnt(0)\ns_branch {self.LF}")
        self.redrows(9, 37, "v_add_f32")
        a("ds_write_b32 v4, v9 offset:512")
        a.wait_lg(); a("s_barrier")
        a("ds_read2_b32 v[36:37], v6 offset0:128 offset1:160\nds_read2_b32 v[38:39], v6 offset0:192 offset1:224")
        a(f"""v_and_b32 v48, 31, v0
        v_mul_u32_u24 v48, 144, v48
        v_lshrrev_b32 v49, 5, v0
        v_lshl_add_u32 v48, v49, 3, v48
        s_lshl_b32 s54, s3, 13
        v_add_u32 v48, s54, v48
        v_lshrrev_b32 v49, 3, v0
        v_mul_u32_u24 v50, 144, v49
        v_and_b32 v51, 7, v0
        v_lshl_add_u32 v50, v51, 4, v50
        v_add_u32 v50, s54, v50
        v_lshlrev_b32 v52, 10, v49
        v_lshl_add_u32 v52, v51, 4, v52
        s_mul_i32 s52, s2, {c['pbs']}
        s_lshl_b32 s54, s3, 7
        s_add_u32 s52, s52, s54
        s_add_u32 s52, s52, {PB}""")
        a.wait_lg()
        a("v_add_f32 v36, v36, v37\nv_add_f32 v38, v38, v39\nv_add_f32 v36, v36, v38\nv_rcp_f32 v38, v36\nv_log_f32 v40, v36\nv_mov_b32 v39, v38\nv_fma_f32 v40, v8, s58, v40")
        for cb in range(2):
            for rq in range(4):
                r = ACC + 16 * cb + 4 * rq
                a(f"v_pk_mul_f32 v[{r}:{r+1}], v[{r}:{r+1}], v[38:39]\nv_pk_mul_f32 v[{r+2}:{r+3}], v[{r+2}:{r+3}], v[38:39]")
                a(f"v_cvt_pk_bf16_f32 v{r}, v{r}, v{r+1}\nv_cvt_pk_bf16_f32 v{r+1}, v{r+2}, v{r+3}")
                a(f"ds_write_b64 v48, v[{r}:{r+1}] offset:{64*cb + 16*rq}")
        a.wait_lg()
        for n in range(4): a(f"ds_read_b128 v[{STG+4*n}:{STG+4*n+3}], v50 offset:{n*8*144}", tag=('r', n))
        for n in range(4):
            a.wait_lg(('r', n))
            a(f"buffer_store_dwordx4 v[{STG+4*n}:{STG+4*n+3}], v52, s[36:39], s52 offen sc1 {c['pbst']}\ns_add_u32 s52, s52, 8192")
        Ls = a.newlabel("L_nopbs")
        a(f"s_cmp_lg_u32 s3, 0\ns_cbranch_scc1 {Ls}")
        a(f"s_lshl_b32 s52, s2, 7\ns_add_u32 s52, s52, {PBS}\nv_lshlrev_b32 v48, 2, v0\ns_mov_b32 exec_hi, 0")
        a(f"buffer_store_dword v40, v48, s[36:39], s52 offen sc1\ns_mov_b64 exec, -1\n{Ls}:")
        self.stamp(8)
        a("s_waitcnt vmcnt(0)\ns_barrier"); a.vm = []
        self.stamp(9)
        if c.get('dH') == 3: a(f"s_branch {self.LF}")
        Ls = a.newlabel("L_nofb")
        a(f"s_cmp_lg_u32 s3, 0\ns_cbranch_scc1 {Ls}\ns_lshl_b32 s52, s2, 7\ns_add_u32 s52, s52, {FB}")
        self.flag_store("s52")
        a(f"{Ls}:")
    def h_uv(self):
        a = self.a; pbs = self.c['pbs']; PART = 16384; ST = PART + 16 * 1040
        self.sels()
        a(f"""v_lshlrev_b32 v28, 7, v0
        v_add_u32 v28, {FB}, v28
        v_lshrrev_b32 v48, 5, v0
        v_lshlrev_b32 v29, 7, v48
        v_mul_u32_u24 v31, {pbs}, v48
        v_and_b32 v49, 31, v0
        v_lshl_add_u32 v31, v49, 4, v31
        s_lshr_b32 s54, s2, 1
        s_lshl_b32 s55, s54, 2
        s_lshl_b32 s52, s3, 10
        s_add_u32 s55, s55, s52
        s_add_u32 s55, s55, {PBS}
        v_add_u32 v25, s52, v1
        s_lshl_b32 s56, s2, 9
        s_mul_i32 s52, s3, {8 * pbs}
        s_add_u32 s56, s56, s52
        s_add_u32 s56, s56, {PB}
        s_lshl_b32 s52, s3, 1
        v_add_u32 v50, s52, v48
        v_mul_u32_u24 v26, 1040, v50
        v_lshl_add_u32 v26, v49, 5, v26
        v_add_u32 v26, {PART}, v26
        v_and_b32 v50, 15, v0
        v_mul_u32_u24 v27, 1040, v50
        v_lshrrev_b32 v51, 4, v0
        v_lshl_add_u32 v27, v51, 5, v27
        s_lshl_b32 s52, s3, 7
        s_add_u32 s52, s52, {PART}
        v_add_u32 v27, s52, v27
        v_lshrrev_b32 v50, 1, v50
        v_lshlrev_b32 v24, 3, v50
        v_add_u32 v24, {ST}, v24
        s_lshl_b32 s52, s3, 3
        s_add_u32 s52, s52, {ST}
        v_mov_b32 v23, s52""")
        for r in range(32, 36): a(f"v_mov_b32 v{r}, 0")
        self.acc_addr(30, 48, 0)
        a(f"""s_lshr_b32 s52, s3, 1
        s_lshl_b32 s52, s52, 5
        s_lshr_b32 s54, s2, 1
        s_add_u32 s52, s52, s54
        s_add_u32 s52, s52, 64
        s_lshl_b32 s52, s52, 3
        s_and_b32 s54, s2, 1
        s_add_u32 s52, s52, s54
        s_lshl_b32 s52, s52, 9
        s_add_u32 s52, s52, {REC}
        s_and_b32 s54, s3, 1
        s_lshl_b32 s54, s54, 8
        v_lshlrev_b32 v50, 2, v0
        v_add_u32 v50, s54, v50
        v_mov_b32 v59, s35
        v_mov_b32 v58, 0""")
        self.poll_flags(28, 4, 1)
        self.stamp(10)
        for n in range(4): a(f"buffer_load_dword v{36+n}, v29, s[36:39], s55 offen offset:{256*n} sc1", tag='st')
        for n in range(4): a(f"buffer_load_dwordx4 v[{64+4*n}:{67+4*n}], v31, s[36:39], s56 offen sc1 {self.c['pbld']}\ns_add_u32 s56, s56, {2 * pbs}", tag=('pb', n))
        a.wait_vm('st')
        a("v_max3_f32 v40, v36, v37, v38\nv_max_f32 v40, v40, v39\nv_mov_b32 v41, v40\nv_permlane32_swap_b32 v40, v41\nv_max_f32 v40, v40, v41")
        for n in range(4): a(f"v_sub_f32 v{36+n}, v{36+n}, v40")
        for n in range(4): a(f"v_exp_f32 v{36+n}, v{36+n}")
        a("v_add_f32 v41, v36, v37\nv_add_f32 v42, v38, v39\nv_add_f32 v41, v41, v42\nv_mov_b32 v42, v41\nv_permlane32_swap_b32 v41, v42\nv_add_f32 v41, v41, v42")
        a("ds_write_b64 v23, v[40:41]")
        for n in range(4):
            a.wait_vm(('pb', n))
            for k in range(4):
                a(f"v_lshlrev_b32 v42, 16, v{64+4*n+k}\nv_and_b32 v43, 0xffff0000, v{64+4*n+k}")
                if n == 0: a(f"v_mul_f32 v{12+2*k}, v36, v42\nv_mul_f32 v{13+2*k}, v36, v43")
                else: a(f"v_fmac_f32 v{12+2*k}, v{36+n}, v42\nv_fmac_f32 v{13+2*k}, v{36+n}, v43")
        a("ds_write_b128 v26, v[12:15]\nds_write_b128 v26, v[16:19] offset:16")
        a.wait_lg(); a("s_barrier")
        a("ds_read_b64 v[40:41], v24\nds_read_b128 v[12:15], v27\nds_read_b128 v[16:19], v27 offset:16")
        a.wait_lg()
        a("v_mov_b32 v42, v40")
        self.red8([42], "v_max_f32")
        a("v_sub_f32 v40, v40, v42\nv_exp_f32 v40, v40\nv_mul_f32 v41, v41, v40")
        self.red8([41], "v_add_f32")
        a("v_rcp_f32 v41, v41\nv_add_f32 v40, v40, v40\nv_mul_f32 v40, v40, v41")
        for k in range(8): a(f"v_mul_f32 v{12+k}, v40, v{12+k}")
        self.red8(list(range(12, 20)), "v_add_f32")
        for k in range(4): a(f"v_cvt_pk_bf16_f32 v{60+k}, v{12+2*k}, v{13+2*k}")
        for k in range(4):
            self.bop(40, 60 + k, 2); self.bop(44, 60 + k, 6)
            self.mfma16(32, UV + 8 * k, 40); self.mfma16(32, UV + 8 * k + 4, 44)
        a("ds_write_b128 v25, v[32:35]")
        a.wait_lg(); a("s_barrier")
        Ls = a.newlabel("L_nostat")
        a(f"s_cmp_ge_u32 s3, 4\ns_cbranch_scc1 {Ls}")
        for w in range(8): a(f"ds_read_b32 v{40+w}, v30 offset:{1024*w}")
        a.wait_lg()
        a("v_add_f32 v40, v40, v41\nv_add_f32 v42, v42, v43\nv_add_f32 v44, v44, v45\nv_add_f32 v46, v46, v47\nv_add_f32 v40, v40, v42\nv_add_f32 v44, v44, v46\nv_add_f32 v54, v40, v44")
        self.rec_store(54)
        a(f"{Ls}:"); a.vm = []
        self.stamp(6)
        if self.c.get('dH') == 5: a(f"s_branch {self.LF}")
    def h_final(self, LX):
        a = self.a; c = self.c
        a(f"""s_lshl_b32 s48, s3, 6
        s_add_u32 s48, s48, s2
        s_cmp_ge_u32 s48, 72
        s_cbranch_scc1 {LX}
        s_cmp_ge_u32 s48, 36
        s_cselect_b32 s49, 1, 0
        s_mul_i32 s52, s49, 36
        s_sub_u32 s50, s48, s52
        s_mul_i32 s56, s49, 1152
        s_add_u32 s54, s4, s56
        s_addc_u32 s55, s5, 0""")
        self.srd(40, "s54", "s55", 1152); self.srd(44, "s26", "s27", 1152)
        a("v_lshlrev_b32 v20, 2, v0")
        for k in range(5):
            a(f"buffer_load_dword v{10+k}, v20, s[40:43], 0 offen offset:{256*k}\nbuffer_load_dword v{15+k}, v20, s[44:47], 0 offen offset:{256*k}")
        a(f"""v_lshrrev_b32 v24, 3, v0
        v_mul_u32_u24 v31, 9216, v24
        v_and_b32 v24, 7, v0
        v_lshl_add_u32 v31, v24, 4, v31
        s_mul_i32 s52, s49, 4608
        s_lshl_b32 s54, s50, 7
        s_add_u32 s52, s52, s54
        s_add_u32 s52, s52, {PO}
        v_add_u32 v31, s52, v31
        v_lshlrev_b32 v21, 2, v24
        v_bfe_u32 v24, v0, 4, 1
        v_lshl_add_u32 v21, v24, 1, v21
        s_lshl_b32 s54, s50, 5
        s_add_u32 s56, s56, s54
        v_mov_b32 v22, 0""")
        for n in range(8): a(f"s_mov_b32 s{64+n}, {n*73728}")
        a.wait_vm()
        self.srd(40, "s28", "s29", 2304)
        for k in range(5):
            a(f"""v_lshlrev_b32 v24, 16, v{10+k}
            v_and_b32 v25, 0xffff0000, v{10+k}
            v_lshlrev_b32 v26, 16, v{15+k}
            v_and_b32 v27, 0xffff0000, v{15+k}
            v_mul_f32 v24, v24, v26
            v_mul_f32 v25, v25, v27
            v_cvt_pk_bf16_f32 v24, v24, v25
            v_lshlrev_b32 v25, 16, v24
            v_and_b32 v24, 0xffff0000, v24
            v_add_f32 v22, v22, v25
            v_add_f32 v22, v22, v24""")
        self.red8([22], "v_add_f32")
        a("v_add_f32_dpp v22, v22, v22 row_ror:8 row_mask:0xf bank_mask:0xf")
        self.redrows(22, 24, "v_add_f32")
        a(f"""v_cvt_pk_bf16_f32 v22, v22, v22
        v_and_b32 v22, 0xffff0000, v22
        v_mul_f32 v22, {LOG2E}, v22
        v_exp_f32 v22, -v22
        v_add_f32 v22, 1.0, v22
        v_rcp_f32 v22, v22
        v_cvt_pk_bf16_f32 v22, v22, v22
        v_and_b32 v22, 0xffff0000, v22
        v_sub_f32 v23, 1.0, v22
        v_cvt_pk_bf16_f32 v23, v23, v23
        v_and_b32 v23, 0xffff0000, v23""")
        if c['ftrig'] == 'rec':
            a(f"s_and_b32 s52, s48, 63\ns_lshl_b32 s52, s52, 12\ns_add_u32 s52, s52, {REC + 12}\nv_and_b32 v30, 3, v0\nv_lshlrev_b32 v30, 9, v30\nv_add_u32 v30, s52, v30")
            self.poll_granules(lambda: a("buffer_load_dword v65, v30, s[36:39], 0 offen sc1"), [65], 7, sleep=c['fsleep'])
        else:
            g = c.get('fgrp', 0)
            self.poll_granules(lambda: a(f"buffer_load_dwordx4 v[64:67], v31, s[36:39], s{64+g} offen sc1"), [65, 67], 7, sleep=c['fsleep'])
        def sums(R):
            for k in range(2):
                a(f"v_add_f32 v{32+k}, v{R+2*k}, v{R+4+2*k}\nv_add_f32 v{34+k}, v{R+8+2*k}, v{R+12+2*k}")
                a(f"v_add_f32 v{36+k}, v{R+16+2*k}, v{R+20+2*k}\nv_add_f32 v{38+k}, v{R+24+2*k}, v{R+28+2*k}")
        def gset(k):
            for n in range(8): a(f"buffer_load_dwordx4 v[{64+32*k+4*n}:{67+32*k+4*n}], v31, s[36:39], s{64+n} offen sc1")
        if c['fsel']:
            Lp = a.newlabel("L_fs"); Ld = a.newlabel("L_fsd")
            a(f"s_mov_b32 s53, {c['spin']}\ns_mov_b32 s72, 0xff\n{Lp}:")
            for n in range(8):
                L = a.newlabel("L_fi")
                a(f"s_bitcmp1_b32 s72, {n}\ns_cbranch_scc0 {L}\nbuffer_load_dwordx4 v[{64+4*n}:{67+4*n}], v31, s[36:39], s{64+n} offen sc1\n{L}:")
            a("s_waitcnt vmcnt(0)")
            for n in range(8):
                L = a.newlabel("L_fc")
                a(f"s_bitcmp1_b32 s72, {n}\ns_cbranch_scc0 {L}")
                self.tagcheck([65 + 4 * n, 67 + 4 * n], 48)
                a(f"s_cbranch_vccnz {L}\ns_bitset0_b32 s72, {n}\n{L}:")
            a(f"s_cmp_eq_u32 s72, 0\ns_cbranch_scc1 {Ld}\ns_sub_u32 s53, s53, 1\ns_cbranch_scc0 {Lp}")
            self.timeout(8)
            a(f"{Ld}:"); a.vm = []; sums(64)
        elif c['fpipe'] > 1: self.poll_pipe(gset, lambda k: [65 + 32 * k + 2 * j for j in range(16)], 8, c['fpipe'], 8, lambda k: sums(64 + 32 * k))
        else:
            self.poll_granules(lambda: gset(0), [65 + 2 * k for k in range(16)], 8, sleep=c.get('fsleep2', 0)); sums(64)
        a("""v_add_f32 v32, v32, v34
        v_add_f32 v36, v36, v38
        v_add_f32 v33, v33, v35
        v_add_f32 v37, v37, v39
        v_permlane32_swap_b32 v32, v36
        v_permlane32_swap_b32 v33, v37
        v_add_f32 v32, v32, v36
        v_add_f32 v33, v33, v37
        v_permlane16_swap_b32 v32, v33
        v_add_f32 v32, v32, v33
        v_add_f32_dpp v42, v32, v32 row_ror:8 row_mask:0xf bank_mask:0xf
        v_cvt_pk_bf16_f32 v42, v42, v42
        v_and_b32 v42, 0xffff0000, v42
        v_mov_b32 v43, v42
        v_permlane32_swap_b32 v42, v43
        v_mul_f32 v42, v22, v42
        v_mul_f32 v43, v23, v43
        v_cvt_pk_bf16_f32 v42, v42, v43
        v_lshlrev_b32 v43, 16, v42
        v_and_b32 v42, 0xffff0000, v42
        v_add_f32 v42, v42, v43
        v_cvt_pk_bf16_f32 v42, v42, v42
        s_mov_b32 exec_lo, 0x00ff00ff
        s_mov_b32 exec_hi, 0
        buffer_store_short v42, v21, s[40:43], s56 offen """ + c['outf'])
        Ls = a.newlabel("L_noep")
        a(f"s_cmp_lg_u32 s48, 0\ns_cbranch_scc1 {Ls}\ns_mov_b64 exec, 1\nv_mov_b32 v44, s35\nv_mov_b32 v45, 0")
        a(f"buffer_store_dword v44, v45, s[36:39], 0 offen {c['outf']}\n{Ls}:\ns_mov_b64 exec, -1")
        self.stamp(7)

    def build(self):
        a = self.a
        hdr = open("gated_mix__gqa_block_cached__compressed_kv_cla__decode.s.ref").read().split("; Override launch")[0]
        a.raw(hdr.rstrip())
        a.raw("; @launch grid=(256,1,1) block=(512,1,1) lds=163840")
        a.raw(DESC)
        a.raw('.amdgcn_target "amdgcn-amd-amdhsa--gfx950"\n.text')
        LS1, LS2, LH, LM, LF, LE = (a.newlabel(x) for x in ("L_headq", "L_headabs", "L_latent", "L_merge", "L_fin", "L_end"))
        self.LF = LF
        self.entry(LS1, LS2, LH, LE)
        a(f"{LH}:"); self.h_front(); self.h_attn(); self.h_uv(); self.h_final(LF); a(f"s_branch {LF}")
        a(f"{LS2}:"); self.head_s2(); a(f"s_branch {LM}")
        a(f"{LS1}:"); self.head_s1()
        a(f"{LM}:"); self.a_static(); self.a_pool(); self.a_epilogue(); self.a_proj()
        a(f"{LF}:"); self.stamp_flush()
        a(f"{LE}:\ns_endpgm")
        a.raw(f""".section .rodata,"a"
.p2align 6
.amdhsa_kernel {KN}
  .amdhsa_next_free_vgpr 256
  .amdhsa_next_free_sgpr 102
  .amdhsa_accum_offset 256
  .amdhsa_group_segment_fixed_size 0
  .amdhsa_kernarg_size 120
  .amdhsa_user_sgpr_count 2
  .amdhsa_user_sgpr_kernarg_segment_ptr 1
  .amdhsa_system_sgpr_workgroup_id_x 1
.end_amdhsa_kernel""")
        return a.text()

def gen(**kw): return G(**kw).build()
if __name__ == "__main__":
    cfg = json.loads(sys.argv[2]) if len(sys.argv) > 2 else {}
    open(sys.argv[1], "w").write(gen(**cfg))
```

```python
import sys, json
sys.path.insert(0, "dev")
from asmlib import Asm
KN = "gated_mix__gqa_block_cached__compressed_kv_cla__decode_kernel"
Q     = 0x1000
QABS  = 0x11000
FQ    = 0x21000
FB    = 0x23000
PBS   = 0x25000
CNT   = 0x27000
REC   = 0x30000
PO    = 0x150000
PB    = 0x200000
STAMP = 0x800000
WS_USED = 0x1000000
LOG2E = 0x3fb8aa3b; SCALE = 0x3db504f3; NEGINF = 0xff800000
DEF = dict(W=4, W2=4, iW2=50, R=40, NS=36, IQ=22, ICHK=26, WH=4, iq2=13, W0=2, n0=8, nsub=4, subrot=3, UT=1, twpos=(0, 1),
           rotb=2, spin=40000, fsleep=4, fsleep2=1, ftrig='po', fgrp=4, fpipe=1, stamps=False, pbs=32768, wsb=0, outf='', rot=65536, xmap=1, s2wait=0, pbst='', pbld='', twsplit=3, pret=0, pre0=None, pord=0, hT=0, htrig=0, hsleep=2, f8=2, f8t=4, fsel=0)
PL = 131072; ML = PL + 4608
TL = 16384; S1L = 32768; S2L = 49152; XL = 57344; EB = 65536
RING = 88; SREG = 64; ZERO = 85; TK = 86
FK = [88, 104]; FV = [96, 112]; TW = [120 + 4 * k for k in range(6)]
WR = 212; UR = 216
QR = 64; ACC = 128; SA = 160; TA = 168; STG = 176; UV = 208; DV = 240
R2 = [12, 16, 20, 24, 172, 244, 248, 252]
QTAGS = [11, 13, 15, 17, 19, 21, 23, 25]

DESC = """; One launch, 256 workgroups of 8 waves (one per CU); later ids exit at once. Generated by a script of the author's.
;  ids 64..255 one slice of the query projections, GQA attention of one (batch, kv head): 6912 keys split statically
; at d_ws[0], which the launch replaces by its tag at the end; every wait is bounded."""

class G:
    def __init__(self, **kw):
        self.c = dict(DEF); self.c.update(kw)
        self.a = Asm(); c = self.c
        self.NF = (2048 - 48 * c['NS']) // c['nsub'] // c['UT']
        self.NW = 4 if c['hT'] else 6
        self.USH = 10 + c['UT'] - 1
        self.TSH = self.USH + c['nsub'].bit_length() - 1
    def reset(self, vm=()): self.a.vm = list(vm); self.a.lg = []; self.a.hist = []
    def srd(self, d, lo, hi, size):
        self.a(f"s_mov_b32 s{d}, {lo}\ns_and_b32 s{d+1}, {hi}, 0xffff\ns_mov_b32 s{d+2}, {size}\ns_mov_b32 s{d+3}, 0x20000")
    def late_prologue(self):
        if self.c['wsb']: self.a(f"s_add_u32 s32, s32, {self.c['wsb']}\ns_addc_u32 s33, s33, 0")
        self.a("s_load_dword s34, s[32:33], 0"); self.srd(36, "s32", "s33", WS_USED)
    def get_tag(self):
        self.a("s_waitcnt lgkmcnt(0)\ns_mul_i32 s35, s34, 1664525\ns_add_u32 s35, s35, 1013904223"); self.a.lg = []
    def stamp(self, k):
        e = self.c.get('enc')
        if self.c['stamps'] or (e and k in (0, e[1])): self.a(f"s_memrealtime s[{80+2*k}:{81+2*k}]")
    def stamp_flush(self):
        e = self.c.get('enc')
        if e:
            a = self.a; L = a.newlabel("L_noenc"); Lq = a.newlabel("L_enc")
            a(f"s_cmp_lg_u32 s3, 0\ns_cbranch_scc1 {L}\ns_cmp_lg_u32 s2, {e[0]}\ns_cbranch_scc1 {L}\ns_waitcnt lgkmcnt(0)")
            a(f"s_sub_u32 s52, s{80+2*e[1]}, s80\ns_mul_i32 s52, s52, {e[2]}\ns_add_u32 s52, s52, 5000\ns_min_u32 s52, s52, 100000")
            a(f"{Lq}:\ns_memrealtime s[78:79]\ns_waitcnt lgkmcnt(0)\ns_sub_u32 s54, s78, s80\ns_cmp_lt_u32 s54, s52\ns_cbranch_scc1 {Lq}\n{L}:")
        if not self.c['stamps']: return
        a = self.a; L = a.newlabel("L_nost")
        a(f"s_cmp_lg_u32 s3, 0\ns_cbranch_scc1 {L}\ns_waitcnt lgkmcnt(0)")
        for k in range(11): a(f"v_mov_b32 v{2+k}, s{80+2*k}")
        a(f"s_lshl_b32 s52, s2, 6\ns_add_u32 s52, s52, {STAMP}\nv_mov_b32 v1, 0\ns_mov_b64 exec, 1")
        for k in range(3): a(f"buffer_store_dwordx4 v[{2+4*k}:{5+4*k}], v1, s[36:39], s52 offen offset:{16*k}")
        a(f"s_mov_b64 exec, -1\n{L}:")
    def sels(self):
        a = self.a
        a("""v_and_b32 v48, 1, v0
        v_mov_b32 v49, 0x0c0c0100
        v_mov_b32 v50, 0x01000c0c
        v_mov_b32 v51, 0x0c0c0302
        v_mov_b32 v52, 0x03020c0c
        v_mov_b32 v53, 0x0c0c0c0c
        v_cmp_eq_u32 vcc, 1, v48
        v_bfe_u32 v54, v0, 1, 2
        v_cndmask_b32 v49, v49, v50, vcc
        v_cndmask_b32 v51, v51, v52, vcc""")
        for k in range(4): a(f"v_cmp_eq_u32 vcc, {k}, v54\nv_cndmask_b32 v{2+k}, v53, v49, vcc\nv_cndmask_b32 v{6+k}, v53, v51, vcc")
    def timeout(self, code):
        self.a(f"v_mov_b32 v62, {code}\nv_mov_b32 v63, 0\nglobal_store_dword v63, v62, s[30:31]")
    def poll_flags(self, voff, code, sleep):
        a = self.a; Ls = a.newlabel("L_pskip"); Lp = a.newlabel("L_poll")
        keep = a.vm[:]
        a(f"s_cmp_lg_u32 s3, 0\ns_cbranch_scc1 {Ls}\ns_mov_b32 s53, {self.c['spin']}\n{Lp}:")
        a(f"buffer_load_dword v61, v{voff}, s[36:39], 0 offen sc1\ns_waitcnt vmcnt(0)")
        a(f"v_cmp_ne_u32 vcc, s35, v61\ns_cbranch_vccz {Ls}\ns_sleep {sleep}\ns_sub_u32 s53, s53, 1\ns_cbranch_scc0 {Lp}")
        self.timeout(code)
        a(f"{Ls}:\ns_barrier"); a.vm = keep
    def tagcheck(self, tags, t):
        a = self.a
        a(f"v_xor_b32 v{t}, s35, v{tags[0]}")
        for r in tags[1:]: a(f"v_bitop3_b32 v{t}, v{t}, v{r}, s35 bitop3:0xf6")
        a(f"v_cmp_ne_u32 vcc, 0, v{t}")
    def poll_granules(self, issue, tags, code, first_issued=False, sleep=0):
        a = self.a; Lp = a.newlabel("L_gpoll"); Ld = a.newlabel("L_gdone"); Lc = a.newlabel("L_gchk")
        a(f"s_mov_b32 s53, {self.c['spin']}")
        if first_issued:
            a.wait_vm('pg'); self.tagcheck(tags, 48); a(f"s_cbranch_vccz {Ld}")
        save = a.vm[:]
        a(f"{Lp}:")
        issue(); a("s_waitcnt vmcnt(0)")
        self.tagcheck(tags, 48)
        a(f"s_cbranch_vccz {Ld}")
        if sleep: a(f"s_sleep {sleep}")
        a(f"s_sub_u32 s53, s53, 1\ns_cbranch_scc0 {Lp}")
        self.timeout(code)
        a(f"s_waitcnt vmcnt(0)\n{Ld}:")
        a.vm = save if first_issued else []
    def poll_pipe(self, issue, tags, nld, nset, code, take):
        a = self.a; Lp = a.newlabel("L_pp"); Ld = [a.newlabel("L_ppd") for _ in range(nset)]; Le = a.newlabel("L_ppe")
        a(f"s_mov_b32 s53, {self.c['spin']}")
        for k in range(nset - 1): issue(k)
        a(f"{Lp}:")
        for k in range(nset):
            issue((k + nset - 1) % nset)
            a(f"s_waitcnt vmcnt({(nset - 1) * nld})")
            self.tagcheck(tags(k), 48)
            a(f"s_cbranch_vccz {Ld[k]}")
        a(f"s_sub_u32 s53, s53, 1\ns_cbranch_scc0 {Lp}")
        self.timeout(code)
        for k in range(nset):
            a(f"{Ld[k]}:"); take(k)
            if k < nset - 1: a(f"s_branch {Le}")
        a(f"{Le}:"); a.vm = []
    def qk(self, K, T, U, mid=None):
        a = self.a; n = len(K)
        for kk in range(4):
            for t in range(n):
                for h in range(2):
                    a(f"v_dot2_f32_bf16 v{T+2*t+h}, v{K[t]+kk}, v{10+8*h+2*kk}, {'0' if kk == 0 else f'v{T+2*t+h}'}")
        if mid: mid()
        for t in range(n): a(f"v_add_f32_dpp v{U[t]}, v{T+2*t}, v{T+2*t} row_ror:8 row_mask:0xf bank_mask:0x3")
        for t in range(n): a(f"v_add_f32_dpp v{U[t]}, v{T+2*t+1}, v{T+2*t+1} row_ror:8 row_mask:0xf bank_mask:0xc")
        self.red8(U[:n], "v_add_f32")
    def bop(self, dst, src, sel):
        for k in range(4): self.a(f"v_perm_b32 v{dst+k}, v{src}, v{src}, v{sel+k}")
    def red8(self, regs, op):
        for m in ("row_half_mirror", "quad_perm:[1,0,3,2]", "quad_perm:[2,3,0,1]"):
            for r in regs: self.a(f"{op}_dpp v{r}, v{r}, v{r} {m} row_mask:0xf bank_mask:0xf")
    def redrows(self, r, t, op):
        self.a(f"v_mov_b32 v{t}, v{r}\nv_permlane16_swap_b32 v{r}, v{t}\n{op} v{r}, v{r}, v{t}")
        self.a(f"v_mov_b32 v{t}, v{r}\nv_permlane32_swap_b32 v{r}, v{t}\n{op} v{r}, v{r}, v{t}")
    def mfma16(self, d, A, B): self.a(f"v_mfma_f32_16x16x32_bf16 v[{d}:{d+3}], v[{A}:{A+3}], v[{B}:{B+3}], v[{d}:{d+3}]")
    def acc_addr(self, dst, t, base):
        self.a(f"""v_and_b32 v{dst}, 7, v0
        v_lshlrev_b32 v{dst}, 4, v{dst}
        v_bfe_u32 v{t}, v0, 3, 2
        v_lshl_add_u32 v{dst}, v{t}, 2, v{dst}
        v_lshrrev_b32 v{t}, 5, v0
        v_lshl_add_u32 v{dst}, v{t}, 8, v{dst}
        s_and_b32 s52, s3, 1
        s_lshl_b32 s52, s52, 9
        s_lshr_b32 s54, s3, 1
        s_lshl_b32 s54, s54, 7
        s_add_u32 s52, s52, s54
        s_add_u32 s52, s52, {base}
        v_add_u32 v{dst}, s52, v{dst}""")
    def rec_store(self, r, vo=50, so=52):
        a = self.a
        a(f"v_mov_b32_dpp v55, v{r} quad_perm:[1,0,3,2] row_mask:0xf bank_mask:0xf\nv_cvt_pk_bf16_f32 v56, v{r}, v55")
        a("v_mov_b32_dpp v57, v56 quad_perm:[2,3,0,1] row_mask:0xf bank_mask:0xf\ns_mov_b32 exec_lo, 0x11111111\ns_mov_b32 exec_hi, 0x11111111")
        a(f"buffer_store_dwordx4 v[56:59], v{vo}, s[36:39], s{so} offen sc1\ns_mov_b64 exec, -1"); a.vm.pop()
    def flag_store(self, sreg):
        self.a(f"v_mov_b32 v50, s35\nv_mov_b32 v51, 0\ns_mov_b64 exec, 1\nbuffer_store_dword v50, v51, s[36:39], {sreg} offen sc1\ns_mov_b64 exec, -1"); self.a.vm.pop()

    def wload(self, t): self.a(f"s_mov_b32 s51, {t*16384}\nbuffer_load_dwordx4 v[{WR+4*t}:{WR+4*t+3}], v28, s[72:75], s51 offen nt", tag=('w', t))
    def uload(self, t): self.a(f"s_mov_b32 s51, {t*8192}\nbuffer_load_dwordx4 v[{UR+4*t}:{UR+4*t+3}], v28, s[72:75], s51 offen nt", tag=('u', t))
    def dma(self, t):
        a = self.a; q = t % 8
        if q == 0: a("s_and_b32 s62, s62, 0x7fffff")
        a(f"s_add_u32 m0, s60, {q*1024}\ns_add_u32 s51, s62, {q*8192}\nbuffer_load_dwordx4 v{DV + (q & 1)}, s[76:79], s51 offen nt lds", tag='d')
        if q == 7: a("s_add_u32 s62, s62, 0x200000\ns_xor_b32 s60, s60, 0x10000")
    def entry(self, LS1, LS2, LH, LE):
        a = self.a; c = self.c
        a.raw(f".globl {KN}\n.p2align 8\n.type {KN},@function\n{KN}:")
        a(f"s_cmp_ge_u32 s2, 256\ns_cbranch_scc1 {LE}")
        self.stamp(0)
        L2 = a.newlabel("L_e2"); L3 = a.newlabel("L_eh"); L4 = a.newlabel("L_e1")
        a(f"""s_load_dwordx16 s[4:19], s[0:1], 0
        s_load_dwordx8 s[20:27], s[0:1], 64
        s_load_dwordx4 s[28:31], s[0:1], 96
        s_load_dwordx2 s[32:33], s[0:1], 112
        v_lshrrev_b32 v1, 6, v0
        v_and_b32 v0, 63, v0
        v_readfirstlane_b32 s3, v1
        v_lshlrev_b32 v1, 4, v0
        s_cmp_lt_u32 s2, 64
        s_cbranch_scc1 {L3}""")
        if c['xmap']:
            a(f"""s_sub_u32 s48, s2, 64
            s_mul_i32 s49, s48, 171
            s_lshr_b32 s49, s49, 12
            s_mul_i32 s52, s49, 24
            s_sub_u32 s52, s48, s52
            s_lshr_b32 s54, s52, 3
            s_bfe_u32 s55, s52, 0x10002
            s_add_u32 s52, s52, s54
            s_add_u32 s52, s52, 1
            s_and_b32 s52, s52, 3
            s_lshl_b32 s49, s49, 2
            s_add_u32 s49, s49, s52
            s_lshl_b32 s50, s54, 1
            s_add_u32 s50, s50, s55
            s_lshl_b32 s57, s49, 1
            s_cmp_eq_u32 s54, 2
            s_cselect_b32 s66, 2, s55
            s_cselect_b32 s52, s55, s54
            s_add_u32 s57, s57, s52
            s_cmp_eq_u32 s66, 2
            s_cbranch_scc1 {L2}""")
        else:
            a(f"""s_sub_u32 s48, s2, 64
            s_mul_i32 s49, s48, 171
            s_lshr_b32 s49, s49, 10
            s_mul_i32 s50, s49, 6
            s_sub_u32 s50, s48, s50
            s_cmp_ge_u32 s50, 3
            s_cselect_b32 s52, 3, 0
            s_cselect_b32 s57, 1, 0
            s_sub_u32 s66, s50, s52
            s_lshl_b32 s52, s49, 1
            s_add_u32 s57, s57, s52
            s_cmp_eq_u32 s66, 2
            s_cbranch_scc1 {L2}""")
        a("""v_lshrrev_b32 v48, 4, v0
        v_mul_u32_u24 v49, 18, v48
        v_bfe_u32 v50, v0, 3, 1
        v_add_u32 v51, v49, v50
        s_mul_i32 s52, s3, 72
        v_add_u32 v51, s52, v51
        v_lshlrev_b32 v28, 13, v51
        v_and_b32 v51, 7, v0
        v_lshl_add_u32 v28, v51, 4, v28
        s_lshl_b32 s54, s57, 7
        v_add_u32 v28, s54, v28
        v_lshlrev_b32 v62, 3, v0
        v_add_u32 v51, 1008, v62
        v_cmp_lt_u32 vcc, 17, v0
        s_lshl_b32 s52, s52, 1
        v_mov_b32 v52, 0x10000
        v_cndmask_b32 v63, v62, v51, vcc
        v_cmp_lt_u32 vcc, 35, v0
        v_add_u32 v63, s52, v63
        s_cmp_eq_u32 s66, 0
        v_cndmask_b32 v63, v63, v52, vcc
        s_waitcnt lgkmcnt(0)
        s_cselect_b32 s54, s18, s10
        s_cselect_b32 s55, s19, s11""")
        self.srd(72, "s54", "s55", 576 * 8192); self.srd(76, "s4", "s5", 2304)
        a("buffer_load_dwordx2 v[20:21], v63, s[76:79], 0 offen")
        for t in range(c['W0']): self.wload(t)
        a(f"s_cmp_lg_u32 s66, 0\ns_cbranch_scc1 {LS1}")
        for t in range(c['W0'], 4): self.wload(t)
        a(f"s_branch {LS1}")
        a(f"{L2}:"); self.reset()
        a("""s_lshr_b32 s56, s57, 4
        s_and_b32 s52, s57, 15
        s_lshl_b32 s52, s52, 2
        s_lshr_b32 s54, s3, 1
        s_add_u32 s52, s52, s54
        s_lshl_b32 s52, s52, 16
        s_lshl_b32 s54, s56, 1
        s_and_b32 s55, s3, 1
        s_add_u32 s54, s54, s55
        s_lshl_b32 s55, s54, 10
        s_add_u32 s52, s52, s55
        v_add_u32 v28, s52, v1
        s_waitcnt lgkmcnt(0)""")
        self.srd(72, "s20", "s21", 512 * 8192)
        for t in range(c['W0']): self.uload(t)
        a(f"s_branch {LS2}")
        a(f"{L3}:"); self.reset()
        a("v_lshrrev_b32 v48, 3, v0\nv_and_b32 v49, 7, v0\ns_lshl_b32 s52, s3, 7\nv_lshlrev_b32 v50, 10, v48\nv_add_u32 v50, s52, v50\nv_lshrrev_b32 v52, 4, v0")
        for q in range(2): a(f"v_add_u32 v51, {4*q}, v52\nv_xor_b32 v51, v51, v49\nv_lshl_add_u32 v{DV+q}, v51, 4, v50")
        a(f"""s_lshr_b32 s63, s2, 5
        s_and_b32 s64, s2, 31
        s_lshl_b32 s60, s3, 13
        s_mul_i32 s62, s63, {c['rotb'] << 21}
        s_lshl_b32 s52, s64, 16
        s_add_u32 s62, s62, s52
        s_lshl_b32 s52, s63, 23
        s_waitcnt lgkmcnt(0)
        s_add_u32 s54, s16, s52
        s_addc_u32 s55, s17, 0""")
        self.srd(76, "s54", "s55", 0x800000)
        for t in range(c['WH']): self.dma(t)
        a(f"s_branch {LH}")

    def a_common(self):
        a = self.a; c = self.c
        self.late_prologue()
        a("s_lshl_b32 s52, s49, 21\ns_add_u32 s54, s6, s52\ns_addc_u32 s55, s7, 0")
        self.srd(40, "s54", "s55", 0x200000)
        a("s_add_u32 s54, s8, s52\ns_addc_u32 s55, s9, 0")
        self.srd(44, "s54", "s55", 0x200000)
        a(f"""s_mul_i32 s52, s49, {c['rot']}
        s_lshl_b32 s60, s50, 3
        s_add_u32 s60, s60, s3
        s_lshl_b32 s60, s60, 12
        s_add_u32 s60, s60, s52
        s_mul_i32 s54, s50, {c['subrot']}
        s_add_u32 s54, s54, s3
        s_and_b32 s54, s54, {c['nsub'] - 1}
        s_lshl_b32 s61, s54, {self.USH}
        s_add_u32 s61, s61, s52
        s_add_u32 s61, s61, {c['NS']*48*1024}
        s_lshl_b32 s62, s49, 3
        s_add_u32 s62, s62, s54
        s_lshl_b32 s62, s62, 7
        s_add_u32 s62, s62, {CNT}
        s_lshl_b32 s52, s49, 10
        s_add_u32 s52, s52, {Q}
        v_and_b32 v29, 15, v0
        v_lshlrev_b32 v29, 4, v29
        v_add_u32 v29, s52, v29
        s_mov_b32 s58, {LOG2E}
        v_mov_b32 v{ZERO}, 0""")
        self.sels()
        if c['hT']:
            a("""s_cmp_ge_u32 s48, 96
            s_cselect_b32 s63, 1, 0
            s_mul_i32 s52, s63, 96
            s_sub_u32 s52, s48, s52
            s_mul_i32 s64, s52, 171
            s_lshr_b32 s64, s64, 9
            s_mul_i32 s65, s64, 3
            s_sub_u32 s65, s52, s65""")
            self.t_addr(False)
        else: self.t_addr192()
        if c['pre0'] is not None:
            L = a.newlabel("L_npt")
            a(f"s_cmp_lg_u32 s3, {c['pre0']}\ns_cbranch_scc1 {L}\ns_mov_b64 exec, 1")
            keep = a.vm[:]
            for srd, v in (("s[40:43]", ZERO), ("s[44:47]", ZERO), ("s[68:71]", 30), ("s[36:39]", 29)):
                a(f"buffer_load_dword v82, v{v}, {srd}, 0 offen nt")
            a.vm = keep
            a(f"s_mov_b64 exec, -1\n{L}:")
        self.get_tag()
    def t_addr192(self):
        a = self.a
        a("""s_cmp_ge_u32 s48, 96
        s_cselect_b32 s63, 1, 0
        s_cselect_b32 s54, s24, s12
        s_cselect_b32 s55, s25, s13
        s_cselect_b32 s67, 2.0, 1.0
        s_mul_i32 s52, s63, 96
        s_sub_u32 s52, s48, s52
        s_mul_i32 s64, s52, 171
        s_lshr_b32 s64, s64, 9
        s_mul_i32 s65, s64, 3
        s_sub_u32 s65, s52, s65""")
        self.srd(68, "s54", "s55", 4096 * 1152)
        a("""s_lshl_b32 s52, s64, 3
        s_add_u32 s52, s52, s3
        s_mul_i32 s52, s52, 18432
        s_mul_i32 s54, s65, 384
        s_add_u32 s52, s52, s54
        v_lshrrev_b32 v48, 4, v0
        v_mul_u32_u24 v30, 4608, v48
        v_add_u32 v30, s52, v30
        v_bfe_u32 v49, v0, 3, 1
        v_mul_u32_u24 v31, 1152, v49
        v_add_u32 v31, v31, v30
        v_and_b32 v50, 7, v0
        v_lshl_add_u32 v31, v50, 4, v31
        v_add_u32 v31, 256, v31
        v_and_b32 v51, 15, v0
        v_lshl_add_u32 v30, v51, 4, v30""")
    def t_addr(self, half):
        a = self.a
        a("""s_cmp_eq_u32 s63, 1
        s_cselect_b32 s54, s24, s12
        s_cselect_b32 s55, s25, s13
        s_cselect_b32 s67, 2.0, 1.0""")
        self.srd(68, "s54", "s55", 4096 * 1152)
        a("""s_lshl_b32 s52, s64, 3
        s_add_u32 s52, s52, s3
        s_mul_i32 s52, s52, 18432
        s_lshl_b32 s54, s65, 8
        s_add_u32 s52, s52, s54
        v_lshrrev_b32 v48, 4, v0
        v_mul_u32_u24 v86, 4608, v48
        v_add_u32 v86, s52, v86""".replace("v86", "v30"))
        if half:
            a("""v_bfe_u32 v49, v0, 3, 1
            v_mul_u32_u24 v31, 1152, v49
            v_add_u32 v31, v31, v30
            v_and_b32 v50, 7, v0
            v_lshl_add_u32 v31, v50, 4, v31
            v_add_u32 v31, 256, v31""")
        a("v_and_b32 v51, 15, v0\nv_lshl_add_u32 v30, v51, 4, v30")
    def ring(self, j): return RING + 4 * (j % self.c['R'])
    def kv(self, j):
        a = self.a; NS = self.c['NS']; jj = j % NS
        if jj % 4 == 0: a(f"s_add_u32 s51, s60, {(jj//4)*48*4096}\ns_and_b32 s51, s51, 0x1fffff")
        a(f"buffer_load_dwordx4 v[{self.ring(j)}:{self.ring(j)+3}], v1, {'s[40:43]' if j < NS else 's[44:47]'}, s51 offen offset:{(jj % 4) * 1024} nt", tag=('kv', j))
    def head_s1(self):
        a = self.a; c = self.c; W, W0, IM = c['W'], c['W0'], c['IQ']
        self.reset(['x'] + [('w', t) for t in range(4)])
        a(f"""v_lshrrev_b32 v48, 4, v0
        v_mul_u32_u24 v61, 36, v48
        v_bfe_u32 v50, v0, 3, 1
        v_mul_u32_u24 v50, 144, v50
        s_lshl_b32 s54, s3, 9
        s_add_u32 s54, s54, {XL}
        v_add3_u32 v61, v61, v50, s54
        v_add_u32 v62, s54, v62
        s_cmp_eq_u32 s66, 0
        s_cselect_b32 s56, 32768, 0
        s_lshr_b32 s54, s57, 1
        s_lshl_b32 s54, s54, 9
        s_add_u32 s56, s56, s54
        s_and_b32 s54, s57, 1
        s_lshl_b32 s54, s54, 7
        s_add_u32 s56, s56, s54
        s_add_u32 s56, s56, {Q}""")
        self.a_common()
        Ly = a.newlabel("L_y"); Lz = a.newlabel("L_nozero")
        a(f"s_cmp_eq_u32 s66, 0\ns_cbranch_scc1 {Ly}")
        a(f"""s_and_b32 s52, s57, 3
        s_lshr_b32 s54, s3, 1
        s_or_b32 s52, s52, s54
        s_cmp_lg_u32 s52, 0
        s_cbranch_scc1 {Lz}
        s_lshl_b32 s52, s3, 4
        s_lshr_b32 s54, s57, 2
        s_add_u32 s52, s52, s54
        s_lshl_b32 s52, s52, 10
        s_add_u32 s52, s52, {CNT}
        v_lshlrev_b32 v48, 7, v0
        s_mov_b64 exec, 0xff
        buffer_store_dword v{ZERO}, v48, s[36:39], s52 offen sc1
        s_mov_b64 exec, -1
        {Lz}:"""); a.vm.pop()
        keep = a.vm[:]
        for t in range(W0, 4): a(f"s_waitcnt vmcnt({W0 - 1})"); self.wload(t)
        a.vm = keep
        a(f"{Ly}:")
        seq = [('w', t) for t in range(4, 9)] + [('kv', j) for j in range(IM)]
        I = 0
        def issue():
            nonlocal I
            x = seq[I]; I += 1
            if I + 3 < c['n0']:
                L = a.newlabel("L_y"); a(f"s_cmp_eq_u32 s66, 0\ns_cbranch_scc1 {L}\ns_waitcnt vmcnt({W0 - 1})\n{L}:")
            self.kv(x[1]) if x[0] == 'kv' else self.wload(x[1])
        for r in range(32, 40): a(f"v_mov_b32 v{r}, 0")
        a.wait_vm('x')
        a("ds_write_b64 v62, v[20:21]")
        for k in range(4): a(f"ds_read2_b32 v[{10+2*k}:{11+2*k}], v61 offset0:{2*k} offset1:{2*k+1}")
        a("ds_read_b32 v18, v61 offset:32")
        a.wait_lg()
        for t in range(9):
            self.bop(40, 10 + t, 2); self.bop(44, 10 + t, 6)
            a.wait_vm(('w', t))
            while I < len(seq) and len(a.vm) < (4 if I < 5 else W): issue()
            self.mfma16(32, WR + 4 * t, 40); self.mfma16(36, WR + 4 * t, 44)
        a(f"v_cmp_lt_u32 vcc, 31, v0\ns_lshl_b32 s52, s3, 10\ns_add_u32 s52, s52, {S1L}\nv_add_u32 v48, s52, v1")
        for r in range(4): a(f"v_cndmask_b32 v{32+r}, v{32+r}, v{36+r}, vcc")
        a("ds_write_b128 v48, v[32:35]")
        a.wait_lg(); a("s_barrier")
        Ls = a.newlabel("L_s1skip")
        a(f"""s_cmp_ge_u32 s3, 2
        s_cbranch_scc1 {Ls}
        v_and_b32 v48, 7, v0
        v_lshlrev_b32 v48, 4, v48
        v_bfe_u32 v49, v0, 3, 2
        v_lshl_add_u32 v48, v49, 2, v48
        v_lshrrev_b32 v49, 5, v0
        v_lshl_add_u32 v48, v49, 8, v48
        s_lshl_b32 s52, s3, 7
        s_add_u32 s52, s52, {S1L}
        v_add_u32 v48, s52, v48""")
        for s in range(16):
            a(f"ds_read_b32 v{32+s}, v48 offset:{512*s}")
            if s == 11: a.wait_lg()
        a("""s_lshl_b32 s52, s3, 14
        s_add_u32 s52, s52, s56
        v_mov_b32 v53, s35
        v_bfe_u32 v50, v0, 2, 1
        v_lshlrev_b32 v50, 8, v50
        v_lshrrev_b32 v51, 3, v0
        v_lshl_add_u32 v50, v51, 4, v50
        v_bfe_u32 v51, v0, 1, 1
        v_lshl_add_u32 v50, v51, 3, v50""")
        a.wait_lg()
        for st in (8, 4, 2, 1):
            for s in range(st): a(f"v_add_f32 v{32+s}, v{32+s}, v{32+s+st}")
        Lw = a.newlabel("L_s1w")
        a(f"s_cmp_eq_u32 s66, 0\ns_cbranch_scc1 {Lw}\ns_waitcnt vmcnt(0)\n{Lw}:")
        a("v_mov_b32_dpp v33, v32 quad_perm:[1,0,3,2] row_mask:0xf bank_mask:0xf")
        a("v_cvt_pk_bf16_f32 v52, v32, v33\ns_mov_b32 exec_lo, 0x55555555\ns_mov_b32 exec_hi, 0x55555555")
        a("buffer_store_dwordx2 v[52:53], v50, s[36:39], s52 offen sc1\ns_mov_b64 exec, -1"); a.vm.pop()
        a(f"{Ls}:")
        self.stamp(9)
        while I < len(seq): a.wait_vm_n(W - 1); issue()
    def head_s2(self):
        a = self.a; c = self.c; W, W0, IM = c['W'], c['W0'], c['IQ']
        self.reset([('u', t) for t in range(W0)])
        a(f"""s_lshl_b32 s54, s54, 11
        s_add_u32 s54, s54, {Q + 32768}
        v_lshrrev_b32 v48, 4, v0
        v_lshlrev_b32 v59, 9, v48
        v_and_b32 v49, 15, v0
        v_lshl_add_u32 v59, v49, 4, v59
        v_add_u32 v59, s54, v59
        s_mov_b32 s76, 16384
        v_bfe_u32 v50, v0, 3, 1
        v_lshlrev_b32 v60, 9, v50
        v_lshl_add_u32 v60, v48, 4, v60
        s_lshr_b32 s52, s3, 1
        s_lshl_b32 s52, s52, 7
        s_and_b32 s55, s3, 1
        s_lshl_b32 s55, s55, 6
        s_add_u32 s52, s52, s55
        s_add_u32 s52, s52, {S2L}
        v_add_u32 v60, s52, v60
        v_add_u32 v51, {S2L + 1024}, v1
        v_and_b32 v50, 7, v0
        v_cmp_lt_u32 vcc, 0, v50
        v_cndmask_b32 v60, v60, v51, vcc""")
        self.a_common()
        seq = [('u', t) for t in range(8)] + [('kv', j) for j in range(IM)]
        I = W0
        def issue():
            nonlocal I
            x = seq[I]; I += 1
            self.kv(x[1]) if x[0] == 'kv' else self.uload(x[1])
        def more(n=1):
            for _ in range(n):
                if I < len(seq): a.wait_vm_n((W0 if I < c['n0'] else W) - 1); issue()
        while ('kv', c['iq2'] - 1) in seq[I:]: more()
        def qissue():
            for b in range(2):
                for k in range(2):
                    a(f"buffer_load_dwordx4 v[{10+8*b+4*k}:{13+8*b+4*k}], v59, s[36:39], {'s76' if b else '0'} offen offset:{256*k} sc1", tag='pg')
        qissue()
        while sum(1 for x in a.vm[a.vm.index('pg'):] if x != 'pg') < W - 1: a.wait_vm_n(W + 3); issue()
        if not c.get('dQ'): self.poll_granules(qissue, QTAGS, 2, first_issued=True, sleep=1)
        self.stamp(9)
        while len(a.vm) < W: issue()
        for n in range(2):
            self.qk([UR + 16 * n + 4 * t for t in range(4)], 36, [44 + 4 * n + t for t in range(4)]); more()
        for k in range(4): a(f"v_cvt_pk_bf16_f32 v{52+k}, v{44+2*k}, v{45+2*k}")
        a("ds_write_b128 v60, v[52:55]")
        a.wait_lg(); a("s_barrier")
        Ls = a.newlabel("L_s2skip")
        a(f"""s_cmp_lg_u32 s3, 7
        s_cbranch_scc1 {Ls}
        v_add_u32 v48, {S2L}, v1
        ds_read_b128 v[52:55], v48
        v_lshrrev_b32 v49, 5, v0
        v_lshlrev_b32 v49, 15, v49
        v_bfe_u32 v50, v0, 3, 2
        v_lshl_add_u32 v49, v50, 10, v49
        v_and_b32 v50, 7, v0
        v_lshl_add_u32 v49, v50, 4, v49
        s_lshr_b32 s52, s56, 1
        s_lshl_b32 s52, s52, 14
        s_and_b32 s54, s57, 3
        s_lshl_b32 s54, s54, 12
        s_add_u32 s52, s52, s54
        s_bfe_u32 s54, s57, 0x20002
        s_lshl_b32 s54, s54, 8
        s_add_u32 s52, s52, s54
        s_and_b32 s54, s56, 1
        s_lshl_b32 s54, s54, 7
        s_add_u32 s52, s52, s54
        s_add_u32 s52, s52, {QABS}""")
        a.wait_lg()
        a("buffer_store_dwordx4 v[52:55], v49, s[36:39], s52 offen sc1"); a.vm.pop()
        if c['s2wait'] == 0:
            a(f"s_lshl_b32 s54, s57, 7\ns_add_u32 s54, s54, {FQ}\ns_waitcnt vmcnt(0)")
            self.flag_store("s54")
            a(f"{Ls}:")
        else:
            a(f"{Ls}:")
            more(c['s2wait'])
            Ls = a.newlabel("L_s2flag")
            a(f"s_cmp_lg_u32 s3, 7\ns_cbranch_scc1 {Ls}\ns_lshl_b32 s54, s57, 7\ns_add_u32 s54, s54, {FQ}\ns_waitcnt vmcnt({c['s2wait'] if c.get('s2cnt') else 0})")
            self.flag_store("s54")
            a(f"{Ls}:")
        while I < len(seq): more()
    def qissue(self):
        for h in range(2):
            for k in range(2):
                self.a(f"buffer_load_dwordx4 v[{10+8*h+4*k}:{13+8*h+4*k}], v29, s[36:39], 0 offen offset:{512*h+256*k} sc1", tag='pg')
    def ticket(self, k):
        self.a(f"v_mov_b32 v{TK+k}, 1\ns_mov_b64 exec, 1\nbuffer_atomic_add v{TK+k}, v{ZERO}, s[36:39], s62 offen sc0\ns_mov_b64 exec, -1", tag=('tk', k))
    def unit_loads(self, r, srd, tag=None):
        for t in range(self.c['UT']): self.a(f"buffer_load_dwordx4 v[{r+4*t}:{r+4*t+3}], v1, {srd}, s51 offen offset:{1024*t} nt", tag=tag)
    def t_load(self, k):
        r = TW[k]
        if k < 4: self.a(f"buffer_load_dwordx4 v[{r}:{r+3}], v30, s[68:71], 0 offen offset:{k*1152} nt")
        else: self.a(f"buffer_load_dwordx4 v[{r}:{r+3}], v31, s[68:71], 0 offen offset:{(k-4)*2304} nt")
    def a_static(self):
        a = self.a; c = self.c; W, R, NS, IM = c['W'], c['R'], c['NS'], c['IQ']; ring = self.ring
        assert RING + 4 * R <= 256 and NS % 4 == 0 and SREG + NS // 2 <= 82 and ring(IM + W) < WR
        assert all(ring(j) >= TW[5] + 4 for j in range(2 * NS - 10, 2 * NS))
        self.reset([('kv', j) for j in range(IM - W, IM)])
        I = IM
        a(f"v_mov_b32 v26, {NEGINF}\nv_mov_b32 v27, 0\nv_mov_b32 v32, 0\nv_mov_b32 v33, 0\nv_mov_b32 v34, 0\nv_mov_b32 v35, 0")
        self.qissue()
        while I < c['ICHK']:
            a.wait_vm_n(W - 1 + (4 if I < IM + W else 0)); self.kv(I); I += 1
        self.stamp(1)
        if not c.get('dQ'): self.poll_granules(self.qissue, QTAGS, 1, first_issued=True)
        self.stamp(2)
        self.a_epi_addr()
        if c['pret']:
            a(f"s_mov_b64 exec, 1\nbuffer_load_dword v82, v30, s[68:71], 0 offen nt", tag=('pt', 0))
            if c['pret'] > 1:
                a(f"s_mov_b32 s52, {PO}\nbuffer_load_dword v82, v{ZERO}, s[36:39], s78 offen sc1\nbuffer_load_dword v82, v{ZERO}, s[36:39], s52 offen sc1", tag=('pt', 1))
            a("s_mov_b64 exec, -1")
        C = 0
        def landed(j): return ('kv', j) not in a.vm
        def last(C): return C + 3 if C < NS else C + 1
        def consume():
            nonlocal C
            if C < NS:
                n = C // 4
                a.wait_vm(('kv', C + 3))
                self.qk([ring(C + t) for t in range(4)], 36, [44, 45, 46, 47])
                a("v_cvt_pk_bf16_f32 v48, v44, v45\nv_cvt_pk_bf16_f32 v50, v46, v47\nv_max3_f32 v26, v26, v44, v45")
                a("v_and_b32 v49, 0xffff0000, v48\nv_lshlrev_b32 v48, 16, v48\nv_and_b32 v51, 0xffff0000, v50\nv_lshlrev_b32 v50, 16, v50")
                a("v_max3_f32 v26, v26, v46, v47")
                for r in (48, 49, 50, 51): a(f"v_mul_f32 v{r}, {SCALE}, v{r}")
                a(f"v_cvt_pk_bf16_f32 v{SREG+2*n}, v48, v49\nv_cvt_pk_bf16_f32 v{SREG+2*n+1}, v50, v51")
                C += 4
                if C == NS:
                    self.redrows(26, 48, "v_max_f32")
                    a(f"v_cvt_pk_bf16_f32 v48, v26, v26\nv_and_b32 v48, 0xffff0000, v48\nv_mul_f32 v48, {SCALE}, v48")
                    a(f"v_cvt_pk_bf16_f32 v48, v48, v48\nv_and_b32 v26, 0xffff0000, v48\nv_mul_f32 v26, {LOG2E}, v26")
                    self.stamp(3)
            else:
                n = (C - NS) // 2
                a(f"v_lshlrev_b32 v60, 16, v{SREG+n}\nv_and_b32 v61, 0xffff0000, v{SREG+n}")
                a("v_fma_f32 v60, v60, s58, -v26\nv_fma_f32 v61, v61, s58, -v26")
                a("v_exp_f32 v60, v60\nv_exp_f32 v61, v61\nv_add_f32 v27, v27, v60\nv_cvt_pk_bf16_f32 v62, v60, v61\nv_add_f32 v27, v27, v61")
                self.bop(52, 62, 2); self.bop(56, 62, 6)
                for k in range(2):
                    a.wait_vm(('kv', C + k)); self.mfma16(32, ring(C + k), 52 + 4 * k)
                C += 2
        def pace(n):
            tiles = [x for x in a.vm if x[0] != 'tk']
            if len(tiles) > n: a.wait_vm(tiles[len(tiles) - n - 1])
        while I < 2 * NS:
            if I - R < C:
                pace((W if I < c['iW2'] else c['W2']) - 1)
                if I == 2 * NS - 5: self.ticket(0)
                if I == 2 * NS - 3: self.ticket(1)
                self.kv(I); I += 1
                if landed(last(C)) and last(C) < I: consume()
            else: consume()
        for k in range(2):
            pace(c['W2'] - 2 + k * (2 * c['UT'] - 2))
            a.wait_vm(('tk', k))
            a(f"""v_readfirstlane_b32 s52, v{TK+k}
            s_cmp_lt_u32 s52, {self.NF}
            s_cselect_b32 s{76+k}, 0, {NEGINF}
            s_cselect_b32 s54, 0, 0x40000000
            s_lshl_b32 s52, s52, {self.TSH}
            s_add_u32 s51, s61, s52
            s_and_b32 s51, s51, 0x1fffff
            s_or_b32 s51, s51, s54""")
            if c['pord']: self.ticket(k)
            self.unit_loads(FK[k], "s[40:43]", ('fk', k)); self.unit_loads(FV[k], "s[44:47]", ('fv', k))
            if not c['pord']: self.ticket(k)
            while C < 2 * NS and landed(last(C)): consume()
        while C < 2 * NS: consume()
        self.stamp(10)
    def unit(self, k, refill, vwait=None):
        a = self.a; UT = self.c['UT']; po = self.c['pord']
        def mid():
            if po: self.ticket(k)
            self.unit_loads(FK[k], "s[40:43]")
        self.qk([FK[k] + 4 * t for t in range(UT)], 36, [44, 45], mid if refill else None)
        a(f"v_cvt_pk_bf16_f32 v48, v44, v{44 + UT - 1}\nv_and_b32 v49, 0xffff0000, v48\nv_lshlrev_b32 v48, 16, v48")
        a(f"v_mul_f32 v49, {SCALE}, v49\nv_mul_f32 v48, {SCALE}, v48\nv_cvt_pk_bf16_f32 v48, v48, v49")
        a(f"v_lshlrev_b32 v44, 16, v48\nv_and_b32 v45, 0xffff0000, v48\nv_add_f32 v44, s{76+k}, v44\nv_add_f32 v45, s{76+k}, v45")
        Ls = a.newlabel("L_nomax")
        a(f"v_fma_f32 v60, v44, s58, -v26\nv_fma_f32 v61, v45, s58, -v26\nv_max_f32 v46, v60, v61\nv_cmp_lt_f32 vcc, 0, v46\ns_cbranch_vccz {Ls}")
        a("v_max_f32 v46, v44, v45\nv_mul_f32 v46, s58, v46")
        self.redrows(46, 48, "v_max_f32")
        a("v_max_f32 v46, v46, v26\nv_sub_f32 v47, v26, v46\nv_exp_f32 v47, v47\nv_mov_b32 v26, v46\nv_fma_f32 v60, v44, s58, -v46\nv_fma_f32 v61, v45, s58, -v46\nv_mul_f32 v27, v27, v47")
        for r in range(32, 36): a(f"v_mul_f32 v{r}, v{r}, v47")
        a(f"{Ls}:\nv_exp_f32 v60, v60\nv_exp_f32 v61, v61\nv_add_f32 v27, v27, v60\nv_cvt_pk_bf16_f32 v62, v60, v61")
        if UT == 2: a("v_add_f32 v27, v27, v61")
        for t in range(UT): self.bop(52 + 4 * t, 62, 2 + 4 * t)
        if isinstance(vwait, tuple):
            L = a.newlabel("L_vw"); a(f"s_waitcnt vmcnt({vwait[1]})\ns_cmp_ge_u32 s3, 4\ns_cbranch_scc1 {L}\ns_waitcnt vmcnt({vwait[0]})\n{L}:")
        elif vwait is not None: a(f"s_waitcnt vmcnt({vwait})")
        for t in range(UT): self.mfma16(32, FV[k] + 4 * t, 52 + 4 * t)
        if refill:
            a(f"s_mov_b32 s{76+k}, 0"); self.unit_loads(FV[k], "s[44:47]")
            if not po: self.ticket(k)
    def a_pool(self):
        a = self.a; c = self.c
        Ll = a.newlabel("L_pool"); Ld = [a.newlabel("L_drain") for _ in range(2)]; Le = a.newlabel("L_poolend")
        a(f"{Ll}:")
        for k in range(2):
            a(f"""s_waitcnt vmcnt({(3 if c['pord'] else 2) * c['UT'] + 1})
            v_readfirstlane_b32 s52, v{TK+k}
            s_cmp_lt_u32 s52, {self.NF}
            s_cbranch_scc0 {Ld[k]}
            s_lshl_b32 s52, s52, {self.TSH}
            s_add_u32 s51, s61, s52
            s_and_b32 s51, s51, 0x1fffff""")
            self.unit(k, True, 3 * c['UT'] + 2 if c['pord'] else None)
        a(f"s_branch {Ll}")
        n0, n1 = c['twpos']
        for k in range(2):
            a(f"{Ld[k]}:")
            for j in range(n0): self.t_load(j)
            A = 0 if c['pord'] else 1
            self.unit(k, False, 2 * c['UT'] + 1 + n0 if c['pord'] else None)
            for j in range(n0, n0 + n1): self.t_load(j)
            a(f"s_waitcnt vmcnt({A + n0 + n1 + c['UT']})")
            if c.get('twall'):
                self.unit(1 - k, False, A + n0 + n1)
            elif c['twsplit']:
                L = a.newlabel("L_tws"); nd = self.NW - c['twsplit']
                for j in range(n0 + n1, nd): self.t_load(j)
                a(f"s_cmp_lt_u32 s3, 4\ns_cbranch_scc1 {L}")
                for j in range(nd, self.NW): self.t_load(j)
                a(f"{L}:")
                self.unit(1 - k, False, (A + nd, A + self.NW))
            else:
                for j in range(n0 + n1, self.NW): self.t_load(j)
                self.unit(1 - k, False, A + self.NW)
            if k == 0: a(f"s_branch {Le}")
        a(f"{Le}:"); a.vm = []
    def a_epi_addr(self):
        a = self.a
        a(f"s_lshl_b32 s52, s3, 10\ns_add_u32 s52, s52, {EB}\nv_add_u32 v83, s52, v1")
        a(f"v_bfe_u32 v84, v0, 3, 1\nv_lshlrev_b32 v84, 6, v84\ns_lshl_b32 s52, s3, 3\ns_add_u32 s52, s52, {EB + 8192}\nv_add_u32 v84, s52, v84")
        self.acc_addr(28, 48, EB)
        a(f"""s_lshr_b32 s52, s3, 1
        s_lshl_b32 s54, s49, 1
        s_add_u32 s52, s52, s54
        s_lshl_b32 s52, s52, 3
        s_add_u32 s52, s52, s50
        s_lshl_b32 s52, s52, 9
        s_add_u32 s78, s52, {REC}
        s_and_b32 s54, s3, 1
        s_lshl_b32 s55, s54, 8
        v_lshlrev_b32 v63, 2, v0
        v_add_u32 v63, s55, v63
        s_lshr_b32 s55, s3, 1
        s_lshl_b32 s55, s55, 6
        s_add_u32 s55, s55, {EB + 8192}
        v_mov_b32 v29, s55""")
    def a_epilogue(self):
        a = self.a
        self.stamp(4)
        self.redrows(27, 48, "v_add_f32")
        a("ds_write_b64 v84, v[26:27]\nds_write_b128 v83, v[32:35]\nv_mov_b32 v59, s35")
        a.wait_lg(); a("s_barrier")
        self.stamp(8)
        Lu = a.newlabel("L_aup")
        if self.c.get('twall'):
            L = a.newlabel("L_twa")
            a(f"s_cmp_lt_u32 s3, 4\ns_cbranch_scc1 {L}")
            if self.c['twall'] == 1:
                for j in range(sum(self.c['twpos']), self.NW): self.t_load(j)
            a(f"s_branch {Lu}\n{L}:")
        else: a(f"s_cmp_ge_u32 s3, 4\ns_cbranch_scc1 {Lu}")
        for k in range(4): a(f"ds_read_b128 v[{10+4*k}:{13+4*k}], v29 offset:{16*k}", tag='st')
        for w in range(8): a(f"ds_read_b32 v{36+w}, v28 offset:{1024*w}")
        a.wait_lg('st')
        a("v_max3_f32 v52, v10, v12, v14\nv_max3_f32 v53, v16, v18, v20\nv_max3_f32 v52, v52, v22, v24\nv_max_f32 v52, v52, v53")
        for w in range(8): a(f"v_sub_f32 v{10+2*w}, v{10+2*w}, v52")
        for w in range(8): a(f"v_exp_f32 v{10+2*w}, v{10+2*w}")
        a.wait_lg()
        a("v_mul_f32 v53, v10, v11\nv_mul_f32 v54, v10, v36")
        for w in range(1, 8): a(f"v_fmac_f32 v53, v{10+2*w}, v{11+2*w}\nv_fmac_f32 v54, v{10+2*w}, v{36+w}")
        a("v_rcp_f32 v55, v53\nv_log_f32 v58, v53\nv_mul_f32 v54, v54, v55\nv_add_f32 v58, v58, v52")
        self.rec_store(54, 63, 78)
        if self.c.get('twall'):
            if self.c['twall'] == 1:
                for j in range(sum(self.c['twpos']), self.NW): self.t_load(j)
        elif self.c['twsplit']:
            for j in range(self.NW - self.c['twsplit'], self.NW): self.t_load(j)
        a(f"{Lu}:")
        self.stamp(5)
    def a_proj(self):
        a = self.a; c = self.c
        a(f"""v_and_b32 v50, 7, v0
        v_min_u32 v51, 5, v50
        v_and_b32 v52, 1, v0
        s_cmp_eq_u32 s63, 0
        s_cselect_b64 vcc, -1, 0
        s_cselect_b32 s66, 5, 7
        v_cndmask_b32 v51, v52, v51, vcc
        v_bfe_u32 v49, v0, 3, 1
        v_lshl_add_u32 v29, v49, 8, v51
        v_lshlrev_b32 v29, 9, v29
        s_lshl_b32 s52, s63, 6
        s_add_u32 s52, s52, s64
        s_lshl_b32 s52, s52, 12
        s_lshl_b32 s54, s3, 6
        s_add_u32 s52, s52, s54
        s_add_u32 s75, s52, {REC}
        v_lshrrev_b32 v48, 4, v0
        v_lshl_add_u32 v29, v48, 4, v29""")
        def gissue(): a("buffer_load_dwordx4 v[10:13], v29, s[36:39], s75 offen sc1", tag='pg')
        gissue()
        a("v_cmp_lt_u32 s[72:73], s66, v50")
        for r in range(32, 44): a(f"v_mov_b32 v{r}, 0")
        a(f"""v_and_b32 v26, 7, v0
        v_lshlrev_b32 v26, 4, v26
        v_bfe_u32 v48, v0, 3, 2
        v_lshl_add_u32 v26, v48, 2, v26
        v_lshrrev_b32 v48, 5, v0
        s_cmp_ge_u32 s3, 4
        s_cselect_b32 s52, 9, 8
        s_cselect_b32 s54, 8, 9
        s_cselect_b32 s55, 8192, 0
        s_cselect_b32 s56, 1024, 0
        s_add_u32 s55, s55, {TL}
        v_lshl_add_u32 v26, v48, s52, v26
        s_and_b32 s57, s3, 1
        s_lshl_b32 s57, s57, s54
        s_add_u32 s56, s56, s57
        s_add_u32 s55, s55, s57
        s_bfe_u32 s57, s3, 0x10001
        s_lshl_b32 s52, s57, 7
        s_add_u32 s55, s55, s52
        v_add_u32 v26, s55, v26
        s_lshl_b32 s52, s3, 10
        s_add_u32 s52, s52, {TL}
        v_add_u32 v27, s52, v1
        v_lshlrev_b32 v23, 3, v0
        v_add_u32 v23, s56, v23
        s_lshl_b32 s74, s63, 5
        s_add_u32 s74, s74, s64
        s_lshl_b32 s74, s74, 1
        s_add_u32 s74, s74, s57
        s_mul_i32 s74, s74, 4608
        s_mul_i32 s54, s65, 1536
        s_add_u32 s74, s74, s54
        s_add_u32 s74, s74, {PO}
        s_lshl_b32 s57, s57, 3
        v_mov_b32 v59, s35
        v_mov_b32 v47, {NEGINF}""")
        if c.get('dT'): a(f"s_branch {self.LF}")
        self.poll_granules(gissue, [13], 6, first_issued=True, sleep=c.get('tsleep', 0))
        self.stamp(6)
        a("v_cndmask_b32 v46, v12, v47, s[72:73]\nv_lshlrev_b32 v52, 16, v10\nv_mov_b32 v44, v46\nv_and_b32 v53, 0xffff0000, v10\nv_lshlrev_b32 v54, 16, v11")
        self.red8([44], "v_max_f32")
        a("v_sub_f32 v44, v46, v44\nv_and_b32 v55, 0xffff0000, v11\nv_exp_f32 v56, v44")
        for t in range(4): a(f"v_mul_f32 v{52+t}, v56, v{52+t}")
        self.red8([52, 53, 54, 55, 56], "v_add_f32")
        for k in range(2): a(f"v_cvt_pk_bf16_f32 v{20+k}, v{52+2*k}, v{53+2*k}")
        a("v_rcp_f32 v56, v56")
        for k in range(2):
            self.bop(44, 20 + k, 2); self.bop(48, 20 + k, 6)
            self.mfma16(36, TW[4 + k], 44); self.mfma16(40, TW[4 + k], 48)
            self.mfma16(32, TW[2 * k], 44); self.mfma16(32, TW[2 * k + 1], 48)
        a("v_cmp_lt_u32 vcc, 31, v0\nv_mul_f32 v56, s67, v56\nv_readlane_b32 s57, v56, s57")
        for r in range(4): a(f"v_cndmask_b32 v{36+r}, v{36+r}, v{40+r}, vcc")
        a("ds_write_b128 v27, v[36:39] offset:8192\nds_write_b128 v27, v[32:35]")
        a.wait_lg(); a("s_barrier")
        for w in range(8): a(f"ds_read_b32 v{44+w}, v26 offset:{1024*w}")
        a.wait_lg()
        a("v_add_f32 v44, v44, v45\nv_add_f32 v46, v46, v47\nv_add_f32 v48, v48, v49\nv_add_f32 v50, v50, v51\nv_add_f32 v44, v44, v46\nv_add_f32 v48, v48, v50\nv_add_f32 v58, v44, v48")
        Lf = a.newlabel("L_tfull")
        a(f"s_cmp_lt_u32 s3, 4\ns_cbranch_scc1 {Lf}")
        a("v_mov_b32 v49, v58\nv_permlane32_swap_b32 v58, v49\nv_add_f32 v58, v58, v49\ns_mov_b32 exec_hi, 0")
        a(f"{Lf}:\nv_mul_f32 v58, s57, v58\nbuffer_store_dwordx2 v[58:59], v23, s[36:39], s74 offen sc1\ns_mov_b64 exec, -1")
        self.stamp(7)

    def proj(self, half):
        a = self.a; c = self.c
        a(f"""v_and_b32 v50, 7, v0
        v_min_u32 v51, 5, v50
        v_and_b32 v52, 1, v0
        s_cmp_eq_u32 s63, 0
        s_cselect_b64 vcc, -1, 0
        s_cselect_b32 s66, 5, 7
        v_cndmask_b32 v51, v52, v51, vcc
        v_bfe_u32 v49, v0, 3, 1
        v_lshl_add_u32 v29, v49, 8, v51
        v_lshlrev_b32 v29, 9, v29
        s_lshl_b32 s52, s63, 6
        s_add_u32 s52, s52, s64
        s_lshl_b32 s52, s52, 12
        s_lshl_b32 s54, s3, 6
        s_add_u32 s52, s52, s54
        s_add_u32 s75, s52, {REC}
        v_lshrrev_b32 v48, 4, v0
        v_lshl_add_u32 v29, v48, 4, v29""")
        def gissue(): a("buffer_load_dwordx4 v[10:13], v29, s[36:39], s75 offen sc1", tag='pg')
        gissue()
        a("v_cmp_lt_u32 s[72:73], s66, v50")
        for r in range(32, 44 if half else 36): a(f"v_mov_b32 v{r}, 0")
        a("""v_and_b32 v26, 7, v0
        v_lshlrev_b32 v26, 4, v26
        v_bfe_u32 v48, v0, 3, 2
        v_lshl_add_u32 v26, v48, 2, v26
        v_lshrrev_b32 v48, 5, v0""")
        if half:
            a(f"""s_cmp_ge_u32 s3, 4
            s_cselect_b32 s52, 9, 8
            s_cselect_b32 s54, 8, 9
            s_cselect_b32 s55, 8192, 0
            s_cselect_b32 s56, 1024, 0
            s_add_u32 s55, s55, {TL}
            v_lshl_add_u32 v26, v48, s52, v26
            s_and_b32 s57, s3, 1
            s_lshl_b32 s57, s57, s54
            s_add_u32 s56, s56, s57
            s_add_u32 s55, s55, s57
            s_bfe_u32 s57, s3, 0x10001""")
        else:
            a(f"""v_lshl_add_u32 v26, v48, 12, v26
            s_and_b32 s56, s3, 3
            s_lshl_b32 s56, s56, 8
            s_add_u32 s55, s56, {TL}
            s_lshr_b32 s57, s3, 2""")
        a(f"""s_lshl_b32 s52, s57, 7
        s_add_u32 s55, s55, s52
        v_add_u32 v26, s55, v26
        s_lshl_b32 s52, s3, 10
        s_add_u32 s52, s52, {TL}
        v_add_u32 v27, s52, v1
        v_lshlrev_b32 v24, 3, v0
        v_add_u32 v24, s56, v24
        s_lshl_b32 s74, s63, 5
        s_add_u32 s74, s74, s64
        s_lshl_b32 s74, s74, 1
        s_add_u32 s74, s74, s57
        s_mul_i32 s74, s74, 4608
        s_lshl_b32 s54, s65, 10
        s_add_u32 s74, s74, s54
        s_add_u32 s74, s74, {PO}
        s_lshl_b32 s57, s57, 3
        v_mov_b32 v59, s35
        v_mov_b32 v47, {NEGINF}""")
        if c.get('dT'): a(f"s_branch {self.LF}")
        self.poll_granules(gissue, [13], 6, first_issued=True, sleep=(c['hsleep'] if half else c.get('tsleep', 0)))
        self.stamp(3 if half else 6)
        a("v_cndmask_b32 v46, v12, v47, s[72:73]\nv_lshlrev_b32 v52, 16, v10\nv_mov_b32 v44, v46\nv_and_b32 v53, 0xffff0000, v10\nv_lshlrev_b32 v54, 16, v11")
        self.red8([44], "v_max_f32")
        a("v_sub_f32 v44, v46, v44\nv_and_b32 v55, 0xffff0000, v11\nv_exp_f32 v56, v44")
        for t in range(4): a(f"v_mul_f32 v{52+t}, v56, v{52+t}")
        self.red8([52, 53, 54, 55, 56], "v_add_f32")
        for k in range(2): a(f"v_cvt_pk_bf16_f32 v{20+k}, v{52+2*k}, v{53+2*k}")
        a("v_rcp_f32 v56, v56")
        for k in range(2):
            self.bop(44, 20 + k, 2); self.bop(48, 20 + k, 6)
            if half: self.mfma16(36, TW[4 + k], 44); self.mfma16(40, TW[4 + k], 48)
            self.mfma16(32, TW[2 * k], 44); self.mfma16(32, TW[2 * k + 1], 48)
        a("v_cmp_lt_u32 vcc, 31, v0\nv_mul_f32 v56, s67, v56\nv_readlane_b32 s57, v56, s57")
        if half:
            for r in range(4): a(f"v_cndmask_b32 v{36+r}, v{36+r}, v{40+r}, vcc")
            a("ds_write_b128 v27, v[36:39] offset:8192")
        a("ds_write_b128 v27, v[32:35]")
        a.wait_lg(); a("s_barrier")
        Lf = a.newlabel("L_tfull")
        if half:
            for w in range(8): a(f"ds_read_b32 v{44+w}, v26 offset:{1024*w}")
            a.wait_lg()
            a("v_add_f32 v44, v44, v45\nv_add_f32 v46, v46, v47\nv_add_f32 v48, v48, v49\nv_add_f32 v50, v50, v51\nv_add_f32 v44, v44, v46\nv_add_f32 v48, v48, v50\nv_add_f32 v58, v44, v48")
            a(f"s_cmp_lt_u32 s3, 4\ns_cbranch_scc1 {Lf}")
        else:
            for w in range(4): a(f"ds_read_b32 v{44+w}, v26 offset:{1024*w}")
            a.wait_lg()
            a("v_add_f32 v44, v44, v45\nv_add_f32 v46, v46, v47\nv_add_f32 v58, v44, v46")
        a("v_mov_b32 v49, v58\nv_permlane32_swap_b32 v58, v49\nv_add_f32 v58, v58, v49\ns_mov_b32 exec_hi, 0")
        a(f"{Lf}:\nv_mul_f32 v58, s57, v58\nbuffer_store_dwordx2 v[58:59], v24, s[36:39], s74 offen sc1\ns_mov_b64 exec, -1")
        self.stamp(4 if half else 7)

    def h_front(self):
        a = self.a; c = self.c; WH = c['WH']
        self.reset(['d'] * WH)
        self.late_prologue()
        a("""v_lshrrev_b32 v52, 4, v0
        v_and_b32 v50, 1, v0
        v_bfe_u32 v51, v0, 1, 1
        v_bfe_u32 v53, v0, 2, 2
        v_lshl_add_u32 v51, v51, 2, v53
        v_lshl_add_u32 v50, v51, 1, v50
        v_lshlrev_b32 v50, 7, v50
        v_lshl_add_u32 v50, v51, 4, v50
        v_lshl_add_u32 v50, v52, 14, v50
        s_and_b32 s52, s3, 3
        s_lshl_b32 s52, s52, 11
        v_add_u32 v50, s52, v50""")
        for ks in range(8): a(f"v_xor_b32 v{SA+ks}, {16*ks}, v50")
        a("""v_bfe_u32 v50, v0, 3, 1
        v_lshlrev_b32 v50, 2, v50
        v_lshrrev_b32 v51, 5, v0
        v_lshl_add_u32 v50, v51, 1, v50
        v_bfe_u32 v51, v0, 4, 1
        v_lshlrev_b32 v51, 1, v51
        v_bfe_u32 v53, v0, 1, 1
        v_add_u32 v51, v51, v53
        v_and_b32 v53, 1, v0
        v_lshlrev_b32 v53, 3, v53
        v_bfe_u32 v54, v0, 2, 1
        v_lshl_add_u32 v53, v54, 7, v53
        s_lshl_b32 s52, s3, 13
        v_add_u32 v53, s52, v53
        v_add_u32 v57, s52, v1
        v_add_u32 v58, 0x10000, v57""")
        for hi in range(2):
            a(f"v_add_u32 v54, {hi}, v50\nv_xor_b32 v55, v54, v51\nv_lshl_add_u32 v55, v55, 4, v53\nv_lshl_add_u32 v55, v54, 8, v55")
            for cb in range(2): a(f"v_xor_b32 v{TA + 2*cb + hi}, {64*cb}, v55")
        a(f"""s_lshr_b32 s52, s3, 2
        s_lshl_b32 s52, s52, 4
        v_and_b32 v49, 15, v0
        v_add_u32 v50, s52, v49
        v_mul_u32_u24 v2, 144, v50
        v_lshl_add_u32 v2, v52, 3, v2
        s_and_b32 s54, s3, 3
        s_lshl_b32 s55, s54, 5
        s_add_u32 s55, s55, {PL}
        v_add_u32 v2, s55, v2
        v_and_b32 v51, 31, v0
        v_mul_u32_u24 v3, 144, v51
        v_lshrrev_b32 v53, 5, v0
        v_lshl_add_u32 v3, v53, 4, v3
        v_add_u32 v3, {PL}, v3
        v_lshlrev_b32 v5, 2, v50
        v_add_u32 v5, {ML}, v5
        s_lshl_b32 s55, s54, 7
        v_add_u32 v4, s55, v5
        v_lshlrev_b32 v6, 2, v51
        v_add_u32 v6, {ML}, v6
        v_mov_b32 v7, {NEGINF}
        v_mov_b32 v8, {NEGINF}
        v_mov_b32 v9, 0
        v_lshlrev_b32 v28, 7, v0
        v_add_u32 v28, {FQ}, v28
        s_mov_b32 s58, {LOG2E}
        s_lshl_b32 s65, s63, 15
        s_lshl_b32 s54, s3, 12
        s_add_u32 s65, s65, s54
        s_add_u32 s65, s65, {QABS}
        s_add_u32 s54, s54, {PL}
        v_add_u32 v30, s54, v1
        s_lshr_b32 s54, s3, 2
        s_lshl_b32 s54, s54, 14
        s_add_u32 s54, s54, {PL}
        v_add_u32 v31, s54, v1""")
        for r in range(32): a(f"v_mov_b32 v{ACC+r}, 0")
        self.srd(44, "s22", "s23", 512 * 8192)
        a("""s_and_b32 s52, s2, 1
        s_lshl_b32 s52, s52, 3
        s_add_u32 s52, s52, s3
        s_lshl_b32 s52, s52, 18
        s_lshr_b32 s54, s2, 1
        s_lshl_b32 s54, s54, 8
        s_add_u32 s52, s52, s54
        v_lshlrev_b32 v59, 16, v52
        v_lshl_add_u32 v59, v49, 4, v59
        v_add_u32 v59, s52, v59""")
        self.get_tag()
        for t in range(WH, 16): a.wait_vm_n(WH - 1); self.dma(t)
        for t in range(16):
            q = t % 8; r = R2[q] if t < 8 else UV + 4 * q
            a.wait_vm_n(WH - 1)
            if q == 0: a("s_and_b32 s62, s62, 0x7fffff")
            a(f"s_add_u32 s51, s62, {q*8192}\nbuffer_load_dwordx4 v[{r}:{r+3}], v{DV + (q & 1)}, s[76:79], s51 offen nt", tag='r')
            if q == 7: a("s_add_u32 s62, s62, 0x200000")
        self.stamp(1)
        if c.get('dH') == 1: a(f"s_waitcnt vmcnt(0)\ns_branch {self.LF}")
        if c.get('dH') == 4:
            for t in range(8): a(f"s_waitcnt vmcnt(3)\ns_mov_b32 s51, {t*8192}\nbuffer_load_dwordx4 v[{64+4*t}:{64+4*t+3}], v59, s[44:47], s51 offen nt")
            a(f"s_waitcnt vmcnt(0)\ns_branch {self.LF}")
        self.poll_flags(28, 3, 2)
        for n in range(4): a(f"buffer_load_dwordx4 v[{STG+4*n}:{STG+4*n+3}], v1, s[36:39], s65 offen offset:{n*1024} sc1", tag=('q', n))
        for n in range(4):
            a.wait_vm(('q', n)); a(f"ds_write_b128 v30, v[{STG+4*n}:{STG+4*n+3}] offset:{n*1024}")
        a.wait_lg(); a("s_barrier")
        for ks in range(16):
            a(f"ds_read_b128 v[{QR+4*ks}:{QR+4*ks+3}], v31 offset:{ks*1024}")
            if ks == 11: a.wait_lg()
        a.wait_lg()
        self.stamp(2)
    def h_attn(self):
        a = self.a; c = self.c
        Lloop = a.newlabel("L_btile")
        a(f"s_mov_b32 s61, 0\n{Lloop}:\ns_barrier")
        for r in range(4): a(f"v_mov_b32 v{32+r}, 0")
        for ks in range(8): a(f"ds_read_b128 v[{STG+4*ks}:{STG+4*ks+3}], v{SA+ks}", tag=('s', ks))
        for ks in range(16):
            a.wait_lg(('s', ks))
            s = STG + 4 * (ks % 8)
            self.mfma16(32, s, QR + 4 * ks)
            if ks + 8 < 16: a(f"ds_read_b128 v[{s}:{s+3}], v{SA+ks} offset:8192", tag=('s', ks + 8))
        for ks in range(8): a(f"v_xor_b32 v{SA+ks}, 0x10000, v{SA+ks}")
        a("v_cvt_pk_bf16_f32 v36, v32, v33\nv_cvt_pk_bf16_f32 v38, v34, v35")
        a("v_and_b32 v37, 0xffff0000, v36\nv_lshlrev_b32 v36, 16, v36\nv_and_b32 v39, 0xffff0000, v38\nv_lshlrev_b32 v38, 16, v38")
        for r in (36, 37, 38, 39): a(f"v_mul_f32 v{r}, {SCALE}, v{r}")
        a("v_cvt_pk_bf16_f32 v36, v36, v37\nv_cvt_pk_bf16_f32 v38, v38, v39")
        a("v_lshlrev_b32 v32, 16, v36\nv_and_b32 v33, 0xffff0000, v36\nv_lshlrev_b32 v34, 16, v38\nv_and_b32 v35, 0xffff0000, v38")
        a("v_max3_f32 v36, v32, v33, v34\nv_max_f32 v36, v36, v35")
        self.redrows(36, 37, "v_max_f32")
        a("ds_write_b32 v4, v36")
        a.wait_lg(); a("s_barrier")
        a("ds_read2_b32 v[36:37], v5 offset1:32\nds_read2_b32 v[38:39], v5 offset0:64 offset1:96\nds_read2_b32 v[40:41], v6 offset1:32\nds_read2_b32 v[42:43], v6 offset0:64 offset1:96")
        a.wait_lg()
        a("v_max3_f32 v36, v36, v37, v7\nv_max3_f32 v40, v40, v41, v8\nv_max3_f32 v36, v36, v38, v39\nv_max3_f32 v38, v40, v42, v43")
        a("v_sub_f32 v40, v7, v36\nv_sub_f32 v41, v8, v38\nv_mul_f32 v37, s58, v36\nv_mul_f32 v40, s58, v40\nv_mul_f32 v42, s58, v41")
        for r in range(4): a(f"v_fma_f32 v{32+r}, v{32+r}, s58, -v37")
        a("v_exp_f32 v40, v40\nv_exp_f32 v42, v42")
        for r in range(4): a(f"v_exp_f32 v{32+r}, v{32+r}")
        a("v_mov_b32 v7, v36\nv_mov_b32 v8, v38\nv_cvt_pk_bf16_f32 v44, v32, v33\nv_cvt_pk_bf16_f32 v45, v34, v35")
        a("ds_write_b64 v2, v[44:45]")
        a("v_fma_f32 v9, v9, v40, v32\nv_add_f32 v33, v33, v34\nv_add_f32 v9, v9, v35\nv_add_f32 v9, v9, v33\nv_mov_b32 v43, v42")
        for r in range(0, 32, 2): a(f"v_pk_mul_f32 v[{ACC+r}:{ACC+r+1}], v[{ACC+r}:{ACC+r+1}], v[42:43]")
        a.wait_lg(); a("s_barrier")
        for s in range(4): a(f"ds_read_b128 v[{32+4*s}:{35+4*s}], v3 offset:{32*s}", tag='p')
        seq = [(s, cb) for s in range(4) for cb in range(2)]
        def trd(i):
            s, cb = seq[i]
            for hi in range(2):
                a(f"ds_read_b64_tr_b16 v[{STG+4*i+2*hi}:{STG+4*i+2*hi+1}], v{TA+2*cb+hi} offset:{2048*s}", tag=('t', i))
        for i in range(5): trd(i)
        for i in range(8):
            s, cb = seq[i]
            a.wait_lg(('t', i))
            a(f"v_mfma_f32_32x32x16_bf16 v[{ACC+16*cb}:{ACC+16*cb+15}], v[{STG+4*i}:{STG+4*i+3}], v[{32+4*s}:{35+4*s}], v[{ACC+16*cb}:{ACC+16*cb+15}]")
            if i + 5 < 8: trd(i + 5)
        for k in range(4): a(f"v_xor_b32 v{TA+k}, 0x10000, v{TA+k}")
        L1 = a.newlabel("L_rf"); L2 = a.newlabel("L_rf")
        a(f"s_cmp_lg_u32 s61, 0\ns_cbranch_scc1 {L1}")
        for q in range(8): a(f"ds_write_b128 v57, v[{R2[q]}:{R2[q]+3}] offset:{q*1024}")
        a(f"{L1}:\ns_cmp_lg_u32 s61, 1\ns_cbranch_scc1 {L2}")
        for q in range(8): a(f"ds_write_b128 v58, v[{UV+4*q}:{UV+4*q+3}] offset:{q*1024}")
        a("s_waitcnt lgkmcnt(0)")
        for t in range(8): a(f"s_mov_b32 s51, {t*8192}\nbuffer_load_dwordx4 v[{UV+4*t}:{UV+4*t+3}], v59, s[44:47], s51 offen nt")
        a(f"{L2}:\ns_waitcnt lgkmcnt(0)\ns_add_u32 s61, s61, 1\ns_cmp_lg_u32 s61, 4\ns_cbranch_scc1 {Lloop}")
        a.vm = []; a.lg = []
        self.stamp(5)
        if c.get('dH') == 2: a(f"s_waitcnt vmcnt(0)\ns_branch {self.LF}")
        self.redrows(9, 37, "v_add_f32")
        a("ds_write_b32 v4, v9 offset:512")
        a.wait_lg(); a("s_barrier")
        a("ds_read2_b32 v[36:37], v6 offset0:128 offset1:160\nds_read2_b32 v[38:39], v6 offset0:192 offset1:224")
        a(f"""v_and_b32 v48, 31, v0
        v_mul_u32_u24 v48, 144, v48
        v_lshrrev_b32 v49, 5, v0
        v_lshl_add_u32 v48, v49, 3, v48
        s_lshl_b32 s54, s3, 13
        v_add_u32 v48, s54, v48
        v_lshrrev_b32 v49, 3, v0
        v_mul_u32_u24 v50, 144, v49
        v_and_b32 v51, 7, v0
        v_lshl_add_u32 v50, v51, 4, v50
        v_add_u32 v50, s54, v50
        v_lshlrev_b32 v52, 10, v49
        v_lshl_add_u32 v52, v51, 4, v52
        s_mul_i32 s52, s2, {c['pbs']}
        s_lshl_b32 s54, s3, 7
        s_add_u32 s52, s52, s54
        s_add_u32 s52, s52, {PB}""")
        a.wait_lg()
        a("v_add_f32 v36, v36, v37\nv_add_f32 v38, v38, v39\nv_add_f32 v36, v36, v38\nv_rcp_f32 v38, v36\nv_log_f32 v40, v36\nv_mov_b32 v39, v38\nv_fma_f32 v40, v8, s58, v40")
        for cb in range(2):
            for rq in range(4):
                r = ACC + 16 * cb + 4 * rq
                a(f"v_pk_mul_f32 v[{r}:{r+1}], v[{r}:{r+1}], v[38:39]\nv_pk_mul_f32 v[{r+2}:{r+3}], v[{r+2}:{r+3}], v[38:39]")
                a(f"v_cvt_pk_bf16_f32 v{r}, v{r}, v{r+1}\nv_cvt_pk_bf16_f32 v{r+1}, v{r+2}, v{r+3}")
                a(f"ds_write_b64 v48, v[{r}:{r+1}] offset:{64*cb + 16*rq}")
        a.wait_lg()
        for n in range(4): a(f"ds_read_b128 v[{STG+4*n}:{STG+4*n+3}], v50 offset:{n*8*144}", tag=('r', n))
        for n in range(4):
            a.wait_lg(('r', n))
            a(f"buffer_store_dwordx4 v[{STG+4*n}:{STG+4*n+3}], v52, s[36:39], s52 offen sc1 {c['pbst']}\ns_add_u32 s52, s52, 8192")
        Ls = a.newlabel("L_nopbs")
        a(f"s_cmp_lg_u32 s3, 0\ns_cbranch_scc1 {Ls}")
        a(f"s_lshl_b32 s52, s2, 7\ns_add_u32 s52, s52, {PBS}\nv_lshlrev_b32 v48, 2, v0\ns_mov_b32 exec_hi, 0")
        a(f"buffer_store_dword v40, v48, s[36:39], s52 offen sc1\ns_mov_b64 exec, -1\n{Ls}:")
        self.stamp(8)
        a("s_waitcnt vmcnt(0)\ns_barrier"); a.vm = []
        self.stamp(9)
        if c.get('dH') == 3: a(f"s_branch {self.LF}")
        Ls = a.newlabel("L_nofb")
        a(f"s_cmp_lg_u32 s3, 0\ns_cbranch_scc1 {Ls}\ns_lshl_b32 s52, s2, 7\ns_add_u32 s52, s52, {FB}")
        self.flag_store("s52")
        a(f"{Ls}:")
    def h_uv(self):
        a = self.a; pbs = self.c['pbs']; PART = 16384; ST = PART + 16 * 1040
        self.sels()
        a(f"""v_lshlrev_b32 v28, 7, v0
        v_add_u32 v28, {FB}, v28
        v_lshrrev_b32 v48, 5, v0
        v_lshlrev_b32 v29, 7, v48
        v_mul_u32_u24 v31, {pbs}, v48
        v_and_b32 v49, 31, v0
        v_lshl_add_u32 v31, v49, 4, v31
        s_lshr_b32 s54, s2, 1
        s_lshl_b32 s55, s54, 2
        s_lshl_b32 s52, s3, 10
        s_add_u32 s55, s55, s52
        s_add_u32 s55, s55, {PBS}
        v_add_u32 v25, s52, v1
        s_lshl_b32 s56, s2, 9
        s_mul_i32 s52, s3, {8 * pbs}
        s_add_u32 s56, s56, s52
        s_add_u32 s56, s56, {PB}
        s_lshl_b32 s52, s3, 1
        v_add_u32 v50, s52, v48
        v_mul_u32_u24 v26, 1040, v50
        v_lshl_add_u32 v26, v49, 5, v26
        v_add_u32 v26, {PART}, v26
        v_and_b32 v50, 15, v0
        v_mul_u32_u24 v27, 1040, v50
        v_lshrrev_b32 v51, 4, v0
        v_lshl_add_u32 v27, v51, 5, v27
        s_lshl_b32 s52, s3, 7
        s_add_u32 s52, s52, {PART}
        v_add_u32 v27, s52, v27
        v_lshrrev_b32 v50, 1, v50
        v_lshlrev_b32 v24, 3, v50
        v_add_u32 v24, {ST}, v24
        s_lshl_b32 s52, s3, 3
        s_add_u32 s52, s52, {ST}
        v_mov_b32 v23, s52""")
        for r in range(32, 36): a(f"v_mov_b32 v{r}, 0")
        self.acc_addr(30, 48, 0)
        a(f"""s_lshr_b32 s52, s3, 1
        s_lshl_b32 s52, s52, 5
        s_lshr_b32 s54, s2, 1
        s_add_u32 s52, s52, s54
        s_add_u32 s52, s52, 64
        s_lshl_b32 s52, s52, 3
        s_and_b32 s54, s2, 1
        s_add_u32 s52, s52, s54
        s_lshl_b32 s52, s52, 9
        s_add_u32 s52, s52, {REC}
        s_and_b32 s54, s3, 1
        s_lshl_b32 s54, s54, 8
        v_lshlrev_b32 v50, 2, v0
        v_add_u32 v50, s54, v50
        v_mov_b32 v59, s35
        v_mov_b32 v58, 0""")
        if self.c['hT']:
            a("s_mov_b32 s79, s52\ns_mov_b32 s78, s55\ns_lshr_b32 s63, s2, 5\ns_and_b32 s64, s2, 31\ns_mov_b32 s65, 3\nv_mov_b32 v22, v30\nv_mov_b32 v21, v31\nv_mov_b32 v20, v50")
            self.t_addr(True)
            a("v_mov_b32 v80, v30\nv_mov_b32 v81, v31\nv_mov_b32 v30, v22\nv_mov_b32 v31, v21\nv_mov_b32 v50, v20\ns_mov_b32 s52, s79\ns_mov_b32 s55, s78")
        self.poll_flags(28, 4, 1)
        self.stamp(10)
        for n in range(4): a(f"buffer_load_dword v{36+n}, v29, s[36:39], s55 offen offset:{256*n} sc1", tag='st')
        for n in range(4): a(f"buffer_load_dwordx4 v[{64+4*n}:{67+4*n}], v31, s[36:39], s56 offen sc1 {self.c['pbld']}\ns_add_u32 s56, s56, {2 * pbs}", tag=('pb', n))
        a.wait_vm('st')
        a("v_max3_f32 v40, v36, v37, v38\nv_max_f32 v40, v40, v39\nv_mov_b32 v41, v40\nv_permlane32_swap_b32 v40, v41\nv_max_f32 v40, v40, v41")
        for n in range(4): a(f"v_sub_f32 v{36+n}, v{36+n}, v40")
        for n in range(4): a(f"v_exp_f32 v{36+n}, v{36+n}")
        a("v_add_f32 v41, v36, v37\nv_add_f32 v42, v38, v39\nv_add_f32 v41, v41, v42\nv_mov_b32 v42, v41\nv_permlane32_swap_b32 v41, v42\nv_add_f32 v41, v41, v42")
        a("ds_write_b64 v23, v[40:41]")
        for n in range(4):
            a.wait_vm(('pb', n))
            for k in range(4):
                a(f"v_lshlrev_b32 v42, 16, v{64+4*n+k}\nv_and_b32 v43, 0xffff0000, v{64+4*n+k}")
                if n == 0: a(f"v_mul_f32 v{12+2*k}, v36, v42\nv_mul_f32 v{13+2*k}, v36, v43")
                else: a(f"v_fmac_f32 v{12+2*k}, v{36+n}, v42\nv_fmac_f32 v{13+2*k}, v{36+n}, v43")
        a("ds_write_b128 v26, v[12:15]\nds_write_b128 v26, v[16:19] offset:16")
        a.wait_lg(); a("s_barrier")
        a("ds_read_b64 v[40:41], v24\nds_read_b128 v[12:15], v27\nds_read_b128 v[16:19], v27 offset:16")
        a.wait_lg()
        a("v_mov_b32 v42, v40")
        self.red8([42], "v_max_f32")
        a("v_sub_f32 v40, v40, v42\nv_exp_f32 v40, v40\nv_mul_f32 v41, v41, v40")
        self.red8([41], "v_add_f32")
        a("v_rcp_f32 v41, v41\nv_add_f32 v40, v40, v40\nv_mul_f32 v40, v40, v41")
        for k in range(8): a(f"v_mul_f32 v{12+k}, v40, v{12+k}")
        self.red8(list(range(12, 20)), "v_add_f32")
        for k in range(4): a(f"v_cvt_pk_bf16_f32 v{60+k}, v{12+2*k}, v{13+2*k}")
        for k in range(4):
            self.bop(40, 60 + k, 2); self.bop(44, 60 + k, 6)
            self.mfma16(32, UV + 8 * k, 40); self.mfma16(32, UV + 8 * k + 4, 44)
        a("ds_write_b128 v25, v[32:35]")
        a.wait_lg(); a("s_barrier")
        Ls = a.newlabel("L_nostat")
        a(f"s_cmp_ge_u32 s3, 4\ns_cbranch_scc1 {Ls}")
        for w in range(8): a(f"ds_read_b32 v{40+w}, v30 offset:{1024*w}")
        a.wait_lg()
        a("v_add_f32 v40, v40, v41\nv_add_f32 v42, v42, v43\nv_add_f32 v44, v44, v45\nv_add_f32 v46, v46, v47\nv_add_f32 v40, v40, v42\nv_add_f32 v44, v44, v46\nv_add_f32 v54, v40, v44")
        self.rec_store(54)
        a(f"{Ls}:"); a.vm = []
        self.stamp(6)
        if self.c.get('dH') == 5: a(f"s_branch {self.LF}")
    def h_tw(self):
        for k in range(6):
            r = TW[k]
            if k < 4: self.a(f"buffer_load_dwordx4 v[{r}:{r+3}], v80, s[68:71], 0 offen offset:{k*1152} nt", tag='tw')
            else: self.a(f"buffer_load_dwordx4 v[{r}:{r+3}], v81, s[68:71], 0 offen offset:{(k-4)*2304} nt", tag='tw')
    def h_final(self, LX):
        a = self.a; c = self.c
        a(f"""s_lshl_b32 s48, s3, 6
        s_add_u32 s48, s48, s2
        s_cmp_ge_u32 s48, 72
        s_cbranch_scc1 {LX}
        s_cmp_ge_u32 s48, 36
        s_cselect_b32 s49, 1, 0
        s_mul_i32 s52, s49, 36
        s_sub_u32 s50, s48, s52
        s_mul_i32 s56, s49, 1152
        s_add_u32 s54, s4, s56
        s_addc_u32 s55, s5, 0""")
        self.srd(40, "s54", "s55", 1152); self.srd(44, "s26", "s27", 1152)
        a("v_lshlrev_b32 v20, 2, v0")
        for k in range(5):
            a(f"buffer_load_dword v{10+k}, v20, s[40:43], 0 offen offset:{256*k}\nbuffer_load_dword v{15+k}, v20, s[44:47], 0 offen offset:{256*k}")
        a(f"""v_lshrrev_b32 v24, 3, v0
        v_mul_u32_u24 v31, 9216, v24
        v_and_b32 v24, 7, v0
        v_lshl_add_u32 v31, v24, 4, v31
        s_mul_i32 s52, s49, 4608
        s_lshl_b32 s54, s50, 7
        s_add_u32 s52, s52, s54
        s_add_u32 s52, s52, {PO}
        v_add_u32 v31, s52, v31
        v_lshlrev_b32 v21, 2, v24
        v_bfe_u32 v24, v0, 4, 1
        v_lshl_add_u32 v21, v24, 1, v21
        s_lshl_b32 s54, s50, 5
        s_add_u32 s56, s56, s54
        v_mov_b32 v22, 0""")
        for n in range(8): a(f"s_mov_b32 s{64+n}, {n*73728}")
        a.wait_vm()
        self.srd(40, "s28", "s29", 2304)
        if c['pret']: a("buffer_load_ushort v29, v21, s[40:43], s56 offen")
        for k in range(5):
            a(f"""v_lshlrev_b32 v24, 16, v{10+k}
            v_and_b32 v25, 0xffff0000, v{10+k}
            v_lshlrev_b32 v26, 16, v{15+k}
            v_and_b32 v27, 0xffff0000, v{15+k}
            v_mul_f32 v24, v24, v26
            v_mul_f32 v25, v25, v27
            v_cvt_pk_bf16_f32 v24, v24, v25
            v_lshlrev_b32 v25, 16, v24
            v_and_b32 v24, 0xffff0000, v24
            v_add_f32 v22, v22, v25
            v_add_f32 v22, v22, v24""")
        self.red8([22], "v_add_f32")
        a("v_add_f32_dpp v22, v22, v22 row_ror:8 row_mask:0xf bank_mask:0xf")
        self.redrows(22, 24, "v_add_f32")
        a(f"""v_cvt_pk_bf16_f32 v22, v22, v22
        v_and_b32 v22, 0xffff0000, v22
        v_mul_f32 v22, {LOG2E}, v22
        v_exp_f32 v22, -v22
        v_add_f32 v22, 1.0, v22
        v_rcp_f32 v22, v22
        v_cvt_pk_bf16_f32 v22, v22, v22
        v_and_b32 v22, 0xffff0000, v22
        v_sub_f32 v23, 1.0, v22
        v_cvt_pk_bf16_f32 v23, v23, v23
        v_and_b32 v23, 0xffff0000, v23""")
        if c['ftrig'] == 'rec':
            a(f"s_and_b32 s52, s48, 63\ns_lshl_b32 s52, s52, 12\ns_add_u32 s52, s52, {REC + 12}\nv_and_b32 v30, 3, v0\nv_lshlrev_b32 v30, 9, v30\nv_add_u32 v30, s52, v30")
            self.poll_granules(lambda: a("buffer_load_dword v65, v30, s[36:39], 0 offen sc1"), [65], 7, sleep=c['fsleep'])
        else:
            g = c.get('fgrp', 0)
            self.poll_granules(lambda: a(f"buffer_load_dwordx4 v[64:67], v31, s[36:39], s{64+g} offen sc1"), [65, 67], 7, sleep=c['fsleep'])
        def sums(R):
            for k in range(2):
                a(f"v_add_f32 v{32+k}, v{R+2*k}, v{R+4+2*k}\nv_add_f32 v{34+k}, v{R+8+2*k}, v{R+12+2*k}")
                a(f"v_add_f32 v{36+k}, v{R+16+2*k}, v{R+20+2*k}\nv_add_f32 v{38+k}, v{R+24+2*k}, v{R+28+2*k}")
        def gset(k):
            for n in range(8): a(f"buffer_load_dwordx4 v[{64+32*k+4*n}:{67+32*k+4*n}], v31, s[36:39], s{64+n} offen sc1")
        if c['fsel']:
            Lp = a.newlabel("L_fs"); Ld = a.newlabel("L_fsd")
            a(f"s_mov_b32 s53, {c['spin']}\ns_mov_b32 s72, 0xff\n{Lp}:")
            for n in range(8):
                L = a.newlabel("L_fi")
                a(f"s_bitcmp1_b32 s72, {n}\ns_cbranch_scc0 {L}\nbuffer_load_dwordx4 v[{64+4*n}:{67+4*n}], v31, s[36:39], s{64+n} offen sc1\n{L}:")
            a("s_waitcnt vmcnt(0)")
            for n in range(8):
                L = a.newlabel("L_fc")
                a(f"s_bitcmp1_b32 s72, {n}\ns_cbranch_scc0 {L}")
                self.tagcheck([65 + 4 * n, 67 + 4 * n], 48)
                a(f"s_cbranch_vccnz {L}\ns_bitset0_b32 s72, {n}\n{L}:")
            a(f"s_cmp_eq_u32 s72, 0\ns_cbranch_scc1 {Ld}\ns_sub_u32 s53, s53, 1\ns_cbranch_scc0 {Lp}")
            self.timeout(8)
            a(f"{Ld}:"); a.vm = []; sums(64)
        elif c['fpipe'] > 1: self.poll_pipe(gset, lambda k: [65 + 32 * k + 2 * j for j in range(16)], 8, c['fpipe'], 8, lambda k: sums(64 + 32 * k))
        else:
            self.poll_granules(lambda: gset(0), [65 + 2 * k for k in range(16)], 8, sleep=c.get('fsleep2', 0)); sums(64)
        a("""v_add_f32 v32, v32, v34
        v_add_f32 v36, v36, v38
        v_add_f32 v33, v33, v35
        v_add_f32 v37, v37, v39
        v_permlane32_swap_b32 v32, v36
        v_permlane32_swap_b32 v33, v37
        v_add_f32 v32, v32, v36
        v_add_f32 v33, v33, v37
        v_permlane16_swap_b32 v32, v33
        v_add_f32 v32, v32, v33
        v_add_f32_dpp v42, v32, v32 row_ror:8 row_mask:0xf bank_mask:0xf
        v_cvt_pk_bf16_f32 v42, v42, v42
        v_and_b32 v42, 0xffff0000, v42
        v_mov_b32 v43, v42
        v_permlane32_swap_b32 v42, v43
        v_mul_f32 v42, v22, v42
        v_mul_f32 v43, v23, v43
        v_cvt_pk_bf16_f32 v42, v42, v43
        v_lshlrev_b32 v43, 16, v42
        v_and_b32 v42, 0xffff0000, v42
        v_add_f32 v42, v42, v43
        v_cvt_pk_bf16_f32 v42, v42, v42
        s_mov_b32 exec_lo, 0x00ff00ff
        s_mov_b32 exec_hi, 0
        buffer_store_short v42, v21, s[40:43], s56 offen """ + c['outf'])
        Ls = a.newlabel("L_noep")
        a(f"s_cmp_lg_u32 s48, 0\ns_cbranch_scc1 {Ls}\ns_mov_b64 exec, 1\nv_mov_b32 v44, s35\nv_mov_b32 v45, 0")
        a(f"buffer_store_dword v44, v45, s[36:39], 0 offen {c['outf']}\n{Ls}:\ns_mov_b64 exec, -1")
        self.stamp(7)

    def h_final8(self, LX):
        a = self.a; c = self.c; FL = 40960
        Lg = a.newlabel("L_nogate")
        a(f"""s_cmp_ge_u32 s2, 36
        s_cbranch_scc1 {Lg if c['hT'] else LX}
        s_cmp_ge_u32 s2, 18
        s_cselect_b32 s49, 1, 0
        s_mul_i32 s52, s49, 18
        s_sub_u32 s50, s2, s52
        s_mul_i32 s76, s49, 1152
        v_lshrrev_b32 v24, 3, v0
        v_mul_u32_u24 v163, 9216, v24
        v_and_b32 v24, 7, v0
        v_lshl_add_u32 v163, v24, 4, v163
        s_mul_i32 s52, s49, 4608
        s_lshl_b32 s54, s50, 8
        s_add_u32 s52, s52, s54
        s_mul_i32 s54, s3, 73728
        s_add_u32 s52, s52, s54
        s_add_u32 s77, s52, {PO}
        v_lshlrev_b32 v20, 2, v0
        s_lshl_b32 s52, s3, 8
        s_add_u32 s52, s52, {FL}
        v_add_u32 v164, s52, v20
        s_cmp_lg_u32 s3, 0
        s_cbranch_scc1 {Lg}
        s_add_u32 s54, s4, s76
        s_addc_u32 s55, s5, 0""")
        self.srd(40, "s54", "s55", 1152); self.srd(44, "s26", "s27", 1152)
        for k in range(5):
            a(f"buffer_load_dword v{10+k}, v20, s[40:43], 0 offen offset:{256*k}\nbuffer_load_dword v{15+k}, v20, s[44:47], 0 offen offset:{256*k}")
        a("""v_lshlrev_b32 v162, 2, v24
        v_bfe_u32 v24, v0, 4, 1
        v_lshl_add_u32 v162, v24, 1, v162
        v_lshrrev_b32 v24, 5, v0
        v_lshl_add_u32 v162, v24, 5, v162
        s_lshl_b32 s54, s50, 6
        s_add_u32 s76, s76, s54
        v_mov_b32 v22, 0""")
        a.wait_vm()
        for k in range(5):
            a(f"""v_lshlrev_b32 v24, 16, v{10+k}
            v_and_b32 v25, 0xffff0000, v{10+k}
            v_lshlrev_b32 v26, 16, v{15+k}
            v_and_b32 v27, 0xffff0000, v{15+k}
            v_mul_f32 v24, v24, v26
            v_mul_f32 v25, v25, v27
            v_cvt_pk_bf16_f32 v24, v24, v25
            v_lshlrev_b32 v25, 16, v24
            v_and_b32 v24, 0xffff0000, v24
            v_add_f32 v22, v22, v25
            v_add_f32 v22, v22, v24""")
        self.red8([22], "v_add_f32")
        a("v_add_f32_dpp v22, v22, v22 row_ror:8 row_mask:0xf bank_mask:0xf")
        self.redrows(22, 24, "v_add_f32")
        a(f"""v_cvt_pk_bf16_f32 v22, v22, v22
        v_and_b32 v22, 0xffff0000, v22
        v_mul_f32 v22, {LOG2E}, v22
        v_exp_f32 v22, -v22
        v_add_f32 v22, 1.0, v22
        v_rcp_f32 v22, v22
        v_cvt_pk_bf16_f32 v22, v22, v22
        v_and_b32 v160, 0xffff0000, v22
        v_sub_f32 v23, 1.0, v160
        v_cvt_pk_bf16_f32 v23, v23, v23
        v_and_b32 v161, 0xffff0000, v23
        {Lg}:""")
        if c['hT']:
            if c['htrig']:
                a(f"s_lshl_b32 s52, s64, 12\ns_add_u32 s52, s52, {REC + 12}\nv_and_b32 v28, 1, v0\nv_lshlrev_b32 v28, 17, v28\nv_add_u32 v28, s52, v28")
                self.poll_flags(28, 9, c['fsleep'])
            self.h_tw()
            self.proj(True)
            a(f"s_cmp_ge_u32 s2, 36\ns_cbranch_scc1 {LX}")
        self.srd(40, "s28", "s29", 2304)
        def g(): a("buffer_load_dwordx4 v[64:67], v163, s[36:39], s77 offen sc1\nbuffer_load_dwordx4 v[68:71], v163, s[36:39], s77 offen offset:128 sc1")
        if c.get('f8t') is not None and not c['hT']:
            L = a.newlabel("L_f8t")
            a(f"s_cmp_lg_u32 s3, {c['f8t']}\ns_cbranch_scc1 {L}")
            self.poll_granules(g, [65, 67, 69, 71], 7, sleep=c['fsleep'])
            a(f"{L}:\ns_barrier")
        self.poll_granules(g, [65, 67, 69, 71], 8, sleep=c['f8'] - 1)
        a("""v_permlane32_swap_b32 v64, v68
        v_permlane32_swap_b32 v66, v70
        v_add_f32 v64, v64, v68
        v_add_f32 v66, v66, v70
        v_permlane16_swap_b32 v64, v66
        v_add_f32 v64, v64, v66
        v_add_f32_dpp v64, v64, v64 row_ror:8 row_mask:0xf bank_mask:0xf
        ds_write_b32 v164, v64""")
        a.wait_lg(); a(f"s_barrier\ns_cmp_lg_u32 s3, 0\ns_cbranch_scc1 {LX}")
        for n in range(8): a(f"ds_read_b32 v{32+n}, v164 offset:{256*n}")
        a.wait_lg()
        a("""v_add_f32 v32, v32, v33
        v_add_f32 v34, v34, v35
        v_add_f32 v36, v36, v37
        v_add_f32 v38, v38, v39
        v_add_f32 v32, v32, v34
        v_add_f32 v36, v36, v38
        v_cvt_pk_bf16_f32 v42, v32, v36
        v_and_b32 v43, 0xffff0000, v42
        v_lshlrev_b32 v42, 16, v42
        v_mul_f32 v42, v160, v42
        v_mul_f32 v43, v161, v43
        v_cvt_pk_bf16_f32 v42, v42, v43
        v_lshlrev_b32 v43, 16, v42
        v_and_b32 v42, 0xffff0000, v42
        v_add_f32 v42, v42, v43
        v_cvt_pk_bf16_f32 v42, v42, v42
        s_mov_b32 exec_lo, 0x00ff00ff
        s_mov_b32 exec_hi, 0x00ff00ff
        buffer_store_short v42, v162, s[40:43], s76 offen""")
        Ls = a.newlabel("L_noep")
        a(f"s_cmp_lg_u32 s2, 0\ns_cbranch_scc1 {Ls}\ns_mov_b64 exec, 1\nv_mov_b32 v44, s35\nv_mov_b32 v45, 0")
        a(f"buffer_store_dword v44, v45, s[36:39], 0 offen\n{Ls}:\ns_mov_b64 exec, -1")
        self.stamp(7)

    def build(self):
        a = self.a
        hdr = open("gated_mix__gqa_block_cached__compressed_kv_cla__decode.s.ref").read().split("; Override launch")[0]
        a.raw(hdr.rstrip())
        a.raw("; @launch grid=(256,1,1) block=(512,1,1) lds=163840")
        a.raw(DESC)
        a.raw('.amdgcn_target "amdgcn-amd-amdhsa--gfx950"\n.text')
        LS1, LS2, LH, LM, LF, LE = (a.newlabel(x) for x in ("L_headq", "L_headabs", "L_latent", "L_merge", "L_fin", "L_end"))
        self.LF = LF
        self.entry(LS1, LS2, LH, LE)
        a(f"{LH}:"); self.h_front(); self.h_attn(); self.h_uv(); (self.h_final8 if self.c['f8'] else self.h_final)(LF); a(f"s_branch {LF}")
        a(f"{LS2}:"); self.head_s2(); a(f"s_branch {LM}")
        a(f"{LS1}:"); self.head_s1()
        a(f"{LM}:"); self.a_static(); self.a_pool(); self.a_epilogue(); (self.proj(False) if self.c['hT'] else self.a_proj())
        a(f"{LF}:"); self.stamp_flush()
        a(f"{LE}:\ns_endpgm")
        a.raw(f""".section .rodata,"a"
.p2align 6
.amdhsa_kernel {KN}
  .amdhsa_next_free_vgpr 256
  .amdhsa_next_free_sgpr 102
  .amdhsa_accum_offset 256
  .amdhsa_group_segment_fixed_size 0
  .amdhsa_kernarg_size 120
  .amdhsa_user_sgpr_count 2
  .amdhsa_user_sgpr_kernarg_segment_ptr 1
  .amdhsa_system_sgpr_workgroup_id_x 1
.end_amdhsa_kernel""")
        return a.text()

def gen(**kw): return G(**kw).build()
if __name__ == "__main__":
    cfg = json.loads(sys.argv[2]) if len(sys.argv) > 2 else {}
    open(sys.argv[1], "w").write(gen(**cfg))
```

```python
import sys, json
sys.path.insert(0, "dev")
from asmlib import Asm
KN = "gated_mix__gqa_block_cached__compressed_kv_cla__decode_kernel"
Q     = 0x1000
QABS  = 0x11000
FQ    = 0x21000
FB    = 0x23000
PBS   = 0x25000
CNT   = 0x27000
REC   = 0x30000
PO    = 0x150000
PB    = 0x200000
STAMP = 0x800000
WS_USED = 0x1000000
LOG2E = 0x3fb8aa3b; SCALE = 0x3db504f3; NEGINF = 0xff800000
DEF = dict(W=4, W2=4, iW2=50, R=40, NS=36, IQ=22, ICHK=26, WH=4, iq2=13, W0=2, n0=8, nsub=4, subrot=3, UT=1, twpos=(0, 1),
           rotb=2, spin=300000, fsleep=4, fsleep2=1, ftrig='po', fgrp=4, fpipe=1, stamps=False, pbs=32768, wsb=0, outf='', rot=65536, xmap=1, s2wait=0, pbst='', pbld='', twsplit=3, pret=0, pre0=None, pord=0, hT=0, outt=0, rank=0, rankw=2, typed=0, tmix=0, dynT=0, dynH=1, qsh=0, htrig=0, hsleep=2, f8=2, f8t=4, fsel=0)
PL = 131072; ML = PL + 4608
QL = 8192; TL = 16384; S1L = 32768; S2L = 49152; XL = 57344; EB = 65536
RING = 88; SREG = 64; ZERO = 85; TK = 86
FK = [88, 104]; FV = [96, 112]; TW = [120 + 4 * k for k in range(6)]
WR = 212; UR = 216
QR = 64; ACC = 128; SA = 160; TA = 168; STG = 176; UV = 208; DV = 240
R2 = [12, 16, 20, 24, 172, 244, 248, 252]
QTAGS = [11, 13, 15, 17, 19, 21, 23, 25]

DESC = """; One launch, 256 workgroups of 8 waves (one per CU); later ids exit at once. Generated by a script of the author's.
;  ids 64..255 one slice of the query projections, GQA attention of one (batch, kv head): 6912 keys split statically
; at d_ws[0], which the launch replaces by its tag at the end; every wait is bounded."""

class G:
    def __init__(self, **kw):
        self.c = dict(DEF); self.c.update(kw)
        self.a = Asm(); c = self.c
        self.NF = (2048 - 48 * c['NS']) // c['nsub'] // c['UT']
        self.NW = 4 if c['hT'] else 6
        self.USH = 10 + c['UT'] - 1
        self.TSH = self.USH + c['nsub'].bit_length() - 1
    def reset(self, vm=()): self.a.vm = list(vm); self.a.lg = []; self.a.hist = []
    def srd(self, d, lo, hi, size):
        self.a(f"s_mov_b32 s{d}, {lo}\ns_and_b32 s{d+1}, {hi}, 0xffff\ns_mov_b32 s{d+2}, {size}\ns_mov_b32 s{d+3}, 0x20000")
    def late_prologue(self):
        if self.c['wsb']: self.a(f"s_add_u32 s32, s32, {self.c['wsb']}\ns_addc_u32 s33, s33, 0")
        self.a("s_load_dword s34, s[32:33], 0"); self.srd(36, "s32", "s33", WS_USED)
    def get_tag(self):
        self.a("s_waitcnt lgkmcnt(0)\ns_mul_i32 s35, s34, 1664525\ns_add_u32 s35, s35, 1013904223"); self.a.lg = []
    def stamp(self, k):
        e = self.c.get('enc')
        if self.c['stamps'] or (e and k in (0, e[1])): self.a(f"s_memrealtime s[{80+2*k}:{81+2*k}]")
    def stamp_flush(self):
        e = self.c.get('enc')
        if e:
            a = self.a; L = a.newlabel("L_noenc"); Lq = a.newlabel("L_enc")
            if e[0] == -1: a(f"s_waitcnt vmcnt(0)\ns_memrealtime s[{80+2*e[1]}:{81+2*e[1]}]\ns_waitcnt lgkmcnt(0)")
            else: a(f"s_cmp_lg_u32 s3, 0\ns_cbranch_scc1 {L}\ns_cmp_lg_u32 s2, {e[0]}\ns_cbranch_scc1 {L}\ns_waitcnt lgkmcnt(0)")
            a(f"s_sub_u32 s52, s{80+2*e[1]}, s80\ns_mul_i32 s52, s52, {e[2]}\ns_add_u32 s52, s52, 5000\ns_min_u32 s52, s52, 100000")
            a(f"{Lq}:\ns_sleep 8\ns_memrealtime s[78:79]\ns_waitcnt lgkmcnt(0)\ns_sub_u32 s54, s78, s80\ns_cmp_lt_u32 s54, s52\ns_cbranch_scc1 {Lq}\n{L}:")
        if not self.c['stamps']: return
        a = self.a; L = a.newlabel("L_nost")
        a(f"s_cmp_lg_u32 s3, 0\ns_cbranch_scc1 {L}\ns_waitcnt lgkmcnt(0)")
        for k in range(11): a(f"v_mov_b32 v{2+k}, s{80+2*k}")
        a(f"s_lshl_b32 s52, s2, 6\ns_add_u32 s52, s52, {STAMP}\nv_mov_b32 v1, 0\ns_mov_b64 exec, 1")
        for k in range(3): a(f"buffer_store_dwordx4 v[{2+4*k}:{5+4*k}], v1, s[36:39], s52 offen offset:{16*k}")
        a(f"s_mov_b64 exec, -1\n{L}:")
    def sels(self):
        a = self.a
        a("""v_and_b32 v48, 1, v0
        v_mov_b32 v49, 0x0c0c0100
        v_mov_b32 v50, 0x01000c0c
        v_mov_b32 v51, 0x0c0c0302
        v_mov_b32 v52, 0x03020c0c
        v_mov_b32 v53, 0x0c0c0c0c
        v_cmp_eq_u32 vcc, 1, v48
        v_bfe_u32 v54, v0, 1, 2
        v_cndmask_b32 v49, v49, v50, vcc
        v_cndmask_b32 v51, v51, v52, vcc""")
        for k in range(4): a(f"v_cmp_eq_u32 vcc, {k}, v54\nv_cndmask_b32 v{2+k}, v53, v49, vcc\nv_cndmask_b32 v{6+k}, v53, v51, vcc")
    def timeout(self, code):
        self.a(f"v_mov_b32 v62, {code}\nv_mov_b32 v63, 0\nglobal_store_dword v63, v62, s[30:31] offset:64")
    def poll_flags(self, voff, code, sleep):
        a = self.a; Ls = a.newlabel("L_pskip"); Lp = a.newlabel("L_poll")
        keep = a.vm[:]
        a(f"s_cmp_lg_u32 s3, 0\ns_cbranch_scc1 {Ls}\ns_mov_b32 s53, {self.c['spin']}\n{Lp}:")
        a(f"buffer_load_dword v61, v{voff}, s[36:39], 0 offen sc1\ns_waitcnt vmcnt(0)")
        a(f"v_cmp_ne_u32 vcc, s35, v61\ns_cbranch_vccz {Ls}\ns_sleep {sleep}\ns_sub_u32 s53, s53, 1\ns_cbranch_scc0 {Lp}")
        self.timeout(code)
        a(f"{Ls}:\ns_barrier"); a.vm = keep
    def tagcheck(self, tags, t):
        a = self.a
        a(f"v_xor_b32 v{t}, s35, v{tags[0]}")
        for r in tags[1:]: a(f"v_bitop3_b32 v{t}, v{t}, v{r}, s35 bitop3:0xf6")
        a(f"v_cmp_ne_u32 vcc, 0, v{t}")
    def poll_granules(self, issue, tags, code, first_issued=False, sleep=0, after_first=None):
        a = self.a; Lp = a.newlabel("L_gpoll"); Ld = a.newlabel("L_gdone"); Lc = a.newlabel("L_gchk")
        a(f"s_mov_b32 s53, {self.c['spin']}")
        if first_issued:
            a.wait_vm('pg')
            if after_first: after_first()
            self.tagcheck(tags, 48); a(f"s_cbranch_vccz {Ld}")
        save = a.vm[:]
        a(f"{Lp}:")
        issue(); a("s_waitcnt vmcnt(0)")
        self.tagcheck(tags, 48)
        a(f"s_cbranch_vccz {Ld}")
        if sleep: a(f"s_sleep {sleep}")
        a(f"s_sub_u32 s53, s53, 1\ns_cbranch_scc0 {Lp}")
        self.timeout(code)
        a(f"s_waitcnt vmcnt(0)\n{Ld}:")
        a.vm = save if first_issued else []
    def poll_lds(self, reads, tags, code):
        a = self.a; Lp = a.newlabel("L_lp"); Ld = a.newlabel("L_lpd")
        a(f"s_mov_b32 s53, {self.c['spin'] * 4}\n{Lp}:")
        reads(); a.wait_lg()
        self.tagcheck(tags, 48)
        a(f"s_cbranch_vccz {Ld}\ns_sub_u32 s53, s53, 1\ns_cbranch_scc0 {Lp}")
        keep = a.vm[:]; self.timeout(code); a.vm = keep
        a(f"{Ld}:")
    def poll_pipe(self, issue, tags, nld, nset, code, take):
        a = self.a; Lp = a.newlabel("L_pp"); Ld = [a.newlabel("L_ppd") for _ in range(nset)]; Le = a.newlabel("L_ppe")
        a(f"s_mov_b32 s53, {self.c['spin']}")
        for k in range(nset - 1): issue(k)
        a(f"{Lp}:")
        for k in range(nset):
            issue((k + nset - 1) % nset)
            a(f"s_waitcnt vmcnt({(nset - 1) * nld})")
            self.tagcheck(tags(k), 48)
            a(f"s_cbranch_vccz {Ld[k]}")
        a(f"s_sub_u32 s53, s53, 1\ns_cbranch_scc0 {Lp}")
        self.timeout(code)
        for k in range(nset):
            a(f"{Ld[k]}:"); take(k)
            if k < nset - 1: a(f"s_branch {Le}")
        a(f"{Le}:"); a.vm = []
    def qk(self, K, T, U, mid=None):
        a = self.a; n = len(K)
        for kk in range(4):
            for t in range(n):
                for h in range(2):
                    a(f"v_dot2_f32_bf16 v{T+2*t+h}, v{K[t]+kk}, v{10+8*h+2*kk}, {'0' if kk == 0 else f'v{T+2*t+h}'}")
        if mid: mid()
        for t in range(n): a(f"v_add_f32_dpp v{U[t]}, v{T+2*t}, v{T+2*t} row_ror:8 row_mask:0xf bank_mask:0x3")
        for t in range(n): a(f"v_add_f32_dpp v{U[t]}, v{T+2*t+1}, v{T+2*t+1} row_ror:8 row_mask:0xf bank_mask:0xc")
        self.red8(U[:n], "v_add_f32")
    def bop(self, dst, src, sel):
        for k in range(4): self.a(f"v_perm_b32 v{dst+k}, v{src}, v{src}, v{sel+k}")
    def red8(self, regs, op):
        for m in ("row_half_mirror", "quad_perm:[1,0,3,2]", "quad_perm:[2,3,0,1]"):
            for r in regs: self.a(f"{op}_dpp v{r}, v{r}, v{r} {m} row_mask:0xf bank_mask:0xf")
    def redrows(self, r, t, op):
        self.a(f"v_mov_b32 v{t}, v{r}\nv_permlane16_swap_b32 v{r}, v{t}\n{op} v{r}, v{r}, v{t}")
        self.a(f"v_mov_b32 v{t}, v{r}\nv_permlane32_swap_b32 v{r}, v{t}\n{op} v{r}, v{r}, v{t}")
    def mfma16(self, d, A, B): self.a(f"v_mfma_f32_16x16x32_bf16 v[{d}:{d+3}], v[{A}:{A+3}], v[{B}:{B+3}], v[{d}:{d+3}]")
    def acc_addr(self, dst, t, base):
        self.a(f"""v_and_b32 v{dst}, 7, v0
        v_lshlrev_b32 v{dst}, 4, v{dst}
        v_bfe_u32 v{t}, v0, 3, 2
        v_lshl_add_u32 v{dst}, v{t}, 2, v{dst}
        v_lshrrev_b32 v{t}, 5, v0
        v_lshl_add_u32 v{dst}, v{t}, 8, v{dst}
        s_and_b32 s52, s3, 1
        s_lshl_b32 s52, s52, 9
        s_lshr_b32 s54, s3, 1
        s_lshl_b32 s54, s54, 7
        s_add_u32 s52, s52, s54
        s_add_u32 s52, s52, {base}
        v_add_u32 v{dst}, s52, v{dst}""")
    def rec_store(self, r, vo=50, so=52):
        a = self.a
        a(f"v_mov_b32_dpp v55, v{r} quad_perm:[1,0,3,2] row_mask:0xf bank_mask:0xf\nv_cvt_pk_bf16_f32 v56, v{r}, v55")
        a("v_mov_b32_dpp v57, v56 quad_perm:[2,3,0,1] row_mask:0xf bank_mask:0xf\ns_mov_b32 exec_lo, 0x11111111\ns_mov_b32 exec_hi, 0x11111111")
        a(f"buffer_store_dwordx4 v[56:59], v{vo}, s[36:39], s{so} offen sc1\ns_mov_b64 exec, -1"); a.vm.pop()
    def flag_store(self, sreg):
        self.a(f"v_mov_b32 v50, s35\nv_mov_b32 v51, 0\ns_mov_b64 exec, 1\nbuffer_store_dword v50, v51, s[36:39], {sreg} offen sc1\ns_mov_b64 exec, -1"); self.a.vm.pop()

    def wload(self, t): self.a(f"s_mov_b32 s51, {t*16384}\nbuffer_load_dwordx4 v[{WR+4*t}:{WR+4*t+3}], v28, s[72:75], s51 offen nt", tag=('w', t))
    def uload(self, t): self.a(f"s_mov_b32 s51, {t*8192}\nbuffer_load_dwordx4 v[{UR+4*t}:{UR+4*t+3}], v28, s[72:75], s51 offen nt", tag=('u', t))
    def dma(self, t):
        a = self.a; q = t % 8
        if q == 0: a("s_and_b32 s62, s62, 0x7fffff")
        a(f"s_add_u32 m0, s60, {q*1024}\ns_add_u32 s51, s62, {q*8192}\nbuffer_load_dwordx4 v{DV + (q & 1)}, s[76:79], s51 offen nt lds", tag='d')
        if q == 7: a("s_add_u32 s62, s62, 0x200000\ns_xor_b32 s60, s60, 0x10000")
    def entry(self, LS1, LS2, LH, LE):
        a = self.a; c = self.c
        a.raw(f".globl {KN}\n.p2align 8\n.type {KN},@function\n{KN}:")
        a(f"s_cmp_ge_u32 s2, 256\ns_cbranch_scc1 {LE}")
        self.stamp(0)
        L2 = a.newlabel("L_e2"); L3 = a.newlabel("L_eh"); L4 = a.newlabel("L_e1")
        a(f"""s_load_dwordx16 s[4:19], s[0:1], 0
        s_load_dwordx8 s[20:27], s[0:1], 64
        s_load_dwordx4 s[28:31], s[0:1], 96
        s_load_dwordx2 s[32:33], s[0:1], 112
        v_lshrrev_b32 v1, 6, v0
        v_and_b32 v0, 63, v0
        v_readfirstlane_b32 s3, v1
        v_lshlrev_b32 v1, 4, v0
        s_cmp_lt_u32 s2, 64
        s_cbranch_scc1 {L3}""")
        if c['xmap']:
            a(f"""s_sub_u32 s48, s2, 64
            s_mul_i32 s49, s48, 171
            s_lshr_b32 s49, s49, 12
            s_mul_i32 s52, s49, 24
            s_sub_u32 s52, s48, s52
            s_lshr_b32 s54, s52, 3
            s_bfe_u32 s55, s52, 0x10002
            s_add_u32 s52, s52, s54
            s_add_u32 s52, s52, 1
            s_and_b32 s52, s52, 3
            s_lshl_b32 s49, s49, 2
            s_add_u32 s49, s49, s52
            s_lshl_b32 s50, s54, 1
            s_add_u32 s50, s50, s55
            s_lshl_b32 s57, s49, 1
            s_cmp_eq_u32 s54, 2
            s_cselect_b32 s66, 2, s55
            s_cselect_b32 s52, s55, s54
            s_add_u32 s57, s57, s52
            s_cmp_eq_u32 s66, 2
            s_cbranch_scc1 {L2}""")
        else:
            a(f"""s_sub_u32 s48, s2, 64
            s_mul_i32 s49, s48, 171
            s_lshr_b32 s49, s49, 10
            s_mul_i32 s50, s49, 6
            s_sub_u32 s50, s48, s50
            s_cmp_ge_u32 s50, 3
            s_cselect_b32 s52, 3, 0
            s_cselect_b32 s57, 1, 0
            s_sub_u32 s66, s50, s52
            s_lshl_b32 s52, s49, 1
            s_add_u32 s57, s57, s52
            s_cmp_eq_u32 s66, 2
            s_cbranch_scc1 {L2}""")
        a("""v_lshrrev_b32 v48, 4, v0
        v_mul_u32_u24 v49, 18, v48
        v_bfe_u32 v50, v0, 3, 1
        v_add_u32 v51, v49, v50
        s_mul_i32 s52, s3, 72
        v_add_u32 v51, s52, v51
        v_lshlrev_b32 v28, 13, v51
        v_and_b32 v51, 7, v0
        v_lshl_add_u32 v28, v51, 4, v28
        s_lshl_b32 s54, s57, 7
        v_add_u32 v28, s54, v28
        v_lshlrev_b32 v62, 3, v0
        v_add_u32 v51, 1008, v62
        v_cmp_lt_u32 vcc, 17, v0
        s_lshl_b32 s52, s52, 1
        v_mov_b32 v52, 0x10000
        v_cndmask_b32 v63, v62, v51, vcc
        v_cmp_lt_u32 vcc, 35, v0
        v_add_u32 v63, s52, v63
        s_cmp_eq_u32 s66, 0
        v_cndmask_b32 v63, v63, v52, vcc
        s_waitcnt lgkmcnt(0)
        s_cselect_b32 s54, s18, s10
        s_cselect_b32 s55, s19, s11""")
        self.srd(72, "s54", "s55", 576 * 8192); self.srd(76, "s4", "s5", 2304)
        a("buffer_load_dwordx2 v[20:21], v63, s[76:79], 0 offen")
        for t in range(c['W0']): self.wload(t)
        a(f"s_cmp_lg_u32 s66, 0\ns_cbranch_scc1 {LS1}")
        for t in range(c['W0'], 4): self.wload(t)
        a(f"s_branch {LS1}")
        a(f"{L2}:"); self.reset()
        a("""s_lshr_b32 s56, s57, 4
        s_and_b32 s52, s57, 15
        s_lshl_b32 s52, s52, 2
        s_lshr_b32 s54, s3, 1
        s_add_u32 s52, s52, s54
        s_lshl_b32 s52, s52, 16
        s_lshl_b32 s54, s56, 1
        s_and_b32 s55, s3, 1
        s_add_u32 s54, s54, s55
        s_lshl_b32 s55, s54, 10
        s_add_u32 s52, s52, s55
        v_add_u32 v28, s52, v1
        s_waitcnt lgkmcnt(0)""")
        self.srd(72, "s20", "s21", 512 * 8192)
        for t in range(c['W0']): self.uload(t)
        a(f"s_branch {LS2}")
        a(f"{L3}:"); self.reset()
        a("v_lshrrev_b32 v48, 3, v0\nv_and_b32 v49, 7, v0\ns_lshl_b32 s52, s3, 7\nv_lshlrev_b32 v50, 10, v48\nv_add_u32 v50, s52, v50\nv_lshrrev_b32 v52, 4, v0")
        for q in range(2): a(f"v_add_u32 v51, {4*q}, v52\nv_xor_b32 v51, v51, v49\nv_lshl_add_u32 v{DV+q}, v51, 4, v50")
        a(f"""s_lshr_b32 s63, s2, 5
        s_and_b32 s64, s2, 31
        s_lshl_b32 s60, s3, 13
        s_mul_i32 s62, s63, {c['rotb'] << 21}
        s_lshl_b32 s52, s64, 16
        s_add_u32 s62, s62, s52
        s_lshl_b32 s52, s63, 23
        s_waitcnt lgkmcnt(0)
        s_add_u32 s54, s16, s52
        s_addc_u32 s55, s17, 0""")
        self.srd(76, "s54", "s55", 0x800000)
        for t in range(c['WH']): self.dma(t)
        a(f"s_branch {LH}")

    def a_common(self):
        a = self.a; c = self.c
        self.late_prologue()
        a("s_lshl_b32 s52, s49, 21\ns_add_u32 s54, s6, s52\ns_addc_u32 s55, s7, 0")
        self.srd(40, "s54", "s55", 0x200000)
        a("s_add_u32 s54, s8, s52\ns_addc_u32 s55, s9, 0")
        self.srd(44, "s54", "s55", 0x200000)
        a(f"""s_mul_i32 s52, s49, {c['rot']}
        s_lshl_b32 s60, s50, 3
        s_add_u32 s60, s60, s3
        s_lshl_b32 s60, s60, 12
        s_add_u32 s60, s60, s52
        s_mul_i32 s54, s50, {c['subrot']}
        s_add_u32 s54, s54, s3
        s_and_b32 s54, s54, {c['nsub'] - 1}
        s_lshl_b32 s61, s54, {self.USH}
        s_add_u32 s61, s61, s52
        s_add_u32 s61, s61, {c['NS']*48*1024}
        s_lshl_b32 s62, s49, 3
        s_add_u32 s62, s62, s54
        s_lshl_b32 s62, s62, 7
        s_add_u32 s62, s62, {CNT}
        s_lshl_b32 s52, s49, 10
        s_add_u32 s52, s52, {Q}
        v_and_b32 v29, 15, v0
        v_lshlrev_b32 v29, 4, v29
        v_add_u32 v29, s52, v29
        s_mov_b32 s58, {LOG2E}
        v_mov_b32 v{ZERO}, 0""")
        self.sels()
        if c['hT']:
            a("""s_cmp_ge_u32 s48, 96
            s_cselect_b32 s63, 1, 0
            s_mul_i32 s52, s63, 96
            s_sub_u32 s52, s48, s52
            s_mul_i32 s64, s52, 171
            s_lshr_b32 s64, s64, 9
            s_mul_i32 s65, s64, 3
            s_sub_u32 s65, s52, s65""")
            self.t_addr(False)
        elif c['dynT']:
            self.srd(68, "s30", "s31", 256)
            a("s_and_b32 s63, s48, 1\ns_lshl_b32 s64, s63, 7\ns_mov_b32 s59, 0")
        else: self.t_addr192()
        if c['pre0'] is not None:
            L = a.newlabel("L_npt")
            a(f"s_cmp_lg_u32 s3, {c['pre0']}\ns_cbranch_scc1 {L}\ns_mov_b64 exec, 1")
            keep = a.vm[:]
            for srd, v in (("s[40:43]", ZERO), ("s[44:47]", ZERO), ("s[68:71]", 30), ("s[36:39]", 29)):
                a(f"buffer_load_dword v82, v{v}, {srd}, 0 offen nt")
            a.vm = keep
            a(f"s_mov_b64 exec, -1\n{L}:")
        self.get_tag()
    def t_addr192(self):
        a = self.a
        if self.c['tmix']: a("s_and_b32 s52, s50, 1\ns_mul_i32 s52, s52, 96\ns_mul_i32 s48, s49, 3\ns_add_u32 s48, s48, s52\ns_lshr_b32 s52, s50, 1\ns_add_u32 s48, s48, s52")
        a("""s_cmp_ge_u32 s48, 96
        s_cselect_b32 s63, 1, 0
        s_cselect_b32 s54, s24, s12
        s_cselect_b32 s55, s25, s13
        s_cselect_b32 s67, 2.0, 1.0
        s_mul_i32 s52, s63, 96
        s_sub_u32 s52, s48, s52
        s_mul_i32 s64, s52, 171
        s_lshr_b32 s64, s64, 9
        s_mul_i32 s65, s64, 3
        s_sub_u32 s65, s52, s65""")
        self.srd(68, "s54", "s55", 4096 * 1152)
        a("""s_lshl_b32 s52, s64, 3
        s_add_u32 s52, s52, s3
        s_mul_i32 s52, s52, 18432
        s_mul_i32 s54, s65, 384
        s_add_u32 s52, s52, s54
        v_lshrrev_b32 v48, 4, v0
        v_mul_u32_u24 v30, 4608, v48
        v_add_u32 v30, s52, v30
        v_bfe_u32 v49, v0, 3, 1
        v_mul_u32_u24 v31, 1152, v49
        v_add_u32 v31, v31, v30
        v_and_b32 v50, 7, v0
        v_lshl_add_u32 v31, v50, 4, v31
        v_add_u32 v31, 256, v31
        v_and_b32 v51, 15, v0
        v_lshl_add_u32 v30, v51, 4, v30""")
    def t_addr(self, half):
        a = self.a
        a("""s_cmp_eq_u32 s63, 1
        s_cselect_b32 s54, s24, s12
        s_cselect_b32 s55, s25, s13
        s_cselect_b32 s67, 2.0, 1.0""")
        self.srd(68, "s54", "s55", 4096 * 1152)
        a("""s_lshl_b32 s52, s64, 3
        s_add_u32 s52, s52, s3
        s_mul_i32 s52, s52, 18432
        s_lshl_b32 s54, s65, 8
        s_add_u32 s52, s52, s54
        v_lshrrev_b32 v48, 4, v0
        v_mul_u32_u24 v86, 4608, v48
        v_add_u32 v86, s52, v86""".replace("v86", "v30"))
        if half:
            a("""v_bfe_u32 v49, v0, 3, 1
            v_mul_u32_u24 v31, 1152, v49
            v_add_u32 v31, v31, v30
            v_and_b32 v50, 7, v0
            v_lshl_add_u32 v31, v50, 4, v31
            v_add_u32 v31, 256, v31""")
        a("v_and_b32 v51, 15, v0\nv_lshl_add_u32 v30, v51, 4, v30")
    def ring(self, j): return RING + 4 * (j % self.c['R'])
    def kv(self, j):
        a = self.a; NS = self.c['NS']; jj = j % NS
        if jj % 4 == 0: a(f"s_add_u32 s51, s60, {(jj//4)*48*4096}\ns_and_b32 s51, s51, 0x1fffff")
        a(f"buffer_load_dwordx4 v[{self.ring(j)}:{self.ring(j)+3}], v1, {'s[40:43]' if j < NS else 's[44:47]'}, s51 offen offset:{(jj % 4) * 1024} nt", tag=('kv', j))
    def head_s1(self):
        a = self.a; c = self.c; W, W0, IM = c['W'], c['W0'], c['IQ']
        self.reset(['x'] + [('w', t) for t in range(4)])
        a(f"""v_lshrrev_b32 v48, 4, v0
        v_mul_u32_u24 v61, 36, v48
        v_bfe_u32 v50, v0, 3, 1
        v_mul_u32_u24 v50, 144, v50
        s_lshl_b32 s54, s3, 9
        s_add_u32 s54, s54, {XL}
        v_add3_u32 v61, v61, v50, s54
        v_add_u32 v62, s54, v62
        s_cmp_eq_u32 s66, 0
        s_cselect_b32 s56, 32768, 0
        s_lshr_b32 s54, s57, 1
        s_lshl_b32 s54, s54, 9
        s_add_u32 s56, s56, s54
        s_and_b32 s54, s57, 1
        s_lshl_b32 s54, s54, 7
        s_add_u32 s56, s56, s54
        s_add_u32 s56, s56, {Q}""")
        self.a_common()
        Ly = a.newlabel("L_y"); Lz = a.newlabel("L_nozero")
        a(f"s_cmp_eq_u32 s66, 0\ns_cbranch_scc1 {Ly}")
        a(f"""s_and_b32 s52, s57, 3
        s_lshr_b32 s54, s3, 1
        s_or_b32 s52, s52, s54
        s_cmp_lg_u32 s52, 0
        s_cbranch_scc1 {Lz}
        s_lshl_b32 s52, s3, 4
        s_lshr_b32 s54, s57, 2
        s_add_u32 s52, s52, s54
        s_lshl_b32 s52, s52, 10
        s_add_u32 s52, s52, {CNT}
        v_lshlrev_b32 v48, 7, v0
        s_mov_b64 exec, 0xff
        buffer_store_dword v{ZERO}, v48, s[36:39], s52 offen sc1
        s_mov_b64 exec, -1
        {Lz}:"""); a.vm.pop()
        keep = a.vm[:]
        for t in range(W0, 4): a(f"s_waitcnt vmcnt({W0 - 1})"); self.wload(t)
        a.vm = keep
        a(f"{Ly}:")
        seq = [('w', t) for t in range(4, 9)] + [('kv', j) for j in range(IM)]
        I = 0
        def issue():
            nonlocal I
            x = seq[I]; I += 1
            if I + 3 < c['n0']:
                L = a.newlabel("L_y"); a(f"s_cmp_eq_u32 s66, 0\ns_cbranch_scc1 {L}\ns_waitcnt vmcnt({W0 - 1})\n{L}:")
            self.kv(x[1]) if x[0] == 'kv' else self.wload(x[1])
        for r in range(32, 40): a(f"v_mov_b32 v{r}, 0")
        a.wait_vm('x')
        a("ds_write_b64 v62, v[20:21]")
        for k in range(4): a(f"ds_read2_b32 v[{10+2*k}:{11+2*k}], v61 offset0:{2*k} offset1:{2*k+1}")
        a("ds_read_b32 v18, v61 offset:32")
        a.wait_lg()
        for t in range(9):
            self.bop(40, 10 + t, 2); self.bop(44, 10 + t, 6)
            a.wait_vm(('w', t))
            while I < len(seq) and len(a.vm) < (4 if I < 5 else W): issue()
            self.mfma16(32, WR + 4 * t, 40); self.mfma16(36, WR + 4 * t, 44)
        a(f"v_cmp_lt_u32 vcc, 31, v0\ns_lshl_b32 s52, s3, 10\ns_add_u32 s52, s52, {S1L}\nv_add_u32 v48, s52, v1")
        for r in range(4): a(f"v_cndmask_b32 v{32+r}, v{32+r}, v{36+r}, vcc")
        a("ds_write_b128 v48, v[32:35]")
        a.wait_lg(); a("s_barrier")
        Ls = a.newlabel("L_s1skip")
        a(f"""s_cmp_ge_u32 s3, 2
        s_cbranch_scc1 {Ls}
        v_and_b32 v48, 7, v0
        v_lshlrev_b32 v48, 4, v48
        v_bfe_u32 v49, v0, 3, 2
        v_lshl_add_u32 v48, v49, 2, v48
        v_lshrrev_b32 v49, 5, v0
        v_lshl_add_u32 v48, v49, 8, v48
        s_lshl_b32 s52, s3, 7
        s_add_u32 s52, s52, {S1L}
        v_add_u32 v48, s52, v48""")
        for s in range(16):
            a(f"ds_read_b32 v{32+s}, v48 offset:{512*s}")
            if s == 11: a.wait_lg()
        a("""s_lshl_b32 s52, s3, 14
        s_add_u32 s52, s52, s56
        v_mov_b32 v53, s35
        v_bfe_u32 v50, v0, 2, 1
        v_lshlrev_b32 v50, 8, v50
        v_lshrrev_b32 v51, 3, v0
        v_lshl_add_u32 v50, v51, 4, v50
        v_bfe_u32 v51, v0, 1, 1
        v_lshl_add_u32 v50, v51, 3, v50""")
        a.wait_lg()
        for st in (8, 4, 2, 1):
            for s in range(st): a(f"v_add_f32 v{32+s}, v{32+s}, v{32+s+st}")
        Lw = a.newlabel("L_s1w")
        a(f"s_cmp_eq_u32 s66, 0\ns_cbranch_scc1 {Lw}\ns_waitcnt vmcnt(0)\n{Lw}:")
        a("v_mov_b32_dpp v33, v32 quad_perm:[1,0,3,2] row_mask:0xf bank_mask:0xf")
        a("v_cvt_pk_bf16_f32 v52, v32, v33\ns_mov_b32 exec_lo, 0x55555555\ns_mov_b32 exec_hi, 0x55555555")
        a("buffer_store_dwordx2 v[52:53], v50, s[36:39], s52 offen sc1\ns_mov_b64 exec, -1"); a.vm.pop()
        a(f"{Ls}:")
        self.stamp(9)
        while I < len(seq): a.wait_vm_n(W - 1); issue()
    def head_s2(self):
        a = self.a; c = self.c; W, W0, IM = c['W'], c['W0'], c['IQ']
        self.reset([('u', t) for t in range(W0)])
        a(f"""s_lshl_b32 s54, s54, 11
        s_add_u32 s54, s54, {Q + 32768}
        v_lshrrev_b32 v48, 4, v0
        v_lshlrev_b32 v59, 9, v48
        v_and_b32 v49, 15, v0
        v_lshl_add_u32 v59, v49, 4, v59
        v_add_u32 v59, s54, v59
        s_mov_b32 s76, 16384
        v_bfe_u32 v50, v0, 3, 1
        v_lshlrev_b32 v60, 9, v50
        v_lshl_add_u32 v60, v48, 4, v60
        s_lshr_b32 s52, s3, 1
        s_lshl_b32 s52, s52, 7
        s_and_b32 s55, s3, 1
        s_lshl_b32 s55, s55, 6
        s_add_u32 s52, s52, s55
        s_add_u32 s52, s52, {S2L}
        v_add_u32 v60, s52, v60
        v_add_u32 v51, {S2L + 1024}, v1
        v_and_b32 v50, 7, v0
        v_cmp_lt_u32 vcc, 0, v50
        v_cndmask_b32 v60, v60, v51, vcc""")
        self.a_common()
        seq = [('u', t) for t in range(8)] + [('kv', j) for j in range(IM)]
        I = W0
        def issue():
            nonlocal I
            x = seq[I]; I += 1
            self.kv(x[1]) if x[0] == 'kv' else self.uload(x[1])
        def more(n=1):
            for _ in range(n):
                if I < len(seq): a.wait_vm_n((W0 if I < c['n0'] else W) - 1); issue()
        while ('kv', c['iq2'] - 1) in seq[I:]: more()
        if c['qsh'] & 2:
            def q1(): a("buffer_load_dwordx4 v[10:13], v58, s[36:39], 0 offen sc1", tag='pg')
            a(f"""s_lshl_b32 s52, s56, 3
            s_add_u32 s52, s52, s3
            s_lshl_b32 s52, s52, 9
            s_add_u32 s52, s52, {Q + 32768}
            v_lshrrev_b32 v48, 5, v0
            v_lshlrev_b32 v58, 14, v48
            v_and_b32 v48, 31, v0
            v_lshl_add_u32 v58, v48, 4, v58
            v_add_u32 v58, s52, v58""")
            q1()
            while sum(1 for x in a.vm[a.vm.index('pg'):] if x != 'pg') < W - 1: a.wait_vm_n(W); issue()
            self.poll_granules(q1, [11, 13], 2, first_issued=True, sleep=1)
            a(f"""s_lshl_b32 s52, s3, 10
            v_add_u32 v48, s52, v1
            ds_write_b128 v48, v[10:13]
            s_and_b32 s52, s3, 1
            s_lshl_b32 s52, s52, 12
            v_lshrrev_b32 v49, 4, v0
            v_lshlrev_b32 v49, 10, v49
            v_and_b32 v50, 15, v0
            v_lshl_add_u32 v49, v50, 4, v49
            v_add_u32 v49, s52, v49""")
            while len(a.vm) < W: issue()
            def rd():
                for b in range(2):
                    for k in range(2): a(f"ds_read_b128 v[{10+8*b+4*k}:{13+8*b+4*k}], v49 offset:{512*b+256*k}")
            self.poll_lds(rd, QTAGS, 11)
        else:
            def qissue():
                for b in range(2):
                    for k in range(2):
                        a(f"buffer_load_dwordx4 v[{10+8*b+4*k}:{13+8*b+4*k}], v59, s[36:39], {'s76' if b else '0'} offen offset:{256*k} sc1", tag='pg')
            qissue()
            while sum(1 for x in a.vm[a.vm.index('pg'):] if x != 'pg') < W - 1: a.wait_vm_n(W + 3); issue()
            if not c.get('dQ'): self.poll_granules(qissue, QTAGS, 2, first_issued=True, sleep=1)
        self.stamp(9)
        while len(a.vm) < W: issue()
        for n in range(2):
            self.qk([UR + 16 * n + 4 * t for t in range(4)], 36, [44 + 4 * n + t for t in range(4)]); more()
        for k in range(4): a(f"v_cvt_pk_bf16_f32 v{52+k}, v{44+2*k}, v{45+2*k}")
        a("ds_write_b128 v60, v[52:55]")
        a.wait_lg(); a("s_barrier")
        Ls = a.newlabel("L_s2skip")
        a(f"""s_cmp_lg_u32 s3, 7
        s_cbranch_scc1 {Ls}
        v_add_u32 v48, {S2L}, v1
        ds_read_b128 v[52:55], v48
        v_lshrrev_b32 v49, 5, v0
        v_lshlrev_b32 v49, 15, v49
        v_bfe_u32 v50, v0, 3, 2
        v_lshl_add_u32 v49, v50, 10, v49
        v_and_b32 v50, 7, v0
        v_lshl_add_u32 v49, v50, 4, v49
        s_lshr_b32 s52, s56, 1
        s_lshl_b32 s52, s52, 14
        s_and_b32 s54, s57, 3
        s_lshl_b32 s54, s54, 12
        s_add_u32 s52, s52, s54
        s_bfe_u32 s54, s57, 0x20002
        s_lshl_b32 s54, s54, 8
        s_add_u32 s52, s52, s54
        s_and_b32 s54, s56, 1
        s_lshl_b32 s54, s54, 7
        s_add_u32 s52, s52, s54
        s_add_u32 s52, s52, {QABS}""")
        a.wait_lg()
        a("buffer_store_dwordx4 v[52:55], v49, s[36:39], s52 offen sc1"); a.vm.pop()
        if c['s2wait'] == 0:
            a(f"s_lshl_b32 s54, s57, 7\ns_add_u32 s54, s54, {FQ}\ns_waitcnt vmcnt(0)")
            self.flag_store("s54")
            a(f"{Ls}:")
        else:
            a(f"{Ls}:")
            more(c['s2wait'])
            Ls = a.newlabel("L_s2flag")
            a(f"s_cmp_lg_u32 s3, 7\ns_cbranch_scc1 {Ls}\ns_lshl_b32 s54, s57, 7\ns_add_u32 s54, s54, {FQ}\ns_waitcnt vmcnt({c['s2wait'] if c.get('s2cnt') else 0})")
            self.flag_store("s54")
            a(f"{Ls}:")
        while I < len(seq): more()
    def qissue(self):
        for h in range(2):
            for k in range(2):
                self.a(f"buffer_load_dwordx4 v[{10+8*h+4*k}:{13+8*h+4*k}], v29, s[36:39], 0 offen offset:{512*h+256*k} sc1", tag='pg')
    def ticket(self, k):
        self.a(f"v_mov_b32 v{TK+k}, 1\ns_mov_b64 exec, 1\nbuffer_atomic_add v{TK+k}, v{ZERO}, s[36:39], s62 offen sc0\ns_mov_b64 exec, -1", tag=('tk', k))
    def unit_loads(self, r, srd, tag=None):
        for t in range(self.c['UT']): self.a(f"buffer_load_dwordx4 v[{r+4*t}:{r+4*t+3}], v1, {srd}, s51 offen offset:{1024*t} nt", tag=tag)
    def t_load(self, k):
        r = TW[k]
        if k < 4: self.a(f"buffer_load_dwordx4 v[{r}:{r+3}], v30, s[68:71], 0 offen offset:{k*1152} nt")
        else: self.a(f"buffer_load_dwordx4 v[{r}:{r+3}], v31, s[68:71], 0 offen offset:{(k-4)*2304} nt")
    def a_static(self):
        a = self.a; c = self.c; W, R, NS, IM = c['W'], c['R'], c['NS'], c['IQ']; ring = self.ring
        assert RING + 4 * R <= 256 and NS % 4 == 0 and SREG + NS // 2 <= 82 and ring(IM + W) < WR
        assert all(ring(j) >= TW[5] + 4 for j in range(2 * NS - 10, 2 * NS))
        self.reset([('kv', j) for j in range(IM - W, IM)])
        I = IM
        a(f"v_mov_b32 v26, {NEGINF}\nv_mov_b32 v27, 0\nv_mov_b32 v32, 0\nv_mov_b32 v33, 0\nv_mov_b32 v34, 0\nv_mov_b32 v35, 0")
        if c['qsh'] & 1:
            def q1(): a("buffer_load_dwordx4 v[10:13], v1, s[36:39], s79 offen sc1", tag='pg')
            L = a.newlabel("L_q0")
            a(f"s_lshl_b32 s79, s49, 10\ns_add_u32 s79, s79, {Q}\ns_cmp_lg_u32 s3, 0\ns_cbranch_scc1 {L}")
            q1(); a.vm.pop(); a(f"{L}:")
            i0 = I
            while I < c['ICHK']:
                if I < i0 + W:
                    L = a.newlabel("L_q0"); keep = a.vm[-(W - 1):]
                    a(f"s_waitcnt vmcnt({W})\ns_cmp_eq_u32 s3, 0\ns_cbranch_scc1 {L}\ns_waitcnt vmcnt({W - 1})\n{L}:")
                    a.vm = a.vm[-W:]
                else: a.wait_vm_n(W - 1)
                self.kv(I); I += 1
            self.stamp(1)
            L = a.newlabel("L_q0"); keep = a.vm[:]
            a(f"s_cmp_lg_u32 s3, 0\ns_cbranch_scc1 {L}")
            a.vm = ['pg'] + [('kv', j) for j in range(i0, I)]
            self.poll_granules(q1, [11, 13], 1, first_issued=True)
            a(f"v_add_u32 v48, {QL}, v1\nds_write_b128 v48, v[10:13]\n{L}:"); a.vm = keep
            a(f"v_and_b32 v49, 15, v0\nv_lshlrev_b32 v49, 4, v49\nv_add_u32 v49, {QL}, v49")
            def rd():
                for h in range(2):
                    for k in range(2): a(f"ds_read_b128 v[{10+8*h+4*k}:{13+8*h+4*k}], v49 offset:{512*h+256*k}")
            self.poll_lds(rd, QTAGS, 10)
        else:
            self.qissue()
            while I < c['ICHK']:
                a.wait_vm_n(W - 1 + (4 if I < IM + W else 0)); self.kv(I); I += 1
            self.stamp(1)
            if not c.get('dQ'): self.poll_granules(self.qissue, QTAGS, 1, first_issued=True)
        self.stamp(2)
        self.a_epi_addr()
        if c['pret']:
            a(f"s_mov_b64 exec, 1\nbuffer_load_dword v82, v30, s[68:71], 0 offen nt", tag=('pt', 0))
            if c['pret'] > 1:
                a(f"s_mov_b32 s52, {PO}\nbuffer_load_dword v82, v{ZERO}, s[36:39], s78 offen sc1\nbuffer_load_dword v82, v{ZERO}, s[36:39], s52 offen sc1", tag=('pt', 1))
            a("s_mov_b64 exec, -1")
        C = 0
        def landed(j): return ('kv', j) not in a.vm
        def last(C): return C + 3 if C < NS else C + 1
        def consume():
            nonlocal C
            if C < NS:
                n = C // 4
                a.wait_vm(('kv', C + 3))
                self.qk([ring(C + t) for t in range(4)], 36, [44, 45, 46, 47])
                a("v_cvt_pk_bf16_f32 v48, v44, v45\nv_cvt_pk_bf16_f32 v50, v46, v47\nv_max3_f32 v26, v26, v44, v45")
                a("v_and_b32 v49, 0xffff0000, v48\nv_lshlrev_b32 v48, 16, v48\nv_and_b32 v51, 0xffff0000, v50\nv_lshlrev_b32 v50, 16, v50")
                a("v_max3_f32 v26, v26, v46, v47")
                for r in (48, 49, 50, 51): a(f"v_mul_f32 v{r}, {SCALE}, v{r}")
                a(f"v_cvt_pk_bf16_f32 v{SREG+2*n}, v48, v49\nv_cvt_pk_bf16_f32 v{SREG+2*n+1}, v50, v51")
                C += 4
                if C == NS:
                    self.redrows(26, 48, "v_max_f32")
                    a(f"v_cvt_pk_bf16_f32 v48, v26, v26\nv_and_b32 v48, 0xffff0000, v48\nv_mul_f32 v48, {SCALE}, v48")
                    a(f"v_cvt_pk_bf16_f32 v48, v48, v48\nv_and_b32 v26, 0xffff0000, v48\nv_mul_f32 v26, {LOG2E}, v26")
                    self.stamp(3)
            else:
                n = (C - NS) // 2
                a(f"v_lshlrev_b32 v60, 16, v{SREG+n}\nv_and_b32 v61, 0xffff0000, v{SREG+n}")
                a("v_fma_f32 v60, v60, s58, -v26\nv_fma_f32 v61, v61, s58, -v26")
                a("v_exp_f32 v60, v60\nv_exp_f32 v61, v61\nv_add_f32 v27, v27, v60\nv_cvt_pk_bf16_f32 v62, v60, v61\nv_add_f32 v27, v27, v61")
                self.bop(52, 62, 2); self.bop(56, 62, 6)
                for k in range(2):
                    a.wait_vm(('kv', C + k)); self.mfma16(32, ring(C + k), 52 + 4 * k)
                C += 2
        def pace(n):
            tiles = [x for x in a.vm if x[0] != 'tk']
            if len(tiles) > n: a.wait_vm(tiles[len(tiles) - n - 1])
        while I < 2 * NS:
            if I - R < C:
                pace((W if I < c['iW2'] else c['W2']) - 1)
                if I == 2 * NS - 5: self.ticket(0)
                if I == 2 * NS - 3: self.ticket(1)
                self.kv(I); I += 1
                if landed(last(C)) and last(C) < I: consume()
            else: consume()
        for k in range(2):
            pace(c['W2'] - 2 + k * (2 * c['UT'] - 2))
            a.wait_vm(('tk', k))
            a(f"""v_readfirstlane_b32 s52, v{TK+k}
            s_cmp_lt_u32 s52, {self.NF}
            s_cselect_b32 s{76+k}, 0, {NEGINF}
            s_cselect_b32 s54, 0, 0x40000000
            s_lshl_b32 s52, s52, {self.TSH}
            s_add_u32 s51, s61, s52
            s_and_b32 s51, s51, 0x1fffff
            s_or_b32 s51, s51, s54""")
            if c['pord']: self.ticket(k)
            self.unit_loads(FK[k], "s[40:43]", ('fk', k)); self.unit_loads(FV[k], "s[44:47]", ('fv', k))
            if not c['pord']: self.ticket(k)
            while C < 2 * NS and landed(last(C)): consume()
        while C < 2 * NS: consume()
        if c['rank']:
            a(f"v_and_b32 v144, 7, v0\nv_lshlrev_b32 v144, 2, v144\ns_add_u32 s52, s49, 2\nv_add_u32 v144, s52, v144\nv_and_b32 v144, 31, v144\nv_lshlrev_b32 v144, 13, v144\nv_add_u32 v144, {REC + 12}, v144")
        self.stamp(10)
    def unit(self, k, refill, vwait=None):
        a = self.a; UT = self.c['UT']; po = self.c['pord']
        def mid():
            if po: self.ticket(k)
            self.unit_loads(FK[k], "s[40:43]")
        self.qk([FK[k] + 4 * t for t in range(UT)], 36, [44, 45], mid if refill else None)
        a(f"v_cvt_pk_bf16_f32 v48, v44, v{44 + UT - 1}\nv_and_b32 v49, 0xffff0000, v48\nv_lshlrev_b32 v48, 16, v48")
        a(f"v_mul_f32 v49, {SCALE}, v49\nv_mul_f32 v48, {SCALE}, v48\nv_cvt_pk_bf16_f32 v48, v48, v49")
        a(f"v_lshlrev_b32 v44, 16, v48\nv_and_b32 v45, 0xffff0000, v48\nv_add_f32 v44, s{76+k}, v44\nv_add_f32 v45, s{76+k}, v45")
        Ls = a.newlabel("L_nomax")
        a(f"v_fma_f32 v60, v44, s58, -v26\nv_fma_f32 v61, v45, s58, -v26\nv_max_f32 v46, v60, v61\nv_cmp_lt_f32 vcc, 0, v46\ns_cbranch_vccz {Ls}")
        a("v_max_f32 v46, v44, v45\nv_mul_f32 v46, s58, v46")
        self.redrows(46, 48, "v_max_f32")
        a("v_max_f32 v46, v46, v26\nv_sub_f32 v47, v26, v46\nv_exp_f32 v47, v47\nv_mov_b32 v26, v46\nv_fma_f32 v60, v44, s58, -v46\nv_fma_f32 v61, v45, s58, -v46\nv_mul_f32 v27, v27, v47")
        for r in range(32, 36): a(f"v_mul_f32 v{r}, v{r}, v47")
        a(f"{Ls}:\nv_exp_f32 v60, v60\nv_exp_f32 v61, v61\nv_add_f32 v27, v27, v60\nv_cvt_pk_bf16_f32 v62, v60, v61")
        if UT == 2: a("v_add_f32 v27, v27, v61")
        for t in range(UT): self.bop(52 + 4 * t, 62, 2 + 4 * t)
        if callable(vwait): vwait()
        elif isinstance(vwait, tuple):
            L = a.newlabel("L_vw"); a(f"s_waitcnt vmcnt({vwait[1]})\ns_cmp_ge_u32 s3, 4\ns_cbranch_scc1 {L}\ns_waitcnt vmcnt({vwait[0]})\n{L}:")
        elif vwait is not None: a(f"s_waitcnt vmcnt({vwait})")
        for t in range(UT): self.mfma16(32, FV[k] + 4 * t, 52 + 4 * t)
        if refill:
            a(f"s_mov_b32 s{76+k}, 0"); self.unit_loads(FV[k], "s[44:47]")
            if not po: self.ticket(k)
    def a_pool(self):
        a = self.a; c = self.c
        Ll = a.newlabel("L_pool"); Ld = [a.newlabel("L_drain") for _ in range(2)]; Le = a.newlabel("L_poolend")
        a(f"{Ll}:")
        for k in range(2):
            a(f"""s_waitcnt vmcnt({(3 if c['pord'] else 2) * c['UT'] + 1})
            v_readfirstlane_b32 s52, v{TK+k}
            s_cmp_lt_u32 s52, {self.NF}
            s_cbranch_scc0 {Ld[k]}
            s_lshl_b32 s52, s52, {self.TSH}
            s_add_u32 s51, s61, s52
            s_and_b32 s51, s51, 0x1fffff""")
            self.unit(k, True, 3 * c['UT'] + 2 if c['pord'] else None)
        a(f"s_branch {Ll}")
        n0, n1 = c['twpos']
        for k in range(2):
            a(f"{Ld[k]}:")
            if c['dynT']:
                assert not c['pord']
                L = a.newlabel("L_dt")
                a(f"s_cmp_lg_u32 s3, 7\ns_cbranch_scc1 {L}\nv_mov_b32 v82, 1\ns_mov_b64 exec, 1\nbuffer_atomic_add v82, v{ZERO}, s[68:71], s64 offen sc0\ns_mov_b64 exec, -1\n{L}:")
                self.unit(k, False)
                a(f"s_waitcnt vmcnt({1 + c['UT']})")
                self.unit(1 - k, False, 1)
                if k == 0: a(f"s_branch {Le}")
                continue
            if c['typed']:
                A = 0 if c['pord'] else 1
                nd = self.NW - c['twsplit']
                def only_a(lo, hi, waves=False):
                    if lo >= hi: return
                    L = a.newlabel("L_ty")
                    a(f"s_cmp_eq_u32 s63, 1\ns_cbranch_scc1 {L}")
                    if waves: a(f"s_cmp_lt_u32 s3, 4\ns_cbranch_scc1 {L}")
                    for j in range(lo, hi): self.t_load(j)
                    a(f"{L}:")
                def wait(na, nb, n4=None):
                    L = a.newlabel("L_tw")
                    a(f"s_waitcnt vmcnt({n4 if n4 is not None else na})")
                    if n4 is not None:
                        L4 = a.newlabel("L_tw")
                        a(f"s_cmp_ge_u32 s3, 4\ns_cbranch_scc1 {L4}\ns_waitcnt vmcnt({na})\n{L4}:")
                    a(f"s_cmp_eq_u32 s63, 0\ns_cbranch_scc1 {L}\ns_waitcnt vmcnt({nb})\n{L}:")
                only_a(0, n0)
                assert not c['pord']
                self.unit(k, False)
                only_a(n0, n0 + n1)
                wait(A + n0 + n1 + c['UT'], A + c['UT'])
                only_a(n0 + n1, nd); only_a(nd, self.NW, True)
                self.unit(1 - k, False, lambda: wait(A + nd, A, A + self.NW))
                if k == 0: a(f"s_branch {Le}")
                continue
            if c['rank']:
                a("buffer_load_dword v82, v144, s[36:39], 0 offen sc1")
                self.unit(k, False, (2 * c['UT'] + 2) if c['pord'] else None)
                L = a.newlabel("L_rk"); L2 = a.newlabel("L_rk")
                a(f"""s_waitcnt vmcnt(0)
                v_cmp_eq_u32 vcc, s35, v82
                s_bcnt1_i32_b64 s79, vcc
                s_cmp_lt_u32 s79, {c['rank'] * 8}
                s_cselect_b32 s79, 1, 0
                s_cbranch_scc1 {L}""")
                nd = self.NW - c['twsplit']
                for j in range(nd): self.t_load(j)
                a(f"s_cmp_lt_u32 s3, 4\ns_cbranch_scc1 {L}")
                for j in range(nd, self.NW): self.t_load(j)
                a(f"{L}:")
                self.unit(1 - k, False)
                if k == 0: a(f"s_branch {Le}")
                continue
            for j in range(n0): self.t_load(j)
            A = 0 if c['pord'] else 1
            self.unit(k, False, 2 * c['UT'] + 1 + n0 if c['pord'] else None)
            for j in range(n0, n0 + n1): self.t_load(j)
            a(f"s_waitcnt vmcnt({A + n0 + n1 + c['UT']})")
            if c.get('twall'):
                self.unit(1 - k, False, A + n0 + n1)
            elif c['twsplit']:
                L = a.newlabel("L_tws"); nd = self.NW - c['twsplit']
                for j in range(n0 + n1, nd): self.t_load(j)
                a(f"s_cmp_lt_u32 s3, 4\ns_cbranch_scc1 {L}")
                for j in range(nd, self.NW): self.t_load(j)
                a(f"{L}:")
                self.unit(1 - k, False, (A + nd, A + self.NW))
            else:
                for j in range(n0 + n1, self.NW): self.t_load(j)
                self.unit(1 - k, False, A + self.NW)
            if k == 0: a(f"s_branch {Le}")
        a(f"{Le}:"); a.vm = []
    def a_epi_addr(self):
        a = self.a
        a(f"s_lshl_b32 s52, s3, 10\ns_add_u32 s52, s52, {EB}\nv_add_u32 v83, s52, v1")
        a(f"v_bfe_u32 v84, v0, 3, 1\nv_lshlrev_b32 v84, 6, v84\ns_lshl_b32 s52, s3, 3\ns_add_u32 s52, s52, {EB + 8192}\nv_add_u32 v84, s52, v84")
        self.acc_addr(28, 48, EB)
        a(f"""s_lshr_b32 s52, s3, 1
        s_lshl_b32 s54, s49, 1
        s_add_u32 s52, s52, s54
        s_lshl_b32 s52, s52, 3
        s_add_u32 s52, s52, s50
        s_lshl_b32 s52, s52, 9
        s_add_u32 s78, s52, {REC}
        s_and_b32 s54, s3, 1
        s_lshl_b32 s55, s54, 8
        v_lshlrev_b32 v63, 2, v0
        v_add_u32 v63, s55, v63
        s_lshr_b32 s55, s3, 1
        s_lshl_b32 s55, s55, 6
        s_add_u32 s55, s55, {EB + 8192}
        v_mov_b32 v29, s55""")
    def a_epilogue(self):
        a = self.a
        self.stamp(4)
        self.redrows(27, 48, "v_add_f32")
        a("ds_write_b64 v84, v[26:27]\nds_write_b128 v83, v[32:35]\nv_mov_b32 v59, s35")
        if self.c['dynT']:
            L = a.newlabel("L_dt")
            a(f"v_mov_b32 v49, {EB + 8448}\ns_cmp_lg_u32 s3, 7\ns_cbranch_scc1 {L}\ns_waitcnt vmcnt(0)\ns_mov_b64 exec, 1\nds_write_b32 v49, v82\ns_mov_b64 exec, -1\n{L}:")
        a.wait_lg(); a("s_barrier")
        self.stamp(8)
        Lu = a.newlabel("L_aup")
        if self.c['dynT']: a(f"ds_read_b32 v82, v49\ns_cmp_ge_u32 s3, 4\ns_cbranch_scc1 {Lu}", tag='st')
        elif self.c['rank']: a(f"s_cmp_ge_u32 s3, 4\ns_cbranch_scc1 {Lu}")
        elif self.c.get('twall'):
            L = a.newlabel("L_twa")
            a(f"s_cmp_lt_u32 s3, 4\ns_cbranch_scc1 {L}")
            if self.c['twall'] == 1:
                for j in range(sum(self.c['twpos']), self.NW): self.t_load(j)
            a(f"s_branch {Lu}\n{L}:")
        else: a(f"s_cmp_ge_u32 s3, 4\ns_cbranch_scc1 {Lu}")
        for k in range(4): a(f"ds_read_b128 v[{10+4*k}:{13+4*k}], v29 offset:{16*k}", tag='st')
        for w in range(8): a(f"ds_read_b32 v{36+w}, v28 offset:{1024*w}")
        a.wait_lg('st')
        a("v_max3_f32 v52, v10, v12, v14\nv_max3_f32 v53, v16, v18, v20\nv_max3_f32 v52, v52, v22, v24\nv_max_f32 v52, v52, v53")
        for w in range(8): a(f"v_sub_f32 v{10+2*w}, v{10+2*w}, v52")
        for w in range(8): a(f"v_exp_f32 v{10+2*w}, v{10+2*w}")
        a.wait_lg()
        a("v_mul_f32 v53, v10, v11\nv_mul_f32 v54, v10, v36")
        for w in range(1, 8): a(f"v_fmac_f32 v53, v{10+2*w}, v{11+2*w}\nv_fmac_f32 v54, v{10+2*w}, v{36+w}")
        a("v_rcp_f32 v55, v53\nv_log_f32 v58, v53\nv_mul_f32 v54, v54, v55\nv_add_f32 v58, v58, v52")
        self.rec_store(54, 63, 78)
        if self.c['dynT']:
            a(f"{Lu}:\ns_waitcnt lgkmcnt(0)"); a.lg = []
            self.stamp(5)
            a(f"v_readfirstlane_b32 s52, v82\ns_cmp_ge_u32 s52, 64\ns_cbranch_scc1 {self.LF}\ns_lshl_b32 s52, s52, 1\ns_add_u32 s52, s52, s63\ns_add_u32 s48, s52, 64")
            a(f"{self.LT}:")
            self.t_addr192()
            for j in range(6): self.t_load(j)
            a(f"{self.LT2}:"); a.vm = []
            return
        if self.c['typed']:
            a(f"s_cmp_eq_u32 s63, 1\ns_cbranch_scc1 {Lu}")
            for j in range(self.NW - self.c['twsplit'], self.NW): self.t_load(j)
            L = a.newlabel("L_late")
            a(f"{Lu}:\ns_cmp_eq_u32 s63, 0\ns_cbranch_scc1 {L}")
            for j in range(self.NW if self.c['typed'] == 1 else self.c.get('tbe', 0)): self.t_load(j)
            a(f"{L}:"); a.vm = []
            self.stamp(5); return
        if self.c['rank']:
            a(f"s_cmp_eq_u32 s79, 1\ns_cbranch_scc1 {Lu}")
            for j in range(self.NW - self.c['twsplit'], self.NW): self.t_load(j)
            L = a.newlabel("L_late")
            a(f"{Lu}:\ns_cmp_eq_u32 s79, 0\ns_cbranch_scc1 {L}")
            for j in range(self.NW):
                if j >= self.c['rankw']: a(f"s_waitcnt vmcnt({self.c['rankw'] - 1})")
                self.t_load(j)
            a(f"{L}:"); a.vm = []
            self.stamp(5); return
        if self.c.get('twall'):
            if self.c['twall'] == 1:
                for j in range(sum(self.c['twpos']), self.NW): self.t_load(j)
        elif self.c['twsplit']:
            for j in range(self.NW - self.c['twsplit'], self.NW): self.t_load(j)
        a(f"{Lu}:")
        self.stamp(5)
    def a_proj(self):
        a = self.a; c = self.c
        a(f"""v_and_b32 v50, 7, v0
        v_min_u32 v51, 5, v50
        v_and_b32 v52, 1, v0
        s_cmp_eq_u32 s63, 0
        s_cselect_b64 vcc, -1, 0
        s_cselect_b32 s66, 5, 7
        v_cndmask_b32 v51, v52, v51, vcc
        v_bfe_u32 v49, v0, 3, 1
        v_lshl_add_u32 v29, v49, 8, v51
        v_lshlrev_b32 v29, 9, v29
        s_lshl_b32 s52, s63, 6
        s_add_u32 s52, s52, s64
        s_lshl_b32 s52, s52, 12
        s_lshl_b32 s54, s3, 6
        s_add_u32 s52, s52, s54
        s_add_u32 s75, s52, {REC}
        v_lshrrev_b32 v48, 4, v0
        v_lshl_add_u32 v29, v48, 4, v29""")
        def gissue(): a("buffer_load_dwordx4 v[10:13], v29, s[36:39], s75 offen sc1", tag='pg')
        gissue()
        a("v_cmp_lt_u32 s[72:73], s66, v50")
        for r in range(32, 44): a(f"v_mov_b32 v{r}, 0")
        a(f"""v_and_b32 v26, 7, v0
        v_lshlrev_b32 v26, 4, v26
        v_bfe_u32 v48, v0, 3, 2
        v_lshl_add_u32 v26, v48, 2, v26
        v_lshrrev_b32 v48, 5, v0
        s_cmp_ge_u32 s3, 4
        s_cselect_b32 s52, 9, 8
        s_cselect_b32 s54, 8, 9
        s_cselect_b32 s55, 8192, 0
        s_cselect_b32 s56, 1024, 0
        s_add_u32 s55, s55, {TL}
        v_lshl_add_u32 v26, v48, s52, v26
        s_and_b32 s57, s3, 1
        s_lshl_b32 s57, s57, s54
        s_add_u32 s56, s56, s57
        s_add_u32 s55, s55, s57
        s_bfe_u32 s57, s3, 0x10001
        s_lshl_b32 s52, s57, 7
        s_add_u32 s55, s55, s52
        v_add_u32 v26, s55, v26
        s_lshl_b32 s52, s3, 10
        s_add_u32 s52, s52, {TL}
        v_add_u32 v27, s52, v1
        v_lshlrev_b32 v23, 3, v0
        v_add_u32 v23, s56, v23
        s_lshl_b32 s74, s63, 5
        s_add_u32 s74, s74, s64
        s_lshl_b32 s74, s74, 1
        s_add_u32 s74, s74, s57
        s_mul_i32 s74, s74, 4608
        s_mul_i32 s54, s65, 1536
        s_add_u32 s74, s74, s54
        s_add_u32 s74, s74, {PO}
        s_lshl_b32 s57, s57, 3
        v_mov_b32 v59, s35
        v_mov_b32 v47, {NEGINF}""")
        if c.get('dT'): a(f"s_branch {self.LF}")
        def wo_b():
            L = a.newlabel("L_tb"); keep = a.vm[:]
            a(f"s_cmp_eq_u32 s63, 0\ns_cbranch_scc1 {L}")
            for j in range(c.get('tbe', 0), self.NW): self.t_load(j)
            a(f"{L}:"); a.vm = keep
        self.poll_granules(gissue, [13], 6, first_issued=True, sleep=c.get('tsleep', 0), after_first=wo_b if c['typed'] == 3 else None)
        self.stamp(6)
        if c['typed'] == 2:
            L = a.newlabel("L_tb")
            a(f"s_cmp_eq_u32 s63, 0\ns_cbranch_scc1 {L}")
            for j in range(c.get('tbe', 0), self.NW): self.t_load(j)
            a(f"{L}:")
        a("v_cndmask_b32 v46, v12, v47, s[72:73]\nv_lshlrev_b32 v52, 16, v10\nv_mov_b32 v44, v46\nv_and_b32 v53, 0xffff0000, v10\nv_lshlrev_b32 v54, 16, v11")
        self.red8([44], "v_max_f32")
        a("v_sub_f32 v44, v46, v44\nv_and_b32 v55, 0xffff0000, v11\nv_exp_f32 v56, v44")
        for t in range(4): a(f"v_mul_f32 v{52+t}, v56, v{52+t}")
        self.red8([52, 53, 54, 55, 56], "v_add_f32")
        for k in range(2): a(f"v_cvt_pk_bf16_f32 v{20+k}, v{52+2*k}, v{53+2*k}")
        a("v_rcp_f32 v56, v56")
        for k in range(2):
            self.bop(44, 20 + k, 2); self.bop(48, 20 + k, 6)
            if k == 0 and c['typed'] >= 2: a("s_waitcnt vmcnt(0)")
            self.mfma16(36, TW[4 + k], 44); self.mfma16(40, TW[4 + k], 48)
            self.mfma16(32, TW[2 * k], 44); self.mfma16(32, TW[2 * k + 1], 48)
        a("v_cmp_lt_u32 vcc, 31, v0\nv_mul_f32 v56, s67, v56\nv_readlane_b32 s57, v56, s57")
        for r in range(4): a(f"v_cndmask_b32 v{36+r}, v{36+r}, v{40+r}, vcc")
        a("ds_write_b128 v27, v[36:39] offset:8192\nds_write_b128 v27, v[32:35]")
        a.wait_lg(); a("s_barrier")
        for w in range(8): a(f"ds_read_b32 v{44+w}, v26 offset:{1024*w}")
        a.wait_lg()
        a("v_add_f32 v44, v44, v45\nv_add_f32 v46, v46, v47\nv_add_f32 v48, v48, v49\nv_add_f32 v50, v50, v51\nv_add_f32 v44, v44, v46\nv_add_f32 v48, v48, v50\nv_add_f32 v58, v44, v48")
        Lf = a.newlabel("L_tfull")
        a(f"s_cmp_lt_u32 s3, 4\ns_cbranch_scc1 {Lf}")
        a("v_mov_b32 v49, v58\nv_permlane32_swap_b32 v58, v49\nv_add_f32 v58, v58, v49\ns_mov_b32 exec_hi, 0")
        a(f"{Lf}:\nv_mul_f32 v58, s57, v58\nbuffer_store_dwordx2 v[58:59], v23, s[36:39], s74 offen sc1\ns_mov_b64 exec, -1")
        self.stamp(7)

    def proj(self, half):
        a = self.a; c = self.c
        a(f"""v_and_b32 v50, 7, v0
        v_min_u32 v51, 5, v50
        v_and_b32 v52, 1, v0
        s_cmp_eq_u32 s63, 0
        s_cselect_b64 vcc, -1, 0
        s_cselect_b32 s66, 5, 7
        v_cndmask_b32 v51, v52, v51, vcc
        v_bfe_u32 v49, v0, 3, 1
        v_lshl_add_u32 v29, v49, 8, v51
        v_lshlrev_b32 v29, 9, v29
        s_lshl_b32 s52, s63, 6
        s_add_u32 s52, s52, s64
        s_lshl_b32 s52, s52, 12
        s_lshl_b32 s54, s3, 6
        s_add_u32 s52, s52, s54
        s_add_u32 s75, s52, {REC}
        v_lshrrev_b32 v48, 4, v0
        v_lshl_add_u32 v29, v48, 4, v29""")
        def gissue(): a("buffer_load_dwordx4 v[10:13], v29, s[36:39], s75 offen sc1", tag='pg')
        gissue()
        a("v_cmp_lt_u32 s[72:73], s66, v50")
        for r in range(32, 44 if half else 36): a(f"v_mov_b32 v{r}, 0")
        a("""v_and_b32 v26, 7, v0
        v_lshlrev_b32 v26, 4, v26
        v_bfe_u32 v48, v0, 3, 2
        v_lshl_add_u32 v26, v48, 2, v26
        v_lshrrev_b32 v48, 5, v0""")
        if half:
            a(f"""s_cmp_ge_u32 s3, 4
            s_cselect_b32 s52, 9, 8
            s_cselect_b32 s54, 8, 9
            s_cselect_b32 s55, 8192, 0
            s_cselect_b32 s56, 1024, 0
            s_add_u32 s55, s55, {TL}
            v_lshl_add_u32 v26, v48, s52, v26
            s_and_b32 s57, s3, 1
            s_lshl_b32 s57, s57, s54
            s_add_u32 s56, s56, s57
            s_add_u32 s55, s55, s57
            s_bfe_u32 s57, s3, 0x10001""")
        else:
            a(f"""v_lshl_add_u32 v26, v48, 12, v26
            s_and_b32 s56, s3, 3
            s_lshl_b32 s56, s56, 8
            s_add_u32 s55, s56, {TL}
            s_lshr_b32 s57, s3, 2""")
        a(f"""s_lshl_b32 s52, s57, 7
        s_add_u32 s55, s55, s52
        v_add_u32 v26, s55, v26
        s_lshl_b32 s52, s3, 10
        s_add_u32 s52, s52, {TL}
        v_add_u32 v27, s52, v1
        v_lshlrev_b32 v24, 3, v0
        v_add_u32 v24, s56, v24
        s_lshl_b32 s74, s63, 5
        s_add_u32 s74, s74, s64
        s_lshl_b32 s74, s74, 1
        s_add_u32 s74, s74, s57
        s_mul_i32 s74, s74, 4608
        s_lshl_b32 s54, s65, 10
        s_add_u32 s74, s74, s54
        s_add_u32 s74, s74, {PO}
        s_lshl_b32 s57, s57, 3
        v_mov_b32 v59, s35
        v_mov_b32 v47, {NEGINF}""")
        if c.get('dT'): a(f"s_branch {self.LF}")
        self.poll_granules(gissue, [13], 6, first_issued=True, sleep=(c['hsleep'] if half else c.get('tsleep', 0)))
        self.stamp(3 if half else 6)
        a("v_cndmask_b32 v46, v12, v47, s[72:73]\nv_lshlrev_b32 v52, 16, v10\nv_mov_b32 v44, v46\nv_and_b32 v53, 0xffff0000, v10\nv_lshlrev_b32 v54, 16, v11")
        self.red8([44], "v_max_f32")
        a("v_sub_f32 v44, v46, v44\nv_and_b32 v55, 0xffff0000, v11\nv_exp_f32 v56, v44")
        for t in range(4): a(f"v_mul_f32 v{52+t}, v56, v{52+t}")
        self.red8([52, 53, 54, 55, 56], "v_add_f32")
        for k in range(2): a(f"v_cvt_pk_bf16_f32 v{20+k}, v{52+2*k}, v{53+2*k}")
        a("v_rcp_f32 v56, v56")
        for k in range(2):
            self.bop(44, 20 + k, 2); self.bop(48, 20 + k, 6)
            if half: self.mfma16(36, TW[4 + k], 44); self.mfma16(40, TW[4 + k], 48)
            self.mfma16(32, TW[2 * k], 44); self.mfma16(32, TW[2 * k + 1], 48)
        a("v_cmp_lt_u32 vcc, 31, v0\nv_mul_f32 v56, s67, v56\nv_readlane_b32 s57, v56, s57")
        if half:
            for r in range(4): a(f"v_cndmask_b32 v{36+r}, v{36+r}, v{40+r}, vcc")
            a("ds_write_b128 v27, v[36:39] offset:8192")
        a("ds_write_b128 v27, v[32:35]")
        a.wait_lg(); a("s_barrier")
        Lf = a.newlabel("L_tfull")
        if half:
            for w in range(8): a(f"ds_read_b32 v{44+w}, v26 offset:{1024*w}")
            a.wait_lg()
            a("v_add_f32 v44, v44, v45\nv_add_f32 v46, v46, v47\nv_add_f32 v48, v48, v49\nv_add_f32 v50, v50, v51\nv_add_f32 v44, v44, v46\nv_add_f32 v48, v48, v50\nv_add_f32 v58, v44, v48")
            a(f"s_cmp_lt_u32 s3, 4\ns_cbranch_scc1 {Lf}")
        else:
            for w in range(4): a(f"ds_read_b32 v{44+w}, v26 offset:{1024*w}")
            a.wait_lg()
            a("v_add_f32 v44, v44, v45\nv_add_f32 v46, v46, v47\nv_add_f32 v58, v44, v46")
        a("v_mov_b32 v49, v58\nv_permlane32_swap_b32 v58, v49\nv_add_f32 v58, v58, v49\ns_mov_b32 exec_hi, 0")
        a(f"{Lf}:\nv_mul_f32 v58, s57, v58\nbuffer_store_dwordx2 v[58:59], v24, s[36:39], s74 offen sc1\ns_mov_b64 exec, -1")
        self.stamp(4 if half else 7)

    def h_front(self):
        a = self.a; c = self.c; WH = c['WH']
        self.reset(['d'] * WH)
        self.late_prologue()
        a("""v_lshrrev_b32 v52, 4, v0
        v_and_b32 v50, 1, v0
        v_bfe_u32 v51, v0, 1, 1
        v_bfe_u32 v53, v0, 2, 2
        v_lshl_add_u32 v51, v51, 2, v53
        v_lshl_add_u32 v50, v51, 1, v50
        v_lshlrev_b32 v50, 7, v50
        v_lshl_add_u32 v50, v51, 4, v50
        v_lshl_add_u32 v50, v52, 14, v50
        s_and_b32 s52, s3, 3
        s_lshl_b32 s52, s52, 11
        v_add_u32 v50, s52, v50""")
        for ks in range(8): a(f"v_xor_b32 v{SA+ks}, {16*ks}, v50")
        a("""v_bfe_u32 v50, v0, 3, 1
        v_lshlrev_b32 v50, 2, v50
        v_lshrrev_b32 v51, 5, v0
        v_lshl_add_u32 v50, v51, 1, v50
        v_bfe_u32 v51, v0, 4, 1
        v_lshlrev_b32 v51, 1, v51
        v_bfe_u32 v53, v0, 1, 1
        v_add_u32 v51, v51, v53
        v_and_b32 v53, 1, v0
        v_lshlrev_b32 v53, 3, v53
        v_bfe_u32 v54, v0, 2, 1
        v_lshl_add_u32 v53, v54, 7, v53
        s_lshl_b32 s52, s3, 13
        v_add_u32 v53, s52, v53
        v_add_u32 v57, s52, v1
        v_add_u32 v58, 0x10000, v57""")
        for hi in range(2):
            a(f"v_add_u32 v54, {hi}, v50\nv_xor_b32 v55, v54, v51\nv_lshl_add_u32 v55, v55, 4, v53\nv_lshl_add_u32 v55, v54, 8, v55")
            for cb in range(2): a(f"v_xor_b32 v{TA + 2*cb + hi}, {64*cb}, v55")
        a(f"""s_lshr_b32 s52, s3, 2
        s_lshl_b32 s52, s52, 4
        v_and_b32 v49, 15, v0
        v_add_u32 v50, s52, v49
        v_mul_u32_u24 v2, 144, v50
        v_lshl_add_u32 v2, v52, 3, v2
        s_and_b32 s54, s3, 3
        s_lshl_b32 s55, s54, 5
        s_add_u32 s55, s55, {PL}
        v_add_u32 v2, s55, v2
        v_and_b32 v51, 31, v0
        v_mul_u32_u24 v3, 144, v51
        v_lshrrev_b32 v53, 5, v0
        v_lshl_add_u32 v3, v53, 4, v3
        v_add_u32 v3, {PL}, v3
        v_lshlrev_b32 v5, 2, v50
        v_add_u32 v5, {ML}, v5
        s_lshl_b32 s55, s54, 7
        v_add_u32 v4, s55, v5
        v_lshlrev_b32 v6, 2, v51
        v_add_u32 v6, {ML}, v6
        v_mov_b32 v7, {NEGINF}
        v_mov_b32 v8, {NEGINF}
        v_mov_b32 v9, 0
        v_lshlrev_b32 v28, 7, v0
        v_add_u32 v28, {FQ}, v28
        s_mov_b32 s58, {LOG2E}
        s_lshl_b32 s65, s63, 15
        s_lshl_b32 s54, s3, 12
        s_add_u32 s65, s65, s54
        s_add_u32 s65, s65, {QABS}
        s_add_u32 s54, s54, {PL}
        v_add_u32 v30, s54, v1
        s_lshr_b32 s54, s3, 2
        s_lshl_b32 s54, s54, 14
        s_add_u32 s54, s54, {PL}
        v_add_u32 v31, s54, v1""")
        for r in range(32): a(f"v_mov_b32 v{ACC+r}, 0")
        self.srd(44, "s22", "s23", 512 * 8192)
        a("""s_and_b32 s52, s2, 1
        s_lshl_b32 s52, s52, 3
        s_add_u32 s52, s52, s3
        s_lshl_b32 s52, s52, 18
        s_lshr_b32 s54, s2, 1
        s_lshl_b32 s54, s54, 8
        s_add_u32 s52, s52, s54
        v_lshlrev_b32 v59, 16, v52
        v_lshl_add_u32 v59, v49, 4, v59
        v_add_u32 v59, s52, v59""")
        self.get_tag()
        for t in range(WH, 16): a.wait_vm_n(WH - 1); self.dma(t)
        for t in range(16):
            q = t % 8; r = R2[q] if t < 8 else UV + 4 * q
            a.wait_vm_n(WH - 1)
            if q == 0: a("s_and_b32 s62, s62, 0x7fffff")
            a(f"s_add_u32 s51, s62, {q*8192}\nbuffer_load_dwordx4 v[{r}:{r+3}], v{DV + (q & 1)}, s[76:79], s51 offen nt", tag='r')
            if q == 7: a("s_add_u32 s62, s62, 0x200000")
        self.stamp(1)
        if c.get('dH') == 1: a(f"s_waitcnt vmcnt(0)\ns_branch {self.LF}")
        if c.get('dH') == 4:
            for t in range(8): a(f"s_waitcnt vmcnt(3)\ns_mov_b32 s51, {t*8192}\nbuffer_load_dwordx4 v[{64+4*t}:{64+4*t+3}], v59, s[44:47], s51 offen nt")
            a(f"s_waitcnt vmcnt(0)\ns_branch {self.LF}")
        self.poll_flags(28, 3, 2)
        for n in range(4): a(f"buffer_load_dwordx4 v[{STG+4*n}:{STG+4*n+3}], v1, s[36:39], s65 offen offset:{n*1024} sc1", tag=('q', n))
        for n in range(4):
            a.wait_vm(('q', n)); a(f"ds_write_b128 v30, v[{STG+4*n}:{STG+4*n+3}] offset:{n*1024}")
        a.wait_lg(); a("s_barrier")
        for ks in range(16):
            a(f"ds_read_b128 v[{QR+4*ks}:{QR+4*ks+3}], v31 offset:{ks*1024}")
            if ks == 11: a.wait_lg()
        a.wait_lg()
        self.stamp(2)
    def h_attn(self):
        a = self.a; c = self.c
        Lloop = a.newlabel("L_btile")
        a(f"s_mov_b32 s61, 0\n{Lloop}:\ns_barrier")
        for r in range(4): a(f"v_mov_b32 v{32+r}, 0")
        for ks in range(8): a(f"ds_read_b128 v[{STG+4*ks}:{STG+4*ks+3}], v{SA+ks}", tag=('s', ks))
        for ks in range(16):
            a.wait_lg(('s', ks))
            s = STG + 4 * (ks % 8)
            self.mfma16(32, s, QR + 4 * ks)
            if ks + 8 < 16: a(f"ds_read_b128 v[{s}:{s+3}], v{SA+ks} offset:8192", tag=('s', ks + 8))
        for ks in range(8): a(f"v_xor_b32 v{SA+ks}, 0x10000, v{SA+ks}")
        a("v_cvt_pk_bf16_f32 v36, v32, v33\nv_cvt_pk_bf16_f32 v38, v34, v35")
        a("v_and_b32 v37, 0xffff0000, v36\nv_lshlrev_b32 v36, 16, v36\nv_and_b32 v39, 0xffff0000, v38\nv_lshlrev_b32 v38, 16, v38")
        for r in (36, 37, 38, 39): a(f"v_mul_f32 v{r}, {SCALE}, v{r}")
        a("v_cvt_pk_bf16_f32 v36, v36, v37\nv_cvt_pk_bf16_f32 v38, v38, v39")
        a("v_lshlrev_b32 v32, 16, v36\nv_and_b32 v33, 0xffff0000, v36\nv_lshlrev_b32 v34, 16, v38\nv_and_b32 v35, 0xffff0000, v38")
        a("v_max3_f32 v36, v32, v33, v34\nv_max_f32 v36, v36, v35")
        self.redrows(36, 37, "v_max_f32")
        a("ds_write_b32 v4, v36")
        a.wait_lg(); a("s_barrier")
        a("ds_read2_b32 v[36:37], v5 offset1:32\nds_read2_b32 v[38:39], v5 offset0:64 offset1:96\nds_read2_b32 v[40:41], v6 offset1:32\nds_read2_b32 v[42:43], v6 offset0:64 offset1:96")
        a.wait_lg()
        a("v_max3_f32 v36, v36, v37, v7\nv_max3_f32 v40, v40, v41, v8\nv_max3_f32 v36, v36, v38, v39\nv_max3_f32 v38, v40, v42, v43")
        a("v_sub_f32 v40, v7, v36\nv_sub_f32 v41, v8, v38\nv_mul_f32 v37, s58, v36\nv_mul_f32 v40, s58, v40\nv_mul_f32 v42, s58, v41")
        for r in range(4): a(f"v_fma_f32 v{32+r}, v{32+r}, s58, -v37")
        a("v_exp_f32 v40, v40\nv_exp_f32 v42, v42")
        for r in range(4): a(f"v_exp_f32 v{32+r}, v{32+r}")
        a("v_mov_b32 v7, v36\nv_mov_b32 v8, v38\nv_cvt_pk_bf16_f32 v44, v32, v33\nv_cvt_pk_bf16_f32 v45, v34, v35")
        a("ds_write_b64 v2, v[44:45]")
        a("v_fma_f32 v9, v9, v40, v32\nv_add_f32 v33, v33, v34\nv_add_f32 v9, v9, v35\nv_add_f32 v9, v9, v33\nv_mov_b32 v43, v42")
        for r in range(0, 32, 2): a(f"v_pk_mul_f32 v[{ACC+r}:{ACC+r+1}], v[{ACC+r}:{ACC+r+1}], v[42:43]")
        a.wait_lg(); a("s_barrier")
        for s in range(4): a(f"ds_read_b128 v[{32+4*s}:{35+4*s}], v3 offset:{32*s}", tag='p')
        seq = [(s, cb) for s in range(4) for cb in range(2)]
        def trd(i):
            s, cb = seq[i]
            for hi in range(2):
                a(f"ds_read_b64_tr_b16 v[{STG+4*i+2*hi}:{STG+4*i+2*hi+1}], v{TA+2*cb+hi} offset:{2048*s}", tag=('t', i))
        for i in range(5): trd(i)
        for i in range(8):
            s, cb = seq[i]
            a.wait_lg(('t', i))
            a(f"v_mfma_f32_32x32x16_bf16 v[{ACC+16*cb}:{ACC+16*cb+15}], v[{STG+4*i}:{STG+4*i+3}], v[{32+4*s}:{35+4*s}], v[{ACC+16*cb}:{ACC+16*cb+15}]")
            if i + 5 < 8: trd(i + 5)
        for k in range(4): a(f"v_xor_b32 v{TA+k}, 0x10000, v{TA+k}")
        L1 = a.newlabel("L_rf"); L2 = a.newlabel("L_rf")
        a(f"s_cmp_lg_u32 s61, 0\ns_cbranch_scc1 {L1}")
        for q in range(8): a(f"ds_write_b128 v57, v[{R2[q]}:{R2[q]+3}] offset:{q*1024}")
        a(f"{L1}:\ns_cmp_lg_u32 s61, 1\ns_cbranch_scc1 {L2}")
        for q in range(8): a(f"ds_write_b128 v58, v[{UV+4*q}:{UV+4*q+3}] offset:{q*1024}")
        a("s_waitcnt lgkmcnt(0)")
        for t in range(8): a(f"s_mov_b32 s51, {t*8192}\nbuffer_load_dwordx4 v[{UV+4*t}:{UV+4*t+3}], v59, s[44:47], s51 offen nt")
        a(f"{L2}:\ns_waitcnt lgkmcnt(0)\ns_add_u32 s61, s61, 1\ns_cmp_lg_u32 s61, 4\ns_cbranch_scc1 {Lloop}")
        a.vm = []; a.lg = []
        self.stamp(5)
        if c.get('dH') == 2: a(f"s_waitcnt vmcnt(0)\ns_branch {self.LF}")
        self.redrows(9, 37, "v_add_f32")
        a("ds_write_b32 v4, v9 offset:512")
        a.wait_lg(); a("s_barrier")
        a("ds_read2_b32 v[36:37], v6 offset0:128 offset1:160\nds_read2_b32 v[38:39], v6 offset0:192 offset1:224")
        a(f"""v_and_b32 v48, 31, v0
        v_mul_u32_u24 v48, 144, v48
        v_lshrrev_b32 v49, 5, v0
        v_lshl_add_u32 v48, v49, 3, v48
        s_lshl_b32 s54, s3, 13
        v_add_u32 v48, s54, v48
        v_lshrrev_b32 v49, 3, v0
        v_mul_u32_u24 v50, 144, v49
        v_and_b32 v51, 7, v0
        v_lshl_add_u32 v50, v51, 4, v50
        v_add_u32 v50, s54, v50
        v_lshlrev_b32 v52, 10, v49
        v_lshl_add_u32 v52, v51, 4, v52
        s_mul_i32 s52, s2, {c['pbs']}
        s_lshl_b32 s54, s3, 7
        s_add_u32 s52, s52, s54
        s_add_u32 s52, s52, {PB}""")
        a.wait_lg()
        a("v_add_f32 v36, v36, v37\nv_add_f32 v38, v38, v39\nv_add_f32 v36, v36, v38\nv_rcp_f32 v38, v36\nv_log_f32 v40, v36\nv_mov_b32 v39, v38\nv_fma_f32 v40, v8, s58, v40")
        for cb in range(2):
            for rq in range(4):
                r = ACC + 16 * cb + 4 * rq
                a(f"v_pk_mul_f32 v[{r}:{r+1}], v[{r}:{r+1}], v[38:39]\nv_pk_mul_f32 v[{r+2}:{r+3}], v[{r+2}:{r+3}], v[38:39]")
                a(f"v_cvt_pk_bf16_f32 v{r}, v{r}, v{r+1}\nv_cvt_pk_bf16_f32 v{r+1}, v{r+2}, v{r+3}")
                a(f"ds_write_b64 v48, v[{r}:{r+1}] offset:{64*cb + 16*rq}")
        a.wait_lg()
        for n in range(4): a(f"ds_read_b128 v[{STG+4*n}:{STG+4*n+3}], v50 offset:{n*8*144}", tag=('r', n))
        for n in range(4):
            a.wait_lg(('r', n))
            a(f"buffer_store_dwordx4 v[{STG+4*n}:{STG+4*n+3}], v52, s[36:39], s52 offen sc1 {c['pbst']}\ns_add_u32 s52, s52, 8192")
        Ls = a.newlabel("L_nopbs")
        a(f"s_cmp_lg_u32 s3, 0\ns_cbranch_scc1 {Ls}")
        a(f"s_lshl_b32 s52, s2, 7\ns_add_u32 s52, s52, {PBS}\nv_lshlrev_b32 v48, 2, v0\ns_mov_b32 exec_hi, 0")
        a(f"buffer_store_dword v40, v48, s[36:39], s52 offen sc1\ns_mov_b64 exec, -1\n{Ls}:")
        self.stamp(8)
        a("s_waitcnt vmcnt(0)\ns_barrier"); a.vm = []
        self.stamp(9)
        if c.get('dH') == 3: a(f"s_branch {self.LF}")
        Ls = a.newlabel("L_nofb")
        a(f"s_cmp_lg_u32 s3, 0\ns_cbranch_scc1 {Ls}\ns_lshl_b32 s52, s2, 7\ns_add_u32 s52, s52, {FB}")
        self.flag_store("s52")
        a(f"{Ls}:")
    def h_uv(self):
        a = self.a; pbs = self.c['pbs']; PART = 16384; ST = PART + 16 * 1040
        self.sels()
        a(f"""v_lshlrev_b32 v28, 7, v0
        v_add_u32 v28, {FB}, v28
        v_lshrrev_b32 v48, 5, v0
        v_lshlrev_b32 v29, 7, v48
        v_mul_u32_u24 v31, {pbs}, v48
        v_and_b32 v49, 31, v0
        v_lshl_add_u32 v31, v49, 4, v31
        s_lshr_b32 s54, s2, 1
        s_lshl_b32 s55, s54, 2
        s_lshl_b32 s52, s3, 10
        s_add_u32 s55, s55, s52
        s_add_u32 s55, s55, {PBS}
        v_add_u32 v25, s52, v1
        s_lshl_b32 s56, s2, 9
        s_mul_i32 s52, s3, {8 * pbs}
        s_add_u32 s56, s56, s52
        s_add_u32 s56, s56, {PB}
        s_lshl_b32 s52, s3, 1
        v_add_u32 v50, s52, v48
        v_mul_u32_u24 v26, 1040, v50
        v_lshl_add_u32 v26, v49, 5, v26
        v_add_u32 v26, {PART}, v26
        v_and_b32 v50, 15, v0
        v_mul_u32_u24 v27, 1040, v50
        v_lshrrev_b32 v51, 4, v0
        v_lshl_add_u32 v27, v51, 5, v27
        s_lshl_b32 s52, s3, 7
        s_add_u32 s52, s52, {PART}
        v_add_u32 v27, s52, v27
        v_lshrrev_b32 v50, 1, v50
        v_lshlrev_b32 v24, 3, v50
        v_add_u32 v24, {ST}, v24
        s_lshl_b32 s52, s3, 3
        s_add_u32 s52, s52, {ST}
        v_mov_b32 v23, s52""")
        for r in range(32, 36): a(f"v_mov_b32 v{r}, 0")
        self.acc_addr(30, 48, 0)
        a(f"""s_lshr_b32 s52, s3, 1
        s_lshl_b32 s52, s52, 5
        s_lshr_b32 s54, s2, 1
        s_add_u32 s52, s52, s54
        s_add_u32 s52, s52, 64
        s_lshl_b32 s52, s52, 3
        s_and_b32 s54, s2, 1
        s_add_u32 s52, s52, s54
        s_lshl_b32 s52, s52, 9
        s_add_u32 s52, s52, {REC}
        s_and_b32 s54, s3, 1
        s_lshl_b32 s54, s54, 8
        v_lshlrev_b32 v50, 2, v0
        v_add_u32 v50, s54, v50
        v_mov_b32 v59, s35
        v_mov_b32 v58, 0""")
        if self.c['hT']:
            a("s_mov_b32 s79, s52\ns_mov_b32 s78, s55\ns_lshr_b32 s63, s2, 5\ns_and_b32 s64, s2, 31\ns_mov_b32 s65, 3\nv_mov_b32 v22, v30\nv_mov_b32 v21, v31\nv_mov_b32 v20, v50")
            self.t_addr(True)
            a("v_mov_b32 v80, v30\nv_mov_b32 v81, v31\nv_mov_b32 v30, v22\nv_mov_b32 v31, v21\nv_mov_b32 v50, v20\ns_mov_b32 s52, s79\ns_mov_b32 s55, s78")
        if self.c['dynT'] and self.c['dynH'] == 0:
            a("s_mov_b32 s79, s52\ns_mov_b32 s78, s55\ns_mov_b32 s48, s2\nv_mov_b32 v22, v30\nv_mov_b32 v21, v31\nv_mov_b32 v20, v50")
            self.t_addr192()
            a("v_mov_b32 v80, v30\nv_mov_b32 v81, v31\nv_mov_b32 v30, v22\nv_mov_b32 v31, v21\nv_mov_b32 v50, v20\ns_mov_b32 s52, s79\ns_mov_b32 s55, s78")
        self.poll_flags(28, 4, 1)
        self.stamp(10)
        for n in range(4): a(f"buffer_load_dword v{36+n}, v29, s[36:39], s55 offen offset:{256*n} sc1", tag='st')
        for n in range(4): a(f"buffer_load_dwordx4 v[{64+4*n}:{67+4*n}], v31, s[36:39], s56 offen sc1 {self.c['pbld']}\ns_add_u32 s56, s56, {2 * pbs}", tag=('pb', n))
        if self.c['dynT'] and self.c['dynH'] == 0: self.h_tw()
        a.wait_vm('st')
        a("v_max3_f32 v40, v36, v37, v38\nv_max_f32 v40, v40, v39\nv_mov_b32 v41, v40\nv_permlane32_swap_b32 v40, v41\nv_max_f32 v40, v40, v41")
        for n in range(4): a(f"v_sub_f32 v{36+n}, v{36+n}, v40")
        for n in range(4): a(f"v_exp_f32 v{36+n}, v{36+n}")
        a("v_add_f32 v41, v36, v37\nv_add_f32 v42, v38, v39\nv_add_f32 v41, v41, v42\nv_mov_b32 v42, v41\nv_permlane32_swap_b32 v41, v42\nv_add_f32 v41, v41, v42")
        a("ds_write_b64 v23, v[40:41]")
        for n in range(4):
            a.wait_vm(('pb', n))
            for k in range(4):
                a(f"v_lshlrev_b32 v42, 16, v{64+4*n+k}\nv_and_b32 v43, 0xffff0000, v{64+4*n+k}")
                if n == 0: a(f"v_mul_f32 v{12+2*k}, v36, v42\nv_mul_f32 v{13+2*k}, v36, v43")
                else: a(f"v_fmac_f32 v{12+2*k}, v{36+n}, v42\nv_fmac_f32 v{13+2*k}, v{36+n}, v43")
        a("ds_write_b128 v26, v[12:15]\nds_write_b128 v26, v[16:19] offset:16")
        a.wait_lg(); a("s_barrier")
        a("ds_read_b64 v[40:41], v24\nds_read_b128 v[12:15], v27\nds_read_b128 v[16:19], v27 offset:16")
        a.wait_lg()
        a("v_mov_b32 v42, v40")
        self.red8([42], "v_max_f32")
        a("v_sub_f32 v40, v40, v42\nv_exp_f32 v40, v40\nv_mul_f32 v41, v41, v40")
        self.red8([41], "v_add_f32")
        a("v_rcp_f32 v41, v41\nv_add_f32 v40, v40, v40\nv_mul_f32 v40, v40, v41")
        for k in range(8): a(f"v_mul_f32 v{12+k}, v40, v{12+k}")
        self.red8(list(range(12, 20)), "v_add_f32")
        for k in range(4): a(f"v_cvt_pk_bf16_f32 v{60+k}, v{12+2*k}, v{13+2*k}")
        for k in range(4):
            self.bop(40, 60 + k, 2); self.bop(44, 60 + k, 6)
            self.mfma16(32, UV + 8 * k, 40); self.mfma16(32, UV + 8 * k + 4, 44)
        a("ds_write_b128 v25, v[32:35]")
        a.wait_lg(); a("s_barrier")
        Ls = a.newlabel("L_nostat")
        a(f"s_cmp_ge_u32 s3, 4\ns_cbranch_scc1 {Ls}")
        for w in range(8): a(f"ds_read_b32 v{40+w}, v30 offset:{1024*w}")
        a.wait_lg()
        a("v_add_f32 v40, v40, v41\nv_add_f32 v42, v42, v43\nv_add_f32 v44, v44, v45\nv_add_f32 v46, v46, v47\nv_add_f32 v40, v40, v42\nv_add_f32 v44, v44, v46\nv_add_f32 v54, v40, v44")
        self.rec_store(54)
        a(f"{Ls}:"); a.vm = []
        self.stamp(6)
        if self.c.get('dH') == 5: a(f"s_branch {self.LF}")
    def h_tw(self):
        for k in range(6):
            r = TW[k]
            if k < 4: self.a(f"buffer_load_dwordx4 v[{r}:{r+3}], v80, s[68:71], 0 offen offset:{k*1152} nt", tag='tw')
            else: self.a(f"buffer_load_dwordx4 v[{r}:{r+3}], v81, s[68:71], 0 offen offset:{(k-4)*2304} nt", tag='tw')
    def h_final(self, LX):
        a = self.a; c = self.c
        a(f"""s_lshl_b32 s48, s3, 6
        s_add_u32 s48, s48, s2
        s_cmp_ge_u32 s48, 72
        s_cbranch_scc1 {LX}
        s_cmp_ge_u32 s48, 36
        s_cselect_b32 s49, 1, 0
        s_mul_i32 s52, s49, 36
        s_sub_u32 s50, s48, s52
        s_mul_i32 s56, s49, 1152
        s_add_u32 s54, s4, s56
        s_addc_u32 s55, s5, 0""")
        self.srd(40, "s54", "s55", 1152); self.srd(44, "s26", "s27", 1152)
        a("v_lshlrev_b32 v20, 2, v0")
        for k in range(5):
            a(f"buffer_load_dword v{10+k}, v20, s[40:43], 0 offen offset:{256*k}\nbuffer_load_dword v{15+k}, v20, s[44:47], 0 offen offset:{256*k}")
        a(f"""v_lshrrev_b32 v24, 3, v0
        v_mul_u32_u24 v31, 9216, v24
        v_and_b32 v24, 7, v0
        v_lshl_add_u32 v31, v24, 4, v31
        s_mul_i32 s52, s49, 4608
        s_lshl_b32 s54, s50, 7
        s_add_u32 s52, s52, s54
        s_add_u32 s52, s52, {PO}
        v_add_u32 v31, s52, v31
        v_lshlrev_b32 v21, 2, v24
        v_bfe_u32 v24, v0, 4, 1
        v_lshl_add_u32 v21, v24, 1, v21
        s_lshl_b32 s54, s50, 5
        s_add_u32 s56, s56, s54
        v_mov_b32 v22, 0""")
        for n in range(8): a(f"s_mov_b32 s{64+n}, {n*73728}")
        a.wait_vm()
        self.srd(40, "s28", "s29", 2304)
        if c['pret']: a("buffer_load_ushort v29, v21, s[40:43], s56 offen")
        for k in range(5):
            a(f"""v_lshlrev_b32 v24, 16, v{10+k}
            v_and_b32 v25, 0xffff0000, v{10+k}
            v_lshlrev_b32 v26, 16, v{15+k}
            v_and_b32 v27, 0xffff0000, v{15+k}
            v_mul_f32 v24, v24, v26
            v_mul_f32 v25, v25, v27
            v_cvt_pk_bf16_f32 v24, v24, v25
            v_lshlrev_b32 v25, 16, v24
            v_and_b32 v24, 0xffff0000, v24
            v_add_f32 v22, v22, v25
            v_add_f32 v22, v22, v24""")
        self.red8([22], "v_add_f32")
        a("v_add_f32_dpp v22, v22, v22 row_ror:8 row_mask:0xf bank_mask:0xf")
        self.redrows(22, 24, "v_add_f32")
        a(f"""v_cvt_pk_bf16_f32 v22, v22, v22
        v_and_b32 v22, 0xffff0000, v22
        v_mul_f32 v22, {LOG2E}, v22
        v_exp_f32 v22, -v22
        v_add_f32 v22, 1.0, v22
        v_rcp_f32 v22, v22
        v_cvt_pk_bf16_f32 v22, v22, v22
        v_and_b32 v22, 0xffff0000, v22
        v_sub_f32 v23, 1.0, v22
        v_cvt_pk_bf16_f32 v23, v23, v23
        v_and_b32 v23, 0xffff0000, v23""")
        if c['ftrig'] == 'rec':
            a(f"s_and_b32 s52, s48, 63\ns_lshl_b32 s52, s52, 12\ns_add_u32 s52, s52, {REC + 12}\nv_and_b32 v30, 3, v0\nv_lshlrev_b32 v30, 9, v30\nv_add_u32 v30, s52, v30")
            self.poll_granules(lambda: a("buffer_load_dword v65, v30, s[36:39], 0 offen sc1"), [65], 7, sleep=c['fsleep'])
        else:
            g = c.get('fgrp', 0)
            self.poll_granules(lambda: a(f"buffer_load_dwordx4 v[64:67], v31, s[36:39], s{64+g} offen sc1"), [65, 67], 7, sleep=c['fsleep'])
        def sums(R):
            for k in range(2):
                a(f"v_add_f32 v{32+k}, v{R+2*k}, v{R+4+2*k}\nv_add_f32 v{34+k}, v{R+8+2*k}, v{R+12+2*k}")
                a(f"v_add_f32 v{36+k}, v{R+16+2*k}, v{R+20+2*k}\nv_add_f32 v{38+k}, v{R+24+2*k}, v{R+28+2*k}")
        def gset(k):
            for n in range(8): a(f"buffer_load_dwordx4 v[{64+32*k+4*n}:{67+32*k+4*n}], v31, s[36:39], s{64+n} offen sc1")
        if c['fsel']:
            Lp = a.newlabel("L_fs"); Ld = a.newlabel("L_fsd")
            a(f"s_mov_b32 s53, {c['spin']}\ns_mov_b32 s72, 0xff\n{Lp}:")
            for n in range(8):
                L = a.newlabel("L_fi")
                a(f"s_bitcmp1_b32 s72, {n}\ns_cbranch_scc0 {L}\nbuffer_load_dwordx4 v[{64+4*n}:{67+4*n}], v31, s[36:39], s{64+n} offen sc1\n{L}:")
            a("s_waitcnt vmcnt(0)")
            for n in range(8):
                L = a.newlabel("L_fc")
                a(f"s_bitcmp1_b32 s72, {n}\ns_cbranch_scc0 {L}")
                self.tagcheck([65 + 4 * n, 67 + 4 * n], 48)
                a(f"s_cbranch_vccnz {L}\ns_bitset0_b32 s72, {n}\n{L}:")
            a(f"s_cmp_eq_u32 s72, 0\ns_cbranch_scc1 {Ld}\ns_sub_u32 s53, s53, 1\ns_cbranch_scc0 {Lp}")
            self.timeout(8)
            a(f"{Ld}:"); a.vm = []; sums(64)
        elif c['fpipe'] > 1: self.poll_pipe(gset, lambda k: [65 + 32 * k + 2 * j for j in range(16)], 8, c['fpipe'], 8, lambda k: sums(64 + 32 * k))
        else:
            self.poll_granules(lambda: gset(0), [65 + 2 * k for k in range(16)], 8, sleep=c.get('fsleep2', 0)); sums(64)
        a("""v_add_f32 v32, v32, v34
        v_add_f32 v36, v36, v38
        v_add_f32 v33, v33, v35
        v_add_f32 v37, v37, v39
        v_permlane32_swap_b32 v32, v36
        v_permlane32_swap_b32 v33, v37
        v_add_f32 v32, v32, v36
        v_add_f32 v33, v33, v37
        v_permlane16_swap_b32 v32, v33
        v_add_f32 v32, v32, v33
        v_add_f32_dpp v42, v32, v32 row_ror:8 row_mask:0xf bank_mask:0xf
        v_cvt_pk_bf16_f32 v42, v42, v42
        v_and_b32 v42, 0xffff0000, v42
        v_mov_b32 v43, v42
        v_permlane32_swap_b32 v42, v43
        v_mul_f32 v42, v22, v42
        v_mul_f32 v43, v23, v43
        v_cvt_pk_bf16_f32 v42, v42, v43
        v_lshlrev_b32 v43, 16, v42
        v_and_b32 v42, 0xffff0000, v42
        v_add_f32 v42, v42, v43
        v_cvt_pk_bf16_f32 v42, v42, v42
        s_mov_b32 exec_lo, 0x00ff00ff
        s_mov_b32 exec_hi, 0
        buffer_store_short v42, v21, s[40:43], s56 offen """ + c['outf'])
        Ls = a.newlabel("L_noep")
        a(f"s_cmp_lg_u32 s48, 0\ns_cbranch_scc1 {Ls}\ns_mov_b64 exec, 1\nv_mov_b32 v44, s35\nv_mov_b32 v45, 0")
        a(f"buffer_store_dword v44, v45, s[36:39], 0 offen {c['outf']}\n{Ls}:\ns_mov_b64 exec, -1")
        self.stamp(7)

    def h_final8(self, LX):
        a = self.a; c = self.c; FL = 40960
        Lg = a.newlabel("L_nogate")
        a(f"""s_cmp_ge_u32 s2, 36
        s_cbranch_scc1 {Lg if c['hT'] or c['dynT'] else LX}
        s_cmp_ge_u32 s2, 18
        s_cselect_b32 s49, 1, 0
        s_mul_i32 s52, s49, 18
        s_sub_u32 s50, s2, s52
        s_mul_i32 s76, s49, 1152
        v_lshrrev_b32 v24, 3, v0
        v_mul_u32_u24 v163, 9216, v24
        v_and_b32 v24, 7, v0
        v_lshl_add_u32 v163, v24, 4, v163
        s_mul_i32 s52, s49, 4608
        s_lshl_b32 s54, s50, 8
        s_add_u32 s52, s52, s54
        s_mul_i32 s54, s3, 73728
        s_add_u32 s52, s52, s54
        s_add_u32 s77, s52, {PO}
        v_lshlrev_b32 v20, 2, v0
        s_lshl_b32 s52, s3, 8
        s_add_u32 s52, s52, {FL}
        v_add_u32 v164, s52, v20
        s_cmp_lg_u32 s3, 0
        s_cbranch_scc1 {Lg}
        s_add_u32 s54, s4, s76
        s_addc_u32 s55, s5, 0""")
        self.srd(40, "s54", "s55", 1152); self.srd(44, "s26", "s27", 1152)
        for k in range(5):
            a(f"buffer_load_dword v{10+k}, v20, s[40:43], 0 offen offset:{256*k}\nbuffer_load_dword v{15+k}, v20, s[44:47], 0 offen offset:{256*k}")
        a("""v_lshlrev_b32 v162, 2, v24
        v_bfe_u32 v24, v0, 4, 1
        v_lshl_add_u32 v162, v24, 1, v162
        v_lshrrev_b32 v24, 5, v0
        v_lshl_add_u32 v162, v24, 5, v162
        s_lshl_b32 s54, s50, 6
        s_add_u32 s76, s76, s54
        v_mov_b32 v22, 0""")
        a.wait_vm()
        for k in range(5):
            a(f"""v_lshlrev_b32 v24, 16, v{10+k}
            v_and_b32 v25, 0xffff0000, v{10+k}
            v_lshlrev_b32 v26, 16, v{15+k}
            v_and_b32 v27, 0xffff0000, v{15+k}
            v_mul_f32 v24, v24, v26
            v_mul_f32 v25, v25, v27
            v_cvt_pk_bf16_f32 v24, v24, v25
            v_lshlrev_b32 v25, 16, v24
            v_and_b32 v24, 0xffff0000, v24
            v_add_f32 v22, v22, v25
            v_add_f32 v22, v22, v24""")
        self.red8([22], "v_add_f32")
        a("v_add_f32_dpp v22, v22, v22 row_ror:8 row_mask:0xf bank_mask:0xf")
        self.redrows(22, 24, "v_add_f32")
        a(f"""v_cvt_pk_bf16_f32 v22, v22, v22
        v_and_b32 v22, 0xffff0000, v22
        v_mul_f32 v22, {LOG2E}, v22
        v_exp_f32 v22, -v22
        v_add_f32 v22, 1.0, v22
        v_rcp_f32 v22, v22
        v_cvt_pk_bf16_f32 v22, v22, v22
        v_and_b32 v160, 0xffff0000, v22
        v_sub_f32 v23, 1.0, v160
        v_cvt_pk_bf16_f32 v23, v23, v23
        v_and_b32 v161, 0xffff0000, v23
        {Lg}:""")
        if c['hT']:
            if c['htrig']:
                a(f"s_lshl_b32 s52, s64, 12\ns_add_u32 s52, s52, {REC + 12}\nv_and_b32 v28, 1, v0\nv_lshlrev_b32 v28, 17, v28\nv_add_u32 v28, s52, v28")
                self.poll_flags(28, 9, c['fsleep'])
            self.h_tw()
            self.proj(True)
            a(f"s_cmp_ge_u32 s2, 36\ns_cbranch_scc1 {LX}")
        if c['dynT']:
            a(f"s_mov_b32 s48, s2\ns_mov_b32 s59, 1\ns_branch {self.LT if c['dynH'] else self.LT2}\n{self.LH2}:\ns_cmp_ge_u32 s2, 36\ns_cbranch_scc1 {LX}")
            self.reset()
        self.srd(40, "s28", "s29", 2304)
        if c['outt']:
            L = a.newlabel("L_not")
            a(f"s_cmp_lg_u32 s3, 0\ns_cbranch_scc1 {L}\nbuffer_load_ushort v29, v162, s[40:43], s76 offen {c['outt'] if c['outt'] != 1 else ''}\n{L}:")
        def g(): a("buffer_load_dwordx4 v[64:67], v163, s[36:39], s77 offen sc1\nbuffer_load_dwordx4 v[68:71], v163, s[36:39], s77 offen offset:128 sc1")
        if c.get('f8t') is not None and not c['hT'] and not (c['dynT'] and not c.get('dynF')):
            L = a.newlabel("L_f8t")
            a(f"s_cmp_lg_u32 s3, {c['f8t']}\ns_cbranch_scc1 {L}")
            self.poll_granules(g, [65, 67, 69, 71], 7, sleep=c['fsleep'])
            a(f"{L}:\ns_barrier")
        self.poll_granules(g, [65, 67, 69, 71], 8, sleep=c['f8'] - 1)
        a("""v_permlane32_swap_b32 v64, v68
        v_permlane32_swap_b32 v66, v70
        v_add_f32 v64, v64, v68
        v_add_f32 v66, v66, v70
        v_permlane16_swap_b32 v64, v66
        v_add_f32 v64, v64, v66
        v_add_f32_dpp v64, v64, v64 row_ror:8 row_mask:0xf bank_mask:0xf
        ds_write_b32 v164, v64""")
        a.wait_lg(); a(f"s_barrier\ns_cmp_lg_u32 s3, 0\ns_cbranch_scc1 {LX}")
        for n in range(8): a(f"ds_read_b32 v{32+n}, v164 offset:{256*n}")
        a.wait_lg()
        a("""v_add_f32 v32, v32, v33
        v_add_f32 v34, v34, v35
        v_add_f32 v36, v36, v37
        v_add_f32 v38, v38, v39
        v_add_f32 v32, v32, v34
        v_add_f32 v36, v36, v38
        v_cvt_pk_bf16_f32 v42, v32, v36
        v_and_b32 v43, 0xffff0000, v42
        v_lshlrev_b32 v42, 16, v42
        v_mul_f32 v42, v160, v42
        v_mul_f32 v43, v161, v43
        v_cvt_pk_bf16_f32 v42, v42, v43
        v_lshlrev_b32 v43, 16, v42
        v_and_b32 v42, 0xffff0000, v42
        v_add_f32 v42, v42, v43
        v_cvt_pk_bf16_f32 v42, v42, v42
        s_mov_b32 exec_lo, 0x00ff00ff
        s_mov_b32 exec_hi, 0x00ff00ff
        buffer_store_short v42, v162, s[40:43], s76 offen """ + c['outf'])
        Ls = a.newlabel("L_noep")
        a(f"s_cmp_lg_u32 s2, 0\ns_cbranch_scc1 {Ls}\ns_mov_b64 exec, 1\nv_mov_b32 v44, s35\nv_mov_b32 v45, 0")
        a(f"buffer_store_dword v44, v45, s[36:39], 0 offen\n{Ls}:\ns_mov_b64 exec, -1")
        self.stamp(7)
        if c['stamps']: a("s_waitcnt vmcnt(0)"); self.stamp(3)

    def build(self):
        a = self.a
        hdr = open("gated_mix__gqa_block_cached__compressed_kv_cla__decode.s.ref").read().split("; Override launch")[0]
        a.raw(hdr.rstrip())
        a.raw("; @launch grid=(256,1,1) block=(512,1,1) lds=163840")
        a.raw(DESC)
        a.raw('.amdgcn_target "amdgcn-amd-amdhsa--gfx950"\n.text')
        LS1, LS2, LH, LM, LF, LE = (a.newlabel(x) for x in ("L_headq", "L_headabs", "L_latent", "L_merge", "L_fin", "L_end"))
        self.LF = LF; self.LT = a.newlabel("L_proj"); self.LT2 = a.newlabel("L_proj"); self.LH2 = a.newlabel("L_hfin")
        self.entry(LS1, LS2, LH, LE)
        a(f"{LH}:"); self.h_front(); self.h_attn(); self.h_uv(); (self.h_final8 if self.c['f8'] else self.h_final)(LF); a(f"s_branch {LF}")
        a(f"{LS2}:"); self.head_s2(); a(f"s_branch {LM}")
        a(f"{LS1}:"); self.head_s1()
        a(f"{LM}:"); self.a_static(); self.a_pool(); self.a_epilogue(); (self.proj(False) if self.c['hT'] else self.a_proj())
        if self.c['dynT']: a(f"s_cmp_eq_u32 s59, 1\ns_cbranch_scc1 {self.LH2}")
        a(f"{LF}:"); self.stamp_flush()
        a(f"{LE}:\ns_endpgm")
        a.raw(f""".section .rodata,"a"
.p2align 6
.amdhsa_kernel {KN}
  .amdhsa_next_free_vgpr 256
  .amdhsa_next_free_sgpr 102
  .amdhsa_accum_offset 256
  .amdhsa_group_segment_fixed_size 0
  .amdhsa_kernarg_size 120
  .amdhsa_user_sgpr_count 2
  .amdhsa_user_sgpr_kernarg_segment_ptr 1
  .amdhsa_system_sgpr_workgroup_id_x 1
.end_amdhsa_kernel""")
        return a.text()

def gen(**kw): return G(**kw).build()
if __name__ == "__main__":
    cfg = json.loads(sys.argv[2]) if len(sys.argv) > 2 else {}
    open(sys.argv[1], "w").write(gen(**cfg))
```

```python
import sys, json
sys.path.insert(0, "dev")
from asmlib import Asm
KN = "gated_mix__gqa_block_cached__compressed_kv_cla__decode_kernel"
Q     = 0x1000
QABS  = 0x11000
FQ    = 0x21000
FB    = 0x23000
PBS   = 0x25000
CNT   = 0x27000
REC   = 0x30000
PO    = 0x150000
PB    = 0x200000
STAMP = 0x800000
WS_USED = 0x1000000
LOG2E = 0x3fb8aa3b; SCALE = 0x3db504f3; NEGINF = 0xff800000
DEF = dict(W=4, W2=4, iW2=50, R=40, NS=36, IQ=22, ICHK=26, WH=4, iq2=13, W0=2, n0=8, nsub=4, subrot=3, UT=1, twpos=(0, 1),
           rotb=2, spin=300000, fsleep=4, fsleep2=1, ftrig='po', fgrp=4, fpipe=1, stamps=False, pbs=32768, wsb=0, outf='', rot=65536, xmap=1, s2wait=0, pbst='', pbld='', twsplit=3, pret=0, pre0=None, pord=0, hT=0, outt=0, rank=0, rankw=2, typed=0, tmix=0, dynT=0, dynH=1, qsh=0, htrig=0, hsleep=2, f8=2, f8t=4, fsel=0)
PL = 131072; ML = PL + 4608
QL = 8192; TL = 16384; S1L = 32768; S2L = 49152; XL = 57344; EB = 65536
RING = 88; SREG = 64; ZERO = 85; TK = 86
FK = [88, 104]; FV = [96, 112]; TW = [120 + 4 * k for k in range(6)]
WR = 212; UR = 216
QR = 64; ACC = 128; SA = 160; TA = 168; STG = 176; UV = 208; DV = 240
R2 = [12, 16, 20, 24, 172, 244, 248, 252]
QTAGS = [11, 13, 15, 17, 19, 21, 23, 25]

DESC = """; One launch, 256 workgroups of 8 waves (one per CU); later ids exit at once. Generated by a script of the author's.
;  ids 64..255 one slice of the query projections, GQA attention of one (batch, kv head): 6912 keys split statically
; at d_ws[0], which the launch replaces by its tag at the end; every wait is bounded."""

class G:
    def __init__(self, **kw):
        self.c = dict(DEF); self.c.update(kw)
        self.a = Asm(); c = self.c
        self.NF = (2048 - 48 * c['NS']) // c['nsub'] // c['UT']
        self.NW = 4 if c['hT'] else 6
        self.USH = 10 + c['UT'] - 1
        self.TSH = self.USH + c['nsub'].bit_length() - 1
    def reset(self, vm=()): self.a.vm = list(vm); self.a.lg = []; self.a.hist = []
    def srd(self, d, lo, hi, size):
        self.a(f"s_mov_b32 s{d}, {lo}\ns_and_b32 s{d+1}, {hi}, 0xffff\ns_mov_b32 s{d+2}, {size}\ns_mov_b32 s{d+3}, 0x20000")
    def late_prologue(self):
        if self.c['wsb']: self.a(f"s_add_u32 s32, s32, {self.c['wsb']}\ns_addc_u32 s33, s33, 0")
        self.a("s_load_dword s34, s[32:33], 0"); self.srd(36, "s32", "s33", WS_USED)
    def get_tag(self):
        self.a("s_waitcnt lgkmcnt(0)\ns_mul_i32 s35, s34, 1664525\ns_add_u32 s35, s35, 1013904223"); self.a.lg = []
    def stamp(self, k):
        e = self.c.get('enc')
        if self.c['stamps'] or (e and k in (0, e[1])): self.a(f"s_memrealtime s[{80+2*k}:{81+2*k}]")
    def stamp_flush(self):
        if self.c.get('probe'):
            a = self.a; L = a.newlabel("L_nopr")
            a(f"s_cmp_lg_u32 s3, 0\ns_cbranch_scc1 {L}\ns_cmp_lg_u32 s2, 0\ns_cbranch_scc1 {L}\ns_waitcnt vmcnt(0)\ns_mov_b64 exec, 1\nv_mov_b32 v1, 0")
            for i, p in enumerate((6, 8, 16, 10, 12, 18, 20, 22, 24)):
                self.srd(40, f"s{p}", f"s{p+1}", 4194304)
                a("s_mov_b32 s60, 0\ns_mov_b32 s61, 0")
                for k in range(17):
                    a(f"s_mov_b32 s51, {k * 8192 + 0x100000 + 384}\ns_memtime s[56:57]\ns_waitcnt lgkmcnt(0)\nbuffer_load_dword v3, v1, s[40:43], s51 offen sc0 sc1 nt\ns_waitcnt vmcnt(0)\ns_memtime s[58:59]\ns_waitcnt lgkmcnt(0)\ns_sub_u32 s58, s58, s56")
                    if k: a(f"s_add_u32 s{60 + (k & 1)}, s{60 + (k & 1)}, s58")
                a(f"s_cmp_lt_u32 s60, s61\ns_cselect_b32 s52, 11, 10\nv_mov_b32 v4, s52\nglobal_store_dword v1, v4, s[30:31] offset:{4 * i}")
            a(f"s_getreg_b32 s52, hwreg(HW_REG_XCC_ID)\nv_mov_b32 v4, s52\nglobal_store_dword v1, v4, s[30:31] offset:40\nv_mov_b32 v4, s6\nglobal_store_dword v1, v4, s[30:31] offset:44\nv_mov_b32 v4, s8\nglobal_store_dword v1, v4, s[30:31] offset:48")
            a(f"s_mov_b64 exec, -1\n{L}:")
        e = self.c.get('enc')
        if e:
            a = self.a; L = a.newlabel("L_noenc"); Lq = a.newlabel("L_enc")
            if e[0] == -1: a(f"s_waitcnt vmcnt(0)\ns_memrealtime s[{80+2*e[1]}:{81+2*e[1]}]\ns_waitcnt lgkmcnt(0)")
            else: a(f"s_cmp_lg_u32 s3, 0\ns_cbranch_scc1 {L}\ns_cmp_lg_u32 s2, {e[0]}\ns_cbranch_scc1 {L}\ns_waitcnt lgkmcnt(0)")
            a(f"s_sub_u32 s52, s{80+2*e[1]}, s80\ns_mul_i32 s52, s52, {e[2]}\ns_add_u32 s52, s52, 5000\ns_min_u32 s52, s52, 100000")
            a(f"{Lq}:\ns_sleep 8\ns_memrealtime s[78:79]\ns_waitcnt lgkmcnt(0)\ns_sub_u32 s54, s78, s80\ns_cmp_lt_u32 s54, s52\ns_cbranch_scc1 {Lq}\n{L}:")
        if not self.c['stamps']: return
        a = self.a; L = a.newlabel("L_nost")
        a(f"s_cmp_lg_u32 s3, 0\ns_cbranch_scc1 {L}\ns_waitcnt lgkmcnt(0)")
        for k in range(11): a(f"v_mov_b32 v{2+k}, s{80+2*k}")
        a(f"s_lshl_b32 s52, s2, 6\ns_add_u32 s52, s52, {STAMP}\nv_mov_b32 v1, 0\ns_mov_b64 exec, 1")
        for k in range(3): a(f"buffer_store_dwordx4 v[{2+4*k}:{5+4*k}], v1, s[36:39], s52 offen offset:{16*k}")
        a(f"s_mov_b64 exec, -1\n{L}:")
    def sels(self):
        a = self.a
        a("""v_and_b32 v48, 1, v0
        v_mov_b32 v49, 0x0c0c0100
        v_mov_b32 v50, 0x01000c0c
        v_mov_b32 v51, 0x0c0c0302
        v_mov_b32 v52, 0x03020c0c
        v_mov_b32 v53, 0x0c0c0c0c
        v_cmp_eq_u32 vcc, 1, v48
        v_bfe_u32 v54, v0, 1, 2
        v_cndmask_b32 v49, v49, v50, vcc
        v_cndmask_b32 v51, v51, v52, vcc""")
        for k in range(4): a(f"v_cmp_eq_u32 vcc, {k}, v54\nv_cndmask_b32 v{2+k}, v53, v49, vcc\nv_cndmask_b32 v{6+k}, v53, v51, vcc")
    def timeout(self, code):
        self.a(f"v_mov_b32 v62, {code}\nv_mov_b32 v63, 0\nglobal_store_dword v63, v62, s[30:31] offset:64")
    def poll_flags(self, voff, code, sleep):
        a = self.a; Ls = a.newlabel("L_pskip"); Lp = a.newlabel("L_poll")
        keep = a.vm[:]
        a(f"s_cmp_lg_u32 s3, 0\ns_cbranch_scc1 {Ls}\ns_mov_b32 s53, {self.c['spin']}\n{Lp}:")
        a(f"buffer_load_dword v61, v{voff}, s[36:39], 0 offen sc1\ns_waitcnt vmcnt(0)")
        a(f"v_cmp_ne_u32 vcc, s35, v61\ns_cbranch_vccz {Ls}\ns_sleep {sleep}\ns_sub_u32 s53, s53, 1\ns_cbranch_scc0 {Lp}")
        self.timeout(code)
        a(f"{Ls}:\ns_barrier"); a.vm = keep
    def tagcheck(self, tags, t):
        a = self.a
        a(f"v_xor_b32 v{t}, s35, v{tags[0]}")
        for r in tags[1:]: a(f"v_bitop3_b32 v{t}, v{t}, v{r}, s35 bitop3:0xf6")
        a(f"v_cmp_ne_u32 vcc, 0, v{t}")
    def poll_granules(self, issue, tags, code, first_issued=False, sleep=0, after_first=None):
        a = self.a; Lp = a.newlabel("L_gpoll"); Ld = a.newlabel("L_gdone"); Lc = a.newlabel("L_gchk")
        a(f"s_mov_b32 s53, {self.c['spin']}")
        if first_issued:
            a.wait_vm('pg')
            if after_first: after_first()
            self.tagcheck(tags, 48); a(f"s_cbranch_vccz {Ld}")
        save = a.vm[:]
        a(f"{Lp}:")
        issue(); a("s_waitcnt vmcnt(0)")
        self.tagcheck(tags, 48)
        a(f"s_cbranch_vccz {Ld}")
        if sleep: a(f"s_sleep {sleep}")
        a(f"s_sub_u32 s53, s53, 1\ns_cbranch_scc0 {Lp}")
        self.timeout(code)
        a(f"s_waitcnt vmcnt(0)\n{Ld}:")
        a.vm = save if first_issued else []
    def poll_lds(self, reads, tags, code):
        a = self.a; Lp = a.newlabel("L_lp"); Ld = a.newlabel("L_lpd")
        a(f"s_mov_b32 s53, {self.c['spin'] * 4}\n{Lp}:")
        reads(); a.wait_lg()
        self.tagcheck(tags, 48)
        a(f"s_cbranch_vccz {Ld}\ns_sub_u32 s53, s53, 1\ns_cbranch_scc0 {Lp}")
        keep = a.vm[:]; self.timeout(code); a.vm = keep
        a(f"{Ld}:")
    def poll_pipe(self, issue, tags, nld, nset, code, take):
        a = self.a; Lp = a.newlabel("L_pp"); Ld = [a.newlabel("L_ppd") for _ in range(nset)]; Le = a.newlabel("L_ppe")
        a(f"s_mov_b32 s53, {self.c['spin']}")
        for k in range(nset - 1): issue(k)
        a(f"{Lp}:")
        for k in range(nset):
            issue((k + nset - 1) % nset)
            a(f"s_waitcnt vmcnt({(nset - 1) * nld})")
            self.tagcheck(tags(k), 48)
            a(f"s_cbranch_vccz {Ld[k]}")
        a(f"s_sub_u32 s53, s53, 1\ns_cbranch_scc0 {Lp}")
        self.timeout(code)
        for k in range(nset):
            a(f"{Ld[k]}:"); take(k)
            if k < nset - 1: a(f"s_branch {Le}")
        a(f"{Le}:"); a.vm = []
    def qk(self, K, T, U, mid=None):
        a = self.a; n = len(K)
        for kk in range(4):
            for t in range(n):
                for h in range(2):
                    a(f"v_dot2_f32_bf16 v{T+2*t+h}, v{K[t]+kk}, v{10+8*h+2*kk}, {'0' if kk == 0 else f'v{T+2*t+h}'}")
        if mid: mid()
        for t in range(n): a(f"v_add_f32_dpp v{U[t]}, v{T+2*t}, v{T+2*t} row_ror:8 row_mask:0xf bank_mask:0x3")
        for t in range(n): a(f"v_add_f32_dpp v{U[t]}, v{T+2*t+1}, v{T+2*t+1} row_ror:8 row_mask:0xf bank_mask:0xc")
        self.red8(U[:n], "v_add_f32")
    def bop(self, dst, src, sel):
        for k in range(4): self.a(f"v_perm_b32 v{dst+k}, v{src}, v{src}, v{sel+k}")
    def red8(self, regs, op):
        for m in ("row_half_mirror", "quad_perm:[1,0,3,2]", "quad_perm:[2,3,0,1]"):
            for r in regs: self.a(f"{op}_dpp v{r}, v{r}, v{r} {m} row_mask:0xf bank_mask:0xf")
    def redrows(self, r, t, op):
        self.a(f"v_mov_b32 v{t}, v{r}\nv_permlane16_swap_b32 v{r}, v{t}\n{op} v{r}, v{r}, v{t}")
        self.a(f"v_mov_b32 v{t}, v{r}\nv_permlane32_swap_b32 v{r}, v{t}\n{op} v{r}, v{r}, v{t}")
    def mfma16(self, d, A, B): self.a(f"v_mfma_f32_16x16x32_bf16 v[{d}:{d+3}], v[{A}:{A+3}], v[{B}:{B+3}], v[{d}:{d+3}]")
    def acc_addr(self, dst, t, base):
        self.a(f"""v_and_b32 v{dst}, 7, v0
        v_lshlrev_b32 v{dst}, 4, v{dst}
        v_bfe_u32 v{t}, v0, 3, 2
        v_lshl_add_u32 v{dst}, v{t}, 2, v{dst}
        v_lshrrev_b32 v{t}, 5, v0
        v_lshl_add_u32 v{dst}, v{t}, 8, v{dst}
        s_and_b32 s52, s3, 1
        s_lshl_b32 s52, s52, 9
        s_lshr_b32 s54, s3, 1
        s_lshl_b32 s54, s54, 7
        s_add_u32 s52, s52, s54
        s_add_u32 s52, s52, {base}
        v_add_u32 v{dst}, s52, v{dst}""")
    def rec_store(self, r, vo=50, so=52):
        a = self.a
        a(f"v_mov_b32_dpp v55, v{r} quad_perm:[1,0,3,2] row_mask:0xf bank_mask:0xf\nv_cvt_pk_bf16_f32 v56, v{r}, v55")
        a("v_mov_b32_dpp v57, v56 quad_perm:[2,3,0,1] row_mask:0xf bank_mask:0xf\ns_mov_b32 exec_lo, 0x11111111\ns_mov_b32 exec_hi, 0x11111111")
        a(f"buffer_store_dwordx4 v[56:59], v{vo}, s[36:39], s{so} offen sc1\ns_mov_b64 exec, -1"); a.vm.pop()
    def flag_store(self, sreg):
        self.a(f"v_mov_b32 v50, s35\nv_mov_b32 v51, 0\ns_mov_b64 exec, 1\nbuffer_store_dword v50, v51, s[36:39], {sreg} offen sc1\ns_mov_b64 exec, -1"); self.a.vm.pop()

    def wload(self, t): self.a(f"s_mov_b32 s51, {t*16384}\nbuffer_load_dwordx4 v[{WR+4*t}:{WR+4*t+3}], v28, s[72:75], s51 offen nt", tag=('w', t))
    def uload(self, t): self.a(f"s_mov_b32 s51, {t*8192}\nbuffer_load_dwordx4 v[{UR+4*t}:{UR+4*t+3}], v28, s[72:75], s51 offen nt", tag=('u', t))
    def dma(self, t):
        a = self.a; q = t % 8
        if q == 0: a("s_and_b32 s62, s62, 0x7fffff")
        a(f"s_add_u32 m0, s60, {q*1024}\ns_add_u32 s51, s62, {q*8192}\nbuffer_load_dwordx4 v{DV + (q & 1)}, s[76:79], s51 offen nt lds", tag='d')
        if q == 7: a("s_add_u32 s62, s62, 0x200000\ns_xor_b32 s60, s60, 0x10000")
    def entry(self, LS1, LS2, LH, LE):
        a = self.a; c = self.c
        a.raw(f".globl {KN}\n.p2align 8\n.type {KN},@function\n{KN}:")
        a(f"s_cmp_ge_u32 s2, 256\ns_cbranch_scc1 {LE}")
        self.stamp(0)
        L2 = a.newlabel("L_e2"); L3 = a.newlabel("L_eh"); L4 = a.newlabel("L_e1")
        a(f"""s_load_dwordx16 s[4:19], s[0:1], 0
        s_load_dwordx8 s[20:27], s[0:1], 64
        s_load_dwordx4 s[28:31], s[0:1], 96
        s_load_dwordx2 s[32:33], s[0:1], 112
        v_lshrrev_b32 v1, 6, v0
        v_and_b32 v0, 63, v0
        v_readfirstlane_b32 s3, v1
        v_lshlrev_b32 v1, 4, v0
        s_cmp_lt_u32 s2, 64
        s_cbranch_scc1 {L3}""")
        if c['xmap']:
            a(f"""s_sub_u32 s48, s2, 64
            s_mul_i32 s49, s48, 171
            s_lshr_b32 s49, s49, 12
            s_mul_i32 s52, s49, 24
            s_sub_u32 s52, s48, s52
            s_lshr_b32 s54, s52, 3
            s_bfe_u32 s55, s52, 0x10002
            s_add_u32 s52, s52, s54
            s_add_u32 s52, s52, 1
            s_and_b32 s52, s52, 3
            s_lshl_b32 s49, s49, 2
            s_add_u32 s49, s49, s52
            s_lshl_b32 s50, s54, 1
            s_add_u32 s50, s50, s55
            s_lshl_b32 s57, s49, 1
            s_cmp_eq_u32 s54, 2
            s_cselect_b32 s66, 2, s55
            s_cselect_b32 s52, s55, s54
            s_add_u32 s57, s57, s52
            s_cmp_eq_u32 s66, 2
            s_cbranch_scc1 {L2}""")
        else:
            a(f"""s_sub_u32 s48, s2, 64
            s_mul_i32 s49, s48, 171
            s_lshr_b32 s49, s49, 10
            s_mul_i32 s50, s49, 6
            s_sub_u32 s50, s48, s50
            s_cmp_ge_u32 s50, 3
            s_cselect_b32 s52, 3, 0
            s_cselect_b32 s57, 1, 0
            s_sub_u32 s66, s50, s52
            s_lshl_b32 s52, s49, 1
            s_add_u32 s57, s57, s52
            s_cmp_eq_u32 s66, 2
            s_cbranch_scc1 {L2}""")
        a("""v_lshrrev_b32 v48, 4, v0
        v_mul_u32_u24 v49, 18, v48
        v_bfe_u32 v50, v0, 3, 1
        v_add_u32 v51, v49, v50
        s_mul_i32 s52, s3, 72
        v_add_u32 v51, s52, v51
        v_lshlrev_b32 v28, 13, v51
        v_and_b32 v51, 7, v0
        v_lshl_add_u32 v28, v51, 4, v28
        s_lshl_b32 s54, s57, 7
        v_add_u32 v28, s54, v28
        v_lshlrev_b32 v62, 3, v0
        v_add_u32 v51, 1008, v62
        v_cmp_lt_u32 vcc, 17, v0
        s_lshl_b32 s52, s52, 1
        v_mov_b32 v52, 0x10000
        v_cndmask_b32 v63, v62, v51, vcc
        v_cmp_lt_u32 vcc, 35, v0
        v_add_u32 v63, s52, v63
        s_cmp_eq_u32 s66, 0
        v_cndmask_b32 v63, v63, v52, vcc
        s_waitcnt lgkmcnt(0)
        s_cselect_b32 s54, s18, s10
        s_cselect_b32 s55, s19, s11""")
        self.srd(72, "s54", "s55", 576 * 8192); self.srd(76, "s4", "s5", 2304)
        a("buffer_load_dwordx2 v[20:21], v63, s[76:79], 0 offen")
        for t in range(c['W0']): self.wload(t)
        a(f"s_cmp_lg_u32 s66, 0\ns_cbranch_scc1 {LS1}")
        for t in range(c['W0'], 4): self.wload(t)
        a(f"s_branch {LS1}")
        a(f"{L2}:"); self.reset()
        a("""s_lshr_b32 s56, s57, 4
        s_and_b32 s52, s57, 15
        s_lshl_b32 s52, s52, 2
        s_lshr_b32 s54, s3, 1
        s_add_u32 s52, s52, s54
        s_lshl_b32 s52, s52, 16
        s_lshl_b32 s54, s56, 1
        s_and_b32 s55, s3, 1
        s_add_u32 s54, s54, s55
        s_lshl_b32 s55, s54, 10
        s_add_u32 s52, s52, s55
        v_add_u32 v28, s52, v1
        s_waitcnt lgkmcnt(0)""")
        self.srd(72, "s20", "s21", 512 * 8192)
        for t in range(c['W0']): self.uload(t)
        a(f"s_branch {LS2}")
        a(f"{L3}:"); self.reset()
        a("v_lshrrev_b32 v48, 3, v0\nv_and_b32 v49, 7, v0\ns_lshl_b32 s52, s3, 7\nv_lshlrev_b32 v50, 10, v48\nv_add_u32 v50, s52, v50\nv_lshrrev_b32 v52, 4, v0")
        for q in range(2): a(f"v_add_u32 v51, {4*q}, v52\nv_xor_b32 v51, v51, v49\nv_lshl_add_u32 v{DV+q}, v51, 4, v50")
        a(f"""s_lshr_b32 s63, s2, 5
        s_and_b32 s64, s2, 31
        s_lshl_b32 s60, s3, 13
        s_mul_i32 s62, s63, {c['rotb'] << 21}
        s_lshl_b32 s52, s64, 16
        s_add_u32 s62, s62, s52
        s_lshl_b32 s52, s63, 23
        s_waitcnt lgkmcnt(0)
        s_add_u32 s54, s16, s52
        s_addc_u32 s55, s17, 0""")
        self.srd(76, "s54", "s55", 0x800000)
        for t in range(c['WH']): self.dma(t)
        a(f"s_branch {LH}")

    def a_common(self):
        a = self.a; c = self.c
        self.late_prologue()
        a("s_lshl_b32 s52, s49, 21\ns_add_u32 s54, s6, s52\ns_addc_u32 s55, s7, 0")
        self.srd(40, "s54", "s55", 0x200000)
        a("s_add_u32 s54, s8, s52\ns_addc_u32 s55, s9, 0")
        self.srd(44, "s54", "s55", 0x200000)
        a(f"""s_mul_i32 s52, s49, {c['rot']}
        s_lshl_b32 s60, s50, 3
        s_add_u32 s60, s60, s3
        s_lshl_b32 s60, s60, 12
        s_add_u32 s60, s60, s52
        s_mul_i32 s54, s50, {c['subrot']}
        s_add_u32 s54, s54, s3
        s_and_b32 s54, s54, {c['nsub'] - 1}
        s_lshl_b32 s61, s54, {self.USH}
        s_add_u32 s61, s61, s52
        s_add_u32 s61, s61, {c['NS']*48*1024}
        s_lshl_b32 s62, s49, 3
        s_add_u32 s62, s62, s54
        s_lshl_b32 s62, s62, 7
        s_add_u32 s62, s62, {CNT}
        s_lshl_b32 s52, s49, 10
        s_add_u32 s52, s52, {Q}
        v_and_b32 v29, 15, v0
        v_lshlrev_b32 v29, 4, v29
        v_add_u32 v29, s52, v29
        s_mov_b32 s58, {LOG2E}
        v_mov_b32 v{ZERO}, 0""")
        self.sels()
        if c['hT']:
            a("""s_cmp_ge_u32 s48, 96
            s_cselect_b32 s63, 1, 0
            s_mul_i32 s52, s63, 96
            s_sub_u32 s52, s48, s52
            s_mul_i32 s64, s52, 171
            s_lshr_b32 s64, s64, 9
            s_mul_i32 s65, s64, 3
            s_sub_u32 s65, s52, s65""")
            self.t_addr(False)
        elif c['dynT']:
            self.srd(68, "s30", "s31", 256)
            a("s_and_b32 s63, s48, 1\ns_lshl_b32 s64, s63, 7\ns_mov_b32 s59, 0")
        else: self.t_addr192()
        if c['pre0'] is not None:
            L = a.newlabel("L_npt")
            a(f"s_cmp_lg_u32 s3, {c['pre0']}\ns_cbranch_scc1 {L}\ns_mov_b64 exec, 1")
            keep = a.vm[:]
            for srd, v in (("s[40:43]", ZERO), ("s[44:47]", ZERO), ("s[68:71]", 30), ("s[36:39]", 29)):
                a(f"buffer_load_dword v82, v{v}, {srd}, 0 offen nt")
            a.vm = keep
            a(f"s_mov_b64 exec, -1\n{L}:")
        self.get_tag()
    def t_addr192(self):
        a = self.a
        if self.c['tmix']: a("s_and_b32 s52, s50, 1\ns_mul_i32 s52, s52, 96\ns_mul_i32 s48, s49, 3\ns_add_u32 s48, s48, s52\ns_lshr_b32 s52, s50, 1\ns_add_u32 s48, s48, s52")
        a("""s_cmp_ge_u32 s48, 96
        s_cselect_b32 s63, 1, 0
        s_cselect_b32 s54, s24, s12
        s_cselect_b32 s55, s25, s13
        s_cselect_b32 s67, 2.0, 1.0
        s_mul_i32 s52, s63, 96
        s_sub_u32 s52, s48, s52
        s_mul_i32 s64, s52, 171
        s_lshr_b32 s64, s64, 9
        s_mul_i32 s65, s64, 3
        s_sub_u32 s65, s52, s65""")
        self.srd(68, "s54", "s55", 4096 * 1152)
        a("""s_lshl_b32 s52, s64, 3
        s_add_u32 s52, s52, s3
        s_mul_i32 s52, s52, 18432
        s_mul_i32 s54, s65, 384
        s_add_u32 s52, s52, s54
        v_lshrrev_b32 v48, 4, v0
        v_mul_u32_u24 v30, 4608, v48
        v_add_u32 v30, s52, v30
        v_bfe_u32 v49, v0, 3, 1
        v_mul_u32_u24 v31, 1152, v49
        v_add_u32 v31, v31, v30
        v_and_b32 v50, 7, v0
        v_lshl_add_u32 v31, v50, 4, v31
        v_add_u32 v31, 256, v31
        v_and_b32 v51, 15, v0
        v_lshl_add_u32 v30, v51, 4, v30""")
    def t_addr(self, half):
        a = self.a
        a("""s_cmp_eq_u32 s63, 1
        s_cselect_b32 s54, s24, s12
        s_cselect_b32 s55, s25, s13
        s_cselect_b32 s67, 2.0, 1.0""")
        self.srd(68, "s54", "s55", 4096 * 1152)
        a("""s_lshl_b32 s52, s64, 3
        s_add_u32 s52, s52, s3
        s_mul_i32 s52, s52, 18432
        s_lshl_b32 s54, s65, 8
        s_add_u32 s52, s52, s54
        v_lshrrev_b32 v48, 4, v0
        v_mul_u32_u24 v86, 4608, v48
        v_add_u32 v86, s52, v86""".replace("v86", "v30"))
        if half:
            a("""v_bfe_u32 v49, v0, 3, 1
            v_mul_u32_u24 v31, 1152, v49
            v_add_u32 v31, v31, v30
            v_and_b32 v50, 7, v0
            v_lshl_add_u32 v31, v50, 4, v31
            v_add_u32 v31, 256, v31""")
        a("v_and_b32 v51, 15, v0\nv_lshl_add_u32 v30, v51, 4, v30")
    def ring(self, j): return RING + 4 * (j % self.c['R'])
    def kv(self, j):
        a = self.a; NS = self.c['NS']; jj = j % NS
        if jj % 4 == 0: a(f"s_add_u32 s51, s60, {(jj//4)*48*4096}\ns_and_b32 s51, s51, 0x1fffff")
        a(f"buffer_load_dwordx4 v[{self.ring(j)}:{self.ring(j)+3}], v1, {'s[40:43]' if j < NS else 's[44:47]'}, s51 offen offset:{(jj % 4) * 1024} nt", tag=('kv', j))
    def head_s1(self):
        a = self.a; c = self.c; W, W0, IM = c['W'], c['W0'], c['IQ']
        self.reset(['x'] + [('w', t) for t in range(4)])
        a(f"""v_lshrrev_b32 v48, 4, v0
        v_mul_u32_u24 v61, 36, v48
        v_bfe_u32 v50, v0, 3, 1
        v_mul_u32_u24 v50, 144, v50
        s_lshl_b32 s54, s3, 9
        s_add_u32 s54, s54, {XL}
        v_add3_u32 v61, v61, v50, s54
        v_add_u32 v62, s54, v62
        s_cmp_eq_u32 s66, 0
        s_cselect_b32 s56, 32768, 0
        s_lshr_b32 s54, s57, 1
        s_lshl_b32 s54, s54, 9
        s_add_u32 s56, s56, s54
        s_and_b32 s54, s57, 1
        s_lshl_b32 s54, s54, 7
        s_add_u32 s56, s56, s54
        s_add_u32 s56, s56, {Q}""")
        self.a_common()
        Ly = a.newlabel("L_y"); Lz = a.newlabel("L_nozero")
        a(f"s_cmp_eq_u32 s66, 0\ns_cbranch_scc1 {Ly}")
        a(f"""s_and_b32 s52, s57, 3
        s_lshr_b32 s54, s3, 1
        s_or_b32 s52, s52, s54
        s_cmp_lg_u32 s52, 0
        s_cbranch_scc1 {Lz}
        s_lshl_b32 s52, s3, 4
        s_lshr_b32 s54, s57, 2
        s_add_u32 s52, s52, s54
        s_lshl_b32 s52, s52, 10
        s_add_u32 s52, s52, {CNT}
        v_lshlrev_b32 v48, 7, v0
        s_mov_b64 exec, 0xff
        buffer_store_dword v{ZERO}, v48, s[36:39], s52 offen sc1
        s_mov_b64 exec, -1
        {Lz}:"""); a.vm.pop()
        keep = a.vm[:]
        for t in range(W0, 4): a(f"s_waitcnt vmcnt({W0 - 1})"); self.wload(t)
        a.vm = keep
        a(f"{Ly}:")
        seq = [('w', t) for t in range(4, 9)] + [('kv', j) for j in range(IM)]
        I = 0
        def issue():
            nonlocal I
            x = seq[I]; I += 1
            if I + 3 < c['n0']:
                L = a.newlabel("L_y"); a(f"s_cmp_eq_u32 s66, 0\ns_cbranch_scc1 {L}\ns_waitcnt vmcnt({W0 - 1})\n{L}:")
            self.kv(x[1]) if x[0] == 'kv' else self.wload(x[1])
        for r in range(32, 40): a(f"v_mov_b32 v{r}, 0")
        a.wait_vm('x')
        a("ds_write_b64 v62, v[20:21]")
        for k in range(4): a(f"ds_read2_b32 v[{10+2*k}:{11+2*k}], v61 offset0:{2*k} offset1:{2*k+1}")
        a("ds_read_b32 v18, v61 offset:32")
        a.wait_lg()
        for t in range(9):
            self.bop(40, 10 + t, 2); self.bop(44, 10 + t, 6)
            a.wait_vm(('w', t))
            while I < len(seq) and len(a.vm) < (4 if I < 5 else W): issue()
            self.mfma16(32, WR + 4 * t, 40); self.mfma16(36, WR + 4 * t, 44)
        a(f"v_cmp_lt_u32 vcc, 31, v0\ns_lshl_b32 s52, s3, 10\ns_add_u32 s52, s52, {S1L}\nv_add_u32 v48, s52, v1")
        for r in range(4): a(f"v_cndmask_b32 v{32+r}, v{32+r}, v{36+r}, vcc")
        a("ds_write_b128 v48, v[32:35]")
        a.wait_lg(); a("s_barrier")
        Ls = a.newlabel("L_s1skip")
        a(f"""s_cmp_ge_u32 s3, 2
        s_cbranch_scc1 {Ls}
        v_and_b32 v48, 7, v0
        v_lshlrev_b32 v48, 4, v48
        v_bfe_u32 v49, v0, 3, 2
        v_lshl_add_u32 v48, v49, 2, v48
        v_lshrrev_b32 v49, 5, v0
        v_lshl_add_u32 v48, v49, 8, v48
        s_lshl_b32 s52, s3, 7
        s_add_u32 s52, s52, {S1L}
        v_add_u32 v48, s52, v48""")
        for s in range(16):
            a(f"ds_read_b32 v{32+s}, v48 offset:{512*s}")
            if s == 11: a.wait_lg()
        a("""s_lshl_b32 s52, s3, 14
        s_add_u32 s52, s52, s56
        v_mov_b32 v53, s35
        v_bfe_u32 v50, v0, 2, 1
        v_lshlrev_b32 v50, 8, v50
        v_lshrrev_b32 v51, 3, v0
        v_lshl_add_u32 v50, v51, 4, v50
        v_bfe_u32 v51, v0, 1, 1
        v_lshl_add_u32 v50, v51, 3, v50""")
        a.wait_lg()
        for st in (8, 4, 2, 1):
            for s in range(st): a(f"v_add_f32 v{32+s}, v{32+s}, v{32+s+st}")
        Lw = a.newlabel("L_s1w")
        a(f"s_cmp_eq_u32 s66, 0\ns_cbranch_scc1 {Lw}\ns_waitcnt vmcnt(0)\n{Lw}:")
        a("v_mov_b32_dpp v33, v32 quad_perm:[1,0,3,2] row_mask:0xf bank_mask:0xf")
        a("v_cvt_pk_bf16_f32 v52, v32, v33\ns_mov_b32 exec_lo, 0x55555555\ns_mov_b32 exec_hi, 0x55555555")
        a("buffer_store_dwordx2 v[52:53], v50, s[36:39], s52 offen sc1\ns_mov_b64 exec, -1"); a.vm.pop()
        a(f"{Ls}:")
        self.stamp(9)
        while I < len(seq): a.wait_vm_n(W - 1); issue()
    def head_s2(self):
        a = self.a; c = self.c; W, W0, IM = c['W'], c['W0'], c['IQ']
        self.reset([('u', t) for t in range(W0)])
        a(f"""s_lshl_b32 s54, s54, 11
        s_add_u32 s54, s54, {Q + 32768}
        v_lshrrev_b32 v48, 4, v0
        v_lshlrev_b32 v59, 9, v48
        v_and_b32 v49, 15, v0
        v_lshl_add_u32 v59, v49, 4, v59
        v_add_u32 v59, s54, v59
        s_mov_b32 s76, 16384
        v_bfe_u32 v50, v0, 3, 1
        v_lshlrev_b32 v60, 9, v50
        v_lshl_add_u32 v60, v48, 4, v60
        s_lshr_b32 s52, s3, 1
        s_lshl_b32 s52, s52, 7
        s_and_b32 s55, s3, 1
        s_lshl_b32 s55, s55, 6
        s_add_u32 s52, s52, s55
        s_add_u32 s52, s52, {S2L}
        v_add_u32 v60, s52, v60
        v_add_u32 v51, {S2L + 1024}, v1
        v_and_b32 v50, 7, v0
        v_cmp_lt_u32 vcc, 0, v50
        v_cndmask_b32 v60, v60, v51, vcc""")
        self.a_common()
        seq = [('u', t) for t in range(8)] + [('kv', j) for j in range(IM)]
        I = W0
        def issue():
            nonlocal I
            x = seq[I]; I += 1
            self.kv(x[1]) if x[0] == 'kv' else self.uload(x[1])
        def more(n=1):
            for _ in range(n):
                if I < len(seq): a.wait_vm_n((W0 if I < c['n0'] else W) - 1); issue()
        while ('kv', c['iq2'] - 1) in seq[I:]: more()
        if c['qsh'] & 2:
            def q1(): a("buffer_load_dwordx4 v[10:13], v58, s[36:39], 0 offen sc1", tag='pg')
            a(f"""s_lshl_b32 s52, s56, 3
            s_add_u32 s52, s52, s3
            s_lshl_b32 s52, s52, 9
            s_add_u32 s52, s52, {Q + 32768}
            v_lshrrev_b32 v48, 5, v0
            v_lshlrev_b32 v58, 14, v48
            v_and_b32 v48, 31, v0
            v_lshl_add_u32 v58, v48, 4, v58
            v_add_u32 v58, s52, v58""")
            q1()
            while sum(1 for x in a.vm[a.vm.index('pg'):] if x != 'pg') < W - 1: a.wait_vm_n(W); issue()
            self.poll_granules(q1, [11, 13], 2, first_issued=True, sleep=1)
            a(f"""s_lshl_b32 s52, s3, 10
            v_add_u32 v48, s52, v1
            ds_write_b128 v48, v[10:13]
            s_and_b32 s52, s3, 1
            s_lshl_b32 s52, s52, 12
            v_lshrrev_b32 v49, 4, v0
            v_lshlrev_b32 v49, 10, v49
            v_and_b32 v50, 15, v0
            v_lshl_add_u32 v49, v50, 4, v49
            v_add_u32 v49, s52, v49""")
            while len(a.vm) < W: issue()
            def rd():
                for b in range(2):
                    for k in range(2): a(f"ds_read_b128 v[{10+8*b+4*k}:{13+8*b+4*k}], v49 offset:{512*b+256*k}")
            self.poll_lds(rd, QTAGS, 11)
        else:
            def qissue():
                for b in range(2):
                    for k in range(2):
                        a(f"buffer_load_dwordx4 v[{10+8*b+4*k}:{13+8*b+4*k}], v59, s[36:39], {'s76' if b else '0'} offen offset:{256*k} sc1", tag='pg')
            qissue()
            while sum(1 for x in a.vm[a.vm.index('pg'):] if x != 'pg') < W - 1: a.wait_vm_n(W + 3); issue()
            if not c.get('dQ'): self.poll_granules(qissue, QTAGS, 2, first_issued=True, sleep=1)
        self.stamp(9)
        while len(a.vm) < W: issue()
        for n in range(2):
            self.qk([UR + 16 * n + 4 * t for t in range(4)], 36, [44 + 4 * n + t for t in range(4)]); more()
        for k in range(4): a(f"v_cvt_pk_bf16_f32 v{52+k}, v{44+2*k}, v{45+2*k}")
        a("ds_write_b128 v60, v[52:55]")
        a.wait_lg(); a("s_barrier")
        Ls = a.newlabel("L_s2skip")
        a(f"""s_cmp_lg_u32 s3, 7
        s_cbranch_scc1 {Ls}
        v_add_u32 v48, {S2L}, v1
        ds_read_b128 v[52:55], v48
        v_lshrrev_b32 v49, 5, v0
        v_lshlrev_b32 v49, 15, v49
        v_bfe_u32 v50, v0, 3, 2
        v_lshl_add_u32 v49, v50, 10, v49
        v_and_b32 v50, 7, v0
        v_lshl_add_u32 v49, v50, 4, v49
        s_lshr_b32 s52, s56, 1
        s_lshl_b32 s52, s52, 14
        s_and_b32 s54, s57, 3
        s_lshl_b32 s54, s54, 12
        s_add_u32 s52, s52, s54
        s_bfe_u32 s54, s57, 0x20002
        s_lshl_b32 s54, s54, 8
        s_add_u32 s52, s52, s54
        s_and_b32 s54, s56, 1
        s_lshl_b32 s54, s54, 7
        s_add_u32 s52, s52, s54
        s_add_u32 s52, s52, {QABS}""")
        a.wait_lg()
        a("buffer_store_dwordx4 v[52:55], v49, s[36:39], s52 offen sc1"); a.vm.pop()
        if c['s2wait'] == 0:
            a(f"s_lshl_b32 s54, s57, 7\ns_add_u32 s54, s54, {FQ}\ns_waitcnt vmcnt(0)")
            self.flag_store("s54")
            a(f"{Ls}:")
        else:
            a(f"{Ls}:")
            more(c['s2wait'])
            Ls = a.newlabel("L_s2flag")
            a(f"s_cmp_lg_u32 s3, 7\ns_cbranch_scc1 {Ls}\ns_lshl_b32 s54, s57, 7\ns_add_u32 s54, s54, {FQ}\ns_waitcnt vmcnt({c['s2wait'] if c.get('s2cnt') else 0})")
            self.flag_store("s54")
            a(f"{Ls}:")
        while I < len(seq): more()
    def qissue(self):
        for h in range(2):
            for k in range(2):
                self.a(f"buffer_load_dwordx4 v[{10+8*h+4*k}:{13+8*h+4*k}], v29, s[36:39], 0 offen offset:{512*h+256*k} sc1", tag='pg')
    def ticket(self, k):
        self.a(f"v_mov_b32 v{TK+k}, 1\ns_mov_b64 exec, 1\nbuffer_atomic_add v{TK+k}, v{ZERO}, s[36:39], s62 offen sc0\ns_mov_b64 exec, -1", tag=('tk', k))
    def unit_loads(self, r, srd, tag=None):
        for t in range(self.c['UT']): self.a(f"buffer_load_dwordx4 v[{r+4*t}:{r+4*t+3}], v1, {srd}, s51 offen offset:{1024*t} nt", tag=tag)
    def t_load(self, k):
        r = TW[k]
        if k < 4: self.a(f"buffer_load_dwordx4 v[{r}:{r+3}], v30, s[68:71], 0 offen offset:{k*1152} nt")
        else: self.a(f"buffer_load_dwordx4 v[{r}:{r+3}], v31, s[68:71], 0 offen offset:{(k-4)*2304} nt")
    def a_static(self):
        a = self.a; c = self.c; W, R, NS, IM = c['W'], c['R'], c['NS'], c['IQ']; ring = self.ring
        assert RING + 4 * R <= 256 and NS % 4 == 0 and SREG + NS // 2 <= 82 and ring(IM + W) < WR
        assert all(ring(j) >= TW[5] + 4 for j in range(2 * NS - 10, 2 * NS))
        self.reset([('kv', j) for j in range(IM - W, IM)])
        I = IM
        a(f"v_mov_b32 v26, {NEGINF}\nv_mov_b32 v27, 0\nv_mov_b32 v32, 0\nv_mov_b32 v33, 0\nv_mov_b32 v34, 0\nv_mov_b32 v35, 0")
        if c['qsh'] & 1:
            def q1(): a("buffer_load_dwordx4 v[10:13], v1, s[36:39], s79 offen sc1", tag='pg')
            L = a.newlabel("L_q0")
            a(f"s_lshl_b32 s79, s49, 10\ns_add_u32 s79, s79, {Q}\ns_cmp_lg_u32 s3, 0\ns_cbranch_scc1 {L}")
            q1(); a.vm.pop(); a(f"{L}:")
            i0 = I
            while I < c['ICHK']:
                if I < i0 + W:
                    L = a.newlabel("L_q0"); keep = a.vm[-(W - 1):]
                    a(f"s_waitcnt vmcnt({W})\ns_cmp_eq_u32 s3, 0\ns_cbranch_scc1 {L}\ns_waitcnt vmcnt({W - 1})\n{L}:")
                    a.vm = a.vm[-W:]
                else: a.wait_vm_n(W - 1)
                self.kv(I); I += 1
            self.stamp(1)
            L = a.newlabel("L_q0"); keep = a.vm[:]
            a(f"s_cmp_lg_u32 s3, 0\ns_cbranch_scc1 {L}")
            a.vm = ['pg'] + [('kv', j) for j in range(i0, I)]
            self.poll_granules(q1, [11, 13], 1, first_issued=True)
            a(f"v_add_u32 v48, {QL}, v1\nds_write_b128 v48, v[10:13]\n{L}:"); a.vm = keep
            a(f"v_and_b32 v49, 15, v0\nv_lshlrev_b32 v49, 4, v49\nv_add_u32 v49, {QL}, v49")
            def rd():
                for h in range(2):
                    for k in range(2): a(f"ds_read_b128 v[{10+8*h+4*k}:{13+8*h+4*k}], v49 offset:{512*h+256*k}")
            self.poll_lds(rd, QTAGS, 10)
        else:
            self.qissue()
            while I < c['ICHK']:
                a.wait_vm_n(W - 1 + (4 if I < IM + W else 0)); self.kv(I); I += 1
            self.stamp(1)
            if not c.get('dQ'): self.poll_granules(self.qissue, QTAGS, 1, first_issued=True)
        self.stamp(2)
        self.a_epi_addr()
        if c['pret']:
            a(f"s_mov_b64 exec, 1\nbuffer_load_dword v82, v30, s[68:71], 0 offen nt", tag=('pt', 0))
            if c['pret'] > 1:
                a(f"s_mov_b32 s52, {PO}\nbuffer_load_dword v82, v{ZERO}, s[36:39], s78 offen sc1\nbuffer_load_dword v82, v{ZERO}, s[36:39], s52 offen sc1", tag=('pt', 1))
            a("s_mov_b64 exec, -1")
        C = 0
        def landed(j): return ('kv', j) not in a.vm
        def last(C): return C + 3 if C < NS else C + 1
        def consume():
            nonlocal C
            if C < NS:
                n = C // 4
                a.wait_vm(('kv', C + 3))
                self.qk([ring(C + t) for t in range(4)], 36, [44, 45, 46, 47])
                a("v_cvt_pk_bf16_f32 v48, v44, v45\nv_cvt_pk_bf16_f32 v50, v46, v47\nv_max3_f32 v26, v26, v44, v45")
                a("v_and_b32 v49, 0xffff0000, v48\nv_lshlrev_b32 v48, 16, v48\nv_and_b32 v51, 0xffff0000, v50\nv_lshlrev_b32 v50, 16, v50")
                a("v_max3_f32 v26, v26, v46, v47")
                for r in (48, 49, 50, 51): a(f"v_mul_f32 v{r}, {SCALE}, v{r}")
                a(f"v_cvt_pk_bf16_f32 v{SREG+2*n}, v48, v49\nv_cvt_pk_bf16_f32 v{SREG+2*n+1}, v50, v51")
                C += 4
                if C == NS:
                    self.redrows(26, 48, "v_max_f32")
                    a(f"v_cvt_pk_bf16_f32 v48, v26, v26\nv_and_b32 v48, 0xffff0000, v48\nv_mul_f32 v48, {SCALE}, v48")
                    a(f"v_cvt_pk_bf16_f32 v48, v48, v48\nv_and_b32 v26, 0xffff0000, v48\nv_mul_f32 v26, {LOG2E}, v26")
                    self.stamp(3)
            else:
                n = (C - NS) // 2
                a(f"v_lshlrev_b32 v60, 16, v{SREG+n}\nv_and_b32 v61, 0xffff0000, v{SREG+n}")
                a("v_fma_f32 v60, v60, s58, -v26\nv_fma_f32 v61, v61, s58, -v26")
                a("v_exp_f32 v60, v60\nv_exp_f32 v61, v61\nv_add_f32 v27, v27, v60\nv_cvt_pk_bf16_f32 v62, v60, v61\nv_add_f32 v27, v27, v61")
                self.bop(52, 62, 2); self.bop(56, 62, 6)
                for k in range(2):
                    a.wait_vm(('kv', C + k)); self.mfma16(32, ring(C + k), 52 + 4 * k)
                C += 2
        def pace(n):
            tiles = [x for x in a.vm if x[0] != 'tk']
            if len(tiles) > n: a.wait_vm(tiles[len(tiles) - n - 1])
        while I < 2 * NS:
            if I - R < C:
                pace((W if I < c['iW2'] else c['W2']) - 1)
                if I == 2 * NS - 5: self.ticket(0)
                if I == 2 * NS - 3: self.ticket(1)
                self.kv(I); I += 1
                if landed(last(C)) and last(C) < I: consume()
            else: consume()
        for k in range(2):
            pace(c['W2'] - 2 + k * (2 * c['UT'] - 2))
            a.wait_vm(('tk', k))
            a(f"""v_readfirstlane_b32 s52, v{TK+k}
            s_cmp_lt_u32 s52, {self.NF}
            s_cselect_b32 s{76+k}, 0, {NEGINF}
            s_cselect_b32 s54, 0, 0x40000000
            s_lshl_b32 s52, s52, {self.TSH}
            s_add_u32 s51, s61, s52
            s_and_b32 s51, s51, 0x1fffff
            s_or_b32 s51, s51, s54""")
            if c['pord']: self.ticket(k)
            self.unit_loads(FK[k], "s[40:43]", ('fk', k)); self.unit_loads(FV[k], "s[44:47]", ('fv', k))
            if not c['pord']: self.ticket(k)
            while C < 2 * NS and landed(last(C)): consume()
        while C < 2 * NS: consume()
        if c['rank']:
            a(f"v_and_b32 v144, 7, v0\nv_lshlrev_b32 v144, 2, v144\ns_add_u32 s52, s49, 2\nv_add_u32 v144, s52, v144\nv_and_b32 v144, 31, v144\nv_lshlrev_b32 v144, 13, v144\nv_add_u32 v144, {REC + 12}, v144")
        self.stamp(10)
    def unit(self, k, refill, vwait=None):
        a = self.a; UT = self.c['UT']; po = self.c['pord']
        def mid():
            if po: self.ticket(k)
            self.unit_loads(FK[k], "s[40:43]")
        self.qk([FK[k] + 4 * t for t in range(UT)], 36, [44, 45], mid if refill else None)
        a(f"v_cvt_pk_bf16_f32 v48, v44, v{44 + UT - 1}\nv_and_b32 v49, 0xffff0000, v48\nv_lshlrev_b32 v48, 16, v48")
        a(f"v_mul_f32 v49, {SCALE}, v49\nv_mul_f32 v48, {SCALE}, v48\nv_cvt_pk_bf16_f32 v48, v48, v49")
        a(f"v_lshlrev_b32 v44, 16, v48\nv_and_b32 v45, 0xffff0000, v48\nv_add_f32 v44, s{76+k}, v44\nv_add_f32 v45, s{76+k}, v45")
        Ls = a.newlabel("L_nomax")
        a(f"v_fma_f32 v60, v44, s58, -v26\nv_fma_f32 v61, v45, s58, -v26\nv_max_f32 v46, v60, v61\nv_cmp_lt_f32 vcc, 0, v46\ns_cbranch_vccz {Ls}")
        a("v_max_f32 v46, v44, v45\nv_mul_f32 v46, s58, v46")
        self.redrows(46, 48, "v_max_f32")
        a("v_max_f32 v46, v46, v26\nv_sub_f32 v47, v26, v46\nv_exp_f32 v47, v47\nv_mov_b32 v26, v46\nv_fma_f32 v60, v44, s58, -v46\nv_fma_f32 v61, v45, s58, -v46\nv_mul_f32 v27, v27, v47")
        for r in range(32, 36): a(f"v_mul_f32 v{r}, v{r}, v47")
        a(f"{Ls}:\nv_exp_f32 v60, v60\nv_exp_f32 v61, v61\nv_add_f32 v27, v27, v60\nv_cvt_pk_bf16_f32 v62, v60, v61")
        if UT == 2: a("v_add_f32 v27, v27, v61")
        for t in range(UT): self.bop(52 + 4 * t, 62, 2 + 4 * t)
        if callable(vwait): vwait()
        elif isinstance(vwait, tuple):
            L = a.newlabel("L_vw"); a(f"s_waitcnt vmcnt({vwait[1]})\ns_cmp_ge_u32 s3, 4\ns_cbranch_scc1 {L}\ns_waitcnt vmcnt({vwait[0]})\n{L}:")
        elif vwait is not None: a(f"s_waitcnt vmcnt({vwait})")
        for t in range(UT): self.mfma16(32, FV[k] + 4 * t, 52 + 4 * t)
        if refill:
            a(f"s_mov_b32 s{76+k}, 0"); self.unit_loads(FV[k], "s[44:47]")
            if not po: self.ticket(k)
    def a_pool(self):
        a = self.a; c = self.c
        Ll = a.newlabel("L_pool"); Ld = [a.newlabel("L_drain") for _ in range(2)]; Le = a.newlabel("L_poolend")
        a(f"{Ll}:")
        for k in range(2):
            a(f"""s_waitcnt vmcnt({(3 if c['pord'] else 2) * c['UT'] + 1})
            v_readfirstlane_b32 s52, v{TK+k}
            s_cmp_lt_u32 s52, {self.NF}
            s_cbranch_scc0 {Ld[k]}
            s_lshl_b32 s52, s52, {self.TSH}
            s_add_u32 s51, s61, s52
            s_and_b32 s51, s51, 0x1fffff""")
            self.unit(k, True, 3 * c['UT'] + 2 if c['pord'] else None)
        a(f"s_branch {Ll}")
        n0, n1 = c['twpos']
        for k in range(2):
            a(f"{Ld[k]}:")
            if c['dynT']:
                assert not c['pord']
                L = a.newlabel("L_dt")
                a(f"s_cmp_lg_u32 s3, 7\ns_cbranch_scc1 {L}\nv_mov_b32 v82, 1\ns_mov_b64 exec, 1\nbuffer_atomic_add v82, v{ZERO}, s[68:71], s64 offen sc0\ns_mov_b64 exec, -1\n{L}:")
                self.unit(k, False)
                a(f"s_waitcnt vmcnt({1 + c['UT']})")
                self.unit(1 - k, False, 1)
                if k == 0: a(f"s_branch {Le}")
                continue
            if c['typed']:
                A = 0 if c['pord'] else 1
                nd = self.NW - c['twsplit']
                def only_a(lo, hi, waves=False):
                    if lo >= hi: return
                    L = a.newlabel("L_ty")
                    a(f"s_cmp_eq_u32 s63, 1\ns_cbranch_scc1 {L}")
                    if waves: a(f"s_cmp_lt_u32 s3, 4\ns_cbranch_scc1 {L}")
                    for j in range(lo, hi): self.t_load(j)
                    a(f"{L}:")
                def wait(na, nb, n4=None):
                    L = a.newlabel("L_tw")
                    a(f"s_waitcnt vmcnt({n4 if n4 is not None else na})")
                    if n4 is not None:
                        L4 = a.newlabel("L_tw")
                        a(f"s_cmp_ge_u32 s3, 4\ns_cbranch_scc1 {L4}\ns_waitcnt vmcnt({na})\n{L4}:")
                    a(f"s_cmp_eq_u32 s63, 0\ns_cbranch_scc1 {L}\ns_waitcnt vmcnt({nb})\n{L}:")
                only_a(0, n0)
                assert not c['pord']
                self.unit(k, False)
                only_a(n0, n0 + n1)
                wait(A + n0 + n1 + c['UT'], A + c['UT'])
                only_a(n0 + n1, nd); only_a(nd, self.NW, True)
                self.unit(1 - k, False, lambda: wait(A + nd, A, A + self.NW))
                if k == 0: a(f"s_branch {Le}")
                continue
            if c['rank']:
                a("buffer_load_dword v82, v144, s[36:39], 0 offen sc1")
                self.unit(k, False, (2 * c['UT'] + 2) if c['pord'] else None)
                L = a.newlabel("L_rk"); L2 = a.newlabel("L_rk")
                a(f"""s_waitcnt vmcnt(0)
                v_cmp_eq_u32 vcc, s35, v82
                s_bcnt1_i32_b64 s79, vcc
                s_cmp_lt_u32 s79, {c['rank'] * 8}
                s_cselect_b32 s79, 1, 0
                s_cbranch_scc1 {L}""")
                nd = self.NW - c['twsplit']
                for j in range(nd): self.t_load(j)
                a(f"s_cmp_lt_u32 s3, 4\ns_cbranch_scc1 {L}")
                for j in range(nd, self.NW): self.t_load(j)
                a(f"{L}:")
                self.unit(1 - k, False)
                if k == 0: a(f"s_branch {Le}")
                continue
            for j in range(n0): self.t_load(j)
            A = 0 if c['pord'] else 1
            self.unit(k, False, 2 * c['UT'] + 1 + n0 if c['pord'] else None)
            for j in range(n0, n0 + n1): self.t_load(j)
            a(f"s_waitcnt vmcnt({A + n0 + n1 + c['UT']})")
            if c.get('twall'):
                self.unit(1 - k, False, A + n0 + n1)
            elif c['twsplit']:
                L = a.newlabel("L_tws"); nd = self.NW - c['twsplit']
                for j in range(n0 + n1, nd): self.t_load(j)
                a(f"s_cmp_lt_u32 s3, 4\ns_cbranch_scc1 {L}")
                for j in range(nd, self.NW): self.t_load(j)
                a(f"{L}:")
                self.unit(1 - k, False, (A + nd, A + self.NW))
            else:
                for j in range(n0 + n1, self.NW): self.t_load(j)
                self.unit(1 - k, False, A + self.NW)
            if k == 0: a(f"s_branch {Le}")
        a(f"{Le}:"); a.vm = []
    def a_epi_addr(self):
        a = self.a
        a(f"s_lshl_b32 s52, s3, 10\ns_add_u32 s52, s52, {EB}\nv_add_u32 v83, s52, v1")
        a(f"v_bfe_u32 v84, v0, 3, 1\nv_lshlrev_b32 v84, 6, v84\ns_lshl_b32 s52, s3, 3\ns_add_u32 s52, s52, {EB + 8192}\nv_add_u32 v84, s52, v84")
        self.acc_addr(28, 48, EB)
        a(f"""s_lshr_b32 s52, s3, 1
        s_lshl_b32 s54, s49, 1
        s_add_u32 s52, s52, s54
        s_lshl_b32 s52, s52, 3
        s_add_u32 s52, s52, s50
        s_lshl_b32 s52, s52, 9
        s_add_u32 s78, s52, {REC}
        s_and_b32 s54, s3, 1
        s_lshl_b32 s55, s54, 8
        v_lshlrev_b32 v63, 2, v0
        v_add_u32 v63, s55, v63
        s_lshr_b32 s55, s3, 1
        s_lshl_b32 s55, s55, 6
        s_add_u32 s55, s55, {EB + 8192}
        v_mov_b32 v29, s55""")
    def a_epilogue(self):
        a = self.a
        self.stamp(4)
        self.redrows(27, 48, "v_add_f32")
        a("ds_write_b64 v84, v[26:27]\nds_write_b128 v83, v[32:35]\nv_mov_b32 v59, s35")
        if self.c['dynT']:
            L = a.newlabel("L_dt")
            a(f"v_mov_b32 v49, {EB + 8448}\ns_cmp_lg_u32 s3, 7\ns_cbranch_scc1 {L}\ns_waitcnt vmcnt(0)\ns_mov_b64 exec, 1\nds_write_b32 v49, v82\ns_mov_b64 exec, -1\n{L}:")
        a.wait_lg(); a("s_barrier")
        self.stamp(8)
        Lu = a.newlabel("L_aup")
        if self.c['dynT']: a(f"ds_read_b32 v82, v49\ns_cmp_ge_u32 s3, 4\ns_cbranch_scc1 {Lu}", tag='st')
        elif self.c['rank']: a(f"s_cmp_ge_u32 s3, 4\ns_cbranch_scc1 {Lu}")
        elif self.c.get('twall'):
            L = a.newlabel("L_twa")
            a(f"s_cmp_lt_u32 s3, 4\ns_cbranch_scc1 {L}")
            if self.c['twall'] == 1:
                for j in range(sum(self.c['twpos']), self.NW): self.t_load(j)
            a(f"s_branch {Lu}\n{L}:")
        else: a(f"s_cmp_ge_u32 s3, 4\ns_cbranch_scc1 {Lu}")
        for k in range(4): a(f"ds_read_b128 v[{10+4*k}:{13+4*k}], v29 offset:{16*k}", tag='st')
        for w in range(8): a(f"ds_read_b32 v{36+w}, v28 offset:{1024*w}")
        a.wait_lg('st')
        a("v_max3_f32 v52, v10, v12, v14\nv_max3_f32 v53, v16, v18, v20\nv_max3_f32 v52, v52, v22, v24\nv_max_f32 v52, v52, v53")
        for w in range(8): a(f"v_sub_f32 v{10+2*w}, v{10+2*w}, v52")
        for w in range(8): a(f"v_exp_f32 v{10+2*w}, v{10+2*w}")
        a.wait_lg()
        a("v_mul_f32 v53, v10, v11\nv_mul_f32 v54, v10, v36")
        for w in range(1, 8): a(f"v_fmac_f32 v53, v{10+2*w}, v{11+2*w}\nv_fmac_f32 v54, v{10+2*w}, v{36+w}")
        a("v_rcp_f32 v55, v53\nv_log_f32 v58, v53\nv_mul_f32 v54, v54, v55\nv_add_f32 v58, v58, v52")
        self.rec_store(54, 63, 78)
        if self.c['dynT']:
            a(f"{Lu}:\ns_waitcnt lgkmcnt(0)"); a.lg = []
            self.stamp(5)
            a(f"v_readfirstlane_b32 s52, v82\ns_cmp_ge_u32 s52, 64\ns_cbranch_scc1 {self.LF}\ns_lshl_b32 s52, s52, 1\ns_add_u32 s52, s52, s63\ns_add_u32 s48, s52, 64")
            a(f"{self.LT}:")
            self.t_addr192()
            for j in range(6): self.t_load(j)
            a(f"{self.LT2}:"); a.vm = []
            return
        if self.c['typed']:
            a(f"s_cmp_eq_u32 s63, 1\ns_cbranch_scc1 {Lu}")
            for j in range(self.NW - self.c['twsplit'], self.NW): self.t_load(j)
            L = a.newlabel("L_late")
            a(f"{Lu}:\ns_cmp_eq_u32 s63, 0\ns_cbranch_scc1 {L}")
            for j in range(self.NW if self.c['typed'] == 1 else self.c.get('tbe', 0)): self.t_load(j)
            a(f"{L}:"); a.vm = []
            self.stamp(5); return
        if self.c['rank']:
            a(f"s_cmp_eq_u32 s79, 1\ns_cbranch_scc1 {Lu}")
            for j in range(self.NW - self.c['twsplit'], self.NW): self.t_load(j)
            L = a.newlabel("L_late")
            a(f"{Lu}:\ns_cmp_eq_u32 s79, 0\ns_cbranch_scc1 {L}")
            for j in range(self.NW):
                if j >= self.c['rankw']: a(f"s_waitcnt vmcnt({self.c['rankw'] - 1})")
                self.t_load(j)
            a(f"{L}:"); a.vm = []
            self.stamp(5); return
        if self.c.get('twall'):
            if self.c['twall'] == 1:
                for j in range(sum(self.c['twpos']), self.NW): self.t_load(j)
        elif self.c['twsplit']:
            for j in range(self.NW - self.c['twsplit'], self.NW): self.t_load(j)
        a(f"{Lu}:")
        self.stamp(5)
    def a_proj(self):
        a = self.a; c = self.c
        a(f"""v_and_b32 v50, 7, v0
        v_min_u32 v51, 5, v50
        v_and_b32 v52, 1, v0
        s_cmp_eq_u32 s63, 0
        s_cselect_b64 vcc, -1, 0
        s_cselect_b32 s66, 5, 7
        v_cndmask_b32 v51, v52, v51, vcc
        v_bfe_u32 v49, v0, 3, 1
        v_lshl_add_u32 v29, v49, 8, v51
        v_lshlrev_b32 v29, 9, v29
        s_lshl_b32 s52, s63, 6
        s_add_u32 s52, s52, s64
        s_lshl_b32 s52, s52, 12
        s_lshl_b32 s54, s3, 6
        s_add_u32 s52, s52, s54
        s_add_u32 s75, s52, {REC}
        v_lshrrev_b32 v48, 4, v0
        v_lshl_add_u32 v29, v48, 4, v29""")
        def gissue(): a("buffer_load_dwordx4 v[10:13], v29, s[36:39], s75 offen sc1", tag='pg')
        gissue()
        a("v_cmp_lt_u32 s[72:73], s66, v50")
        for r in range(32, 44): a(f"v_mov_b32 v{r}, 0")
        a(f"""v_and_b32 v26, 7, v0
        v_lshlrev_b32 v26, 4, v26
        v_bfe_u32 v48, v0, 3, 2
        v_lshl_add_u32 v26, v48, 2, v26
        v_lshrrev_b32 v48, 5, v0
        s_cmp_ge_u32 s3, 4
        s_cselect_b32 s52, 9, 8
        s_cselect_b32 s54, 8, 9
        s_cselect_b32 s55, 8192, 0
        s_cselect_b32 s56, 1024, 0
        s_add_u32 s55, s55, {TL}
        v_lshl_add_u32 v26, v48, s52, v26
        s_and_b32 s57, s3, 1
        s_lshl_b32 s57, s57, s54
        s_add_u32 s56, s56, s57
        s_add_u32 s55, s55, s57
        s_bfe_u32 s57, s3, 0x10001
        s_lshl_b32 s52, s57, 7
        s_add_u32 s55, s55, s52
        v_add_u32 v26, s55, v26
        s_lshl_b32 s52, s3, 10
        s_add_u32 s52, s52, {TL}
        v_add_u32 v27, s52, v1
        v_lshlrev_b32 v23, 3, v0
        v_add_u32 v23, s56, v23
        s_lshl_b32 s74, s63, 5
        s_add_u32 s74, s74, s64
        s_lshl_b32 s74, s74, 1
        s_add_u32 s74, s74, s57
        s_mul_i32 s74, s74, 4608
        s_mul_i32 s54, s65, 1536
        s_add_u32 s74, s74, s54
        s_add_u32 s74, s74, {PO}
        s_lshl_b32 s57, s57, 3
        v_mov_b32 v59, s35
        v_mov_b32 v47, {NEGINF}""")
        if c.get('dT'): a(f"s_branch {self.LF}")
        def wo_b():
            L = a.newlabel("L_tb"); keep = a.vm[:]
            a(f"s_cmp_eq_u32 s63, 0\ns_cbranch_scc1 {L}")
            for j in range(c.get('tbe', 0), self.NW): self.t_load(j)
            a(f"{L}:"); a.vm = keep
        self.poll_granules(gissue, [13], 6, first_issued=True, sleep=c.get('tsleep', 0), after_first=wo_b if c['typed'] == 3 else None)
        self.stamp(6)
        if c['typed'] == 2:
            L = a.newlabel("L_tb")
            a(f"s_cmp_eq_u32 s63, 0\ns_cbranch_scc1 {L}")
            for j in range(c.get('tbe', 0), self.NW): self.t_load(j)
            a(f"{L}:")
        a("v_cndmask_b32 v46, v12, v47, s[72:73]\nv_lshlrev_b32 v52, 16, v10\nv_mov_b32 v44, v46\nv_and_b32 v53, 0xffff0000, v10\nv_lshlrev_b32 v54, 16, v11")
        self.red8([44], "v_max_f32")
        a("v_sub_f32 v44, v46, v44\nv_and_b32 v55, 0xffff0000, v11\nv_exp_f32 v56, v44")
        for t in range(4): a(f"v_mul_f32 v{52+t}, v56, v{52+t}")
        self.red8([52, 53, 54, 55, 56], "v_add_f32")
        for k in range(2): a(f"v_cvt_pk_bf16_f32 v{20+k}, v{52+2*k}, v{53+2*k}")
        a("v_rcp_f32 v56, v56")
        for k in range(2):
            self.bop(44, 20 + k, 2); self.bop(48, 20 + k, 6)
            if k == 0 and c['typed'] >= 2: a("s_waitcnt vmcnt(0)")
            self.mfma16(36, TW[4 + k], 44); self.mfma16(40, TW[4 + k], 48)
            self.mfma16(32, TW[2 * k], 44); self.mfma16(32, TW[2 * k + 1], 48)
        a("v_cmp_lt_u32 vcc, 31, v0\nv_mul_f32 v56, s67, v56\nv_readlane_b32 s57, v56, s57")
        for r in range(4): a(f"v_cndmask_b32 v{36+r}, v{36+r}, v{40+r}, vcc")
        a("ds_write_b128 v27, v[36:39] offset:8192\nds_write_b128 v27, v[32:35]")
        a.wait_lg(); a("s_barrier")
        for w in range(8): a(f"ds_read_b32 v{44+w}, v26 offset:{1024*w}")
        a.wait_lg()
        a("v_add_f32 v44, v44, v45\nv_add_f32 v46, v46, v47\nv_add_f32 v48, v48, v49\nv_add_f32 v50, v50, v51\nv_add_f32 v44, v44, v46\nv_add_f32 v48, v48, v50\nv_add_f32 v58, v44, v48")
        Lf = a.newlabel("L_tfull")
        a(f"s_cmp_lt_u32 s3, 4\ns_cbranch_scc1 {Lf}")
        a("v_mov_b32 v49, v58\nv_permlane32_swap_b32 v58, v49\nv_add_f32 v58, v58, v49\ns_mov_b32 exec_hi, 0")
        a(f"{Lf}:\nv_mul_f32 v58, s57, v58\nbuffer_store_dwordx2 v[58:59], v23, s[36:39], s74 offen sc1\ns_mov_b64 exec, -1")
        self.stamp(7)

    def proj(self, half):
        a = self.a; c = self.c
        a(f"""v_and_b32 v50, 7, v0
        v_min_u32 v51, 5, v50
        v_and_b32 v52, 1, v0
        s_cmp_eq_u32 s63, 0
        s_cselect_b64 vcc, -1, 0
        s_cselect_b32 s66, 5, 7
        v_cndmask_b32 v51, v52, v51, vcc
        v_bfe_u32 v49, v0, 3, 1
        v_lshl_add_u32 v29, v49, 8, v51
        v_lshlrev_b32 v29, 9, v29
        s_lshl_b32 s52, s63, 6
        s_add_u32 s52, s52, s64
        s_lshl_b32 s52, s52, 12
        s_lshl_b32 s54, s3, 6
        s_add_u32 s52, s52, s54
        s_add_u32 s75, s52, {REC}
        v_lshrrev_b32 v48, 4, v0
        v_lshl_add_u32 v29, v48, 4, v29""")
        def gissue(): a("buffer_load_dwordx4 v[10:13], v29, s[36:39], s75 offen sc1", tag='pg')
        gissue()
        a("v_cmp_lt_u32 s[72:73], s66, v50")
        for r in range(32, 44 if half else 36): a(f"v_mov_b32 v{r}, 0")
        a("""v_and_b32 v26, 7, v0
        v_lshlrev_b32 v26, 4, v26
        v_bfe_u32 v48, v0, 3, 2
        v_lshl_add_u32 v26, v48, 2, v26
        v_lshrrev_b32 v48, 5, v0""")
        if half:
            a(f"""s_cmp_ge_u32 s3, 4
            s_cselect_b32 s52, 9, 8
            s_cselect_b32 s54, 8, 9
            s_cselect_b32 s55, 8192, 0
            s_cselect_b32 s56, 1024, 0
            s_add_u32 s55, s55, {TL}
            v_lshl_add_u32 v26, v48, s52, v26
            s_and_b32 s57, s3, 1
            s_lshl_b32 s57, s57, s54
            s_add_u32 s56, s56, s57
            s_add_u32 s55, s55, s57
            s_bfe_u32 s57, s3, 0x10001""")
        else:
            a(f"""v_lshl_add_u32 v26, v48, 12, v26
            s_and_b32 s56, s3, 3
            s_lshl_b32 s56, s56, 8
            s_add_u32 s55, s56, {TL}
            s_lshr_b32 s57, s3, 2""")
        a(f"""s_lshl_b32 s52, s57, 7
        s_add_u32 s55, s55, s52
        v_add_u32 v26, s55, v26
        s_lshl_b32 s52, s3, 10
        s_add_u32 s52, s52, {TL}
        v_add_u32 v27, s52, v1
        v_lshlrev_b32 v24, 3, v0
        v_add_u32 v24, s56, v24
        s_lshl_b32 s74, s63, 5
        s_add_u32 s74, s74, s64
        s_lshl_b32 s74, s74, 1
        s_add_u32 s74, s74, s57
        s_mul_i32 s74, s74, 4608
        s_lshl_b32 s54, s65, 10
        s_add_u32 s74, s74, s54
        s_add_u32 s74, s74, {PO}
        s_lshl_b32 s57, s57, 3
        v_mov_b32 v59, s35
        v_mov_b32 v47, {NEGINF}""")
        if c.get('dT'): a(f"s_branch {self.LF}")
        self.poll_granules(gissue, [13], 6, first_issued=True, sleep=(c['hsleep'] if half else c.get('tsleep', 0)))
        self.stamp(3 if half else 6)
        a("v_cndmask_b32 v46, v12, v47, s[72:73]\nv_lshlrev_b32 v52, 16, v10\nv_mov_b32 v44, v46\nv_and_b32 v53, 0xffff0000, v10\nv_lshlrev_b32 v54, 16, v11")
        self.red8([44], "v_max_f32")
        a("v_sub_f32 v44, v46, v44\nv_and_b32 v55, 0xffff0000, v11\nv_exp_f32 v56, v44")
        for t in range(4): a(f"v_mul_f32 v{52+t}, v56, v{52+t}")
        self.red8([52, 53, 54, 55, 56], "v_add_f32")
        for k in range(2): a(f"v_cvt_pk_bf16_f32 v{20+k}, v{52+2*k}, v{53+2*k}")
        a("v_rcp_f32 v56, v56")
        for k in range(2):
            self.bop(44, 20 + k, 2); self.bop(48, 20 + k, 6)
            if half: self.mfma16(36, TW[4 + k], 44); self.mfma16(40, TW[4 + k], 48)
            self.mfma16(32, TW[2 * k], 44); self.mfma16(32, TW[2 * k + 1], 48)
        a("v_cmp_lt_u32 vcc, 31, v0\nv_mul_f32 v56, s67, v56\nv_readlane_b32 s57, v56, s57")
        if half:
            for r in range(4): a(f"v_cndmask_b32 v{36+r}, v{36+r}, v{40+r}, vcc")
            a("ds_write_b128 v27, v[36:39] offset:8192")
        a("ds_write_b128 v27, v[32:35]")
        a.wait_lg(); a("s_barrier")
        Lf = a.newlabel("L_tfull")
        if half:
            for w in range(8): a(f"ds_read_b32 v{44+w}, v26 offset:{1024*w}")
            a.wait_lg()
            a("v_add_f32 v44, v44, v45\nv_add_f32 v46, v46, v47\nv_add_f32 v48, v48, v49\nv_add_f32 v50, v50, v51\nv_add_f32 v44, v44, v46\nv_add_f32 v48, v48, v50\nv_add_f32 v58, v44, v48")
            a(f"s_cmp_lt_u32 s3, 4\ns_cbranch_scc1 {Lf}")
        else:
            for w in range(4): a(f"ds_read_b32 v{44+w}, v26 offset:{1024*w}")
            a.wait_lg()
            a("v_add_f32 v44, v44, v45\nv_add_f32 v46, v46, v47\nv_add_f32 v58, v44, v46")
        a("v_mov_b32 v49, v58\nv_permlane32_swap_b32 v58, v49\nv_add_f32 v58, v58, v49\ns_mov_b32 exec_hi, 0")
        a(f"{Lf}:\nv_mul_f32 v58, s57, v58\nbuffer_store_dwordx2 v[58:59], v24, s[36:39], s74 offen sc1\ns_mov_b64 exec, -1")
        self.stamp(4 if half else 7)

    def h_front(self):
        a = self.a; c = self.c; WH = c['WH']
        self.reset(['d'] * WH)
        self.late_prologue()
        a("""v_lshrrev_b32 v52, 4, v0
        v_and_b32 v50, 1, v0
        v_bfe_u32 v51, v0, 1, 1
        v_bfe_u32 v53, v0, 2, 2
        v_lshl_add_u32 v51, v51, 2, v53
        v_lshl_add_u32 v50, v51, 1, v50
        v_lshlrev_b32 v50, 7, v50
        v_lshl_add_u32 v50, v51, 4, v50
        v_lshl_add_u32 v50, v52, 14, v50
        s_and_b32 s52, s3, 3
        s_lshl_b32 s52, s52, 11
        v_add_u32 v50, s52, v50""")
        for ks in range(8): a(f"v_xor_b32 v{SA+ks}, {16*ks}, v50")
        a("""v_bfe_u32 v50, v0, 3, 1
        v_lshlrev_b32 v50, 2, v50
        v_lshrrev_b32 v51, 5, v0
        v_lshl_add_u32 v50, v51, 1, v50
        v_bfe_u32 v51, v0, 4, 1
        v_lshlrev_b32 v51, 1, v51
        v_bfe_u32 v53, v0, 1, 1
        v_add_u32 v51, v51, v53
        v_and_b32 v53, 1, v0
        v_lshlrev_b32 v53, 3, v53
        v_bfe_u32 v54, v0, 2, 1
        v_lshl_add_u32 v53, v54, 7, v53
        s_lshl_b32 s52, s3, 13
        v_add_u32 v53, s52, v53
        v_add_u32 v57, s52, v1
        v_add_u32 v58, 0x10000, v57""")
        for hi in range(2):
            a(f"v_add_u32 v54, {hi}, v50\nv_xor_b32 v55, v54, v51\nv_lshl_add_u32 v55, v55, 4, v53\nv_lshl_add_u32 v55, v54, 8, v55")
            for cb in range(2): a(f"v_xor_b32 v{TA + 2*cb + hi}, {64*cb}, v55")
        a(f"""s_lshr_b32 s52, s3, 2
        s_lshl_b32 s52, s52, 4
        v_and_b32 v49, 15, v0
        v_add_u32 v50, s52, v49
        v_mul_u32_u24 v2, 144, v50
        v_lshl_add_u32 v2, v52, 3, v2
        s_and_b32 s54, s3, 3
        s_lshl_b32 s55, s54, 5
        s_add_u32 s55, s55, {PL}
        v_add_u32 v2, s55, v2
        v_and_b32 v51, 31, v0
        v_mul_u32_u24 v3, 144, v51
        v_lshrrev_b32 v53, 5, v0
        v_lshl_add_u32 v3, v53, 4, v3
        v_add_u32 v3, {PL}, v3
        v_lshlrev_b32 v5, 2, v50
        v_add_u32 v5, {ML}, v5
        s_lshl_b32 s55, s54, 7
        v_add_u32 v4, s55, v5
        v_lshlrev_b32 v6, 2, v51
        v_add_u32 v6, {ML}, v6
        v_mov_b32 v7, {NEGINF}
        v_mov_b32 v8, {NEGINF}
        v_mov_b32 v9, 0
        v_lshlrev_b32 v28, 7, v0
        v_add_u32 v28, {FQ}, v28
        s_mov_b32 s58, {LOG2E}
        s_lshl_b32 s65, s63, 15
        s_lshl_b32 s54, s3, 12
        s_add_u32 s65, s65, s54
        s_add_u32 s65, s65, {QABS}
        s_add_u32 s54, s54, {PL}
        v_add_u32 v30, s54, v1
        s_lshr_b32 s54, s3, 2
        s_lshl_b32 s54, s54, 14
        s_add_u32 s54, s54, {PL}
        v_add_u32 v31, s54, v1""")
        for r in range(32): a(f"v_mov_b32 v{ACC+r}, 0")
        self.srd(44, "s22", "s23", 512 * 8192)
        a("""s_and_b32 s52, s2, 1
        s_lshl_b32 s52, s52, 3
        s_add_u32 s52, s52, s3
        s_lshl_b32 s52, s52, 18
        s_lshr_b32 s54, s2, 1
        s_lshl_b32 s54, s54, 8
        s_add_u32 s52, s52, s54
        v_lshlrev_b32 v59, 16, v52
        v_lshl_add_u32 v59, v49, 4, v59
        v_add_u32 v59, s52, v59""")
        self.get_tag()
        for t in range(WH, 16): a.wait_vm_n(WH - 1); self.dma(t)
        for t in range(16):
            q = t % 8; r = R2[q] if t < 8 else UV + 4 * q
            a.wait_vm_n(WH - 1)
            if q == 0: a("s_and_b32 s62, s62, 0x7fffff")
            a(f"s_add_u32 s51, s62, {q*8192}\nbuffer_load_dwordx4 v[{r}:{r+3}], v{DV + (q & 1)}, s[76:79], s51 offen nt", tag='r')
            if q == 7: a("s_add_u32 s62, s62, 0x200000")
        self.stamp(1)
        if c.get('dH') == 1: a(f"s_waitcnt vmcnt(0)\ns_branch {self.LF}")
        if c.get('dH') == 4:
            for t in range(8): a(f"s_waitcnt vmcnt(3)\ns_mov_b32 s51, {t*8192}\nbuffer_load_dwordx4 v[{64+4*t}:{64+4*t+3}], v59, s[44:47], s51 offen nt")
            a(f"s_waitcnt vmcnt(0)\ns_branch {self.LF}")
        self.poll_flags(28, 3, 2)
        for n in range(4): a(f"buffer_load_dwordx4 v[{STG+4*n}:{STG+4*n+3}], v1, s[36:39], s65 offen offset:{n*1024} sc1", tag=('q', n))
        for n in range(4):
            a.wait_vm(('q', n)); a(f"ds_write_b128 v30, v[{STG+4*n}:{STG+4*n+3}] offset:{n*1024}")
        a.wait_lg(); a("s_barrier")
        for ks in range(16):
            a(f"ds_read_b128 v[{QR+4*ks}:{QR+4*ks+3}], v31 offset:{ks*1024}")
            if ks == 11: a.wait_lg()
        a.wait_lg()
        self.stamp(2)
    def h_attn(self):
        a = self.a; c = self.c
        Lloop = a.newlabel("L_btile")
        a(f"s_mov_b32 s61, 0\n{Lloop}:\ns_barrier")
        for r in range(4): a(f"v_mov_b32 v{32+r}, 0")
        for ks in range(8): a(f"ds_read_b128 v[{STG+4*ks}:{STG+4*ks+3}], v{SA+ks}", tag=('s', ks))
        for ks in range(16):
            a.wait_lg(('s', ks))
            s = STG + 4 * (ks % 8)
            self.mfma16(32, s, QR + 4 * ks)
            if ks + 8 < 16: a(f"ds_read_b128 v[{s}:{s+3}], v{SA+ks} offset:8192", tag=('s', ks + 8))
        for ks in range(8): a(f"v_xor_b32 v{SA+ks}, 0x10000, v{SA+ks}")
        a("v_cvt_pk_bf16_f32 v36, v32, v33\nv_cvt_pk_bf16_f32 v38, v34, v35")
        a("v_and_b32 v37, 0xffff0000, v36\nv_lshlrev_b32 v36, 16, v36\nv_and_b32 v39, 0xffff0000, v38\nv_lshlrev_b32 v38, 16, v38")
        for r in (36, 37, 38, 39): a(f"v_mul_f32 v{r}, {SCALE}, v{r}")
        a("v_cvt_pk_bf16_f32 v36, v36, v37\nv_cvt_pk_bf16_f32 v38, v38, v39")
        a("v_lshlrev_b32 v32, 16, v36\nv_and_b32 v33, 0xffff0000, v36\nv_lshlrev_b32 v34, 16, v38\nv_and_b32 v35, 0xffff0000, v38")
        a("v_max3_f32 v36, v32, v33, v34\nv_max_f32 v36, v36, v35")
        self.redrows(36, 37, "v_max_f32")
        a("ds_write_b32 v4, v36")
        a.wait_lg(); a("s_barrier")
        a("ds_read2_b32 v[36:37], v5 offset1:32\nds_read2_b32 v[38:39], v5 offset0:64 offset1:96\nds_read2_b32 v[40:41], v6 offset1:32\nds_read2_b32 v[42:43], v6 offset0:64 offset1:96")
        a.wait_lg()
        a("v_max3_f32 v36, v36, v37, v7\nv_max3_f32 v40, v40, v41, v8\nv_max3_f32 v36, v36, v38, v39\nv_max3_f32 v38, v40, v42, v43")
        a("v_sub_f32 v40, v7, v36\nv_sub_f32 v41, v8, v38\nv_mul_f32 v37, s58, v36\nv_mul_f32 v40, s58, v40\nv_mul_f32 v42, s58, v41")
        for r in range(4): a(f"v_fma_f32 v{32+r}, v{32+r}, s58, -v37")
        a("v_exp_f32 v40, v40\nv_exp_f32 v42, v42")
        for r in range(4): a(f"v_exp_f32 v{32+r}, v{32+r}")
        a("v_mov_b32 v7, v36\nv_mov_b32 v8, v38\nv_cvt_pk_bf16_f32 v44, v32, v33\nv_cvt_pk_bf16_f32 v45, v34, v35")
        a("ds_write_b64 v2, v[44:45]")
        a("v_fma_f32 v9, v9, v40, v32\nv_add_f32 v33, v33, v34\nv_add_f32 v9, v9, v35\nv_add_f32 v9, v9, v33\nv_mov_b32 v43, v42")
        for r in range(0, 32, 2): a(f"v_pk_mul_f32 v[{ACC+r}:{ACC+r+1}], v[{ACC+r}:{ACC+r+1}], v[42:43]")
        a.wait_lg(); a("s_barrier")
        for s in range(4): a(f"ds_read_b128 v[{32+4*s}:{35+4*s}], v3 offset:{32*s}", tag='p')
        seq = [(s, cb) for s in range(4) for cb in range(2)]
        def trd(i):
            s, cb = seq[i]
            for hi in range(2):
                a(f"ds_read_b64_tr_b16 v[{STG+4*i+2*hi}:{STG+4*i+2*hi+1}], v{TA+2*cb+hi} offset:{2048*s}", tag=('t', i))
        for i in range(5): trd(i)
        for i in range(8):
            s, cb = seq[i]
            a.wait_lg(('t', i))
            a(f"v_mfma_f32_32x32x16_bf16 v[{ACC+16*cb}:{ACC+16*cb+15}], v[{STG+4*i}:{STG+4*i+3}], v[{32+4*s}:{35+4*s}], v[{ACC+16*cb}:{ACC+16*cb+15}]")
            if i + 5 < 8: trd(i + 5)
        for k in range(4): a(f"v_xor_b32 v{TA+k}, 0x10000, v{TA+k}")
        L1 = a.newlabel("L_rf"); L2 = a.newlabel("L_rf")
        a(f"s_cmp_lg_u32 s61, 0\ns_cbranch_scc1 {L1}")
        for q in range(8): a(f"ds_write_b128 v57, v[{R2[q]}:{R2[q]+3}] offset:{q*1024}")
        a(f"{L1}:\ns_cmp_lg_u32 s61, 1\ns_cbranch_scc1 {L2}")
        for q in range(8): a(f"ds_write_b128 v58, v[{UV+4*q}:{UV+4*q+3}] offset:{q*1024}")
        a("s_waitcnt lgkmcnt(0)")
        for t in range(8): a(f"s_mov_b32 s51, {t*8192}\nbuffer_load_dwordx4 v[{UV+4*t}:{UV+4*t+3}], v59, s[44:47], s51 offen nt")
        a(f"{L2}:\ns_waitcnt lgkmcnt(0)\ns_add_u32 s61, s61, 1\ns_cmp_lg_u32 s61, 4\ns_cbranch_scc1 {Lloop}")
        a.vm = []; a.lg = []
        self.stamp(5)
        if c.get('dH') == 2: a(f"s_waitcnt vmcnt(0)\ns_branch {self.LF}")
        self.redrows(9, 37, "v_add_f32")
        a("ds_write_b32 v4, v9 offset:512")
        a.wait_lg(); a("s_barrier")
        a("ds_read2_b32 v[36:37], v6 offset0:128 offset1:160\nds_read2_b32 v[38:39], v6 offset0:192 offset1:224")
        a(f"""v_and_b32 v48, 31, v0
        v_mul_u32_u24 v48, 144, v48
        v_lshrrev_b32 v49, 5, v0
        v_lshl_add_u32 v48, v49, 3, v48
        s_lshl_b32 s54, s3, 13
        v_add_u32 v48, s54, v48
        v_lshrrev_b32 v49, 3, v0
        v_mul_u32_u24 v50, 144, v49
        v_and_b32 v51, 7, v0
        v_lshl_add_u32 v50, v51, 4, v50
        v_add_u32 v50, s54, v50
        v_lshlrev_b32 v52, 10, v49
        v_lshl_add_u32 v52, v51, 4, v52
        s_mul_i32 s52, s2, {c['pbs']}
        s_lshl_b32 s54, s3, 7
        s_add_u32 s52, s52, s54
        s_add_u32 s52, s52, {PB}""")
        a.wait_lg()
        a("v_add_f32 v36, v36, v37\nv_add_f32 v38, v38, v39\nv_add_f32 v36, v36, v38\nv_rcp_f32 v38, v36\nv_log_f32 v40, v36\nv_mov_b32 v39, v38\nv_fma_f32 v40, v8, s58, v40")
        for cb in range(2):
            for rq in range(4):
                r = ACC + 16 * cb + 4 * rq
                a(f"v_pk_mul_f32 v[{r}:{r+1}], v[{r}:{r+1}], v[38:39]\nv_pk_mul_f32 v[{r+2}:{r+3}], v[{r+2}:{r+3}], v[38:39]")
                a(f"v_cvt_pk_bf16_f32 v{r}, v{r}, v{r+1}\nv_cvt_pk_bf16_f32 v{r+1}, v{r+2}, v{r+3}")
                a(f"ds_write_b64 v48, v[{r}:{r+1}] offset:{64*cb + 16*rq}")
        a.wait_lg()
        for n in range(4): a(f"ds_read_b128 v[{STG+4*n}:{STG+4*n+3}], v50 offset:{n*8*144}", tag=('r', n))
        for n in range(4):
            a.wait_lg(('r', n))
            a(f"buffer_store_dwordx4 v[{STG+4*n}:{STG+4*n+3}], v52, s[36:39], s52 offen sc1 {c['pbst']}\ns_add_u32 s52, s52, 8192")
        Ls = a.newlabel("L_nopbs")
        a(f"s_cmp_lg_u32 s3, 0\ns_cbranch_scc1 {Ls}")
        a(f"s_lshl_b32 s52, s2, 7\ns_add_u32 s52, s52, {PBS}\nv_lshlrev_b32 v48, 2, v0\ns_mov_b32 exec_hi, 0")
        a(f"buffer_store_dword v40, v48, s[36:39], s52 offen sc1\ns_mov_b64 exec, -1\n{Ls}:")
        self.stamp(8)
        a("s_waitcnt vmcnt(0)\ns_barrier"); a.vm = []
        self.stamp(9)
        if c.get('dH') == 3: a(f"s_branch {self.LF}")
        Ls = a.newlabel("L_nofb")
        a(f"s_cmp_lg_u32 s3, 0\ns_cbranch_scc1 {Ls}\ns_lshl_b32 s52, s2, 7\ns_add_u32 s52, s52, {FB}")
        self.flag_store("s52")
        a(f"{Ls}:")
    def h_uv(self):
        a = self.a; pbs = self.c['pbs']; PART = 16384; ST = PART + 16 * 1040
        self.sels()
        a(f"""v_lshlrev_b32 v28, 7, v0
        v_add_u32 v28, {FB}, v28
        v_lshrrev_b32 v48, 5, v0
        v_lshlrev_b32 v29, 7, v48
        v_mul_u32_u24 v31, {pbs}, v48
        v_and_b32 v49, 31, v0
        v_lshl_add_u32 v31, v49, 4, v31
        s_lshr_b32 s54, s2, 1
        s_lshl_b32 s55, s54, 2
        s_lshl_b32 s52, s3, 10
        s_add_u32 s55, s55, s52
        s_add_u32 s55, s55, {PBS}
        v_add_u32 v25, s52, v1
        s_lshl_b32 s56, s2, 9
        s_mul_i32 s52, s3, {8 * pbs}
        s_add_u32 s56, s56, s52
        s_add_u32 s56, s56, {PB}
        s_lshl_b32 s52, s3, 1
        v_add_u32 v50, s52, v48
        v_mul_u32_u24 v26, 1040, v50
        v_lshl_add_u32 v26, v49, 5, v26
        v_add_u32 v26, {PART}, v26
        v_and_b32 v50, 15, v0
        v_mul_u32_u24 v27, 1040, v50
        v_lshrrev_b32 v51, 4, v0
        v_lshl_add_u32 v27, v51, 5, v27
        s_lshl_b32 s52, s3, 7
        s_add_u32 s52, s52, {PART}
        v_add_u32 v27, s52, v27
        v_lshrrev_b32 v50, 1, v50
        v_lshlrev_b32 v24, 3, v50
        v_add_u32 v24, {ST}, v24
        s_lshl_b32 s52, s3, 3
        s_add_u32 s52, s52, {ST}
        v_mov_b32 v23, s52""")
        for r in range(32, 36): a(f"v_mov_b32 v{r}, 0")
        self.acc_addr(30, 48, 0)
        a(f"""s_lshr_b32 s52, s3, 1
        s_lshl_b32 s52, s52, 5
        s_lshr_b32 s54, s2, 1
        s_add_u32 s52, s52, s54
        s_add_u32 s52, s52, 64
        s_lshl_b32 s52, s52, 3
        s_and_b32 s54, s2, 1
        s_add_u32 s52, s52, s54
        s_lshl_b32 s52, s52, 9
        s_add_u32 s52, s52, {REC}
        s_and_b32 s54, s3, 1
        s_lshl_b32 s54, s54, 8
        v_lshlrev_b32 v50, 2, v0
        v_add_u32 v50, s54, v50
        v_mov_b32 v59, s35
        v_mov_b32 v58, 0""")
        if self.c['hT']:
            a("s_mov_b32 s79, s52\ns_mov_b32 s78, s55\ns_lshr_b32 s63, s2, 5\ns_and_b32 s64, s2, 31\ns_mov_b32 s65, 3\nv_mov_b32 v22, v30\nv_mov_b32 v21, v31\nv_mov_b32 v20, v50")
            self.t_addr(True)
            a("v_mov_b32 v80, v30\nv_mov_b32 v81, v31\nv_mov_b32 v30, v22\nv_mov_b32 v31, v21\nv_mov_b32 v50, v20\ns_mov_b32 s52, s79\ns_mov_b32 s55, s78")
        if self.c['dynT'] and self.c['dynH'] == 0:
            a("s_mov_b32 s79, s52\ns_mov_b32 s78, s55\ns_mov_b32 s48, s2\nv_mov_b32 v22, v30\nv_mov_b32 v21, v31\nv_mov_b32 v20, v50")
            self.t_addr192()
            a("v_mov_b32 v80, v30\nv_mov_b32 v81, v31\nv_mov_b32 v30, v22\nv_mov_b32 v31, v21\nv_mov_b32 v50, v20\ns_mov_b32 s52, s79\ns_mov_b32 s55, s78")
        self.poll_flags(28, 4, 1)
        self.stamp(10)
        for n in range(4): a(f"buffer_load_dword v{36+n}, v29, s[36:39], s55 offen offset:{256*n} sc1", tag='st')
        for n in range(4): a(f"buffer_load_dwordx4 v[{64+4*n}:{67+4*n}], v31, s[36:39], s56 offen sc1 {self.c['pbld']}\ns_add_u32 s56, s56, {2 * pbs}", tag=('pb', n))
        if self.c['dynT'] and self.c['dynH'] == 0: self.h_tw()
        a.wait_vm('st')
        a("v_max3_f32 v40, v36, v37, v38\nv_max_f32 v40, v40, v39\nv_mov_b32 v41, v40\nv_permlane32_swap_b32 v40, v41\nv_max_f32 v40, v40, v41")
        for n in range(4): a(f"v_sub_f32 v{36+n}, v{36+n}, v40")
        for n in range(4): a(f"v_exp_f32 v{36+n}, v{36+n}")
        a("v_add_f32 v41, v36, v37\nv_add_f32 v42, v38, v39\nv_add_f32 v41, v41, v42\nv_mov_b32 v42, v41\nv_permlane32_swap_b32 v41, v42\nv_add_f32 v41, v41, v42")
        a("ds_write_b64 v23, v[40:41]")
        for n in range(4):
            a.wait_vm(('pb', n))
            for k in range(4):
                a(f"v_lshlrev_b32 v42, 16, v{64+4*n+k}\nv_and_b32 v43, 0xffff0000, v{64+4*n+k}")
                if n == 0: a(f"v_mul_f32 v{12+2*k}, v36, v42\nv_mul_f32 v{13+2*k}, v36, v43")
                else: a(f"v_fmac_f32 v{12+2*k}, v{36+n}, v42\nv_fmac_f32 v{13+2*k}, v{36+n}, v43")
        a("ds_write_b128 v26, v[12:15]\nds_write_b128 v26, v[16:19] offset:16")
        a.wait_lg(); a("s_barrier")
        a("ds_read_b64 v[40:41], v24\nds_read_b128 v[12:15], v27\nds_read_b128 v[16:19], v27 offset:16")
        a.wait_lg()
        a("v_mov_b32 v42, v40")
        self.red8([42], "v_max_f32")
        a("v_sub_f32 v40, v40, v42\nv_exp_f32 v40, v40\nv_mul_f32 v41, v41, v40")
        self.red8([41], "v_add_f32")
        a("v_rcp_f32 v41, v41\nv_add_f32 v40, v40, v40\nv_mul_f32 v40, v40, v41")
        for k in range(8): a(f"v_mul_f32 v{12+k}, v40, v{12+k}")
        self.red8(list(range(12, 20)), "v_add_f32")
        for k in range(4): a(f"v_cvt_pk_bf16_f32 v{60+k}, v{12+2*k}, v{13+2*k}")
        for k in range(4):
            self.bop(40, 60 + k, 2); self.bop(44, 60 + k, 6)
            self.mfma16(32, UV + 8 * k, 40); self.mfma16(32, UV + 8 * k + 4, 44)
        a("ds_write_b128 v25, v[32:35]")
        a.wait_lg(); a("s_barrier")
        Ls = a.newlabel("L_nostat")
        a(f"s_cmp_ge_u32 s3, 4\ns_cbranch_scc1 {Ls}")
        for w in range(8): a(f"ds_read_b32 v{40+w}, v30 offset:{1024*w}")
        a.wait_lg()
        a("v_add_f32 v40, v40, v41\nv_add_f32 v42, v42, v43\nv_add_f32 v44, v44, v45\nv_add_f32 v46, v46, v47\nv_add_f32 v40, v40, v42\nv_add_f32 v44, v44, v46\nv_add_f32 v54, v40, v44")
        self.rec_store(54)
        a(f"{Ls}:"); a.vm = []
        self.stamp(6)
        if self.c.get('dH') == 5: a(f"s_branch {self.LF}")
    def h_tw(self):
        for k in range(6):
            r = TW[k]
            if k < 4: self.a(f"buffer_load_dwordx4 v[{r}:{r+3}], v80, s[68:71], 0 offen offset:{k*1152} nt", tag='tw')
            else: self.a(f"buffer_load_dwordx4 v[{r}:{r+3}], v81, s[68:71], 0 offen offset:{(k-4)*2304} nt", tag='tw')
    def h_final(self, LX):
        a = self.a; c = self.c
        a(f"""s_lshl_b32 s48, s3, 6
        s_add_u32 s48, s48, s2
        s_cmp_ge_u32 s48, 72
        s_cbranch_scc1 {LX}
        s_cmp_ge_u32 s48, 36
        s_cselect_b32 s49, 1, 0
        s_mul_i32 s52, s49, 36
        s_sub_u32 s50, s48, s52
        s_mul_i32 s56, s49, 1152
        s_add_u32 s54, s4, s56
        s_addc_u32 s55, s5, 0""")
        self.srd(40, "s54", "s55", 1152); self.srd(44, "s26", "s27", 1152)
        a("v_lshlrev_b32 v20, 2, v0")
        for k in range(5):
            a(f"buffer_load_dword v{10+k}, v20, s[40:43], 0 offen offset:{256*k}\nbuffer_load_dword v{15+k}, v20, s[44:47], 0 offen offset:{256*k}")
        a(f"""v_lshrrev_b32 v24, 3, v0
        v_mul_u32_u24 v31, 9216, v24
        v_and_b32 v24, 7, v0
        v_lshl_add_u32 v31, v24, 4, v31
        s_mul_i32 s52, s49, 4608
        s_lshl_b32 s54, s50, 7
        s_add_u32 s52, s52, s54
        s_add_u32 s52, s52, {PO}
        v_add_u32 v31, s52, v31
        v_lshlrev_b32 v21, 2, v24
        v_bfe_u32 v24, v0, 4, 1
        v_lshl_add_u32 v21, v24, 1, v21
        s_lshl_b32 s54, s50, 5
        s_add_u32 s56, s56, s54
        v_mov_b32 v22, 0""")
        for n in range(8): a(f"s_mov_b32 s{64+n}, {n*73728}")
        a.wait_vm()
        self.srd(40, "s28", "s29", 2304)
        if c['pret']: a("buffer_load_ushort v29, v21, s[40:43], s56 offen")
        for k in range(5):
            a(f"""v_lshlrev_b32 v24, 16, v{10+k}
            v_and_b32 v25, 0xffff0000, v{10+k}
            v_lshlrev_b32 v26, 16, v{15+k}
            v_and_b32 v27, 0xffff0000, v{15+k}
            v_mul_f32 v24, v24, v26
            v_mul_f32 v25, v25, v27
            v_cvt_pk_bf16_f32 v24, v24, v25
            v_lshlrev_b32 v25, 16, v24
            v_and_b32 v24, 0xffff0000, v24
            v_add_f32 v22, v22, v25
            v_add_f32 v22, v22, v24""")
        self.red8([22], "v_add_f32")
        a("v_add_f32_dpp v22, v22, v22 row_ror:8 row_mask:0xf bank_mask:0xf")
        self.redrows(22, 24, "v_add_f32")
        a(f"""v_cvt_pk_bf16_f32 v22, v22, v22
        v_and_b32 v22, 0xffff0000, v22
        v_mul_f32 v22, {LOG2E}, v22
        v_exp_f32 v22, -v22
        v_add_f32 v22, 1.0, v22
        v_rcp_f32 v22, v22
        v_cvt_pk_bf16_f32 v22, v22, v22
        v_and_b32 v22, 0xffff0000, v22
        v_sub_f32 v23, 1.0, v22
        v_cvt_pk_bf16_f32 v23, v23, v23
        v_and_b32 v23, 0xffff0000, v23""")
        if c['ftrig'] == 'rec':
            a(f"s_and_b32 s52, s48, 63\ns_lshl_b32 s52, s52, 12\ns_add_u32 s52, s52, {REC + 12}\nv_and_b32 v30, 3, v0\nv_lshlrev_b32 v30, 9, v30\nv_add_u32 v30, s52, v30")
            self.poll_granules(lambda: a("buffer_load_dword v65, v30, s[36:39], 0 offen sc1"), [65], 7, sleep=c['fsleep'])
        else:
            g = c.get('fgrp', 0)
            self.poll_granules(lambda: a(f"buffer_load_dwordx4 v[64:67], v31, s[36:39], s{64+g} offen sc1"), [65, 67], 7, sleep=c['fsleep'])
        def sums(R):
            for k in range(2):
                a(f"v_add_f32 v{32+k}, v{R+2*k}, v{R+4+2*k}\nv_add_f32 v{34+k}, v{R+8+2*k}, v{R+12+2*k}")
                a(f"v_add_f32 v{36+k}, v{R+16+2*k}, v{R+20+2*k}\nv_add_f32 v{38+k}, v{R+24+2*k}, v{R+28+2*k}")
        def gset(k):
            for n in range(8): a(f"buffer_load_dwordx4 v[{64+32*k+4*n}:{67+32*k+4*n}], v31, s[36:39], s{64+n} offen sc1")
        if c['fsel']:
            Lp = a.newlabel("L_fs"); Ld = a.newlabel("L_fsd")
            a(f"s_mov_b32 s53, {c['spin']}\ns_mov_b32 s72, 0xff\n{Lp}:")
            for n in range(8):
                L = a.newlabel("L_fi")
                a(f"s_bitcmp1_b32 s72, {n}\ns_cbranch_scc0 {L}\nbuffer_load_dwordx4 v[{64+4*n}:{67+4*n}], v31, s[36:39], s{64+n} offen sc1\n{L}:")
            a("s_waitcnt vmcnt(0)")
            for n in range(8):
                L = a.newlabel("L_fc")
                a(f"s_bitcmp1_b32 s72, {n}\ns_cbranch_scc0 {L}")
                self.tagcheck([65 + 4 * n, 67 + 4 * n], 48)
                a(f"s_cbranch_vccnz {L}\ns_bitset0_b32 s72, {n}\n{L}:")
            a(f"s_cmp_eq_u32 s72, 0\ns_cbranch_scc1 {Ld}\ns_sub_u32 s53, s53, 1\ns_cbranch_scc0 {Lp}")
            self.timeout(8)
            a(f"{Ld}:"); a.vm = []; sums(64)
        elif c['fpipe'] > 1: self.poll_pipe(gset, lambda k: [65 + 32 * k + 2 * j for j in range(16)], 8, c['fpipe'], 8, lambda k: sums(64 + 32 * k))
        else:
            self.poll_granules(lambda: gset(0), [65 + 2 * k for k in range(16)], 8, sleep=c.get('fsleep2', 0)); sums(64)
        a("""v_add_f32 v32, v32, v34
        v_add_f32 v36, v36, v38
        v_add_f32 v33, v33, v35
        v_add_f32 v37, v37, v39
        v_permlane32_swap_b32 v32, v36
        v_permlane32_swap_b32 v33, v37
        v_add_f32 v32, v32, v36
        v_add_f32 v33, v33, v37
        v_permlane16_swap_b32 v32, v33
        v_add_f32 v32, v32, v33
        v_add_f32_dpp v42, v32, v32 row_ror:8 row_mask:0xf bank_mask:0xf
        v_cvt_pk_bf16_f32 v42, v42, v42
        v_and_b32 v42, 0xffff0000, v42
        v_mov_b32 v43, v42
        v_permlane32_swap_b32 v42, v43
        v_mul_f32 v42, v22, v42
        v_mul_f32 v43, v23, v43
        v_cvt_pk_bf16_f32 v42, v42, v43
        v_lshlrev_b32 v43, 16, v42
        v_and_b32 v42, 0xffff0000, v42
        v_add_f32 v42, v42, v43
        v_cvt_pk_bf16_f32 v42, v42, v42
        s_mov_b32 exec_lo, 0x00ff00ff
        s_mov_b32 exec_hi, 0
        buffer_store_short v42, v21, s[40:43], s56 offen """ + c['outf'])
        Ls = a.newlabel("L_noep")
        a(f"s_cmp_lg_u32 s48, 0\ns_cbranch_scc1 {Ls}\ns_mov_b64 exec, 1\nv_mov_b32 v44, s35\nv_mov_b32 v45, 0")
        a(f"buffer_store_dword v44, v45, s[36:39], 0 offen {c['outf']}\n{Ls}:\ns_mov_b64 exec, -1")
        self.stamp(7)

    def h_final8(self, LX):
        a = self.a; c = self.c; FL = 40960
        Lg = a.newlabel("L_nogate")
        a(f"""s_cmp_ge_u32 s2, 36
        s_cbranch_scc1 {Lg if c['hT'] or c['dynT'] else LX}
        s_cmp_ge_u32 s2, 18
        s_cselect_b32 s49, 1, 0
        s_mul_i32 s52, s49, 18
        s_sub_u32 s50, s2, s52
        s_mul_i32 s76, s49, 1152
        v_lshrrev_b32 v24, 3, v0
        v_mul_u32_u24 v163, 9216, v24
        v_and_b32 v24, 7, v0
        v_lshl_add_u32 v163, v24, 4, v163
        s_mul_i32 s52, s49, 4608
        s_lshl_b32 s54, s50, 8
        s_add_u32 s52, s52, s54
        s_mul_i32 s54, s3, 73728
        s_add_u32 s52, s52, s54
        s_add_u32 s77, s52, {PO}
        v_lshlrev_b32 v20, 2, v0
        s_lshl_b32 s52, s3, 8
        s_add_u32 s52, s52, {FL}
        v_add_u32 v164, s52, v20
        s_cmp_lg_u32 s3, 0
        s_cbranch_scc1 {Lg}
        s_add_u32 s54, s4, s76
        s_addc_u32 s55, s5, 0""")
        self.srd(40, "s54", "s55", 1152); self.srd(44, "s26", "s27", 1152)
        for k in range(5):
            a(f"buffer_load_dword v{10+k}, v20, s[40:43], 0 offen offset:{256*k}\nbuffer_load_dword v{15+k}, v20, s[44:47], 0 offen offset:{256*k}")
        a("""v_lshlrev_b32 v162, 2, v24
        v_bfe_u32 v24, v0, 4, 1
        v_lshl_add_u32 v162, v24, 1, v162
        v_lshrrev_b32 v24, 5, v0
        v_lshl_add_u32 v162, v24, 5, v162
        s_lshl_b32 s54, s50, 6
        s_add_u32 s76, s76, s54
        v_mov_b32 v22, 0""")
        a.wait_vm()
        for k in range(5):
            a(f"""v_lshlrev_b32 v24, 16, v{10+k}
            v_and_b32 v25, 0xffff0000, v{10+k}
            v_lshlrev_b32 v26, 16, v{15+k}
            v_and_b32 v27, 0xffff0000, v{15+k}
            v_mul_f32 v24, v24, v26
            v_mul_f32 v25, v25, v27
            v_cvt_pk_bf16_f32 v24, v24, v25
            v_lshlrev_b32 v25, 16, v24
            v_and_b32 v24, 0xffff0000, v24
            v_add_f32 v22, v22, v25
            v_add_f32 v22, v22, v24""")
        self.red8([22], "v_add_f32")
        a("v_add_f32_dpp v22, v22, v22 row_ror:8 row_mask:0xf bank_mask:0xf")
        self.redrows(22, 24, "v_add_f32")
        a(f"""v_cvt_pk_bf16_f32 v22, v22, v22
        v_and_b32 v22, 0xffff0000, v22
        v_mul_f32 v22, {LOG2E}, v22
        v_exp_f32 v22, -v22
        v_add_f32 v22, 1.0, v22
        v_rcp_f32 v22, v22
        v_cvt_pk_bf16_f32 v22, v22, v22
        v_and_b32 v160, 0xffff0000, v22
        v_sub_f32 v23, 1.0, v160
        v_cvt_pk_bf16_f32 v23, v23, v23
        v_and_b32 v161, 0xffff0000, v23
        {Lg}:""")
        if c['hT']:
            if c['htrig']:
                a(f"s_lshl_b32 s52, s64, 12\ns_add_u32 s52, s52, {REC + 12}\nv_and_b32 v28, 1, v0\nv_lshlrev_b32 v28, 17, v28\nv_add_u32 v28, s52, v28")
                self.poll_flags(28, 9, c['fsleep'])
            self.h_tw()
            self.proj(True)
            a(f"s_cmp_ge_u32 s2, 36\ns_cbranch_scc1 {LX}")
        if c['dynT']:
            a(f"s_mov_b32 s48, s2\ns_mov_b32 s59, 1\ns_branch {self.LT if c['dynH'] else self.LT2}\n{self.LH2}:\ns_cmp_ge_u32 s2, 36\ns_cbranch_scc1 {LX}")
            self.reset()
        self.srd(40, "s28", "s29", 2304)
        if c['outt']:
            L = a.newlabel("L_not")
            a(f"s_cmp_lg_u32 s3, 0\ns_cbranch_scc1 {L}\nbuffer_load_ushort v29, v162, s[40:43], s76 offen {c['outt'] if c['outt'] != 1 else ''}\n{L}:")
        def g(): a("buffer_load_dwordx4 v[64:67], v163, s[36:39], s77 offen sc1\nbuffer_load_dwordx4 v[68:71], v163, s[36:39], s77 offen offset:128 sc1")
        if c.get('f8t') is not None and not c['hT'] and not (c['dynT'] and not c.get('dynF')):
            L = a.newlabel("L_f8t")
            a(f"s_cmp_lg_u32 s3, {c['f8t']}\ns_cbranch_scc1 {L}")
            self.poll_granules(g, [65, 67, 69, 71], 7, sleep=c['fsleep'])
            a(f"{L}:\ns_barrier")
        self.poll_granules(g, [65, 67, 69, 71], 8, sleep=c['f8'] - 1)
        a("""v_permlane32_swap_b32 v64, v68
        v_permlane32_swap_b32 v66, v70
        v_add_f32 v64, v64, v68
        v_add_f32 v66, v66, v70
        v_permlane16_swap_b32 v64, v66
        v_add_f32 v64, v64, v66
        v_add_f32_dpp v64, v64, v64 row_ror:8 row_mask:0xf bank_mask:0xf
        ds_write_b32 v164, v64""")
        a.wait_lg(); a(f"s_barrier\ns_cmp_lg_u32 s3, 0\ns_cbranch_scc1 {LX}")
        for n in range(8): a(f"ds_read_b32 v{32+n}, v164 offset:{256*n}")
        a.wait_lg()
        a("""v_add_f32 v32, v32, v33
        v_add_f32 v34, v34, v35
        v_add_f32 v36, v36, v37
        v_add_f32 v38, v38, v39
        v_add_f32 v32, v32, v34
        v_add_f32 v36, v36, v38
        v_cvt_pk_bf16_f32 v42, v32, v36
        v_and_b32 v43, 0xffff0000, v42
        v_lshlrev_b32 v42, 16, v42
        v_mul_f32 v42, v160, v42
        v_mul_f32 v43, v161, v43
        v_cvt_pk_bf16_f32 v42, v42, v43
        v_lshlrev_b32 v43, 16, v42
        v_and_b32 v42, 0xffff0000, v42
        v_add_f32 v42, v42, v43
        v_cvt_pk_bf16_f32 v42, v42, v42
        s_mov_b32 exec_lo, 0x00ff00ff
        s_mov_b32 exec_hi, 0x00ff00ff
        buffer_store_short v42, v162, s[40:43], s76 offen """ + c['outf'])
        Ls = a.newlabel("L_noep")
        a(f"s_cmp_lg_u32 s2, 0\ns_cbranch_scc1 {Ls}\ns_mov_b64 exec, 1\nv_mov_b32 v44, s35\nv_mov_b32 v45, 0")
        a(f"buffer_store_dword v44, v45, s[36:39], 0 offen\n{Ls}:\ns_mov_b64 exec, -1")
        self.stamp(7)
        if c['stamps']: a("s_waitcnt vmcnt(0)"); self.stamp(3)

    def build(self):
        a = self.a
        hdr = open("gated_mix__gqa_block_cached__compressed_kv_cla__decode.s.ref").read().split("; Override launch")[0]
        a.raw(hdr.rstrip())
        a.raw("; @launch grid=(256,1,1) block=(512,1,1) lds=163840")
        a.raw(DESC)
        a.raw('.amdgcn_target "amdgcn-amd-amdhsa--gfx950"\n.text')
        LS1, LS2, LH, LM, LF, LE = (a.newlabel(x) for x in ("L_headq", "L_headabs", "L_latent", "L_merge", "L_fin", "L_end"))
        self.LF = LF; self.LT = a.newlabel("L_proj"); self.LT2 = a.newlabel("L_proj"); self.LH2 = a.newlabel("L_hfin")
        self.entry(LS1, LS2, LH, LE)
        a(f"{LH}:"); self.h_front(); self.h_attn(); self.h_uv(); (self.h_final8 if self.c['f8'] else self.h_final)(LF); a(f"s_branch {LF}")
        a(f"{LS2}:"); self.head_s2(); a(f"s_branch {LM}")
        a(f"{LS1}:"); self.head_s1()
        a(f"{LM}:"); self.a_static(); self.a_pool(); self.a_epilogue(); (self.proj(False) if self.c['hT'] else self.a_proj())
        if self.c['dynT']: a(f"s_cmp_eq_u32 s59, 1\ns_cbranch_scc1 {self.LH2}")
        a(f"{LF}:"); self.stamp_flush()
        a(f"{LE}:\ns_endpgm")
        a.raw(f""".section .rodata,"a"
.p2align 6
.amdhsa_kernel {KN}
  .amdhsa_next_free_vgpr 256
  .amdhsa_next_free_sgpr 102
  .amdhsa_accum_offset 256
  .amdhsa_group_segment_fixed_size 0
  .amdhsa_kernarg_size 120
  .amdhsa_user_sgpr_count 2
  .amdhsa_user_sgpr_kernarg_segment_ptr 1
  .amdhsa_system_sgpr_workgroup_id_x 1
.end_amdhsa_kernel""")
        return a.text()

def gen(**kw): return G(**kw).build()
if __name__ == "__main__":
    cfg = json.loads(sys.argv[2]) if len(sys.argv) > 2 else {}
    open(sys.argv[1], "w").write(gen(**cfg))
```
